```python
import torch

def _softmax(x, axis=-1):
    return torch.softmax(x, dim=axis)
def _gelu(x):
    return torch.nn.functional.gelu(x, approximate="tanh")
def _silu(x):
    return torch.nn.functional.silu(x)
def _sigmoid(x):
    return torch.sigmoid(x)
def _layernorm(x, axis=-1, eps=1e-5):
    m = x.mean(dim=axis, keepdim=True)
    v = x.var(dim=axis, keepdim=True, unbiased=False)
    return (x - m) / torch.sqrt(v + eps)
def _scatter_add(tgt, idx, src, axis=0):
    return tgt.clone().index_add_(axis, idx, src)
def _segment_sum(src, seg, n):
    out = torch.zeros((n,) + src.shape[1:], dtype=src.dtype)
    return out.index_add_(0, seg, src)
def _pad(x, pw):
    flat = tuple(v for pair in reversed(pw) for v in pair)
    return torch.nn.functional.pad(x, flat)

kernel_name = 'sequential_preLN__spectral_gfnet__dense_activation_silu__prompt'

def setup_inputs():

    _w = (lambda a: (lambda t: t.to(torch.bfloat16) if t.is_floating_point() else t)(torch.as_tensor(a)))
    def _A_setup():
        B, S, D = 1, 2048, 512
        Df = D // 2 + 1
        return {
            "x": _w((lambda *s: torch.randn(*s, dtype=torch.bfloat16) * 0.05)(B, S, D)),
            "w_r": _w((lambda *s: torch.randn(*s, dtype=torch.bfloat16) * 0.4)(S, Df) * 0.02),
            "w_i": _w((lambda *s: torch.randn(*s, dtype=torch.bfloat16) * 0.4)(S, Df) * 0.02),
        }
    _A_in = _A_setup()

    def _B_setup():
        B, S, D, F = 1, 2048, 512, 1376
        return {
            "x": _w((lambda *s: torch.randn(*s, dtype=torch.bfloat16) * 0.05)(B, S, D)),
            "w1": _w((lambda *s: torch.randn(*s, dtype=torch.bfloat16) * 0.8)(D, F) * (D ** -0.5)),
            "w2": _w((lambda *s: torch.randn(*s, dtype=torch.bfloat16) * 0.1)(F, D) * (F ** -0.5)),
        }
    _B_in = _B_setup()

    return {
        "A_x": _A_in["x"],
        "A_w_r": _A_in["w_r"],
        "A_w_i": _A_in["w_i"],
        "B_x": _B_in["x"],
        "B_w1": _B_in["w1"],
        "B_w2": _B_in["w2"],
    }

def reference(A_x, A_w_r, A_w_i, B_x, B_w1, B_w2):
    def _A_ref(x, w_r, w_i):
        B, S, D = x.shape
        X = (lambda x, axes=(-2,-1): torch.fft.rfft2(x.float(), dim=axes))(x, axes=(-2, -1))
        W = w_r + 1j * w_i
        X = X * W
        y = (lambda x, s, axes=(-2,-1): torch.fft.irfft2(x, s=s, dim=axes).to(torch.bfloat16))(X, (S, D), axes=(-2, -1))
        return y

    def _B_ref(x, w1, w2):
        h = torch.einsum("bsd,df->bsf", x, w1)
        h = _silu(h)
        out = torch.einsum("bsf,fd->bsd", h, w2)
        return out

    x = A_x
    h = x + _A_ref(_layernorm(x, axis=-1), A_w_r, A_w_i)
    h2 = h + _B_ref(_layernorm(h, axis=-1), B_w1, B_w2)
    return h2
```

```python
import re

def R(n, cnt=1):
    p, b = ("v", n) if n < 256 else ("a", n - 256)
    assert 0 <= n and n + cnt <= 512 and (n >= 256 or n + cnt <= 256), (n, cnt)
    if cnt > 1: assert n % 2 == 0, ("unaligned tuple", n, cnt)
    return f"{p}{b}" if cnt == 1 else f"{p}[{b}:{b + cnt - 1}]"
def S(n, cnt=1):
    return f"s{n}" if cnt == 1 else f"s[{n}:{n + cnt - 1}]"

_reg = re.compile(r"^-?\|?(?:abs\()?([vas])(?:(\d+)|\[(\d+):(\d+)\])\)?\|?$")
def regs_of(op):
    op = op.strip()
    if op == "vcc": return {("s", 106), ("s", 107)}
    if op == "exec": return {("s", 126), ("s", 127)}
    if op == "m0": return {("s", 124)}
    m = _reg.match(op)
    if not m: return set()
    k = m.group(1)
    lo, hi = (int(m.group(2)),) * 2 if m.group(2) is not None else (int(m.group(3)), int(m.group(4)))
    if k == "s": return {("s", i) for i in range(lo, hi + 1)}
    off = 256 if k == "a" else 0
    return {("v", i + off) for i in range(lo, hi + 1)}

TRANS = ("v_exp_", "v_log_", "v_rcp_", "v_rsq_", "v_sqrt_", "v_sin_", "v_cos_")
class Ins:
    def __init__(self, text):
        self.text = text
        t = text.split(";")[0].strip()
        self.label = t[:-1] if t.endswith(":") else None
        self.raw = t.startswith(".") and self.label is None
        self.rd = set(); self.wr = set()
        self.kind = None; self.mn = ""; self.target = None
        self.passes = 0; self.A = self.B = self.C = self.D = set()
        self.dpp = False; self.data = set(); self.wide = False; self.dma = False; self.nop = 0
        if self.label or self.raw or not t: return
        sp = t.split(None, 1)
        mn = self.mn = sp[0]
        rest = sp[1] if len(sp) > 1 else ""
        parts = [p.strip() for p in rest.split(",")] if rest else []
        ops = []; mods = ""
        for i, p in enumerate(parts):
            q = p.split(None, 1)
            ops.append(q[0])
            if len(q) > 1:
                mods = q[1] + "," + ",".join(parts[i + 1:]); break
        self.ops = ops; self.mods = mods
        rs = [regs_of(o) for o in ops]
        U = lambda l: set().union(*l) if l else set()
        if mn.startswith("v_mfma"):
            self.kind = "mfma"
            self.passes = 8 if "32x32" in mn else 4
            self.D, self.A, self.B, self.C = rs[0], rs[1], rs[2], rs[3]
            self.wr = set(self.D); self.rd = self.A | self.B | self.C
        elif mn.startswith("v_"):
            self.kind = "valu"
            self.dpp = "_dpp" in mn or "row_" in mods or "quad_perm" in mods
            if "swap" in mn:
                self.wr = rs[0] | rs[1]; self.rd = rs[0] | rs[1]
            elif mn == "v_nop": pass
            else:
                self.wr = set(rs[0]); self.rd = U(rs[1:])
                if mn.startswith(("v_add_co", "v_sub_co", "v_addc_co", "v_subb_co")):
                    self.wr |= rs[1]; self.rd = U(rs[2:])
                if "fmac" in mn or "dot2c" in mn or self.dpp or mn.startswith("v_writelane"): self.rd |= rs[0]
        elif mn.startswith("ds_"):
            self.kind = "ds"
            if mn.startswith("ds_read"): self.wr = set(rs[0]); self.rd = U(rs[1:])
            else: self.rd = U(rs); self.data = U(rs[1:])
        elif mn.startswith(("buffer_", "global_")):
            self.kind = "vmem"
            words = mods.replace(",", " ").split()
            if "lds" in words:
                self.dma = True; self.rd = U(rs) | {("s", 124)}
            elif "_load" in mn:
                self.wr = set(rs[0]); self.rd = U(rs[1:])
                if "d16" in mn: self.rd |= rs[0]
            else:
                self.rd = U(rs)
                self.data = rs[0] if mn.startswith("buffer_") and rs else (rs[1] if len(rs) > 1 else set())
                self.wide = "x4" in mn or "x3" in mn
        elif mn.startswith("s_"):
            self.kind = "salu"
            if mn == "s_nop": self.nop = int(ops[0])
            elif mn.startswith(("s_cbranch", "s_branch")): self.target = ops[0]; self.kind = "branch"
            elif mn.startswith(("s_waitcnt", "s_barrier", "s_endpgm", "s_sleep", "s_setprio")): pass
            elif mn.startswith(("s_cmp", "s_bitcmp")): self.rd = U(rs)
            elif mn.startswith(("s_load", "s_memtime", "s_memrealtime")):
                self.kind = "smem"; self.wr = set(rs[0]); self.rd = U(rs[1:])
            else:
                self.wr = set(rs[0]); self.rd = U(rs[1:])
                if "saveexec" in mn: self.wr |= regs_of("exec")
        else:
            raise ValueError("unknown instruction: " + text)
        self.trans = mn.startswith(TRANS)
        self.dl = mn.startswith("v_dot")
    def states(self): return self.nop + 1

def vset(s): return {r for r in s if r[0] == "v"}
def sset(s): return {r for r in s if r[0] == "s"}

def need(p, c):
    n = 0
    if p.kind == "valu":
        vw = vset(p.wr); sw = sset(p.wr)
        if c.kind == "mfma" and vw & c.rd: n = max(n, 3 if p.dl else 2)
        if c.kind == "valu":
            if p.trans and not c.trans and vw & c.rd: n = max(n, 1)
            if "permlane" in c.mn and vw & c.rd: n = max(n, 2)
            if c.dpp and vw & c.rd: n = max(n, 2)
            if c.mn.startswith(("v_readlane", "v_readfirstlane")) and vw & c.rd: n = max(n, 1)
            if sw & c.rd: n = max(n, 4 if c.mn.startswith(("v_readlane", "v_writelane")) else 2)
        if p.dl and c.kind in ("valu", "vmem", "ds") and vw & (c.rd | c.wr):
            if c.mn == p.mn:
                ab = regs_of(c.ops[1]) | regs_of(c.ops[2])
                if vw & ab: n = max(n, 3)
            else: n = max(n, 3)
        if c.kind == "vmem" and sw & c.rd: n = max(n, 5)
    elif p.kind == "mfma":
        big = p.passes == 8
        if c.kind == "mfma":
            if p.D & (c.A | c.B): n = max(n, 12 if big else 8)
            same = p.passes == c.passes
            if p.D & c.C and not (p.D == c.C and same): n = max(n, 10 if big else 6)
            if p.D & c.D and not (p.D == c.D and same): n = max(n, 10 if big else 6)
        elif c.kind in ("valu", "vmem", "ds"):
            if p.D & (c.rd | c.wr): n = max(n, 12 if big else 8)
            if p.C & c.wr: n = max(n, 7 if big else 3)
    elif p.kind == "vmem":
        if p.wide and p.data & c.wr: n = max(n, 2)
    elif p.kind == "salu":
        if ("s", 124) in p.wr and c.dma: n = max(n, 1)
    return n

class Asm:
    def __init__(self):
        self.ins = []
        self.vm = []
        self.lg = []
        self.tok = 0
        self.auto = True
        self.nlabel = 0
    def _push(self, i): self.ins.append(i)
    def _waitvm(self, pos):
        n = min(len(self.vm) - 1 - pos, 63)
        self._push(Ins(f"s_waitcnt vmcnt({n})"))
        self.vm = self.vm[len(self.vm) - n:] if n else []
    def _waitlg(self, pos):
        n = min(len(self.lg) - 1 - pos, 15)
        self._push(Ins(f"s_waitcnt lgkmcnt({n})"))
        self.lg = self.lg[len(self.lg) - n:] if n else []
    def __call__(self, text):
        tok = None
        for line in text.split("\n"):
            if line.strip(): tok = self.one(line.strip())
        return tok
    def one(self, text):
        i = Ins(text)
        if self.auto and i.kind:
            touch = vset(i.rd | i.wr)
            pos = max([k for k, (_, d) in enumerate(self.vm) if d & touch], default=-1)
            if pos >= 0: self._waitvm(pos)
            pos = max([k for k, (_, d) in enumerate(self.lg) if d & touch], default=-1)
            if pos >= 0: self._waitlg(pos)
        self._push(i)
        if not self.auto: return None
        if i.kind == "vmem":
            self.tok += 1; self.vm.append((self.tok, vset(i.wr))); return self.tok
        if i.kind == "ds":
            self.tok += 1; self.lg.append((self.tok, vset(i.wr))); return self.tok
        if i.mn == "s_waitcnt":
            m = re.search(r"vmcnt\((\d+)\)", text)
            if m:
                n = int(m.group(1)); self.vm = self.vm[max(0, len(self.vm) - n):] if n else []
            m = re.search(r"lgkmcnt\((\d+)\)", text)
            if m:
                n = int(m.group(1)); self.lg = self.lg[max(0, len(self.lg) - n):] if n else []
        return None
    def wait_vm(self, tok):
        for k, (t, _) in enumerate(self.vm):
            if t == tok: self._waitvm(k); return
    def wait_lg(self, tok):
        for k, (t, _) in enumerate(self.lg):
            if t == tok: self._waitlg(k); return
    def wait_vm_all(self):
        if self.vm: self._waitvm(len(self.vm) - 1)
    def wait_lg_all(self):
        if self.lg: self._waitlg(len(self.lg) - 1)
    def barrier(self):
        self.wait_lg_all(); self("s_barrier")
    def label(self, base):
        self.nlabel += 1
        return f"L_{base}_{self.nlabel}"
    def finalize(self):
        ins = self.ins
        self.nops_added = 0
        changed = True
        while changed:
            changed = False
            lab = {x.label: k for k, x in enumerate(ins) if x.label}
            preds = {}
            for k, x in enumerate(ins):
                if x.kind == "branch": preds.setdefault(lab[x.target], []).append(k)
            def worst(k):
                c = ins[k]; best = 0
                stack = [(k - 1, 0)]; seen = set()
                while stack:
                    j, dist = stack.pop()
                    while j >= 0 and dist < 20:
                        if (j, dist) in seen: break
                        seen.add((j, dist))
                        p = ins[j]
                        if p.label:
                            for b in preds.get(j, []): stack.append((b, dist))
                            q = j - 1
                            while q >= 0 and not ins[q].kind and not ins[q].label: q -= 1
                            if q >= 0 and ins[q].mn in ("s_branch", "s_endpgm"): break
                        elif p.kind:
                            best = max(best, need(p, c) - dist)
                            dist += p.states()
                        j -= 1
                return best
            k = 0
            while k < len(ins):
                if ins[k].kind in ("valu", "mfma", "vmem", "ds"):
                    n = worst(k)
                    if n > 0:
                        ins.insert(k, Ins(f"s_nop {n - 1}"))
                        self.nops_added += n
                        changed = True
                        lab = {x.label: kk for kk, x in enumerate(ins) if x.label}
                        preds = {}
                        for kk, x in enumerate(ins):
                            if x.kind == "branch": preds.setdefault(lab[x.target], []).append(kk)
                        k += 1
                k += 1
        return "\n".join((x.text if x.label or x.raw else "    " + x.text) for x in ins) + "\n"

class Alloc:
    def __init__(self, lo, hi):
        self.lo, self.hi = lo, hi
        self.used = {}
        self.high = lo
    def __call__(self, n=1, name="", align=None):
        al = align or (2 if n > 1 else 1)
        b = (self.lo + al - 1) // al * al
        while b + n <= self.hi:
            if all((b + i) not in self.used for i in range(n)):
                for i in range(n): self.used[b + i] = (b, n, name)
                self.high = max(self.high, b + n)
                return b
            b += al
        raise RuntimeError(f"out of registers allocating {n} ({name}); used={sorted(set(self.used.values()))}")
    def free(self, *bases):
        for b in bases:
            _, n, _ = self.used[b]
            assert self.used[b][0] == b
            for i in range(n): del self.used[b + i]

def merge(main, fill, lead=0):
    out = []
    nm = len(main) - lead
    k = 0
    for i, m in enumerate(main):
        out.append(m)
        if i >= lead:
            want = (i - lead + 1) * len(fill) // max(nm, 1)
            while k < want: out.append(fill[k]); k += 1
    out += fill[k:]
    return out
```

```python
import sys, struct, math
from asmlib import *

KN = "sequential_preLN__spectral_gfnet__dense_activation_silu__prompt_kernel"
def fl(x): return "0x%08x" % struct.unpack("<I", struct.pack("<f", x))[0]

Z1 = 0x0; Z2 = 0x200000; HN = 0x400000; HH = 0x600000; HB = 0x800000; EPO = 0xE00000; STAMP = 0xE80000
WS_SIZE = 0xF00000
HCL = 4 * 44 * 1024
OOB = 0x40000000
HNL = 0; HROW = 1040; HTILE = 16 * HROW
EA = 2 * HTILE; EB = EA + 10752
STG = 4 * HTILE; STGW = 24320
RED = (0, HTILE)
LDS_SIZE = 163840
sX, sWR, sWI, sW1, sW2, sO, sWS = 8, 12, 16, 20, 24, 28, 32
sW, sS2, sK1, sC, sMem, sRot, sT0, sT1, sT2, sOnes, sMask, sEp, sCnt, sStg, sW1b, sW2b, sHb = range(36, 53)
sOff = 56
sKap = 68
sStamp = 80
SPIN = 4000

class Gen:
    def __init__(self, stamps=False, sched=None):
        self.a = Asm(); self.va = Alloc(1, 144); self.vb = Alloc(144, 252); self.stamps = stamps; self.nst = 0; self.stnames = []
        self.tail = []
        self.sched = sched or {}
        self.W2 = lambda i, t: 256 + (i * 4 + t) * 4
        def W1(ks, T):
            f = ks * 3 + T
            return 144 + f * 4 if f < 28 else 256 + 176 + (f - 28) * 4
        self.W1 = W1
        self.slots = {}; self.stg_used = []; self.stg_pend = []
    def stamp(self, name):
        if self.stamps:
            self.a(f"s_memrealtime {S(sStamp + 2 * self.nst, 2)}"); self.nst += 1; self.stnames.append(name)
    def sincos(self, c, s, ang):
        self.a(f"v_cos_f32 {R(c)}, {R(ang)}"); self.a(f"v_sin_f32 {R(s)}, {R(ang)}")
    def poll(self, name, loads, check):
        a = self.a
        Lr = a.label(name + "_retry"); Lo = a.label(name + "_ok")
        check()
        a(f"s_cbranch_vccnz {Lr}")
        a(Lo + ":")
        def tail():
            a.auto = False
            a(Lr + ":")
            a(f"s_mov_b32 {S(sCnt)}, 0")
            Ll = a.label(name + "_loop")
            a(Ll + ":")
            a("s_sleep 2")
            for l in loads: a(l)
            a("s_waitcnt vmcnt(0)")
            check()
            a(f"s_cbranch_vccz {Lo}")
            a(f"s_add_u32 {S(sCnt)}, {S(sCnt)}, 1")
            a(f"s_cmp_lt_u32 {S(sCnt)}, {SPIN}")
            a(f"s_cbranch_scc1 {Ll}")
            a(f"s_branch {Lo}")
        self.tail.append(tail)
    def check_sentinel(self, regs):
        a = self.a; t = self.vT
        def chk():
            r = list(regs)
            if len(r) % 2 == 0:
                a(f"v_max_u32 {R(t)}, {R(r[0])}, {R(r[1])}"); r = r[2:]
            else:
                a(f"v_max3_u32 {R(t)}, {R(r[0])}, {R(r[1])}, {R(r[2])}"); r = r[3:]
            while r:
                a(f"v_max3_u32 {R(t)}, {R(t)}, {R(r[0])}, {R(r[1])}"); r = r[2:]
            a(f"v_cmp_eq_u32 vcc, -1, {R(t)}")
        return chk
    def cmul(self, ore, oim, re, im, c, s, n, conj, bc=False, addend=None):
        a = self.a
        for k in range(0, n, 2):
            if bc:
                cc = R(c, 2); ss = R(c, 2); oc = " op_sel:[0,0%s] op_sel_hi:[1,0%s]"; os_ = " op_sel:[0,1,0] op_sel_hi:[1,1,1]"
            else:
                cc = R(c + k, 2); ss = R(s + k, 2); oc = None; os_ = ""
            for o, x in ((ore, re), (oim, im)):
                if addend is None:
                    a(f"v_pk_mul_f32 {R(o + k, 2)}, {R(x + k, 2)}, {cc}" + (oc % ("", "") if bc else ""))
                else:
                    assert not bc
                    a(f"v_pk_fma_f32 {R(o + k, 2)}, {R(x + k, 2)}, {cc}, {R(addend, 2)} op_sel_hi:[1,1,0] neg_lo:[0,0,1] neg_hi:[0,0,1]")
        for k in range(0, n, 2):
            ss = R(c, 2) if bc else R(s + k, 2)
            os_ = " op_sel:[0,1,0] op_sel_hi:[1,1,1]" if bc else ""
            neg = " neg_lo:[0,1,0] neg_hi:[0,1,0]"
            a(f"v_pk_fma_f32 {R(ore + k, 2)}, {R(im + k, 2)}, {ss}, {R(ore + k, 2)}" + os_ + (neg if conj else ""))
            a(f"v_pk_fma_f32 {R(oim + k, 2)}, {R(re + k, 2)}, {ss}, {R(oim + k, 2)}" + os_ + ("" if conj else neg))
    def stats(self, X, st, scale, mscale):
        a = self.a
        S0, S1, Q0, Q1 = st, st + 1, st + 2, st + 3
        for r in range(4):
            a(f"v_dot2c_f32_bf16 {R(S0)}, {S(sOnes)}, {R(X + r)}")
            a(f"v_dot2c_f32_bf16 {R(Q0)}, {R(X + r)}, {R(X + r)}")
            a(f"v_dot2c_f32_bf16 {R(S1)}, {S(sOnes)}, {R(X + 4 + r)}")
            a(f"v_dot2c_f32_bf16 {R(Q1)}, {R(X + 4 + r)}, {R(X + 4 + r)}")
        a(f"v_permlane32_swap_b32 {R(S0)}, {R(S1)}")
        a(f"v_permlane32_swap_b32 {R(Q0)}, {R(Q1)}")
        a(f"v_add_f32 {R(S0)}, {R(S0)}, {R(S1)}")
        a(f"v_add_f32 {R(Q0)}, {R(Q0)}, {R(Q1)}")
        a(f"v_permlane16_swap_b32 {R(S0)}, {R(Q0)}")
        a(f"v_add_f32 {R(S0)}, {R(S0)}, {R(Q0)}")
        for sh in (8, 4, 2, 1):
            a(f"v_add_f32_dpp {R(S0)}, {R(S0)}, {R(S0)} row_ror:{sh} row_mask:0xf bank_mask:0xf")
        a(f"v_mul_f32 {R(S0)}, {fl(1 / 512)}, {R(S0)}")
        a(f"v_mov_b32 {R(Q0)}, {R(S0)}")
        a(f"v_permlane16_swap_b32 {R(S0)}, {R(Q0)}")
        a(f"v_fma_f32 {R(Q0)}, -{R(S0)}, {R(S0)}, {R(Q0)}")
        a(f"v_max_f32 {R(Q0)}, 0, {R(Q0)}")
        a(f"v_add_f32 {R(Q0)}, {fl(1e-5)}, {R(Q0)}")
        a(f"v_rsq_f32 {R(Q0)}, {R(Q0)}")
        if mscale is not None: a(f"v_mul_f32 {R(S0)}, {R(mscale)}, {R(S0)}")
        if scale != 1.0: a(f"v_mul_f32 {R(Q0)}, {fl(scale)}, {R(Q0)}")
        a(f"v_mul_f32 {R(st + 4)}, {R(S0)}, {R(Q0)}")
        a(f"v_mov_b32 {R(st)}, {R(Q0)}")
        a(f"v_mov_b32 {R(st + 6)}, {R(st + 4)}")
        a(f"v_permlane32_swap_b32 {R(st)}, {R(st + 2)}")
        a(f"v_permlane32_swap_b32 {R(st + 4)}, {R(st + 6)}")
    def stg_alloc(self, size):
        off = 0
        for (o, s_) in sorted(self.stg_used):
            if off + size <= o: break
            off = o + s_
        assert off + size <= STGW, "staging overflow"
        self.stg_used.append((off, size))
        keep = []
        for (o, s_, tok) in self.stg_pend:
            if o < off + size and off < o + s_: self.a.wait_lg(tok)
            else: keep.append((o, s_, tok))
        self.stg_pend = keep
        return off
    def dma(self, item):
        a = self.a; kind, i = item
        size = 3072 if kind == 1 else 4096
        off = self.stg_alloc(size)
        a(f"s_add_u32 m0, {S(sStg)}, {off}")
        if kind == 1:
            a(f"s_xor_b32 {S(sT0)}, {S(sRot)}, {i}")
            a(f"s_mul_i32 {S(sT0)}, {S(sT0)}, {8 * 2752}")
            for p in range(3):
                tok = a(f"buffer_load_dwordx4 {R(self.vW1 + p)}, {S(sW1, 4)}, {S(sT0)} offen offset:{p * 1024} lds")
        else:
            a(f"s_lshl_b32 {S(sT0)}, {S(sKap + i)}, 5")
            for p in range(4):
                if p: a(f"s_add_u32 {S(sT0)}, {S(sT0)}, 7168")
                tok = a(f"buffer_load_dwordx4 {R(self.vW2)}, {S(sW2, 4)}, {S(sT0)} offen offset:{p * 1024} lds")
        self.slots[item] = (off, size, tok)
    def drain_list(self, item):
        a = self.a; kind, i = item
        off, size, tok = self.slots[item]
        out = [lambda: a.wait_vm(tok)]
        rd = []
        if kind == 1:
            for T in range(3):
                assert not any((self.W1(i, T) + q) in self.vb.used for q in range(4)), "w1 registers still in use"
                for h in range(2):
                    rd.append(f"ds_read_b64_tr_b16 {R(self.W1(i, T) + 2 * h, 2)}, {R(self.vTr1)} offset:{off + h * 1536 + 32 * T}")
        else:
            for t in range(4):
                for h in range(2):
                    rd.append(f"ds_read_b64_tr_b16 {R(self.W2(i, t) + 2 * h, 2)}, {R(self.vTr2 + t)} offset:{off + h * 1024}")
        for s_ in rd[:-1]: out.append(lambda s_=s_: a(s_))
        def last():
            t = a(rd[-1]); self.stg_used.remove((off, size)); self.stg_pend.append((off, size, t))
        out.append(last)
        return out
    def drain(self, item):
        for f in self.drain_list(item): f()
    def point(self, name):
        for op, item in self.sched.get(name, []):
            (self.dma if op == "dma" else self.drain)(item)
    def prologue(self):
        a = self.a; va = self.va
        self.stamp("entry")
        a(f"s_cmp_ge_u32 s2, 256\ns_cbranch_scc1 L_end")
        for reg, off in ((sX, 0), (sWS, 64), (sWR, 8), (sWI, 16), (sW1, 32), (sW2, 40), (sO, 48)):
            a(f"s_load_dwordx2 {S(reg, 2)}, s[0:1], {off}")
        for reg, n in ((sX, 2097152), (sWS, WS_SIZE), (sWR, 2048 * 514), (sWI, 2048 * 514), (sW1, 512 * 2752), (sW2, 1376 * 1024), (sO, 2097152)):
            a(f"s_mov_b32 {S(reg + 2)}, {n}\ns_mov_b32 {S(reg + 3)}, 0x20000")
        self.vL = va(1, "lane"); self.vLi = va(1, "li"); self.vG = va(1, "g"); self.vT = va(1, "T")
        L, Li, G, T = self.vL, self.vLi, self.vG, self.vT
        a(f"v_lshrrev_b32 {R(T)}, 6, v0")
        a(f"v_and_b32 {R(L)}, 63, v0")
        a(f"v_readfirstlane_b32 {S(sW)}, {R(T)}")
        a(f"v_and_b32 {R(Li)}, 15, v0")
        a(f"v_bfe_u32 {R(G)}, v0, 4, 2")
        a(f"s_and_b32 {S(sK1)}, s2, 7\ns_lshr_b32 {S(sC)}, s2, 3")
        a(f"s_lshl_b32 {S(sS2)}, {S(sK1)}, 5\ns_or_b32 {S(sS2)}, {S(sS2)}, {S(sC)}")
        a(f"s_and_b32 {S(sMem)}, {S(sC)}, 7")
        self.X = va(8, "X"); ad = va(1, "ad")
        a(f"v_lshlrev_b32 {R(ad)}, 2, {R(Li)}")
        a(f"v_lshl_add_u32 {R(ad)}, {R(G)}, 8, {R(ad)}")
        a(f"s_lshl_b32 {S(sT0)}, {S(sW)}, 19\ns_lshl_b32 {S(sT1)}, {S(sS2)}, 10")
        a(f"s_add_u32 {S(sOff)}, {S(sT0)}, {S(sT1)}\ns_add_u32 {S(sOff + 1)}, {S(sOff)}, 0x40000")
        self.vZero = va(1, "zero"); self.vEp = va(1, "ep")
        a(f"v_mov_b32 {R(self.vZero)}, 0")
        a("s_waitcnt lgkmcnt(0)")
        self.stamp("karg")
        for rho in range(2):
            for r in range(4):
                a(f"buffer_load_dword {R(self.X + 4 * rho + r)}, {R(ad)}, {S(sX, 4)}, {S(sOff + rho)} offen offset:{64 * r}")
        a(f"s_mov_b32 {S(sT0)}, {EPO}")
        a(f"buffer_load_dword {R(self.vEp)}, {R(self.vZero)}, {S(sWS, 4)}, {S(sT0)} offen sc1")
        va.free(ad)
        self.vNat = va(1, "nat"); self.vL16 = va(1, "l16")
        a(f"v_lshlrev_b32 {R(self.vNat)}, 6, {R(Li)}")
        a(f"v_lshl_add_u32 {R(self.vNat)}, {R(G)}, 4, {R(self.vNat)}")
        a(f"v_lshlrev_b32 {R(self.vL16)}, 4, {R(L)}")
        self.vM1 = va(4, "m1")
        for i in range(4): a(f"v_mov_b32 {R(self.vM1 + i)}, -1")
        a(f"s_lshl_b32 {S(sT0)}, {S(sS2)}, 13\ns_lshl_b32 {S(sT1)}, {S(sW)}, 11\ns_add_u32 {S(sOff + 2)}, {S(sT0)}, {S(sT1)}")
        self.clear(Z2)
        a("s_getpc_b64 s[4:5]")
        a(f"s_and_b32 {S(sT0)}, {S(sC)}, 3\ns_lshl_b32 {S(sT0)}, {S(sT0)}, 2\ns_add_u32 {S(sT0)}, {S(sT0)}, {S(sW)}\ns_lshl_b32 {S(sT0)}, {S(sT0)}, 11")
        a(f"v_lshl_add_u32 {R(T)}, {R(Li)}, 7, {S(sT0)}")
        self.vPf = va(1, "pf")
        a(f"global_load_dword {R(self.vPf)}, {R(T)}, s[4:5]")
        a(f"s_mov_b32 {S(sOnes)}, 0x3f803f80\ns_mov_b32 {S(sMask)}, 0x00030003")
    def clear(self, base):
        a = self.a
        a(f"s_add_u32 {S(sT0)}, {S(sOff + 2)}, {base}")
        for i in range(2):
            self.tokclr = a(f"buffer_store_dwordx4 {R(self.vM1, 4)}, {R(self.vL16)}, {S(sWS, 4)}, {S(sT0)} offen offset:{1024 * i} sc1")
    def clear_H(self):
        a = self.a; T = self.vT
        a(f"s_lshl_b32 {S(sT0)}, {S(sS2)}, 2\ns_add_u32 {S(sT0)}, {S(sT0)}, {S(sW)}\ns_mul_i32 {S(sT0)}, {S(sT0)}, 5632\ns_add_u32 {S(sT0)}, {S(sT0)}, {HB}")
        for i in range(4):
            a(f"buffer_store_dwordx4 {R(self.vM1, 4)}, {R(self.vL16)}, {S(sWS, 4)}, {S(sT0)} offen offset:{1024 * i} sc1")
        a(f"s_add_u32 {S(sT0)}, {S(sT0)}, 4096")
        a(f"buffer_store_dwordx4 {R(self.vM1, 4)}, {R(self.vL16)}, {S(sWS, 4)}, {S(sT0)} offen sc1")
        a(f"v_cmp_gt_u32 vcc, 32, {R(self.vL)}\nv_mov_b32 {R(T)}, {OOB}")
        a(f"v_cndmask_b32 {R(T)}, {R(T)}, {R(self.vL16)}, vcc")
        a(f"buffer_store_dwordx4 {R(self.vM1, 4)}, {R(T)}, {S(sWS, 4)}, {S(sT0)} offen offset:1024 sc1")
    def w_gather(self):
        a = self.a; va = self.va; Li, G, T = self.vLi, self.vG, self.vT
        self.Wraw = self.vb(24, "Wraw")
        for i in range(24): a(f"v_mov_b32 {R(self.Wraw + i)}, 0")
        k = va(1, "k"); j = va(1, "j"); aP = va(1, "aP"); aQ = va(4, "aQ"); aR = va(1, "aR")
        self.vJ = j
        a(f"v_and_b32 {R(k)}, 3, {R(Li)}")
        a(f"v_lshlrev_b32 {R(k)}, 3, {R(k)}")
        a(f"v_lshl_add_u32 {R(k)}, {R(G)}, 9, {R(k)}")
        a(f"s_lshl_b32 {S(sT0)}, {S(sW)}, 5\ns_add_u32 {S(sT0)}, {S(sT0)}, {S(sK1)}")
        a(f"v_add_u32 {R(k)}, {S(sT0)}, {R(k)}")
        a(f"v_lshrrev_b32 {R(j)}, 2, {R(Li)}")
        a(f"s_lshl_b32 {S(sT0)}, {S(sC)}, 2")
        a(f"v_add_u32 {R(j)}, {S(sT0)}, {R(j)}")
        a(f"v_mul_u32_u24 {R(aR)}, 514, {R(k)}")
        a(f"v_cmp_eq_u32 vcc, 0, {R(j)}")
        a(f"v_mov_b32 {R(T)}, 256")
        a(f"v_cndmask_b32 {R(T)}, {R(j)}, {R(T)}, vcc")
        a(f"v_lshl_add_u32 {R(aP)}, {R(T)}, 1, {R(aR)}")
        a(f"v_add_u32 {R(aR)}, 256, {R(aR)}")
        a(f"v_mov_b32 {R(T)}, {OOB}")
        a(f"v_cndmask_b32 {R(aR)}, {R(T)}, {R(aR)}, vcc")
        a(f"v_sub_u32 {R(T)}, 256, {R(j)}")
        a(f"v_lshlrev_b32 {R(T)}, 1, {R(T)}")
        a(f"s_movk_i32 {S(sT0)}, 514")
        for r in range(4):
            a(f"v_sub_u32 {R(aQ + r)}, {2048 - 128 * r}, {R(k)}")
            a(f"v_and_b32 {R(aQ + r)}, 2047, {R(aQ + r)}")
            a(f"v_mad_u32_u24 {R(aQ + r)}, {R(aQ + r)}, {S(sT0)}, {R(T)}")
        for r in range(4):
            so = "0" if r == 0 else S(sT0)
            if r: a(f"s_mov_b32 {S(sT0)}, {128 * 514 * r}")
            W = self.Wraw
            a(f"buffer_load_short_d16_hi {R(W + r)}, {R(aP)}, {S(sWR, 4)}, {so} offen")
            a(f"buffer_load_short_d16_hi {R(W + 4 + r)}, {R(aP)}, {S(sWI, 4)}, {so} offen")
            a(f"buffer_load_short_d16_hi {R(W + 8 + r)}, {R(aQ + r)}, {S(sWR, 4)}, 0 offen")
            a(f"buffer_load_short_d16_hi {R(W + 12 + r)}, {R(aQ + r)}, {S(sWI, 4)}, 0 offen")
            a(f"buffer_load_short_d16_hi {R(W + 16 + r)}, {R(aR)}, {S(sWR, 4)}, {so} offen")
            a(f"buffer_load_short_d16_hi {R(W + 20 + r)}, {R(aR)}, {S(sWI, 4)}, {so} offen")
        va.free(k, aP, aQ, aR)
    def w_coefs(self):
        a = self.a; va = self.va; T = self.vT; j = self.vJ; W = self.Wraw
        sc = 2.0 ** -19
        c = va(1, "c"); s = va(1, "s"); al = va(1, "al"); be = va(1, "be"); al2 = va(1, "al2"); be2 = va(1, "be2")
        a(f"v_cvt_f32_u32 {R(T)}, {R(j)}")
        a(f"v_mul_f32 {R(T)}, {fl(1 / 512)}, {R(T)}")
        self.sincos(c, s, T)
        a(f"v_cmp_eq_u32 vcc, 0, {R(j)}")
        a(f"v_mul_f32 {R(c)}, {fl(sc / 2)}, {R(c)}")
        a(f"v_mul_f32 {R(s)}, {fl(sc / 2)}, {R(s)}")
        a(f"v_sub_f32 {R(al)}, {fl(sc / 2)}, {R(s)}")
        a(f"v_add_f32 {R(be)}, {fl(sc / 2)}, {R(s)}")
        a(f"v_cndmask_b32 {R(c)}, {R(c)}, {R(self.vZero)}, vcc")
        a(f"v_cndmask_b32 {R(al2)}, {R(al)}, {R(self.vZero)}, vcc")
        a(f"v_cndmask_b32 {R(be2)}, {R(be)}, {R(self.vZero)}, vcc")
        self.CF = self.vb(16, "CF")
        A1r, A1i, Br, Bi = self.CF, self.CF + 4, self.CF + 8, self.CF + 12
        Pr, Pi, Qr, Qi, Rr, Ri = (W + 4 * i for i in range(6))
        for r in range(4):
            a(f"v_mul_f32 {R(A1r + r)}, {R(al)}, {R(Pr + r)}")
            a(f"v_mul_f32 {R(A1i + r)}, {R(al)}, {R(Pi + r)}")
            a(f"v_add_f32 {R(Br + r)}, {R(Pi + r)}, {R(Qi + r)}")
            a(f"v_sub_f32 {R(Bi + r)}, {R(Pr + r)}, {R(Qr + r)}")
            a(f"v_mul_f32 {R(Rr + r)}, {fl(sc)}, {R(Rr + r)}")
            a(f"v_mul_f32 {R(Ri + r)}, {fl(sc)}, {R(Ri + r)}")
            a(f"v_fmac_f32 {R(A1r + r)}, {R(be)}, {R(Qr + r)}")
            a(f"v_fma_f32 {R(A1i + r)}, -{R(be)}, {R(Qi + r)}, {R(A1i + r)}")
            a(f"v_mul_f32 {R(Br + r)}, -{R(c)}, {R(Br + r)}")
            a(f"v_mul_f32 {R(Bi + r)}, {R(c)}, {R(Bi + r)}")
            a(f"v_fmac_f32 {R(Rr + r)}, {R(be2)}, {R(Pr + r)}")
            a(f"v_fmac_f32 {R(Ri + r)}, {R(be2)}, {R(Pi + r)}")
            a(f"v_fmac_f32 {R(Rr + r)}, {R(al2)}, {R(Qr + r)}")
            a(f"v_fma_f32 {R(Ri + r)}, -{R(al2)}, {R(Qi + r)}, {R(Ri + r)}")
        va.free(c, s, al, be, al2, be2, j)
    def tables_p1(self):
        a = self.a; va = self.va; Li, G, T = self.vLi, self.vG, self.vT
        self.M = va(8, "M"); self.M2 = va(8, "M2"); self.TW = va(8, "TW"); self.Gm = va(8, "G")
        p = va(1, "p"); c = va(1, "c"); s = va(1, "s"); u = va(1, "u")
        a(f"v_mul_u32_u24 {R(p)}, {R(Li)}, {R(G)}")
        a(f"v_lshlrev_b32 {R(p)}, 2, {R(p)}")
        for r in range(4):
            if r: a(f"v_add_u32 {R(p)}, {R(p)}, {R(Li)}")
            a(f"v_and_b32 {R(T)}, 15, {R(p)}")
            a(f"v_cvt_f32_u32 {R(u)}, {R(p)}")
            a(f"v_cvt_f32_u32 {R(T)}, {R(T)}")
            a(f"v_mul_f32 {R(u)}, {fl(1 / 256)}, {R(u)}")
            a(f"v_mul_f32 {R(T)}, {fl(1 / 16)}, {R(T)}")
            self.sincos(c, s, T)
            self.sincos(self.TW + r, self.TW + 4 + r, u)
            a(f"v_cvt_pk_bf16_f32 {R(self.M + r)}, {R(c)}, {R(s)}")
            a(f"v_cvt_pk_bf16_f32 {R(self.M + 4 + r)}, -{R(s)}, {R(c)}")
            a(f"v_cvt_pk_f16_f32 {R(self.M2 + r)}, {R(c)}, {R(s)}")
            a(f"v_cvt_pk_f16_f32 {R(self.M2 + 4 + r)}, -{R(s)}, {R(c)}")
        k1 = va(1, "k1"); msk = va(1, "msk"); sg = va(1, "sg")
        a(f"v_lshrrev_b32 {R(k1)}, 1, {R(Li)}")
        a(f"v_and_b32 {R(p)}, 1, {R(G)}")
        a(f"v_lshlrev_b32 {R(p)}, 10, {R(p)}")
        a(f"v_add_u32 {R(p)}, {S(sS2)}, {R(p)}")
        a(f"v_mul_u32_u24 {R(p)}, {R(p)}, {R(k1)}")
        a(f"v_lshlrev_b32 {R(k1)}, 8, {R(k1)}")
        a(f"v_lshrrev_b32 {R(msk)}, 1, {R(G)}")
        a(f"v_xor_b32 {R(msk)}, {R(msk)}, {R(Li)}")
        a(f"v_and_b32 {R(msk)}, 1, {R(msk)}")
        a(f"v_add_u32 {R(msk)}, -1, {R(msk)}")
        a(f"v_lshlrev_b32 {R(sg)}, 31, {R(Li)}")
        for r in range(4):
            if r: a(f"v_add_u32 {R(p)}, {R(p)}, {R(k1)}")
            a(f"v_and_b32 {R(T)}, 2047, {R(p)}")
            a(f"v_cvt_f32_u32 {R(T)}, {R(T)}")
            a(f"v_mul_f32 {R(T)}, {fl(1 / 2048)}, {R(T)}")
            self.sincos(c, s, T)
            a(f"v_cvt_pk_f16_f32 {R(self.Gm + r)}, {R(c)}, {R(s)}")
            a(f"v_cvt_pk_f16_f32 {R(self.Gm + 4 + r)}, -{R(s)}, {R(c)}")
            for q in (self.Gm + r, self.Gm + 4 + r):
                a(f"v_bitop3_b32 {R(q)}, {R(q)}, {R(sg)}, {R(msk)} bitop3:0x28")
        va.free(k1, msk, sg, p, c, s, u)
        self.aE1w = va(1, "aE1w"); self.aE1r = va(2, "aE1r"); self.aZ1 = va(1, "aZ1"); self.v16 = va(1, "m16")
        a(f"s_lshr_b32 {S(sT0)}, {S(sW)}, 1\ns_lshl_b32 {S(sT0)}, {S(sT0)}, 12\ns_and_b32 {S(sT1)}, {S(sW)}, 1\ns_lshl_b32 {S(sT1)}, {S(sT1)}, 3")
        a(f"s_add_u32 {S(sT0)}, {S(sT0)}, {S(sT1)}\ns_add_u32 {S(sT0)}, {S(sT0)}, {EA}")
        a(f"v_lshl_add_u32 {R(self.aE1w)}, {R(Li)}, 4, {S(sT0)}")
        a(f"v_lshl_add_u32 {R(self.aE1w)}, {R(G)}, 10, {R(self.aE1w)}")
        c = va(1, "c"); hh = va(1, "hh")
        a(f"v_and_b32 {R(hh)}, 1, {R(G)}")
        a(f"v_lshlrev_b32 {R(hh)}, 12, {R(hh)}")
        a(f"v_add_u32 {R(hh)}, {EA}, {R(hh)}")
        a(f"s_lshl_b32 {S(sT0)}, {S(sW)}, 5")
        for t in range(2):
            q = self.aE1r + t
            if t: a(f"s_add_u32 {S(sT0)}, {S(sT0)}, 16")
            a(f"v_add_u32 {R(q)}, {S(sT0)}, {R(Li)}")
            a(f"v_sub_u32 {R(c)}, 256, {R(q)}")
            a(f"v_cmp_eq_u32 vcc, 0, {R(q)}")
            a(f"v_mov_b32 {R(T)}, 128")
            a(f"v_cndmask_b32 {R(c)}, {R(c)}, {R(T)}, vcc")
            a(f"v_cmp_lt_u32 vcc, 1, {R(G)}")
            a(f"v_cndmask_b32 {R(q)}, {R(q)}, {R(c)}, vcc")
            a(f"v_lshl_add_u32 {R(q)}, {R(q)}, 4, {R(hh)}")
        a(f"v_lshrrev_b32 {R(c)}, 1, {R(Li)}")
        a(f"v_lshlrev_b32 {R(c)}, 10, {R(c)}")
        a(f"v_lshl_add_u32 {R(c)}, {R(G)}, 5, {R(c)}")
        a(f"v_and_b32 {R(T)}, 1, {R(Li)}")
        a(f"v_lshl_add_u32 {R(self.aZ1)}, {R(T)}, 4, {R(c)}")
        a(f"v_cmp_eq_u32 vcc, 0, {R(Li)}")
        a(f"v_mov_b32 {R(T)}, {fl(16.0)}")
        a(f"v_cndmask_b32 {R(self.v16)}, {R(self.vZero)}, {R(T)}, vcc")
        va.free(c, hh)
        self.ST = va(8, "ST")
        for i in range(4): a(f"v_mov_b32 {R(self.ST + i)}, 0")
    def tags(self):
        a = self.a; va = self.va; Li, T = self.vLi, self.vT
        a(f"v_readfirstlane_b32 {S(sEp)}, {R(self.vEp)}")
        a(f"s_add_u32 {S(sT0)}, {S(sEp)}, 1\ns_and_b32 {S(sT0)}, {S(sT0)}, 15")
        a(f"s_and_b32 {S(sEp)}, {S(sEp)}, 0xfffffff0")
        a(f"s_and_b32 {S(sT1)}, {S(sEp)}, 0xfffeffff\ns_or_b32 {S(sT1)}, {S(sT1)}, 0x00100010")
        a(f"s_or_b32 {S(sEp)}, {S(sEp)}, {S(sT0)}")
        self.TG = va(4, "TG"); self.TG2 = va(1, "TG2"); u = self.vEp
        def nib(dst, sh):
            a(f"v_lshrrev_b32 {R(dst)}, {R(sh)}, {S(sT1)}")
            a(f"v_add_u32 {R(dst)}, {S(sT0)}, {R(dst)}")
            a(f"v_bfe_u32 {R(T)}, {R(dst)}, 2, 2")
            a(f"v_and_b32 {R(dst)}, 3, {R(dst)}")
            a(f"v_lshl_or_b32 {R(dst)}, {R(T)}, 16, {R(dst)}")
        a(f"v_and_b32 {R(u)}, 1, {R(Li)}")
        a(f"v_lshlrev_b32 {R(u)}, 4, {R(u)}")
        for r in range(4):
            if r: a(f"v_add_u32 {R(u)}, 4, {R(u)}")
            nib(self.TG + r, u)
        a(f"v_and_b32 {R(u)}, 7, {R(Li)}")
        a(f"v_lshlrev_b32 {R(u)}, 2, {R(u)}")
        nib(self.TG2, u)
        va.free(self.vEp)
    def p1(self):
        a = self.a; va = self.va; X = self.X; M = self.M; M2 = self.M2; ST = self.ST
        D = va(16, "D"); E = va(16, "E"); cs = va(8, "cs")
        for rho in range(2):
            for ri in range(2):
                a(f"v_mfma_f32_16x16x32_bf16 {R(D + 8 * rho + 4 * ri, 4)}, {R(X + 4 * rho, 4)}, {R(M + 4 * ri, 4)}, 0")
        self.stamp("x_in")
        self.stats(X, ST, 1.0, self.v16)
        for rho in range(2):
            for k in range(0, 8, 2):
                a(f"v_pk_mul_f32 {R(cs + k, 2)}, {R(self.TW + k, 2)}, {R(ST + 2 * rho, 2)} op_sel_hi:[1,0]")
            self.cmul(E + 8 * rho, E + 8 * rho + 4, D + 8 * rho, D + 8 * rho + 4, cs, cs + 4, 4, False, addend=ST + 4 + 2 * rho)
            for r in range(4):
                a(f"v_cvt_pk_f16_f32 {R(X + 4 * rho + r)}, {R(E + 8 * rho + r)}, {R(E + 8 * rho + 4 + r)}")
            for ri in range(2):
                a(f"v_mfma_f32_16x16x32_f16 {R(D + 8 * rho + 4 * ri, 4)}, {R(M2 + 4 * ri, 4)}, {R(X + 4 * rho, 4)}, 0")
        for r in range(4):
            for rho in range(2):
                a(f"v_cvt_pk_f16_f32 {R(E + 2 * r + rho)}, {R(D + 8 * rho + r)}, {R(D + 8 * rho + 4 + r)}")
            a(f"ds_write_b64 {R(self.aE1w)}, {R(E + 2 * r, 2)} offset:{256 * r}")
        a.wait_vm(self.tokclr)
        a.barrier()
        for t in range(2):
            a(f"ds_read_b128 {R(X + 4 * t, 4)}, {R(self.aE1r + t)}")
        a(f"s_lshl_b32 {S(sT0)}, {S(sS2)}, 13\ns_lshl_b32 {S(sT1)}, {S(sW)}, 8\ns_add_u32 {S(sT0)}, {S(sT0)}, {S(sT1)}")
        for t in range(2):
            for ri in range(2):
                a(f"v_mfma_f32_16x16x32_f16 {R(D + 8 * t + 4 * ri, 4)}, {R(X + 4 * t, 4)}, {R(self.Gm + 4 * ri, 4)}, 0")
        for t in range(2):
            for r in range(4):
                a(f"v_cvt_pk_f16_f32 {R(E + 4 * t + r)}, {R(D + 8 * t + r)}, {R(D + 8 * t + 4 + r)}")
            for r in range(4):
                a(f"v_bfi_b32 {R(E + 4 * t + r)}, {S(sMask)}, {R(self.TG + r)}, {R(E + 4 * t + r)}")
            a(f"buffer_store_dwordx4 {R(E + 4 * t, 4)}, {R(self.aZ1)}, {S(sWS, 4)}, {S(sT0)} offen offset:{128 * t} sc1")
        self.stamp("z1_st")
        va.free(D, E, cs, X, self.Gm, self.aE1w, self.aE1r, self.aZ1, self.v16, self.TG)
    def tables_p2(self):
        a = self.a; va = self.va; Li, G, T = self.vLi, self.vG, self.vT
        self.TF = va(4, "TF"); self.TI = va(8, "TI")
        p = va(1, "p")
        a(f"s_lshl_b32 {S(sT0)}, {S(sW)}, 2")
        a(f"v_and_b32 {R(p)}, 2, {R(G)}")
        a(f"v_add_u32 {R(p)}, {S(sT0)}, {R(p)}")
        a(f"v_mul_u32_u24 {R(p)}, {R(p)}, {R(Li)}")
        for t in range(2):
            if t: a(f"v_add_u32 {R(p)}, {R(p)}, {R(Li)}")
            a(f"v_cvt_f32_u32 {R(T)}, {R(p)}")
            a(f"v_mul_f32 {R(T)}, {fl(1 / 256)}, {R(T)}")
            self.sincos(self.TF + 2 * t, self.TF + 2 * t + 1, T)
        a(f"v_mul_u32_u24 {R(p)}, {S(sT0)}, {R(Li)}")
        for r in range(4):
            if r: a(f"v_add_u32 {R(p)}, {R(p)}, {R(Li)}")
            a(f"v_cvt_f32_u32 {R(T)}, {R(p)}")
            a(f"v_mul_f32 {R(T)}, {fl(1 / 256)}, {R(T)}")
            self.sincos(self.TI + r, self.TI + 4 + r, T)
        self.aG1 = va(1, "aG1"); self.aE2w = va(1, "aE2w"); self.aE2r = va(1, "aE2r"); self.aE3w = va(1, "aE3w"); self.aE3r = va(1, "aE3r"); self.aZ2 = va(1, "aZ2")
        col = va(1, "col"); bp = va(1, "bp")
        a(f"v_and_b32 {R(col)}, 7, {R(Li)}")
        a(f"v_lshrrev_b32 {R(bp)}, 3, {R(Li)}")
        a(f"v_lshlrev_b32 {R(p)}, 2, {R(col)}")
        a(f"v_lshl_add_u32 {R(p)}, {R(G)}, 19, {R(p)}")
        a(f"v_lshl_add_u32 {R(self.aG1)}, {R(bp)}, 14, {R(p)}")
        self.aG2 = va(1, "aG2")
        a(f"v_lshl_add_u32 {R(self.aG2)}, {R(bp)}, 13, {R(p)}")
        a(f"s_mul_i32 {S(sT0)}, {S(sW)}, 2560\ns_add_u32 {S(sT0)}, {S(sT0)}, {EB}")
        a(f"v_and_b32 {R(p)}, 1, {R(G)}")
        a(f"v_mul_u32_u24 {R(p)}, 1280, {R(p)}")
        a(f"v_lshl_add_u32 {R(p)}, {R(Li)}, 4, {R(p)}")
        a(f"v_and_b32 {R(T)}, 2, {R(G)}")
        a(f"v_lshl_add_u32 {R(p)}, {R(T)}, 2, {R(p)}")
        a(f"v_add_u32 {R(self.aE2w)}, {S(sT0)}, {R(p)}")
        a(f"s_lshl_b32 {S(sT1)}, {S(sW)}, 6\ns_add_u32 {S(sT0)}, {S(sT1)}, {EB}")
        a(f"v_mul_u32_u24 {R(p)}, 2560, {R(G)}")
        a(f"v_lshrrev_b32 {R(T)}, 2, {R(Li)}")
        a(f"v_mul_u32_u24 {R(T)}, 320, {R(T)}")
        a(f"v_add3_u32 {R(p)}, {R(p)}, {R(T)}, {S(sT0)}")
        a(f"v_and_b32 {R(T)}, 3, {R(Li)}")
        a(f"v_lshl_add_u32 {R(self.aE2r)}, {R(T)}, 4, {R(p)}")
        a(f"s_mul_i32 {S(sT0)}, {S(sW)}, 2304\ns_add_u32 {S(sT0)}, {S(sT0)}, {EA}")
        a(f"v_mul_u32_u24 {R(p)}, 288, {R(G)}")
        a(f"v_lshl_add_u32 {R(p)}, {R(Li)}, 4, {R(p)}")
        a(f"v_add_u32 {R(self.aE3w)}, {S(sT0)}, {R(p)}")
        a(f"s_add_u32 {S(sT0)}, {S(sT1)}, {EA}")
        a(f"v_mul_u32_u24 {R(p)}, 2304, {R(G)}")
        a(f"v_mul_u32_u24 {R(T)}, 288, {R(col)}")
        a(f"v_add3_u32 {R(p)}, {R(p)}, {R(T)}, {S(sT0)}")
        a(f"v_lshl_add_u32 {R(self.aE3r)}, {R(bp)}, 4, {R(p)}")
        a(f"v_lshlrev_b32 {R(p)}, 9, {R(Li)}")
        a(f"v_lshl_add_u32 {R(self.aZ2)}, {R(G)}, 4, {R(p)}")
        va.free(p, col, bp)
        a(f"s_lshl_b32 {S(sT0)}, {S(sW)}, 15\ns_lshl_b32 {S(sT1)}, {S(sK1)}, 10\ns_add_u32 {S(sT0)}, {S(sT0)}, {S(sT1)}")
        a(f"s_lshl_b32 {S(sT1)}, {S(sC)}, 5\ns_add_u32 {S(sT0)}, {S(sT0)}, {S(sT1)}")
        for t in range(2):
            for r in range(4):
                a(f"s_add_u32 {S(sOff + 4 + 4 * t + r)}, {S(sT0)}, {Z1 + (16 * r + t) * 8192}")
    def p2_gather(self):
        a = self.a; va = self.va
        self.Y = va(8, "Y")
        self.g1 = [f"buffer_load_dword {R(self.Y + i)}, {R(self.aG1)}, {S(sWS, 4)}, {S(sOff + 4 + i)} offen sc1" for i in range(8)]
        for l in self.g1: a(l)
    def p2(self):
        a = self.a; va = self.va; Y = self.Y; M = self.M; M2 = self.M2; T = self.vT
        def chk():
            for i in range(8): a(f"v_xor_b32 {R(Y + i)}, {R(self.TG2)}, {R(Y + i)}")
            a(f"v_or3_b32 {R(T)}, {R(Y)}, {R(Y + 1)}, {R(Y + 2)}")
            a(f"v_or3_b32 {R(T)}, {R(T)}, {R(Y + 3)}, {R(Y + 4)}")
            a(f"v_or3_b32 {R(T)}, {R(T)}, {R(Y + 5)}, {R(Y + 6)}")
            a(f"v_bitop3_b32 {R(T)}, {R(T)}, {R(Y + 7)}, {S(sMask)} bitop3:0xa8")
            a(f"v_cmp_ne_u32 vcc, 0, {R(T)}")
        self.poll("z1", self.g1, chk)
        self.stamp("z1_in")
        D = va(16, "D"); E = va(16, "E")
        for t in range(2):
            for ri in range(2):
                a(f"v_mfma_f32_16x16x32_f16 {R(D + 8 * t + 4 * ri, 4)}, {R(Y + 4 * t, 4)}, {R(M2 + 4 * ri, 4)}, 0")
        self.point("p2_start")
        for t in range(2):
            self.cmul(E + 8 * t, E + 8 * t + 4, D + 8 * t, D + 8 * t + 4, self.TF + 2 * t, None, 4, False, bc=True)
        for r in range(4):
            for t in range(2):
                a(f"v_cvt_pk_f16_f32 {R(Y + 2 * r + t)}, {R(E + 8 * t + r)}, {R(E + 8 * t + 4 + r)}")
            a(f"ds_write_b64 {R(self.aE2w)}, {R(Y + 2 * r, 2)} offset:{320 * r}")
        a.barrier()
        for uv in range(2):
            a(f"ds_read_b128 {R(Y + 4 * uv, 4)}, {R(self.aE2r)} offset:{1280 * uv}")
        Ls = a.label("noep")
        a(f"s_or_b32 {S(sT0)}, s2, {S(sW)}\ns_cmp_lg_u32 {S(sT0)}, 0\ns_cselect_b32 {S(sT0)}, {OOB}, {EPO}")
        a(f"v_mov_b32 {R(T)}, {S(sEp)}")
        a(f"buffer_store_dword {R(T)}, {R(self.vZero)}, {S(sWS, 4)}, {S(sT0)} offen sc1")
        for uv in range(2):
            for ri in range(2):
                a(f"v_mfma_f32_16x16x32_f16 {R(D + 8 * uv + 4 * ri, 4)}, {R(M2 + 4 * ri, 4)}, {R(Y + 4 * uv, 4)}, 0")
        Ur, Ui, Vr, Vi = D, D + 4, D + 8, D + 12
        A1r, A1i, Br, Bi = self.CF, self.CF + 4, self.CF + 8, self.CF + 12
        A2r, A2i = self.Wraw + 16, self.Wraw + 20
        neg = " neg_lo:[0,1,0] neg_hi:[0,1,0]"
        terms = [(E, [(Ur, A1r, 0), (Ui, A1i, 1), (Vr, Br, 0), (Vi, Bi, 1)]),
                 (E + 4, [(Ur, A1i, 0), (Ui, A1r, 0), (Vr, Bi, 0), (Vi, Br, 0)]),
                 (E + 8, [(Ui, Bi, 0), (Ur, Br, 1), (Vr, A2r, 0), (Vi, A2i, 1)]),
                 (E + 12, [(Vr, A2i, 0), (Ur, Bi, 1), (Ui, Br, 1), (Vi, A2r, 0)])]
        for step in range(4):
            for o, tl in terms:
                x, cf, ng = tl[step]
                for k in (0, 2):
                    if step == 0: a(f"v_pk_mul_f32 {R(o + k, 2)}, {R(x + k, 2)}, {R(cf + k, 2)}")
                    else: a(f"v_pk_fma_f32 {R(o + k, 2)}, {R(x + k, 2)}, {R(cf + k, 2)}, {R(o + k, 2)}" + (neg if ng else ""))
        for uv in range(2):
            for r in range(4):
                a(f"v_cvt_pk_bf16_f32 {R(Y + 4 * uv + r)}, {R(E + 8 * uv + 4 + r)}, {R(E + 8 * uv + r)}")
            for ri in range(2):
                a(f"v_mfma_f32_16x16x32_bf16 {R(D + 8 * uv + 4 * ri, 4)}, {R(Y + 4 * uv, 4)}, {R(M + 4 * (1 - ri), 4)}, 0")
        for uv in range(2):
            self.cmul(E + 8 * uv, E + 8 * uv + 4, D + 8 * uv, D + 8 * uv + 4, self.TI, self.TI + 4, 4, True)
            for r in range(4):
                a(f"v_cvt_pk_bf16_f32 {R(Y + 4 * uv + r)}, {R(E + 8 * uv + 4 + r)}, {R(E + 8 * uv + r)}")
            a(f"ds_write_b128 {R(self.aE3w)}, {R(Y + 4 * uv, 4)} offset:{1152 * uv}")
        a.barrier()
        for t in range(2):
            a(f"ds_read_b128 {R(Y + 4 * t, 4)}, {R(self.aE3r)} offset:{32 * t}")
        a(f"s_lshl_b32 {S(sT0)}, {S(sS2)}, 13\ns_lshl_b32 {S(sT1)}, {S(sW)}, 7\ns_add_u32 {S(sT0)}, {S(sT0)}, {S(sT1)}\ns_add_u32 {S(sT0)}, {S(sT0)}, {Z2}")
        for t in range(2):
            for ri in range(2):
                a(f"v_mfma_f32_16x16x32_bf16 {R(D + 8 * t + 4 * ri, 4)}, {R(Y + 4 * t, 4)}, {R(M + 4 * (1 - ri), 4)}, 0")
        for t in range(2):
            for r in range(4):
                a(f"v_cvt_pk_bf16_f32 {R(E + 4 * t + r)}, {R(D + 8 * t + r)}, {R(D + 8 * t + 4 + r)}")
            a(f"buffer_store_dwordx4 {R(E + 4 * t, 4)}, {R(self.aZ2)}, {S(sWS, 4)}, {S(sT0)} offen offset:{64 * t} sc1")
        self.stamp("z2_st")
        self.vb.free(self.CF, self.Wraw)
        va.free(D, E, Y, self.TF, self.TI, self.M2, self.TG2, self.aG1, self.aE2w, self.aE2r, self.aE3w, self.aE3r, self.aZ2)
    def xnat_load(self):
        a = self.a; va = self.va
        self.XN = va(8, "XN")
        for rho in range(2):
            a(f"buffer_load_dwordx4 {R(self.XN + 4 * rho, 4)}, {R(self.vNat)}, {S(sX, 4)}, {S(sOff + rho)} offen")
    def tables_p3(self):
        a = self.a; va = self.va; Li, G, T = self.vLi, self.vG, self.vT
        self.M4 = va(8, "M4"); self.Gi = va(2, "Gi"); self.XC = va(16, "XC")
        self.aE4w = va(4, "aE4w"); self.aE4r = va(2, "aE4r")
        p = va(1, "p"); c = va(1, "c"); s = va(1, "s"); u = va(1, "u")
        a(f"v_and_b32 {R(p)}, 2, {R(G)}")
        a(f"v_lshlrev_b32 {R(p)}, 14, {R(p)}")
        for i in range(8): a(f"v_xor_b32 {R(self.M4 + i)}, {R(p)}, {R(self.M + i)}")
        a(f"v_lshrrev_b32 {R(u)}, 1, {R(Li)}")
        a(f"v_lshl_add_u32 {R(u)}, {R(u)}, 8, {S(sS2)}")
        a(f"v_mul_u32_u24 {R(p)}, {R(u)}, {R(G)}")
        a(f"v_lshlrev_b32 {R(p)}, 1, {R(p)}")
        a(f"v_and_b32 {R(T)}, 1, {R(Li)}")
        a(f"v_cmp_eq_u32 vcc, 1, {R(T)}")
        for rho in range(2):
            if rho: a(f"v_add_u32 {R(p)}, {R(p)}, {R(u)}")
            a(f"v_and_b32 {R(T)}, 2047, {R(p)}")
            a(f"v_cvt_f32_u32 {R(T)}, {R(T)}")
            a(f"v_mul_f32 {R(T)}, {fl(1 / 2048)}, {R(T)}")
            self.sincos(c, s, T)
            a(f"v_cvt_pk_bf16_f32 {R(T)}, {R(c)}, -{R(s)}")
            a(f"v_cvt_pk_bf16_f32 {R(c)}, {R(s)}, {R(c)}")
            a(f"v_cndmask_b32 {R(self.Gi + rho)}, {R(T)}, {R(c)}, vcc")
        a(f"v_mul_u32_u24 {R(u)}, 2624, {R(G)}")
        a(f"v_add_u32 {R(u)}, {EB}, {R(u)}")
        a(f"v_lshrrev_b32 {R(p)}, 3, {R(Li)}")
        a(f"v_and_b32 {R(T)}, 3, {R(Li)}")
        a(f"v_lshl_add_u32 {R(p)}, {R(p)}, 2, {R(T)}")
        a(f"s_lshl_b32 {S(sT0)}, {S(sW)}, 5")
        a(f"v_add_u32 {R(p)}, {S(sT0)}, {R(p)}")
        a(f"v_sub_u32 {R(c)}, 256, {R(p)}")
        a(f"v_and_b32 {R(T)}, 4, {R(Li)}")
        a(f"v_cmp_ne_u32 s[4:5], 0, {R(T)}")
        for t in range(4):
            q = self.aE4w + t
            if t:
                a(f"v_add_u32 {R(p)}, 8, {R(p)}\nv_add_u32 {R(c)}, -8, {R(c)}")
                a(f"v_cndmask_b32 {R(q)}, {R(p)}, {R(c)}, s[4:5]")
            else:
                a(f"v_cmp_eq_u32 vcc, 0, {R(p)}\nv_mov_b32 {R(T)}, 128")
                a(f"v_cndmask_b32 {R(T)}, {R(c)}, {R(T)}, vcc")
                a(f"v_cndmask_b32 {R(q)}, {R(p)}, {R(T)}, s[4:5]")
            a(f"v_lshrrev_b32 {R(T)}, 6, {R(q)}")
            a(f"v_lshl_add_u32 {R(q)}, {R(T)}, 4, {R(q)}")
            a(f"v_lshl_add_u32 {R(q)}, {R(q)}, 2, {R(u)}")
        a(f"s_mul_i32 {S(sT0)}, {S(sW)}, 2624\ns_add_u32 {S(sT0)}, {S(sT0)}, {EB}")
        a(f"v_mul_u32_u24 {R(p)}, 320, {R(G)}")
        a(f"v_lshl_add_u32 {R(p)}, {R(Li)}, 2, {R(p)}")
        a(f"v_add_u32 {R(self.aE4r)}, {S(sT0)}, {R(p)}")
        a(f"v_add_u32 {R(self.aE4r + 1)}, 1280, {R(self.aE4r)}")
        va.free(p, c, s, u)
        for rho in range(2):
            for r in range(4):
                a(f"v_lshlrev_b32 {R(self.XC + 8 * rho + r)}, 16, {R(self.XN + 4 * rho + r)}")
                a(f"v_and_b32 {R(self.XC + 8 * rho + 4 + r)}, 0xffff0000, {R(self.XN + 4 * rho + r)}")
        va.free(self.XN)
        for i in range(4): a(f"v_mov_b32 {R(self.ST + i)}, 0")
        a(f"s_lshl_b32 {S(sT0)}, {S(sW)}, 16\ns_lshl_b32 {S(sT1)}, {S(sS2)}, 5\ns_add_u32 {S(sT0)}, {S(sT0)}, {S(sT1)}")
        for t in range(4):
            for rho in range(2):
                a(f"s_add_u32 {S(sOff + 4 + 2 * t + rho)}, {S(sT0)}, {Z2 + (32 * rho + 2 * t) * 8192}")
    def p3_gather(self):
        a = self.a; va = self.va
        self.Y = va(8, "Y")
        self.g2 = [f"buffer_load_dword {R(self.Y + i)}, {R(self.aG2)}, {S(sWS, 4)}, {S(sOff + 4 + i)} offen sc1" for i in range(8)]
        for l in self.g2: a(l)
    def p3(self):
        a = self.a; va = self.va; Y = self.Y; M = self.M; M4 = self.M4; ST = self.ST; XC = self.XC
        self.poll("z2", self.g2, self.check_sentinel(range(Y, Y + 8)))
        self.stamp("z2_in")
        D = va(16, "D"); E = va(16, "E")
        for t in range(4):
            a(f"v_mfma_f32_16x16x16_bf16 {R(D + 4 * t, 4)}, {R(self.Gi, 2)}, {R(Y + 2 * t, 2)}, 0")
        self.point("p3_start")
        for t in range(4):
            a(f"v_cvt_pk_bf16_f32 {R(E + 2 * t)}, {R(D + 4 * t + 1)}, {R(D + 4 * t)}")
            a(f"v_cvt_pk_bf16_f32 {R(E + 2 * t + 1)}, {R(D + 4 * t + 3)}, {R(D + 4 * t + 2)}")
            a(f"ds_write2st64_b32 {R(self.aE4w + t)}, {R(E + 2 * t)}, {R(E + 2 * t + 1)} offset0:0 offset1:5")
        a.barrier()
        for rho in range(2):
            for h in range(2):
                a(f"ds_read2_b32 {R(Y + 4 * rho + 2 * h, 2)}, {R(self.aE4r + rho)} offset0:{32 * h} offset1:{32 * h + 16}")
        for rho in range(2):
            for ri in range(2):
                a(f"v_mfma_f32_16x16x32_bf16 {R(D + 8 * rho + 4 * ri, 4)}, {R(Y + 4 * rho, 4)}, {R(M4 + 4 * (1 - ri), 4)}, 0")
        for rho in range(2):
            self.cmul(E + 8 * rho, E + 8 * rho + 4, D + 8 * rho, D + 8 * rho + 4, self.TW, self.TW + 4, 4, True)
            for r in range(4):
                a(f"v_cvt_pk_bf16_f32 {R(Y + 4 * rho + r)}, {R(E + 8 * rho + 4 + r)}, {R(E + 8 * rho + r)}")
            for ri in range(2):
                q = XC + 8 * rho + 4 * ri
                a(f"v_mfma_f32_16x16x32_bf16 {R(q, 4)}, {R(Y + 4 * rho, 4)}, {R(M + 4 * (1 - ri), 4)}, {R(q, 4)}")
        a(f"s_add_u32 {S(sT0)}, {S(sOff + 2)}, {HN}\ns_add_u32 {S(sT1)}, {S(sOff + 2)}, {HH}")
        for rho in range(2):
            for r in range(4):
                a(f"v_cvt_pk_bf16_f32 {R(D + 4 * rho + r)}, {R(XC + 8 * rho + r)}, {R(XC + 8 * rho + 4 + r)}")
        self.stats(D, ST, 1.4426950408889634, None)
        for rho in range(2):
            for k in range(0, 8, 2):
                q = XC + 8 * rho + k
                a(f"v_pk_fma_f32 {R(q, 2)}, {R(q, 2)}, {R(ST + 2 * rho, 2)}, {R(ST + 4 + 2 * rho, 2)} op_sel_hi:[1,0,0] neg_lo:[0,0,1] neg_hi:[0,0,1]")
            for r in range(4):
                a(f"v_cvt_pk_bf16_f32 {R(E + 4 * rho + r)}, {R(XC + 8 * rho + r)}, {R(XC + 8 * rho + 4 + r)}")
            a(f"buffer_store_dwordx4 {R(E + 4 * rho, 4)}, {R(self.vNat)}, {S(sWS, 4)}, {S(sT0)} offen offset:{1024 * rho} sc1")
        for rho in range(2):
            a(f"buffer_store_dwordx4 {R(D + 4 * rho, 4)}, {R(self.vNat)}, {S(sWS, 4)}, {S(sT1)} offen offset:{1024 * rho} sc1")
        self.stamp("hn_st")
        va.free(D, E, Y, XC, ST, self.M, self.M4, self.TW, self.Gi, self.aE4w, self.aE4r, self.aG2, self.vNat)
    def tables_w(self):
        a = self.a; va = self.va; L, Li, G, T = self.vL, self.vLi, self.vG, self.vT
        self.vW1 = va(3, "vW1", 1); self.vW2 = va(1, "vW2"); self.vTr1 = va(1, "vTr1"); self.vTr2 = va(4, "vTr2", 1)
        rho = va(1, "rho"); ch = va(1, "ch"); u = va(1, "u")
        a(f"s_mul_i32 {S(sStg)}, {S(sW)}, {STGW}\ns_add_u32 {S(sStg)}, {S(sStg)}, {STG}")
        a(f"s_lshr_b32 {S(sRot)}, {S(sC)}, 3")
        a(f"s_mul_i32 {S(sT2)}, {S(sRot)}, 3\ns_lshl_b32 {S(sRot)}, {S(sRot)}, 2")
        a(f"s_mul_i32 {S(sT1)}, {S(sW)}, 11")
        for i in range(11):
            a(f"s_add_u32 {S(sT0)}, {S(sT2)}, {i}\ns_cmp_ge_u32 {S(sT0)}, 11\ns_cselect_b32 {S(sKap + i)}, 11, 0")
            a(f"s_sub_u32 {S(sT0)}, {S(sT0)}, {S(sKap + i)}\ns_add_u32 {S(sT0)}, {S(sT0)}, {S(sT1)}\ns_lshl_b32 {S(sKap + i)}, {S(sT0)}, 10")
        a(f"s_lshl_b32 {S(sT0)}, {S(sMem)}, 2\ns_add_u32 {S(sT0)}, {S(sT0)}, {S(sW)}\ns_mul_i32 {S(sT0)}, {S(sT0)}, 96")
        a(f"s_and_b32 {S(sT1)}, {S(sW)}, 1\ns_lshl_b32 {S(sT1)}, {S(sT1)}, 1")
        a(f"s_movk_i32 {S(sT2)}, 2752")
        for p in range(3):
            q = self.vW1 + p
            a(f"v_add_u32 {R(u)}, {64 * p}, {R(L)}")
            a(f"v_mul_u32_u24 {R(rho)}, 10923, {R(u)}")
            a(f"v_lshrrev_b32 {R(rho)}, 16, {R(rho)}")
            a(f"v_mul_u32_u24 {R(ch)}, 6, {R(rho)}")
            a(f"v_sub_u32 {R(ch)}, {R(u)}, {R(ch)}")
            a(f"v_add_u32 {R(ch)}, {S(sT1)}, {R(ch)}")
            a(f"v_subrev_u32 {R(u)}, 6, {R(ch)}")
            a(f"v_min_u32 {R(ch)}, {R(ch)}, {R(u)}")
            a(f"v_lshl_add_u32 {R(ch)}, {R(ch)}, 4, {S(sT0)}")
            a(f"v_bfe_u32 {R(u)}, {R(rho)}, 2, 2")
            a(f"v_lshlrev_b32 {R(u)}, 7, {R(u)}")
            a(f"v_and_or_b32 {R(u)}, {R(rho)}, 3, {R(u)}")
            a(f"v_lshrrev_b32 {R(rho)}, 4, {R(rho)}")
            a(f"v_lshl_add_u32 {R(u)}, {R(rho)}, 2, {R(u)}")
            a(f"v_mad_u32_u24 {R(q)}, {R(u)}, {S(sT2)}, {R(ch)}")
            if p: a(f"v_subrev_u32 {R(q)}, {1024 * p}, {R(q)}")
            a(f"v_cmp_gt_u32 vcc, {S(sT2)}, {R(ch)}")
            a(f"v_mov_b32 {R(T)}, {OOB}")
            a(f"v_cndmask_b32 {R(q)}, {R(T)}, {R(q)}, vcc")
        a(f"v_lshrrev_b32 {R(u)}, 2, {R(L)}")
        a(f"v_mul_u32_u24 {R(u)}, 96, {R(u)}")
        a(f"v_and_b32 {R(ch)}, 3, {R(L)}")
        a(f"v_lshl_add_u32 {R(ch)}, {R(ch)}, 3, {S(sStg)}")
        a(f"v_add_u32 {R(self.vTr1)}, {R(u)}, {R(ch)}")
        a(f"v_bfe_u32 {R(u)}, {R(L)}, 1, 2")
        a(f"v_xor_b32 {R(u)}, {R(u)}, {R(G)}")
        a(f"v_lshlrev_b32 {R(u)}, 5, {R(u)}")
        a(f"v_and_b32 {R(T)}, 1, {R(L)}")
        a(f"v_lshl_add_u32 {R(u)}, {R(T)}, 4, {R(u)}")
        a(f"v_lshrrev_b32 {R(T)}, 3, {R(L)}")
        a(f"v_lshl_add_u32 {R(u)}, {R(T)}, 10, {R(u)}")
        a(f"s_lshl_b32 {S(sT0)}, {S(sMem)}, 7")
        a(f"v_add_u32 {R(self.vW2)}, {S(sT0)}, {R(u)}")
        a(f"v_bfe_u32 {R(rho)}, {R(L)}, 2, 3")
        a(f"v_bfe_u32 {R(u)}, {R(L)}, 3, 2")
        a(f"v_lshl_add_u32 {R(ch)}, {R(rho)}, 7, {R(ch)}")
        a(f"v_lshrrev_b32 {R(T)}, 5, {R(L)}")
        a(f"v_lshl_add_u32 {R(ch)}, {R(T)}, 11, {R(ch)}")
        for t in range(4):
            a(f"v_xor_b32 {R(T)}, {t}, {R(u)}")
            a(f"v_lshl_add_u32 {R(self.vTr2 + t)}, {R(T)}, 5, {R(ch)}")
        va.free(rho, ch, u)
    def tables_ffn(self):
        a = self.a; va = self.va; L, Li, G, T = self.vL, self.vLi, self.vG, self.vT
        self.aHw = va(1, "aHw"); self.aHr = va(1, "aHr"); self.aHs = va(2, "aHs", 1)
        self.aRw = va(2, "aRw", 1); self.aRr = va(1, "aRr"); self.aRes = va(1, "aRes"); self.aOut = va(1, "aOut")
        a(f"s_mul_i32 {S(sT0)}, {S(sW)}, {4 * HROW}")
        a(f"v_xor_b32 {R(T)}, {S(sRot)}, {R(L)}")
        a(f"v_lshl_add_u32 {R(self.aHw)}, {R(T)}, 4, {S(sT0)}")
        a(f"v_mul_u32_u24 {R(T)}, {HROW}, {R(Li)}")
        a(f"v_lshl_add_u32 {R(self.aHr)}, {R(G)}, 8, {R(T)}")
        a(f"s_lshr_b32 {S(sHb)}, {S(sS2)}, 3\ns_mul_i32 {S(sHb)}, {S(sHb)}, {HCL}\ns_add_u32 {S(sHb)}, {S(sHb)}, {HB}")
        a(f"s_lshl_b32 {S(sT0)}, {S(sMem)}, 2\ns_add_u32 {S(sT0)}, {S(sT0)}, {S(sW)}")
        a(f"s_lshr_b32 {S(sT1)}, {S(sT0)}, 1\ns_mul_i32 {S(sT1)}, {S(sT1)}, 3072\ns_and_b32 {S(sT2)}, {S(sW)}, 1")
        a(f"s_lshl_b32 s4, {S(sT2)}, 11\ns_add_u32 s4, s4, {S(sT1)}\ns_cmp_le_u32 {S(sT0)}, 28\ns_cselect_b32 s4, s4, {OOB}")
        a(f"s_lshl_b32 s5, {S(sT2)}, 9\ns_add_u32 s5, s5, {S(sT1)}\ns_add_u32 s5, s5, 1024\ns_cmp_lt_u32 {S(sT0)}, 28\ns_cselect_b32 s5, s5, {OOB}")
        a(f"v_add_u32 {R(self.aHs)}, s4, {R(self.vL16)}")
        a(f"v_add_u32 {R(self.aHs + 1)}, s5, {R(self.vL16)}")
        a(f"v_cmp_gt_u32 vcc, 32, {R(L)}\nv_mov_b32 {R(T)}, {OOB}")
        a(f"v_cndmask_b32 {R(self.aHs + 1)}, {R(T)}, {R(self.aHs + 1)}, vcc")
        a(f"s_lshl_b32 {S(sT0)}, {S(sW)}, 12")
        a(f"v_and_b32 {R(T)}, 7, {R(Li)}")
        a(f"v_xor_b32 {R(T)}, {R(T)}, {R(G)}")
        a(f"v_lshlrev_b32 {R(T)}, 4, {R(T)}")
        a(f"v_lshl_add_u32 {R(T)}, {R(Li)}, 8, {R(T)}")
        a(f"v_add_u32 {R(self.aRw)}, {S(sT0)}, {R(T)}")
        a(f"v_xor_b32 {R(self.aRw + 1)}, 64, {R(self.aRw)}")
        a(f"s_lshl_b32 {S(sT0)}, {S(sW)}, 2")
        a(f"v_add_u32 {R(self.aRr)}, {S(sT0)}, {R(G)}")
        a(f"v_and_b32 {R(T)}, 7, {R(self.aRr)}")
        a(f"v_xor_b32 {R(T)}, {R(T)}, {R(Li)}")
        a(f"v_lshlrev_b32 {R(T)}, 4, {R(T)}")
        a(f"v_lshl_add_u32 {R(self.aRr)}, {R(self.aRr)}, 8, {R(T)}")
        a(f"s_lshl_b32 {S(sT1)}, {S(sMem)}, 7")
        a(f"v_lshl_add_u32 {R(T)}, {R(Li)}, 3, {S(sT1)}")
        a(f"v_lshl_add_u32 {R(self.aRes)}, {R(G)}, 10, {R(T)}")
        a(f"v_lshl_add_u32 {R(self.aOut)}, {R(G)}, 18, {R(T)}")
        a(f"s_lshr_b32 {S(sT0)}, {S(sS2)}, 3\ns_lshl_b32 {S(sT1)}, {S(sT0)}, 16\ns_lshl_b32 {S(sT2)}, {S(sW)}, 12\ns_add_u32 {S(sOff + 3)}, {S(sT1)}, {S(sT2)}")
        a(f"s_lshl_b32 {S(sT0)}, {S(sT0)}, 13\ns_and_b32 {S(sT1)}, {S(sW)}, 1\ns_lshl_b32 {S(sT1)}, {S(sT1)}, 20\ns_add_u32 {S(sT0)}, {S(sT0)}, {S(sT1)}")
        a(f"s_lshr_b32 {S(sT1)}, {S(sW)}, 1\ns_lshl_b32 {S(sT1)}, {S(sT1)}, 10\ns_add_u32 {S(sOff)}, {S(sT0)}, {S(sT1)}")
        for rt in range(4):
            a(f"s_add_u32 {S(sOff + 4 + rt)}, {S(sOff + 3)}, {HN + rt * 16384}")
    def hn_gather(self):
        a = self.a; va = self.va
        self.HG = va(64, "HG")
        self.g3 = [f"buffer_load_dwordx4 {R(self.HG + 16 * rt + 4 * n, 4)}, {R(self.vL16)}, {S(sWS, 4)}, {S(sOff + 4 + rt)} offen offset:{1024 * n} sc1"
                   for rt in range(4) for n in range(4)]
        for l in self.g3: a(l)
    def hn_stage(self):
        a = self.a; va = self.va
        self.poll("hn", self.g3, self.check_sentinel([self.HG + 4 * i for i in range(16)]))
        for rt in range(4):
            if rt == 2: a("s_barrier")
            for n in range(4):
                a(f"ds_write_b128 {R(self.aHw)}, {R(self.HG + 16 * rt + 4 * n, 4)} offset:{rt * HTILE + n * HROW}")
        a.barrier()
        self.stamp("hn_in")
        va.free(self.HG, self.aHw)
    def silu_list(self, acc, rt):
        a = self.a; tmp = self.SL; P = self.HP
        out = []
        for i in range(12): out.append(f"v_exp_f32 {R(tmp + i)}, -{R(acc + i)}")
        for i in range(12): out.append(f"v_add_f32 {R(tmp + i)}, 1.0, {R(tmp + i)}")
        for i in range(12): out.append(f"v_rcp_f32 {R(tmp + i)}, {R(tmp + i)}")
        for i in range(12): out.append(f"v_mul_f32 {R(tmp + i)}, {R(tmp + i)}, {R(acc + i)}")
        for i in range(6): out.append(f"v_cvt_pk_bf16_f32 {R(P + i)}, {R(tmp + 2 * i)}, {R(tmp + 2 * i + 1)}")
        out.append(f"s_add_u32 {S(sT0)}, {S(sHb)}, {rt * 45056}")
        out += [f"v_permlane32_swap_b32 {R(P)}, {R(P + 2)}", f"v_permlane32_swap_b32 {R(P + 1)}, {R(P + 3)}",
                f"v_permlane32_swap_b32 {R(P + 4)}, {R(P + 6)}", f"v_permlane32_swap_b32 {R(P + 5)}, {R(P + 7)}"]
        out.append(f"buffer_store_dwordx4 {R(P, 4)}, {R(self.aHs)}, {S(sWS, 4)}, {S(sT0)} offen sc1")
        out.append(f"buffer_store_dwordx4 {R(P + 4, 4)}, {R(self.aHs + 1)}, {S(sWS, 4)}, {S(sT0)} offen sc1")
        return out
    def run(self, lst):
        for x in lst:
            if callable(x): x()
            else: self.a(x)
    def gemm1(self):
        a = self.a; va = self.va
        ACC = va(24, "acc1"); BF = va(16, "bf"); self.SL = va(12, "silu"); self.HP = va(8, "hp")
        for i in (6, 7): a(f"v_mov_b32 {R(self.HP + i)}, 0")
        rd = lambda n: f"ds_read_b128 {R(BF + 4 * (n % 4), 4)}, {R(self.aHr)} offset:{(n // 16) * HTILE + (n % 16) * 16}"
        for n in range(3): a(rd(n))
        for rt in range(4):
            acc = ACC + 12 * (rt & 1)
            main = []
            for ks in range(16):
                n = rt * 16 + ks
                for T in range(3):
                    c = R(acc + 4 * T, 4) if ks else "0"
                    main.append(f"v_mfma_f32_16x16x32_bf16 {R(acc + 4 * T, 4)}, {R(self.W1(ks, T), 4)}, {R(BF + 4 * (n % 4), 4)}, {c}")
                    if T == 0 and n + 3 < 64: main.append(rd(n + 3))
            fill = self.silu_list(ACC + 12 * ((rt - 1) & 1), rt - 1) if rt else []
            self.run(merge(main, fill, 3))
        self.run(self.silu_list(ACC + 12, 3))
        a.barrier()
        self.stamp("g1_end")
        va.free(ACC, BF, self.SL, self.HP, self.aHr, self.aHs)
    def h_loads(self, rt, buf):
        out = []
        for i in range(11):
            out.append(f"buffer_load_dwordx4 {R(buf + 4 * i, 4)}, {R(self.aHl + rt)}, {S(sWS, 4)}, {S(sKap + i)} offen sc1")
        return out
    def gemm2(self):
        a = self.a; va = self.va; T = self.vT
        for i in range(11):
            a(f"s_cmp_eq_u32 {S(sKap + i)}, {43 * 1024}\ns_cselect_b32 {S(sKap + i)}, {OOB}, {S(sKap + i)}")
        self.aHl = va(4, "aHl", 1)
        for rt in range(4):
            a(f"s_add_u32 {S(sT0)}, {S(sHb)}, {rt * 45056}")
            a(f"v_add_u32 {R(self.aHl + rt)}, {S(sT0)}, {R(self.vL16)}")
        HB_ = [144, 188]
        ACC = va(16, "acc2"); RB = va(16, "rb"); RES = va(8, "res"); O = va(4, "o")
        resl = []
        for rt in range(4):
            a(f"s_add_u32 {S(sOff + 4 + rt)}, {S(sOff + 3)}, {HH + rt * 16384}")
            resl.append(f"buffer_load_dwordx2 {R(RES + 2 * rt, 2)}, {R(self.aRes)}, {S(sWS, 4)}, {S(sOff + 4 + rt)} offen sc1")
        a(f"s_mov_b32 {S(sT2)}, {fl(math.log(2.0))}")
        self.run(resl)
        self.run(self.h_loads(0, HB_[0]))
        self.run(self.h_loads(1, HB_[1]))
        self.poll("res", resl, self.check_sentinel(range(RES, RES + 8)))
        for rt in range(4):
            buf = HB_[rt & 1]
            self.poll("H%d" % rt, self.h_loads(rt, buf), self.check_sentinel([buf + 4 * i for i in range(11)]))
            for i in range(11):
                for t in range(4):
                    c = R(ACC + 4 * t, 4) if i else "0"
                    a(f"v_mfma_f32_16x16x32_bf16 {R(ACC + 4 * t, 4)}, {R(self.W2(i, t), 4)}, {R(buf + 4 * i, 4)}, {c}")
            if rt < 2: self.run(self.h_loads(rt + 2, buf))
            red = RED[rt & 1]
            for t in range(4):
                a(f"ds_write_b128 {R(self.aRw + (t & 1))}, {R(ACC + 4 * t, 4)} offset:{red + 128 * (t >> 1)}")
            a.barrier()
            for src in range(4):
                a(f"ds_read_b128 {R(RB + 4 * src, 4)}, {R(self.aRr)} offset:{red + 4096 * src}")
            a(f"v_lshlrev_b32 {R(O)}, 16, {R(RES + 2 * rt)}\nv_and_b32 {R(O + 1)}, 0xffff0000, {R(RES + 2 * rt)}")
            a(f"v_lshlrev_b32 {R(O + 2)}, 16, {R(RES + 2 * rt + 1)}\nv_and_b32 {R(O + 3)}, 0xffff0000, {R(RES + 2 * rt + 1)}")
            for k in (0, 2): a(f"v_pk_add_f32 {R(RB + k, 2)}, {R(RB + k, 2)}, {R(RB + 4 + k, 2)}")
            for k in (0, 2): a(f"v_pk_add_f32 {R(RB + 8 + k, 2)}, {R(RB + 8 + k, 2)}, {R(RB + 12 + k, 2)}")
            for k in (0, 2): a(f"v_pk_add_f32 {R(RB + k, 2)}, {R(RB + k, 2)}, {R(RB + 8 + k, 2)}")
            for k in range(4): a(f"v_fmac_f32 {R(O + k)}, {S(sT2)}, {R(RB + k)}")
            a(f"v_cvt_pk_bf16_f32 {R(O)}, {R(O)}, {R(O + 1)}\nv_cvt_pk_bf16_f32 {R(O + 1)}, {R(O + 2)}, {R(O + 3)}")
            a(f"s_add_u32 {S(sT0)}, {S(sOff)}, {2048 * rt}")
            a(f"buffer_store_dwordx2 {R(O, 2)}, {R(self.aOut)}, {S(sO, 4)}, {S(sT0)} offen")
        self.stamp("end")
    def build(self):
        a = self.a; va = self.va
        self.prologue()
        self.w_gather()
        self.tables_w()
        self.point("start")
        self.tables_p1()
        self.tags()
        self.p1()
        self.clear(HN); self.clear(HH)
        self.point("p1_end")
        self.tables_p2()
        self.w_coefs()
        self.p2_gather()
        self.p2()
        self.clear_H()
        self.xnat_load()
        va.free(self.vM1)
        self.point("p2_end")
        self.tables_p3()
        self.p3_gather()
        self.p3()
        self.point("p3_end")
        self.tables_ffn()
        self.hn_gather()
        self.hn_stage()
        self.point("g1_start")
        self.gemm1()
        self.point("g1_end")
        self.gemm2()
        if self.stamps:
            a("s_waitcnt lgkmcnt(0)")
            a(f"s_lshl_b32 {S(sT0)}, s2, 2\ns_add_u32 {S(sT0)}, {S(sT0)}, {S(sW)}\ns_lshl_b32 {S(sT0)}, {S(sT0)}, 6\ns_add_u32 {S(sT0)}, {S(sT0)}, {STAMP}")
            for i in range(self.nst):
                a(f"v_mov_b32 {R(self.vT)}, {S(sStamp + 2 * i)}")
                a(f"buffer_store_dword {R(self.vT)}, {R(self.vZero)}, {S(sWS, 4)}, {S(sT0)} offen offset:{4 * i}")
        a("L_end:")
        a("s_endpgm")
        for t in self.tail: t()
        body = a.finalize()
        hdr = open("sequential_preLN__spectral_gfnet__dense_activation_silu__prompt.s.ref").read().split("; Override")[0]
        s = hdr + f"; @launch grid=(256,1,1) block=(256,1,1) lds={LDS_SIZE}\n"
        s += f'.amdgcn_target "amdgcn-amd-amdhsa--gfx950"\n.text\n.globl {KN}\n.p2align 8\n.type {KN},@function\n{KN}:\n'
        s += body
        s += ".p2align 8\n.fill 4096, 4, 0xbf810000\n"
        s += f'''.section .rodata,"a"
.p2align 6
.amdhsa_kernel {KN}
  .amdhsa_next_free_vgpr 512
  .amdhsa_next_free_sgpr 102
  .amdhsa_accum_offset 256
  .amdhsa_group_segment_fixed_size 0
  .amdhsa_kernarg_size 72
  .amdhsa_user_sgpr_count 2
  .amdhsa_user_sgpr_kernarg_segment_ptr 1
  .amdhsa_system_sgpr_workgroup_id_x 1
  .amdhsa_float_denorm_mode_32 3
.end_amdhsa_kernel
'''
        return s

def simple_sched():
    D = lambda k, r: [("dma", (k, i)) for i in r]
    X = lambda k, r: [("drain", (k, i)) for i in r]
    return {
        "start": D(1, range(12, 16)),
        "p1_end": [],
        "p2_start": D(1, range(9, 12)),
        "p2_end": X(1, range(12, 16)) + X(1, range(9, 12)),
        "p3_start": D(1, range(0, 7)),
        "p3_end": X(1, range(0, 7)) + D(1, [7, 8]) + D(2, range(0, 4)),
        "g1_start": X(1, [7, 8]) + X(2, range(0, 4)) + D(2, range(4, 9)),
        "g1_end": X(2, range(4, 9)) + D(2, [9, 10]) + X(2, [9, 10]),
    }

if __name__ == "__main__":
    out = sys.argv[1] if len(sys.argv) > 1 else "k.s"
    stamps = "--stamps" in sys.argv
    g = Gen(stamps, simple_sched())
    s = g.build()
    open(out, "w").write(s)
    print("wrote", out, "instrs", len(g.a.ins), "nops", g.a.nops_added, "vgpr high", g.va.high, "stamps", g.stnames)
```

```python
import sys, struct, math
from asmlib import *

KN = "sequential_preLN__spectral_gfnet__dense_activation_silu__prompt_kernel"
def fl(x): return "0x%08x" % struct.unpack("<I", struct.pack("<f", x))[0]

Z1 = 0x0; Z2 = 0x200000; HN = 0x400000; HH = 0x600000; HB = 0x800000; EPO = 0xE00000; STAMP = 0xE80000
WS_SIZE = 0xF00000
HCL = 4 * 44 * 1024
OOB = 0x40000000
HNL = 0; HROW = 1040; HTILE = 16 * HROW
EA = 2 * HTILE; EB = EA + 10752
STG = 4 * HTILE; STGW = 24320
RED = (0, HTILE)
LDS_SIZE = 163840
sX, sWR, sWI, sW1, sW2, sO, sWS = 8, 12, 16, 20, 24, 28, 32
sW, sS2, sK1, sC, sMem, sRot, sT0, sT1, sT2, sOnes, sMask, sEp, sCnt, sStg, sW1b, sW2b, sHb = range(36, 53)
sOff = 56
sKap = 68
sStamp = 80
SPIN = 4000

class Gen:
    def __init__(self, stamps=False, sched=None, amp=None):
        self.amp = amp
        self.a = Asm(); self.va = Alloc(1, 144); self.vb = Alloc(144, 252); self.stamps = stamps; self.nst = 0; self.stnames = []
        self.tail = []
        self.sched = sched or {}
        self.W2 = lambda i, t: 256 + (i * 4 + t) * 4
        def W1(ks, T):
            f = ks * 3 + T
            return 144 + f * 4 if f < 28 else 256 + 176 + (f - 28) * 4
        self.W1 = W1
        self.slots = {}; self.stg_used = []; self.stg_pend = []
    def stamp(self, name):
        if self.stamps:
            self.a(f"s_memrealtime {S(sStamp + 2 * self.nst, 2)}"); self.nst += 1; self.stnames.append(name)
    def sincos(self, c, s, ang):
        self.a(f"v_cos_f32 {R(c)}, {R(ang)}"); self.a(f"v_sin_f32 {R(s)}, {R(ang)}")
    def poll(self, name, loads, check):
        a = self.a
        Lr = a.label(name + "_retry"); Lo = a.label(name + "_ok")
        check()
        a(f"s_cbranch_vccnz {Lr}")
        a(Lo + ":")
        def tail():
            a.auto = False
            a(Lr + ":")
            a(f"s_mov_b32 {S(sCnt)}, 0")
            Ll = a.label(name + "_loop")
            a(Ll + ":")
            a("s_sleep 2")
            for l in loads: a(l)
            a("s_waitcnt vmcnt(0)")
            check()
            a(f"s_cbranch_vccz {Lo}")
            a(f"s_add_u32 {S(sCnt)}, {S(sCnt)}, 1")
            a(f"s_cmp_lt_u32 {S(sCnt)}, {SPIN}")
            a(f"s_cbranch_scc1 {Ll}")
            a(f"s_branch {Lo}")
        self.tail.append(tail)
    def check_sentinel(self, regs):
        a = self.a; t = self.vT
        def chk():
            r = list(regs)
            if len(r) % 2 == 0:
                a(f"v_max_u32 {R(t)}, {R(r[0])}, {R(r[1])}"); r = r[2:]
            else:
                a(f"v_max3_u32 {R(t)}, {R(r[0])}, {R(r[1])}, {R(r[2])}"); r = r[3:]
            while r:
                a(f"v_max3_u32 {R(t)}, {R(t)}, {R(r[0])}, {R(r[1])}"); r = r[2:]
            a(f"v_cmp_eq_u32 vcc, -1, {R(t)}")
        return chk
    def cmul(self, ore, oim, re, im, c, s, n, conj, bc=False, addend=None):
        a = self.a
        for k in range(0, n, 2):
            if bc:
                cc = R(c, 2); ss = R(c, 2); oc = " op_sel:[0,0%s] op_sel_hi:[1,0%s]"; os_ = " op_sel:[0,1,0] op_sel_hi:[1,1,1]"
            else:
                cc = R(c + k, 2); ss = R(s + k, 2); oc = None; os_ = ""
            for o, x in ((ore, re), (oim, im)):
                if addend is None:
                    a(f"v_pk_mul_f32 {R(o + k, 2)}, {R(x + k, 2)}, {cc}" + (oc % ("", "") if bc else ""))
                else:
                    assert not bc
                    a(f"v_pk_fma_f32 {R(o + k, 2)}, {R(x + k, 2)}, {cc}, {R(addend, 2)} op_sel_hi:[1,1,0] neg_lo:[0,0,1] neg_hi:[0,0,1]")
        for k in range(0, n, 2):
            ss = R(c, 2) if bc else R(s + k, 2)
            os_ = " op_sel:[0,1,0] op_sel_hi:[1,1,1]" if bc else ""
            neg = " neg_lo:[0,1,0] neg_hi:[0,1,0]"
            a(f"v_pk_fma_f32 {R(ore + k, 2)}, {R(im + k, 2)}, {ss}, {R(ore + k, 2)}" + os_ + (neg if conj else ""))
            a(f"v_pk_fma_f32 {R(oim + k, 2)}, {R(re + k, 2)}, {ss}, {R(oim + k, 2)}" + os_ + ("" if conj else neg))
    def stats(self, X, st, scale, mscale):
        a = self.a
        S0, S1, Q0, Q1 = st, st + 1, st + 2, st + 3
        for r in range(4):
            a(f"v_dot2c_f32_bf16 {R(S0)}, {S(sOnes)}, {R(X + r)}")
            a(f"v_dot2c_f32_bf16 {R(Q0)}, {R(X + r)}, {R(X + r)}")
            a(f"v_dot2c_f32_bf16 {R(S1)}, {S(sOnes)}, {R(X + 4 + r)}")
            a(f"v_dot2c_f32_bf16 {R(Q1)}, {R(X + 4 + r)}, {R(X + 4 + r)}")
        a(f"v_permlane32_swap_b32 {R(S0)}, {R(S1)}")
        a(f"v_permlane32_swap_b32 {R(Q0)}, {R(Q1)}")
        a(f"v_add_f32 {R(S0)}, {R(S0)}, {R(S1)}")
        a(f"v_add_f32 {R(Q0)}, {R(Q0)}, {R(Q1)}")
        a(f"v_permlane16_swap_b32 {R(S0)}, {R(Q0)}")
        a(f"v_add_f32 {R(S0)}, {R(S0)}, {R(Q0)}")
        for sh in (8, 4, 2, 1):
            a(f"v_add_f32_dpp {R(S0)}, {R(S0)}, {R(S0)} row_ror:{sh} row_mask:0xf bank_mask:0xf")
        a(f"v_mul_f32 {R(S0)}, {fl(1 / 512)}, {R(S0)}")
        a(f"v_mov_b32 {R(Q0)}, {R(S0)}")
        a(f"v_permlane16_swap_b32 {R(S0)}, {R(Q0)}")
        a(f"v_fma_f32 {R(Q0)}, -{R(S0)}, {R(S0)}, {R(Q0)}")
        a(f"v_max_f32 {R(Q0)}, 0, {R(Q0)}")
        a(f"v_add_f32 {R(Q0)}, {fl(1e-5)}, {R(Q0)}")
        a(f"v_rsq_f32 {R(Q0)}, {R(Q0)}")
        if mscale is not None: a(f"v_mul_f32 {R(S0)}, {R(mscale)}, {R(S0)}")
        if scale != 1.0: a(f"v_mul_f32 {R(Q0)}, {fl(scale)}, {R(Q0)}")
        a(f"v_mul_f32 {R(st + 4)}, {R(S0)}, {R(Q0)}")
        a(f"v_mov_b32 {R(st)}, {R(Q0)}")
        a(f"v_mov_b32 {R(st + 6)}, {R(st + 4)}")
        a(f"v_permlane32_swap_b32 {R(st)}, {R(st + 2)}")
        a(f"v_permlane32_swap_b32 {R(st + 4)}, {R(st + 6)}")
    def stg_alloc(self, size):
        off = 0
        for (o, s_) in sorted(self.stg_used):
            if off + size <= o: break
            off = o + s_
        assert off + size <= STGW, "staging overflow"
        self.stg_used.append((off, size))
        keep = []
        for (o, s_, tok) in self.stg_pend:
            if o < off + size and off < o + s_: self.a.wait_lg(tok)
            else: keep.append((o, s_, tok))
        self.stg_pend = keep
        return off
    def dma(self, item):
        a = self.a; kind, i = item
        size = 3072 if kind == 1 else 4096
        off = self.stg_alloc(size)
        a(f"s_add_u32 m0, {S(sStg)}, {off}")
        if kind == 1:
            a(f"s_xor_b32 {S(sT0)}, {S(sRot)}, {i}")
            a(f"s_mul_i32 {S(sT0)}, {S(sT0)}, {8 * 2752}")
            for p in range(3):
                tok = a(f"buffer_load_dwordx4 {R(self.vW1 + p)}, {S(sW1, 4)}, {S(sT0)} offen offset:{p * 1024} lds")
        else:
            a(f"s_lshl_b32 {S(sT0)}, {S(sKap + i)}, 5")
            for p in range(4):
                if p: a(f"s_add_u32 {S(sT0)}, {S(sT0)}, 7168")
                tok = a(f"buffer_load_dwordx4 {R(self.vW2)}, {S(sW2, 4)}, {S(sT0)} offen offset:{p * 1024} lds")
        self.slots[item] = (off, size, tok)
    def drain_list(self, item):
        a = self.a; kind, i = item
        off, size, tok = self.slots[item]
        out = [lambda: a.wait_vm(tok)]
        rd = []
        if kind == 1:
            for T in range(3):
                assert not any((self.W1(i, T) + q) in self.vb.used for q in range(4)), "w1 registers still in use"
                for h in range(2):
                    rd.append(f"ds_read_b64_tr_b16 {R(self.W1(i, T) + 2 * h, 2)}, {R(self.vTr1)} offset:{off + h * 1536 + 32 * T}")
        else:
            for t in range(4):
                for h in range(2):
                    rd.append(f"ds_read_b64_tr_b16 {R(self.W2(i, t) + 2 * h, 2)}, {R(self.vTr2 + t)} offset:{off + h * 1024}")
        for s_ in rd[:-1]: out.append(lambda s_=s_: a(s_))
        def last():
            t = a(rd[-1]); self.stg_used.remove((off, size)); self.stg_pend.append((off, size, t))
        out.append(last)
        return out
    def drain(self, item):
        for f in self.drain_list(item): f()
    def point(self, name):
        for op, item in self.sched.get(name, []):
            (self.dma if op == "dma" else self.drain)(item)
    def prologue(self):
        a = self.a; va = self.va
        self.stamp("entry")
        a(f"s_cmp_ge_u32 s2, 256\ns_cbranch_scc1 L_end")
        for reg, off in ((sX, 0), (sWS, 64), (sWR, 8), (sWI, 16), (sW1, 32), (sW2, 40), (sO, 48)):
            a(f"s_load_dwordx2 {S(reg, 2)}, s[0:1], {off}")
        for reg, n in ((sX, 2097152), (sWS, WS_SIZE), (sWR, 2048 * 514), (sWI, 2048 * 514), (sW1, 512 * 2752), (sW2, 1376 * 1024), (sO, 2097152)):
            a(f"s_mov_b32 {S(reg + 2)}, {n}\ns_mov_b32 {S(reg + 3)}, 0x20000")
        self.vL = va(1, "lane"); self.vLi = va(1, "li"); self.vG = va(1, "g"); self.vT = va(1, "T")
        L, Li, G, T = self.vL, self.vLi, self.vG, self.vT
        a(f"v_lshrrev_b32 {R(T)}, 6, v0")
        a(f"v_and_b32 {R(L)}, 63, v0")
        a(f"v_readfirstlane_b32 {S(sW)}, {R(T)}")
        a(f"v_and_b32 {R(Li)}, 15, v0")
        a(f"v_bfe_u32 {R(G)}, v0, 4, 2")
        a(f"s_and_b32 {S(sK1)}, s2, 7\ns_lshr_b32 {S(sC)}, s2, 3")
        a(f"s_lshl_b32 {S(sS2)}, {S(sK1)}, 5\ns_or_b32 {S(sS2)}, {S(sS2)}, {S(sC)}")
        a(f"s_and_b32 {S(sMem)}, {S(sC)}, 7")
        self.X = va(8, "X"); ad = va(1, "ad")
        a(f"v_lshlrev_b32 {R(ad)}, 2, {R(Li)}")
        a(f"v_lshl_add_u32 {R(ad)}, {R(G)}, 8, {R(ad)}")
        a(f"s_lshl_b32 {S(sT0)}, {S(sW)}, 19\ns_lshl_b32 {S(sT1)}, {S(sS2)}, 10")
        a(f"s_add_u32 {S(sOff)}, {S(sT0)}, {S(sT1)}\ns_add_u32 {S(sOff + 1)}, {S(sOff)}, 0x40000")
        self.vZero = va(1, "zero"); self.vEp = va(1, "ep")
        a(f"v_mov_b32 {R(self.vZero)}, 0")
        a("s_waitcnt lgkmcnt(0)")
        self.stamp("karg")
        for rho in range(2):
            for r in range(4):
                a(f"buffer_load_dword {R(self.X + 4 * rho + r)}, {R(ad)}, {S(sX, 4)}, {S(sOff + rho)} offen offset:{64 * r}")
        a(f"s_mov_b32 {S(sT0)}, {EPO}")
        a(f"buffer_load_dword {R(self.vEp)}, {R(self.vZero)}, {S(sWS, 4)}, {S(sT0)} offen sc1")
        va.free(ad)
        self.vNat = va(1, "nat"); self.vL16 = va(1, "l16")
        a(f"v_lshlrev_b32 {R(self.vNat)}, 6, {R(Li)}")
        a(f"v_lshl_add_u32 {R(self.vNat)}, {R(G)}, 4, {R(self.vNat)}")
        a(f"v_lshlrev_b32 {R(self.vL16)}, 4, {R(L)}")
        self.vM1 = va(4, "m1")
        for i in range(4): a(f"v_mov_b32 {R(self.vM1 + i)}, -1")
        a(f"s_lshl_b32 {S(sT0)}, {S(sS2)}, 13\ns_lshl_b32 {S(sT1)}, {S(sW)}, 11\ns_add_u32 {S(sOff + 2)}, {S(sT0)}, {S(sT1)}")
        self.clear(Z2)
        a("s_getpc_b64 s[4:5]")
        a(f"s_and_b32 {S(sT0)}, {S(sC)}, 3\ns_lshl_b32 {S(sT0)}, {S(sT0)}, 2\ns_add_u32 {S(sT0)}, {S(sT0)}, {S(sW)}\ns_lshl_b32 {S(sT0)}, {S(sT0)}, 11")
        a(f"v_lshl_add_u32 {R(T)}, {R(Li)}, 7, {S(sT0)}")
        self.vPf = va(1, "pf")
        a(f"global_load_dword {R(self.vPf)}, {R(T)}, s[4:5]")
        a(f"s_mov_b32 {S(sOnes)}, 0x3f803f80\ns_mov_b32 {S(sMask)}, 0x00030003")
    def clear(self, base):
        a = self.a
        a(f"s_add_u32 {S(sT0)}, {S(sOff + 2)}, {base}")
        for i in range(2):
            self.tokclr = a(f"buffer_store_dwordx4 {R(self.vM1, 4)}, {R(self.vL16)}, {S(sWS, 4)}, {S(sT0)} offen offset:{1024 * i} sc1")
    def clear_H(self):
        a = self.a; T = self.vT
        a(f"s_lshl_b32 {S(sT0)}, {S(sS2)}, 2\ns_add_u32 {S(sT0)}, {S(sT0)}, {S(sW)}\ns_mul_i32 {S(sT0)}, {S(sT0)}, 5632\ns_add_u32 {S(sT0)}, {S(sT0)}, {HB}")
        for i in range(4):
            a(f"buffer_store_dwordx4 {R(self.vM1, 4)}, {R(self.vL16)}, {S(sWS, 4)}, {S(sT0)} offen offset:{1024 * i} sc1")
        a(f"s_add_u32 {S(sT0)}, {S(sT0)}, 4096")
        a(f"buffer_store_dwordx4 {R(self.vM1, 4)}, {R(self.vL16)}, {S(sWS, 4)}, {S(sT0)} offen sc1")
        a(f"v_cmp_gt_u32 vcc, 32, {R(self.vL)}\nv_mov_b32 {R(T)}, {OOB}")
        a(f"v_cndmask_b32 {R(T)}, {R(T)}, {R(self.vL16)}, vcc")
        a(f"buffer_store_dwordx4 {R(self.vM1, 4)}, {R(T)}, {S(sWS, 4)}, {S(sT0)} offen offset:1024 sc1")
    def w_gather(self):
        a = self.a; va = self.va; Li, G, T = self.vLi, self.vG, self.vT
        self.Wraw = self.vb(24, "Wraw")
        for i in range(24): a(f"v_mov_b32 {R(self.Wraw + i)}, 0")
        k = va(1, "k"); j = va(1, "j"); aP = va(1, "aP"); aQ = va(4, "aQ"); aR = va(1, "aR")
        self.vJ = j
        a(f"v_and_b32 {R(k)}, 3, {R(Li)}")
        a(f"v_lshlrev_b32 {R(k)}, 3, {R(k)}")
        a(f"v_lshl_add_u32 {R(k)}, {R(G)}, 9, {R(k)}")
        a(f"s_lshl_b32 {S(sT0)}, {S(sW)}, 5\ns_add_u32 {S(sT0)}, {S(sT0)}, {S(sK1)}")
        a(f"v_add_u32 {R(k)}, {S(sT0)}, {R(k)}")
        a(f"v_lshrrev_b32 {R(j)}, 2, {R(Li)}")
        a(f"s_lshl_b32 {S(sT0)}, {S(sC)}, 2")
        a(f"v_add_u32 {R(j)}, {S(sT0)}, {R(j)}")
        a(f"v_mul_u32_u24 {R(aR)}, 514, {R(k)}")
        a(f"v_cmp_eq_u32 vcc, 0, {R(j)}")
        a(f"v_mov_b32 {R(T)}, 256")
        a(f"v_cndmask_b32 {R(T)}, {R(j)}, {R(T)}, vcc")
        a(f"v_lshl_add_u32 {R(aP)}, {R(T)}, 1, {R(aR)}")
        a(f"v_add_u32 {R(aR)}, 256, {R(aR)}")
        a(f"v_mov_b32 {R(T)}, {OOB}")
        a(f"v_cndmask_b32 {R(aR)}, {R(T)}, {R(aR)}, vcc")
        a(f"v_sub_u32 {R(T)}, 256, {R(j)}")
        a(f"v_lshlrev_b32 {R(T)}, 1, {R(T)}")
        a(f"s_movk_i32 {S(sT0)}, 514")
        for r in range(4):
            a(f"v_sub_u32 {R(aQ + r)}, {2048 - 128 * r}, {R(k)}")
            a(f"v_and_b32 {R(aQ + r)}, 2047, {R(aQ + r)}")
            a(f"v_mad_u32_u24 {R(aQ + r)}, {R(aQ + r)}, {S(sT0)}, {R(T)}")
        for r in range(4):
            so = "0" if r == 0 else S(sT0)
            if r: a(f"s_mov_b32 {S(sT0)}, {128 * 514 * r}")
            W = self.Wraw
            a(f"buffer_load_short_d16_hi {R(W + r)}, {R(aP)}, {S(sWR, 4)}, {so} offen")
            a(f"buffer_load_short_d16_hi {R(W + 4 + r)}, {R(aP)}, {S(sWI, 4)}, {so} offen")
            a(f"buffer_load_short_d16_hi {R(W + 8 + r)}, {R(aQ + r)}, {S(sWR, 4)}, 0 offen")
            a(f"buffer_load_short_d16_hi {R(W + 12 + r)}, {R(aQ + r)}, {S(sWI, 4)}, 0 offen")
            a(f"buffer_load_short_d16_hi {R(W + 16 + r)}, {R(aR)}, {S(sWR, 4)}, {so} offen")
            a(f"buffer_load_short_d16_hi {R(W + 20 + r)}, {R(aR)}, {S(sWI, 4)}, {so} offen")
        va.free(k, aP, aQ, aR)
    def w_coefs(self):
        a = self.a; va = self.va; T = self.vT; j = self.vJ; W = self.Wraw
        sc = 2.0 ** -19
        c = va(1, "c"); s = va(1, "s"); al = va(1, "al"); be = va(1, "be"); al2 = va(1, "al2"); be2 = va(1, "be2")
        a(f"v_cvt_f32_u32 {R(T)}, {R(j)}")
        a(f"v_mul_f32 {R(T)}, {fl(1 / 512)}, {R(T)}")
        self.sincos(c, s, T)
        a(f"v_cmp_eq_u32 vcc, 0, {R(j)}")
        a(f"v_mul_f32 {R(c)}, {fl(sc / 2)}, {R(c)}")
        a(f"v_mul_f32 {R(s)}, {fl(sc / 2)}, {R(s)}")
        a(f"v_sub_f32 {R(al)}, {fl(sc / 2)}, {R(s)}")
        a(f"v_add_f32 {R(be)}, {fl(sc / 2)}, {R(s)}")
        a(f"v_cndmask_b32 {R(c)}, {R(c)}, {R(self.vZero)}, vcc")
        a(f"v_cndmask_b32 {R(al2)}, {R(al)}, {R(self.vZero)}, vcc")
        a(f"v_cndmask_b32 {R(be2)}, {R(be)}, {R(self.vZero)}, vcc")
        self.CF = self.vb(16, "CF")
        A1r, A1i, Br, Bi = self.CF, self.CF + 4, self.CF + 8, self.CF + 12
        Pr, Pi, Qr, Qi, Rr, Ri = (W + 4 * i for i in range(6))
        for r in range(4):
            a(f"v_mul_f32 {R(A1r + r)}, {R(al)}, {R(Pr + r)}")
            a(f"v_mul_f32 {R(A1i + r)}, {R(al)}, {R(Pi + r)}")
            a(f"v_add_f32 {R(Br + r)}, {R(Pi + r)}, {R(Qi + r)}")
            a(f"v_sub_f32 {R(Bi + r)}, {R(Pr + r)}, {R(Qr + r)}")
            a(f"v_mul_f32 {R(Rr + r)}, {fl(sc)}, {R(Rr + r)}")
            a(f"v_mul_f32 {R(Ri + r)}, {fl(sc)}, {R(Ri + r)}")
            a(f"v_fmac_f32 {R(A1r + r)}, {R(be)}, {R(Qr + r)}")
            a(f"v_fma_f32 {R(A1i + r)}, -{R(be)}, {R(Qi + r)}, {R(A1i + r)}")
            a(f"v_mul_f32 {R(Br + r)}, -{R(c)}, {R(Br + r)}")
            a(f"v_mul_f32 {R(Bi + r)}, {R(c)}, {R(Bi + r)}")
            a(f"v_fmac_f32 {R(Rr + r)}, {R(be2)}, {R(Pr + r)}")
            a(f"v_fmac_f32 {R(Ri + r)}, {R(be2)}, {R(Pi + r)}")
            a(f"v_fmac_f32 {R(Rr + r)}, {R(al2)}, {R(Qr + r)}")
            a(f"v_fma_f32 {R(Ri + r)}, -{R(al2)}, {R(Qi + r)}, {R(Ri + r)}")
        va.free(c, s, al, be, al2, be2, j)
    def tables_p1(self):
        a = self.a; va = self.va; Li, G, T = self.vLi, self.vG, self.vT
        self.M = va(8, "M"); self.M2 = va(8, "M2"); self.TW = va(8, "TW"); self.Gm = va(8, "G")
        p = va(1, "p"); c = va(1, "c"); s = va(1, "s"); u = va(1, "u")
        a(f"v_mul_u32_u24 {R(p)}, {R(Li)}, {R(G)}")
        a(f"v_lshlrev_b32 {R(p)}, 2, {R(p)}")
        for r in range(4):
            if r: a(f"v_add_u32 {R(p)}, {R(p)}, {R(Li)}")
            a(f"v_and_b32 {R(T)}, 15, {R(p)}")
            a(f"v_cvt_f32_u32 {R(u)}, {R(p)}")
            a(f"v_cvt_f32_u32 {R(T)}, {R(T)}")
            a(f"v_mul_f32 {R(u)}, {fl(1 / 256)}, {R(u)}")
            a(f"v_mul_f32 {R(T)}, {fl(1 / 16)}, {R(T)}")
            self.sincos(c, s, T)
            self.sincos(self.TW + r, self.TW + 4 + r, u)
            a(f"v_cvt_pk_bf16_f32 {R(self.M + r)}, {R(c)}, {R(s)}")
            a(f"v_cvt_pk_bf16_f32 {R(self.M + 4 + r)}, -{R(s)}, {R(c)}")
            a(f"v_cvt_pk_f16_f32 {R(self.M2 + r)}, {R(c)}, {R(s)}")
            a(f"v_cvt_pk_f16_f32 {R(self.M2 + 4 + r)}, -{R(s)}, {R(c)}")
        k1 = va(1, "k1"); msk = va(1, "msk"); sg = va(1, "sg")
        a(f"v_lshrrev_b32 {R(k1)}, 1, {R(Li)}")
        a(f"v_and_b32 {R(p)}, 1, {R(G)}")
        a(f"v_lshlrev_b32 {R(p)}, 10, {R(p)}")
        a(f"v_add_u32 {R(p)}, {S(sS2)}, {R(p)}")
        a(f"v_mul_u32_u24 {R(p)}, {R(p)}, {R(k1)}")
        a(f"v_lshlrev_b32 {R(k1)}, 8, {R(k1)}")
        a(f"v_lshrrev_b32 {R(msk)}, 1, {R(G)}")
        a(f"v_xor_b32 {R(msk)}, {R(msk)}, {R(Li)}")
        a(f"v_and_b32 {R(msk)}, 1, {R(msk)}")
        a(f"v_add_u32 {R(msk)}, -1, {R(msk)}")
        a(f"v_lshlrev_b32 {R(sg)}, 31, {R(Li)}")
        for r in range(4):
            if r: a(f"v_add_u32 {R(p)}, {R(p)}, {R(k1)}")
            a(f"v_and_b32 {R(T)}, 2047, {R(p)}")
            a(f"v_cvt_f32_u32 {R(T)}, {R(T)}")
            a(f"v_mul_f32 {R(T)}, {fl(1 / 2048)}, {R(T)}")
            self.sincos(c, s, T)
            a(f"v_cvt_pk_f16_f32 {R(self.Gm + r)}, {R(c)}, {R(s)}")
            a(f"v_cvt_pk_f16_f32 {R(self.Gm + 4 + r)}, -{R(s)}, {R(c)}")
            for q in (self.Gm + r, self.Gm + 4 + r):
                a(f"v_bitop3_b32 {R(q)}, {R(q)}, {R(sg)}, {R(msk)} bitop3:0x28")
        va.free(k1, msk, sg, p, c, s, u)
        self.aE1w = va(1, "aE1w"); self.aE1r = va(2, "aE1r"); self.aZ1 = va(1, "aZ1"); self.v16 = va(1, "m16")
        a(f"s_lshr_b32 {S(sT0)}, {S(sW)}, 1\ns_lshl_b32 {S(sT0)}, {S(sT0)}, 12\ns_and_b32 {S(sT1)}, {S(sW)}, 1\ns_lshl_b32 {S(sT1)}, {S(sT1)}, 3")
        a(f"s_add_u32 {S(sT0)}, {S(sT0)}, {S(sT1)}\ns_add_u32 {S(sT0)}, {S(sT0)}, {EA}")
        a(f"v_lshl_add_u32 {R(self.aE1w)}, {R(Li)}, 4, {S(sT0)}")
        a(f"v_lshl_add_u32 {R(self.aE1w)}, {R(G)}, 10, {R(self.aE1w)}")
        c = va(1, "c"); hh = va(1, "hh")
        a(f"v_and_b32 {R(hh)}, 1, {R(G)}")
        a(f"v_lshlrev_b32 {R(hh)}, 12, {R(hh)}")
        a(f"v_add_u32 {R(hh)}, {EA}, {R(hh)}")
        a(f"s_lshl_b32 {S(sT0)}, {S(sW)}, 5")
        for t in range(2):
            q = self.aE1r + t
            if t: a(f"s_add_u32 {S(sT0)}, {S(sT0)}, 16")
            a(f"v_add_u32 {R(q)}, {S(sT0)}, {R(Li)}")
            a(f"v_sub_u32 {R(c)}, 256, {R(q)}")
            a(f"v_cmp_eq_u32 vcc, 0, {R(q)}")
            a(f"v_mov_b32 {R(T)}, 128")
            a(f"v_cndmask_b32 {R(c)}, {R(c)}, {R(T)}, vcc")
            a(f"v_cmp_lt_u32 vcc, 1, {R(G)}")
            a(f"v_cndmask_b32 {R(q)}, {R(q)}, {R(c)}, vcc")
            a(f"v_lshl_add_u32 {R(q)}, {R(q)}, 4, {R(hh)}")
        a(f"v_lshrrev_b32 {R(c)}, 1, {R(Li)}")
        a(f"v_lshlrev_b32 {R(c)}, 10, {R(c)}")
        a(f"v_lshl_add_u32 {R(c)}, {R(G)}, 5, {R(c)}")
        a(f"v_and_b32 {R(T)}, 1, {R(Li)}")
        a(f"v_lshl_add_u32 {R(self.aZ1)}, {R(T)}, 4, {R(c)}")
        a(f"v_cmp_eq_u32 vcc, 0, {R(Li)}")
        a(f"v_mov_b32 {R(T)}, {fl(16.0)}")
        a(f"v_cndmask_b32 {R(self.v16)}, {R(self.vZero)}, {R(T)}, vcc")
        va.free(c, hh)
        self.ST = va(8, "ST")
        for i in range(4): a(f"v_mov_b32 {R(self.ST + i)}, 0")
    def tags(self):
        a = self.a; va = self.va; Li, T = self.vLi, self.vT
        a(f"v_readfirstlane_b32 {S(sEp)}, {R(self.vEp)}")
        a(f"s_add_u32 {S(sT0)}, {S(sEp)}, 1\ns_and_b32 {S(sT0)}, {S(sT0)}, 15")
        a(f"s_and_b32 {S(sEp)}, {S(sEp)}, 0xfffffff0")
        a(f"s_and_b32 {S(sT1)}, {S(sEp)}, 0xfffeffff\ns_or_b32 {S(sT1)}, {S(sT1)}, 0x00100010")
        a(f"s_or_b32 {S(sEp)}, {S(sEp)}, {S(sT0)}")
        self.TG = va(4, "TG"); self.TG2 = va(1, "TG2"); u = self.vEp
        def nib(dst, sh):
            a(f"v_lshrrev_b32 {R(dst)}, {R(sh)}, {S(sT1)}")
            a(f"v_add_u32 {R(dst)}, {S(sT0)}, {R(dst)}")
            a(f"v_bfe_u32 {R(T)}, {R(dst)}, 2, 2")
            a(f"v_and_b32 {R(dst)}, 3, {R(dst)}")
            a(f"v_lshl_or_b32 {R(dst)}, {R(T)}, 16, {R(dst)}")
        a(f"v_and_b32 {R(u)}, 1, {R(Li)}")
        a(f"v_lshlrev_b32 {R(u)}, 4, {R(u)}")
        for r in range(4):
            if r: a(f"v_add_u32 {R(u)}, 4, {R(u)}")
            nib(self.TG + r, u)
        a(f"v_and_b32 {R(u)}, 7, {R(Li)}")
        a(f"v_lshlrev_b32 {R(u)}, 2, {R(u)}")
        nib(self.TG2, u)
        va.free(self.vEp)
    def p1(self):
        a = self.a; va = self.va; X = self.X; M = self.M; M2 = self.M2; ST = self.ST
        D = va(16, "D"); E = va(16, "E"); cs = va(8, "cs")
        for rho in range(2):
            for ri in range(2):
                a(f"v_mfma_f32_16x16x32_bf16 {R(D + 8 * rho + 4 * ri, 4)}, {R(X + 4 * rho, 4)}, {R(M + 4 * ri, 4)}, 0")
        self.stamp("x_in")
        self.stats(X, ST, 1.0, self.v16)
        for rho in range(2):
            for k in range(0, 8, 2):
                a(f"v_pk_mul_f32 {R(cs + k, 2)}, {R(self.TW + k, 2)}, {R(ST + 2 * rho, 2)} op_sel_hi:[1,0]")
            self.cmul(E + 8 * rho, E + 8 * rho + 4, D + 8 * rho, D + 8 * rho + 4, cs, cs + 4, 4, False, addend=ST + 4 + 2 * rho)
            for r in range(4):
                a(f"v_cvt_pk_f16_f32 {R(X + 4 * rho + r)}, {R(E + 8 * rho + r)}, {R(E + 8 * rho + 4 + r)}")
            for ri in range(2):
                a(f"v_mfma_f32_16x16x32_f16 {R(D + 8 * rho + 4 * ri, 4)}, {R(M2 + 4 * ri, 4)}, {R(X + 4 * rho, 4)}, 0")
        for r in range(4):
            for rho in range(2):
                a(f"v_cvt_pk_f16_f32 {R(E + 2 * r + rho)}, {R(D + 8 * rho + r)}, {R(D + 8 * rho + 4 + r)}")
            a(f"ds_write_b64 {R(self.aE1w)}, {R(E + 2 * r, 2)} offset:{256 * r}")
        a.wait_vm(self.tokclr)
        a.barrier()
        for t in range(2):
            a(f"ds_read_b128 {R(X + 4 * t, 4)}, {R(self.aE1r + t)}")
        a(f"s_lshl_b32 {S(sT0)}, {S(sS2)}, 13\ns_lshl_b32 {S(sT1)}, {S(sW)}, 8\ns_add_u32 {S(sT0)}, {S(sT0)}, {S(sT1)}")
        for t in range(2):
            for ri in range(2):
                a(f"v_mfma_f32_16x16x32_f16 {R(D + 8 * t + 4 * ri, 4)}, {R(X + 4 * t, 4)}, {R(self.Gm + 4 * ri, 4)}, 0")
        for t in range(2):
            for r in range(4):
                a(f"v_cvt_pk_f16_f32 {R(E + 4 * t + r)}, {R(D + 8 * t + r)}, {R(D + 8 * t + 4 + r)}")
            for r in range(4):
                a(f"v_bfi_b32 {R(E + 4 * t + r)}, {S(sMask)}, {R(self.TG + r)}, {R(E + 4 * t + r)}")
            a(f"buffer_store_dwordx4 {R(E + 4 * t, 4)}, {R(self.aZ1)}, {S(sWS, 4)}, {S(sT0)} offen offset:{128 * t} sc1")
        self.stamp("z1_st")
        va.free(D, E, cs, X, self.Gm, self.aE1w, self.aE1r, self.aZ1, self.v16, self.TG)
    def tables_p2(self):
        a = self.a; va = self.va; Li, G, T = self.vLi, self.vG, self.vT
        self.TF = va(4, "TF"); self.TI = va(8, "TI")
        p = va(1, "p")
        a(f"s_lshl_b32 {S(sT0)}, {S(sW)}, 2")
        a(f"v_and_b32 {R(p)}, 2, {R(G)}")
        a(f"v_add_u32 {R(p)}, {S(sT0)}, {R(p)}")
        a(f"v_mul_u32_u24 {R(p)}, {R(p)}, {R(Li)}")
        for t in range(2):
            if t: a(f"v_add_u32 {R(p)}, {R(p)}, {R(Li)}")
            a(f"v_cvt_f32_u32 {R(T)}, {R(p)}")
            a(f"v_mul_f32 {R(T)}, {fl(1 / 256)}, {R(T)}")
            self.sincos(self.TF + 2 * t, self.TF + 2 * t + 1, T)
        a(f"v_mul_u32_u24 {R(p)}, {S(sT0)}, {R(Li)}")
        for r in range(4):
            if r: a(f"v_add_u32 {R(p)}, {R(p)}, {R(Li)}")
            a(f"v_cvt_f32_u32 {R(T)}, {R(p)}")
            a(f"v_mul_f32 {R(T)}, {fl(1 / 256)}, {R(T)}")
            self.sincos(self.TI + r, self.TI + 4 + r, T)
        self.aG1 = va(1, "aG1"); self.aE2w = va(1, "aE2w"); self.aE2r = va(1, "aE2r"); self.aE3w = va(1, "aE3w"); self.aE3r = va(1, "aE3r"); self.aZ2 = va(1, "aZ2")
        col = va(1, "col"); bp = va(1, "bp")
        a(f"v_and_b32 {R(col)}, 7, {R(Li)}")
        a(f"v_lshrrev_b32 {R(bp)}, 3, {R(Li)}")
        a(f"v_lshlrev_b32 {R(p)}, 2, {R(col)}")
        a(f"v_lshl_add_u32 {R(p)}, {R(G)}, 19, {R(p)}")
        a(f"v_lshl_add_u32 {R(self.aG1)}, {R(bp)}, 14, {R(p)}")
        self.aG2 = va(1, "aG2")
        a(f"v_lshl_add_u32 {R(self.aG2)}, {R(bp)}, 13, {R(p)}")
        a(f"s_mul_i32 {S(sT0)}, {S(sW)}, 2560\ns_add_u32 {S(sT0)}, {S(sT0)}, {EB}")
        a(f"v_and_b32 {R(p)}, 1, {R(G)}")
        a(f"v_mul_u32_u24 {R(p)}, 1280, {R(p)}")
        a(f"v_lshl_add_u32 {R(p)}, {R(Li)}, 4, {R(p)}")
        a(f"v_and_b32 {R(T)}, 2, {R(G)}")
        a(f"v_lshl_add_u32 {R(p)}, {R(T)}, 2, {R(p)}")
        a(f"v_add_u32 {R(self.aE2w)}, {S(sT0)}, {R(p)}")
        a(f"s_lshl_b32 {S(sT1)}, {S(sW)}, 6\ns_add_u32 {S(sT0)}, {S(sT1)}, {EB}")
        a(f"v_mul_u32_u24 {R(p)}, 2560, {R(G)}")
        a(f"v_lshrrev_b32 {R(T)}, 2, {R(Li)}")
        a(f"v_mul_u32_u24 {R(T)}, 320, {R(T)}")
        a(f"v_add3_u32 {R(p)}, {R(p)}, {R(T)}, {S(sT0)}")
        a(f"v_and_b32 {R(T)}, 3, {R(Li)}")
        a(f"v_lshl_add_u32 {R(self.aE2r)}, {R(T)}, 4, {R(p)}")
        a(f"s_mul_i32 {S(sT0)}, {S(sW)}, 2304\ns_add_u32 {S(sT0)}, {S(sT0)}, {EA}")
        a(f"v_mul_u32_u24 {R(p)}, 288, {R(G)}")
        a(f"v_lshl_add_u32 {R(p)}, {R(Li)}, 4, {R(p)}")
        a(f"v_add_u32 {R(self.aE3w)}, {S(sT0)}, {R(p)}")
        a(f"s_add_u32 {S(sT0)}, {S(sT1)}, {EA}")
        a(f"v_mul_u32_u24 {R(p)}, 2304, {R(G)}")
        a(f"v_mul_u32_u24 {R(T)}, 288, {R(col)}")
        a(f"v_add3_u32 {R(p)}, {R(p)}, {R(T)}, {S(sT0)}")
        a(f"v_lshl_add_u32 {R(self.aE3r)}, {R(bp)}, 4, {R(p)}")
        a(f"v_lshlrev_b32 {R(p)}, 9, {R(Li)}")
        a(f"v_lshl_add_u32 {R(self.aZ2)}, {R(G)}, 4, {R(p)}")
        va.free(p, col, bp)
        a(f"s_lshl_b32 {S(sT0)}, {S(sW)}, 15\ns_lshl_b32 {S(sT1)}, {S(sK1)}, 10\ns_add_u32 {S(sT0)}, {S(sT0)}, {S(sT1)}")
        a(f"s_lshl_b32 {S(sT1)}, {S(sC)}, 5\ns_add_u32 {S(sT0)}, {S(sT0)}, {S(sT1)}")
        for t in range(2):
            for r in range(4):
                a(f"s_add_u32 {S(sOff + 4 + 4 * t + r)}, {S(sT0)}, {Z1 + (16 * r + t) * 8192}")
    def p2_gather(self):
        a = self.a; va = self.va
        self.Y = va(8, "Y")
        self.g1 = [f"buffer_load_dword {R(self.Y + i)}, {R(self.aG1)}, {S(sWS, 4)}, {S(sOff + 4 + i)} offen sc1" for i in range(8)]
        for l in self.g1: a(l)
    def p2(self):
        a = self.a; va = self.va; Y = self.Y; M = self.M; M2 = self.M2; T = self.vT
        def chk():
            for i in range(8): a(f"v_xor_b32 {R(Y + i)}, {R(self.TG2)}, {R(Y + i)}")
            a(f"v_or3_b32 {R(T)}, {R(Y)}, {R(Y + 1)}, {R(Y + 2)}")
            a(f"v_or3_b32 {R(T)}, {R(T)}, {R(Y + 3)}, {R(Y + 4)}")
            a(f"v_or3_b32 {R(T)}, {R(T)}, {R(Y + 5)}, {R(Y + 6)}")
            a(f"v_bitop3_b32 {R(T)}, {R(T)}, {R(Y + 7)}, {S(sMask)} bitop3:0xa8")
            a(f"v_cmp_ne_u32 vcc, 0, {R(T)}")
        self.poll("z1", self.g1, chk)
        self.stamp("z1_in")
        D = va(16, "D"); E = va(16, "E")
        for t in range(2):
            for ri in range(2):
                a(f"v_mfma_f32_16x16x32_f16 {R(D + 8 * t + 4 * ri, 4)}, {R(Y + 4 * t, 4)}, {R(M2 + 4 * ri, 4)}, 0")
        self.point("p2_start")
        for t in range(2):
            self.cmul(E + 8 * t, E + 8 * t + 4, D + 8 * t, D + 8 * t + 4, self.TF + 2 * t, None, 4, False, bc=True)
        for r in range(4):
            for t in range(2):
                a(f"v_cvt_pk_f16_f32 {R(Y + 2 * r + t)}, {R(E + 8 * t + r)}, {R(E + 8 * t + 4 + r)}")
            a(f"ds_write_b64 {R(self.aE2w)}, {R(Y + 2 * r, 2)} offset:{320 * r}")
        a.barrier()
        for uv in range(2):
            a(f"ds_read_b128 {R(Y + 4 * uv, 4)}, {R(self.aE2r)} offset:{1280 * uv}")
        Ls = a.label("noep")
        a(f"s_or_b32 {S(sT0)}, s2, {S(sW)}\ns_cmp_lg_u32 {S(sT0)}, 0\ns_cselect_b32 {S(sT0)}, {OOB}, {EPO}")
        a(f"v_mov_b32 {R(T)}, {S(sEp)}")
        a(f"buffer_store_dword {R(T)}, {R(self.vZero)}, {S(sWS, 4)}, {S(sT0)} offen sc1")
        for uv in range(2):
            for ri in range(2):
                a(f"v_mfma_f32_16x16x32_f16 {R(D + 8 * uv + 4 * ri, 4)}, {R(M2 + 4 * ri, 4)}, {R(Y + 4 * uv, 4)}, 0")
        Ur, Ui, Vr, Vi = D, D + 4, D + 8, D + 12
        A1r, A1i, Br, Bi = self.CF, self.CF + 4, self.CF + 8, self.CF + 12
        A2r, A2i = self.Wraw + 16, self.Wraw + 20
        neg = " neg_lo:[0,1,0] neg_hi:[0,1,0]"
        terms = [(E, [(Ur, A1r, 0), (Ui, A1i, 1), (Vr, Br, 0), (Vi, Bi, 1)]),
                 (E + 4, [(Ur, A1i, 0), (Ui, A1r, 0), (Vr, Bi, 0), (Vi, Br, 0)]),
                 (E + 8, [(Ui, Bi, 0), (Ur, Br, 1), (Vr, A2r, 0), (Vi, A2i, 1)]),
                 (E + 12, [(Vr, A2i, 0), (Ur, Bi, 1), (Ui, Br, 1), (Vi, A2r, 0)])]
        for step in range(4):
            for o, tl in terms:
                x, cf, ng = tl[step]
                for k in (0, 2):
                    if step == 0: a(f"v_pk_mul_f32 {R(o + k, 2)}, {R(x + k, 2)}, {R(cf + k, 2)}")
                    else: a(f"v_pk_fma_f32 {R(o + k, 2)}, {R(x + k, 2)}, {R(cf + k, 2)}, {R(o + k, 2)}" + (neg if ng else ""))
        for uv in range(2):
            for r in range(4):
                a(f"v_cvt_pk_bf16_f32 {R(Y + 4 * uv + r)}, {R(E + 8 * uv + 4 + r)}, {R(E + 8 * uv + r)}")
            for ri in range(2):
                a(f"v_mfma_f32_16x16x32_bf16 {R(D + 8 * uv + 4 * ri, 4)}, {R(Y + 4 * uv, 4)}, {R(M + 4 * (1 - ri), 4)}, 0")
        for uv in range(2):
            self.cmul(E + 8 * uv, E + 8 * uv + 4, D + 8 * uv, D + 8 * uv + 4, self.TI, self.TI + 4, 4, True)
            for r in range(4):
                a(f"v_cvt_pk_bf16_f32 {R(Y + 4 * uv + r)}, {R(E + 8 * uv + 4 + r)}, {R(E + 8 * uv + r)}")
            a(f"ds_write_b128 {R(self.aE3w)}, {R(Y + 4 * uv, 4)} offset:{1152 * uv}")
        a.barrier()
        for t in range(2):
            a(f"ds_read_b128 {R(Y + 4 * t, 4)}, {R(self.aE3r)} offset:{32 * t}")
        a(f"s_lshl_b32 {S(sT0)}, {S(sS2)}, 13\ns_lshl_b32 {S(sT1)}, {S(sW)}, 7\ns_add_u32 {S(sT0)}, {S(sT0)}, {S(sT1)}\ns_add_u32 {S(sT0)}, {S(sT0)}, {Z2}")
        for t in range(2):
            for ri in range(2):
                a(f"v_mfma_f32_16x16x32_bf16 {R(D + 8 * t + 4 * ri, 4)}, {R(Y + 4 * t, 4)}, {R(M + 4 * (1 - ri), 4)}, 0")
        for t in range(2):
            for r in range(4):
                a(f"v_cvt_pk_bf16_f32 {R(E + 4 * t + r)}, {R(D + 8 * t + r)}, {R(D + 8 * t + 4 + r)}")
            a(f"buffer_store_dwordx4 {R(E + 4 * t, 4)}, {R(self.aZ2)}, {S(sWS, 4)}, {S(sT0)} offen offset:{64 * t} sc1")
        self.stamp("z2_st")
        self.vb.free(self.CF, self.Wraw)
        va.free(D, E, Y, self.TF, self.TI, self.M2, self.TG2, self.aG1, self.aE2w, self.aE2r, self.aE3w, self.aE3r, self.aZ2)
    def xnat_load(self):
        a = self.a; va = self.va
        self.XN = va(8, "XN")
        for rho in range(2):
            a(f"buffer_load_dwordx4 {R(self.XN + 4 * rho, 4)}, {R(self.vNat)}, {S(sX, 4)}, {S(sOff + rho)} offen")
    def tables_p3(self):
        a = self.a; va = self.va; Li, G, T = self.vLi, self.vG, self.vT
        self.M4 = va(8, "M4"); self.Gi = va(2, "Gi"); self.XC = va(16, "XC")
        self.aE4w = va(4, "aE4w"); self.aE4r = va(2, "aE4r")
        p = va(1, "p"); c = va(1, "c"); s = va(1, "s"); u = va(1, "u")
        a(f"v_and_b32 {R(p)}, 2, {R(G)}")
        a(f"v_lshlrev_b32 {R(p)}, 14, {R(p)}")
        for i in range(8): a(f"v_xor_b32 {R(self.M4 + i)}, {R(p)}, {R(self.M + i)}")
        a(f"v_lshrrev_b32 {R(u)}, 1, {R(Li)}")
        a(f"v_lshl_add_u32 {R(u)}, {R(u)}, 8, {S(sS2)}")
        a(f"v_mul_u32_u24 {R(p)}, {R(u)}, {R(G)}")
        a(f"v_lshlrev_b32 {R(p)}, 1, {R(p)}")
        a(f"v_and_b32 {R(T)}, 1, {R(Li)}")
        a(f"v_cmp_eq_u32 vcc, 1, {R(T)}")
        for rho in range(2):
            if rho: a(f"v_add_u32 {R(p)}, {R(p)}, {R(u)}")
            a(f"v_and_b32 {R(T)}, 2047, {R(p)}")
            a(f"v_cvt_f32_u32 {R(T)}, {R(T)}")
            a(f"v_mul_f32 {R(T)}, {fl(1 / 2048)}, {R(T)}")
            self.sincos(c, s, T)
            a(f"v_cvt_pk_bf16_f32 {R(T)}, {R(c)}, -{R(s)}")
            a(f"v_cvt_pk_bf16_f32 {R(c)}, {R(s)}, {R(c)}")
            a(f"v_cndmask_b32 {R(self.Gi + rho)}, {R(T)}, {R(c)}, vcc")
        a(f"v_mul_u32_u24 {R(u)}, 2624, {R(G)}")
        a(f"v_add_u32 {R(u)}, {EB}, {R(u)}")
        a(f"v_lshrrev_b32 {R(p)}, 3, {R(Li)}")
        a(f"v_and_b32 {R(T)}, 3, {R(Li)}")
        a(f"v_lshl_add_u32 {R(p)}, {R(p)}, 2, {R(T)}")
        a(f"s_lshl_b32 {S(sT0)}, {S(sW)}, 5")
        a(f"v_add_u32 {R(p)}, {S(sT0)}, {R(p)}")
        a(f"v_sub_u32 {R(c)}, 256, {R(p)}")
        a(f"v_and_b32 {R(T)}, 4, {R(Li)}")
        a(f"v_cmp_ne_u32 s[4:5], 0, {R(T)}")
        for t in range(4):
            q = self.aE4w + t
            if t:
                a(f"v_add_u32 {R(p)}, 8, {R(p)}\nv_add_u32 {R(c)}, -8, {R(c)}")
                a(f"v_cndmask_b32 {R(q)}, {R(p)}, {R(c)}, s[4:5]")
            else:
                a(f"v_cmp_eq_u32 vcc, 0, {R(p)}\nv_mov_b32 {R(T)}, 128")
                a(f"v_cndmask_b32 {R(T)}, {R(c)}, {R(T)}, vcc")
                a(f"v_cndmask_b32 {R(q)}, {R(p)}, {R(T)}, s[4:5]")
            a(f"v_lshrrev_b32 {R(T)}, 6, {R(q)}")
            a(f"v_lshl_add_u32 {R(q)}, {R(T)}, 4, {R(q)}")
            a(f"v_lshl_add_u32 {R(q)}, {R(q)}, 2, {R(u)}")
        a(f"s_mul_i32 {S(sT0)}, {S(sW)}, 2624\ns_add_u32 {S(sT0)}, {S(sT0)}, {EB}")
        a(f"v_mul_u32_u24 {R(p)}, 320, {R(G)}")
        a(f"v_lshl_add_u32 {R(p)}, {R(Li)}, 2, {R(p)}")
        a(f"v_add_u32 {R(self.aE4r)}, {S(sT0)}, {R(p)}")
        a(f"v_add_u32 {R(self.aE4r + 1)}, 1280, {R(self.aE4r)}")
        va.free(p, c, s, u)
        for rho in range(2):
            for r in range(4):
                a(f"v_lshlrev_b32 {R(self.XC + 8 * rho + r)}, 16, {R(self.XN + 4 * rho + r)}")
                a(f"v_and_b32 {R(self.XC + 8 * rho + 4 + r)}, 0xffff0000, {R(self.XN + 4 * rho + r)}")
        va.free(self.XN)
        for i in range(4): a(f"v_mov_b32 {R(self.ST + i)}, 0")
        a(f"s_lshl_b32 {S(sT0)}, {S(sW)}, 16\ns_lshl_b32 {S(sT1)}, {S(sS2)}, 5\ns_add_u32 {S(sT0)}, {S(sT0)}, {S(sT1)}")
        for t in range(4):
            for rho in range(2):
                a(f"s_add_u32 {S(sOff + 4 + 2 * t + rho)}, {S(sT0)}, {Z2 + (32 * rho + 2 * t) * 8192}")
    def p3_gather(self):
        a = self.a; va = self.va
        self.Y = va(8, "Y")
        self.g2 = [f"buffer_load_dword {R(self.Y + i)}, {R(self.aG2)}, {S(sWS, 4)}, {S(sOff + 4 + i)} offen sc1" for i in range(8)]
        for l in self.g2: a(l)
    def p3(self):
        a = self.a; va = self.va; Y = self.Y; M = self.M; M4 = self.M4; ST = self.ST; XC = self.XC
        self.poll("z2", self.g2, self.check_sentinel(range(Y, Y + 8)))
        self.stamp("z2_in")
        D = va(16, "D"); E = va(16, "E")
        for t in range(4):
            a(f"v_mfma_f32_16x16x16_bf16 {R(D + 4 * t, 4)}, {R(self.Gi, 2)}, {R(Y + 2 * t, 2)}, 0")
        self.point("p3_start")
        for t in range(4):
            a(f"v_cvt_pk_bf16_f32 {R(E + 2 * t)}, {R(D + 4 * t + 1)}, {R(D + 4 * t)}")
            a(f"v_cvt_pk_bf16_f32 {R(E + 2 * t + 1)}, {R(D + 4 * t + 3)}, {R(D + 4 * t + 2)}")
            a(f"ds_write2st64_b32 {R(self.aE4w + t)}, {R(E + 2 * t)}, {R(E + 2 * t + 1)} offset0:0 offset1:5")
        a.barrier()
        for rho in range(2):
            for h in range(2):
                a(f"ds_read2_b32 {R(Y + 4 * rho + 2 * h, 2)}, {R(self.aE4r + rho)} offset0:{32 * h} offset1:{32 * h + 16}")
        for rho in range(2):
            for ri in range(2):
                a(f"v_mfma_f32_16x16x32_bf16 {R(D + 8 * rho + 4 * ri, 4)}, {R(Y + 4 * rho, 4)}, {R(M4 + 4 * (1 - ri), 4)}, 0")
        for rho in range(2):
            self.cmul(E + 8 * rho, E + 8 * rho + 4, D + 8 * rho, D + 8 * rho + 4, self.TW, self.TW + 4, 4, True)
            for r in range(4):
                a(f"v_cvt_pk_bf16_f32 {R(Y + 4 * rho + r)}, {R(E + 8 * rho + 4 + r)}, {R(E + 8 * rho + r)}")
            for ri in range(2):
                q = XC + 8 * rho + 4 * ri
                a(f"v_mfma_f32_16x16x32_bf16 {R(q, 4)}, {R(Y + 4 * rho, 4)}, {R(M + 4 * (1 - ri), 4)}, {R(q, 4)}")
        a(f"s_add_u32 {S(sT0)}, {S(sOff + 2)}, {HN}\ns_add_u32 {S(sT1)}, {S(sOff + 2)}, {HH}")
        for rho in range(2):
            for r in range(4):
                a(f"v_cvt_pk_bf16_f32 {R(D + 4 * rho + r)}, {R(XC + 8 * rho + r)}, {R(XC + 8 * rho + 4 + r)}")
        self.stats(D, ST, 1.4426950408889634, None)
        for rho in range(2):
            for k in range(0, 8, 2):
                q = XC + 8 * rho + k
                a(f"v_pk_fma_f32 {R(q, 2)}, {R(q, 2)}, {R(ST + 2 * rho, 2)}, {R(ST + 4 + 2 * rho, 2)} op_sel_hi:[1,0,0] neg_lo:[0,0,1] neg_hi:[0,0,1]")
            for r in range(4):
                a(f"v_cvt_pk_bf16_f32 {R(E + 4 * rho + r)}, {R(XC + 8 * rho + r)}, {R(XC + 8 * rho + 4 + r)}")
            a(f"buffer_store_dwordx4 {R(E + 4 * rho, 4)}, {R(self.vNat)}, {S(sWS, 4)}, {S(sT0)} offen offset:{1024 * rho} sc1")
        for rho in range(2):
            a(f"buffer_store_dwordx4 {R(D + 4 * rho, 4)}, {R(self.vNat)}, {S(sWS, 4)}, {S(sT1)} offen offset:{1024 * rho} sc1")
        self.stamp("hn_st")
        va.free(D, E, Y, XC, ST, self.M, self.M4, self.TW, self.Gi, self.aE4w, self.aE4r, self.aG2, self.vNat)
    def tables_w(self):
        a = self.a; va = self.va; L, Li, G, T = self.vL, self.vLi, self.vG, self.vT
        self.vW1 = va(3, "vW1", 1); self.vW2 = va(1, "vW2"); self.vTr1 = va(1, "vTr1"); self.vTr2 = va(4, "vTr2", 1)
        rho = va(1, "rho"); ch = va(1, "ch"); u = va(1, "u")
        a(f"s_mul_i32 {S(sStg)}, {S(sW)}, {STGW}\ns_add_u32 {S(sStg)}, {S(sStg)}, {STG}")
        a(f"s_lshr_b32 {S(sRot)}, {S(sC)}, 3")
        a(f"s_mul_i32 {S(sT2)}, {S(sRot)}, 3\ns_lshl_b32 {S(sRot)}, {S(sRot)}, 2")
        a(f"s_mul_i32 {S(sT1)}, {S(sW)}, 11")
        for i in range(11):
            a(f"s_add_u32 {S(sT0)}, {S(sT2)}, {i}\ns_cmp_ge_u32 {S(sT0)}, 11\ns_cselect_b32 {S(sKap + i)}, 11, 0")
            a(f"s_sub_u32 {S(sT0)}, {S(sT0)}, {S(sKap + i)}\ns_add_u32 {S(sT0)}, {S(sT0)}, {S(sT1)}\ns_lshl_b32 {S(sKap + i)}, {S(sT0)}, 10")
        a(f"s_lshl_b32 {S(sT0)}, {S(sMem)}, 2\ns_add_u32 {S(sT0)}, {S(sT0)}, {S(sW)}\ns_mul_i32 {S(sT0)}, {S(sT0)}, 96")
        a(f"s_and_b32 {S(sT1)}, {S(sW)}, 1\ns_lshl_b32 {S(sT1)}, {S(sT1)}, 1")
        a(f"s_movk_i32 {S(sT2)}, 2752")
        for p in range(3):
            q = self.vW1 + p
            a(f"v_add_u32 {R(u)}, {64 * p}, {R(L)}")
            a(f"v_mul_u32_u24 {R(rho)}, 10923, {R(u)}")
            a(f"v_lshrrev_b32 {R(rho)}, 16, {R(rho)}")
            a(f"v_mul_u32_u24 {R(ch)}, 6, {R(rho)}")
            a(f"v_sub_u32 {R(ch)}, {R(u)}, {R(ch)}")
            a(f"v_add_u32 {R(ch)}, {S(sT1)}, {R(ch)}")
            a(f"v_subrev_u32 {R(u)}, 6, {R(ch)}")
            a(f"v_min_u32 {R(ch)}, {R(ch)}, {R(u)}")
            a(f"v_lshl_add_u32 {R(ch)}, {R(ch)}, 4, {S(sT0)}")
            a(f"v_bfe_u32 {R(u)}, {R(rho)}, 2, 2")
            a(f"v_lshlrev_b32 {R(u)}, 7, {R(u)}")
            a(f"v_and_or_b32 {R(u)}, {R(rho)}, 3, {R(u)}")
            a(f"v_lshrrev_b32 {R(rho)}, 4, {R(rho)}")
            a(f"v_lshl_add_u32 {R(u)}, {R(rho)}, 2, {R(u)}")
            a(f"v_mad_u32_u24 {R(q)}, {R(u)}, {S(sT2)}, {R(ch)}")
            if p: a(f"v_subrev_u32 {R(q)}, {1024 * p}, {R(q)}")
            a(f"v_cmp_gt_u32 vcc, {S(sT2)}, {R(ch)}")
            a(f"v_mov_b32 {R(T)}, {OOB}")
            a(f"v_cndmask_b32 {R(q)}, {R(T)}, {R(q)}, vcc")
        a(f"v_lshrrev_b32 {R(u)}, 2, {R(L)}")
        a(f"v_mul_u32_u24 {R(u)}, 96, {R(u)}")
        a(f"v_and_b32 {R(ch)}, 3, {R(L)}")
        a(f"v_lshl_add_u32 {R(ch)}, {R(ch)}, 3, {S(sStg)}")
        a(f"v_add_u32 {R(self.vTr1)}, {R(u)}, {R(ch)}")
        a(f"v_bfe_u32 {R(u)}, {R(L)}, 1, 2")
        a(f"v_xor_b32 {R(u)}, {R(u)}, {R(G)}")
        a(f"v_lshlrev_b32 {R(u)}, 5, {R(u)}")
        a(f"v_and_b32 {R(T)}, 1, {R(L)}")
        a(f"v_lshl_add_u32 {R(u)}, {R(T)}, 4, {R(u)}")
        a(f"v_lshrrev_b32 {R(T)}, 3, {R(L)}")
        a(f"v_lshl_add_u32 {R(u)}, {R(T)}, 10, {R(u)}")
        a(f"s_lshl_b32 {S(sT0)}, {S(sMem)}, 7")
        a(f"v_add_u32 {R(self.vW2)}, {S(sT0)}, {R(u)}")
        a(f"v_bfe_u32 {R(rho)}, {R(L)}, 2, 3")
        a(f"v_bfe_u32 {R(u)}, {R(L)}, 3, 2")
        a(f"v_lshl_add_u32 {R(ch)}, {R(rho)}, 7, {R(ch)}")
        a(f"v_lshrrev_b32 {R(T)}, 5, {R(L)}")
        a(f"v_lshl_add_u32 {R(ch)}, {R(T)}, 11, {R(ch)}")
        for t in range(4):
            a(f"v_xor_b32 {R(T)}, {t}, {R(u)}")
            a(f"v_lshl_add_u32 {R(self.vTr2 + t)}, {R(T)}, 5, {R(ch)}")
        va.free(rho, ch, u)
    def tables_ffn(self):
        a = self.a; va = self.va; L, Li, G, T = self.vL, self.vLi, self.vG, self.vT
        self.aHw = va(1, "aHw"); self.aHr = va(1, "aHr"); self.aHs = va(2, "aHs", 1)
        self.aRw = va(2, "aRw", 1); self.aRr = va(1, "aRr"); self.aRes = va(1, "aRes"); self.aOut = va(1, "aOut")
        a(f"s_mul_i32 {S(sT0)}, {S(sW)}, {4 * HROW}")
        a(f"v_xor_b32 {R(T)}, {S(sRot)}, {R(L)}")
        a(f"v_lshl_add_u32 {R(self.aHw)}, {R(T)}, 4, {S(sT0)}")
        a(f"v_mul_u32_u24 {R(T)}, {HROW}, {R(Li)}")
        a(f"v_lshl_add_u32 {R(self.aHr)}, {R(G)}, 8, {R(T)}")
        a(f"s_lshr_b32 {S(sHb)}, {S(sS2)}, 3\ns_mul_i32 {S(sHb)}, {S(sHb)}, {HCL}\ns_add_u32 {S(sHb)}, {S(sHb)}, {HB}")
        a(f"s_lshl_b32 {S(sT0)}, {S(sMem)}, 2\ns_add_u32 {S(sT0)}, {S(sT0)}, {S(sW)}")
        a(f"s_lshr_b32 {S(sT1)}, {S(sT0)}, 1\ns_mul_i32 {S(sT1)}, {S(sT1)}, 3072\ns_and_b32 {S(sT2)}, {S(sW)}, 1")
        a(f"s_lshl_b32 s4, {S(sT2)}, 11\ns_add_u32 s4, s4, {S(sT1)}\ns_cmp_le_u32 {S(sT0)}, 28\ns_cselect_b32 s4, s4, {OOB}")
        a(f"s_lshl_b32 s5, {S(sT2)}, 9\ns_add_u32 s5, s5, {S(sT1)}\ns_add_u32 s5, s5, 1024\ns_cmp_lt_u32 {S(sT0)}, 28\ns_cselect_b32 s5, s5, {OOB}")
        a(f"v_add_u32 {R(self.aHs)}, s4, {R(self.vL16)}")
        a(f"v_add_u32 {R(self.aHs + 1)}, s5, {R(self.vL16)}")
        a(f"v_cmp_gt_u32 vcc, 32, {R(L)}\nv_mov_b32 {R(T)}, {OOB}")
        a(f"v_cndmask_b32 {R(self.aHs + 1)}, {R(T)}, {R(self.aHs + 1)}, vcc")
        a(f"s_lshl_b32 {S(sT0)}, {S(sW)}, 12")
        a(f"v_and_b32 {R(T)}, 7, {R(Li)}")
        a(f"v_xor_b32 {R(T)}, {R(T)}, {R(G)}")
        a(f"v_lshlrev_b32 {R(T)}, 4, {R(T)}")
        a(f"v_lshl_add_u32 {R(T)}, {R(Li)}, 8, {R(T)}")
        a(f"v_add_u32 {R(self.aRw)}, {S(sT0)}, {R(T)}")
        a(f"v_xor_b32 {R(self.aRw + 1)}, 64, {R(self.aRw)}")
        a(f"s_lshl_b32 {S(sT0)}, {S(sW)}, 2")
        a(f"v_add_u32 {R(self.aRr)}, {S(sT0)}, {R(G)}")
        a(f"v_and_b32 {R(T)}, 7, {R(self.aRr)}")
        a(f"v_xor_b32 {R(T)}, {R(T)}, {R(Li)}")
        a(f"v_lshlrev_b32 {R(T)}, 4, {R(T)}")
        a(f"v_lshl_add_u32 {R(self.aRr)}, {R(self.aRr)}, 8, {R(T)}")
        a(f"s_lshl_b32 {S(sT1)}, {S(sMem)}, 7")
        a(f"v_lshl_add_u32 {R(T)}, {R(Li)}, 3, {S(sT1)}")
        a(f"v_lshl_add_u32 {R(self.aRes)}, {R(G)}, 10, {R(T)}")
        a(f"v_lshl_add_u32 {R(self.aOut)}, {R(G)}, 18, {R(T)}")
        a(f"s_lshr_b32 {S(sT0)}, {S(sS2)}, 3\ns_lshl_b32 {S(sT1)}, {S(sT0)}, 16\ns_lshl_b32 {S(sT2)}, {S(sW)}, 12\ns_add_u32 {S(sOff + 3)}, {S(sT1)}, {S(sT2)}")
        a(f"s_lshl_b32 {S(sT0)}, {S(sT0)}, 13\ns_and_b32 {S(sT1)}, {S(sW)}, 1\ns_lshl_b32 {S(sT1)}, {S(sT1)}, 20\ns_add_u32 {S(sT0)}, {S(sT0)}, {S(sT1)}")
        a(f"s_lshr_b32 {S(sT1)}, {S(sW)}, 1\ns_lshl_b32 {S(sT1)}, {S(sT1)}, 10\ns_add_u32 {S(sOff)}, {S(sT0)}, {S(sT1)}")
        for rt in range(4):
            a(f"s_add_u32 {S(sOff + 4 + rt)}, {S(sOff + 3)}, {HN + rt * 16384}")
    def hn_gather(self):
        a = self.a; va = self.va
        self.HG = va(64, "HG")
        self.g3 = [f"buffer_load_dwordx4 {R(self.HG + 16 * rt + 4 * n, 4)}, {R(self.vL16)}, {S(sWS, 4)}, {S(sOff + 4 + rt)} offen offset:{1024 * n} sc1"
                   for rt in range(4) for n in range(4)]
        for l in self.g3: a(l)
    def hn_stage(self):
        a = self.a; va = self.va
        self.poll("hn", self.g3, self.check_sentinel([self.HG + 4 * i for i in range(16)]))
        for rt in range(4):
            if rt == 2: a("s_barrier")
            for n in range(4):
                a(f"ds_write_b128 {R(self.aHw)}, {R(self.HG + 16 * rt + 4 * n, 4)} offset:{rt * HTILE + n * HROW}")
        a.barrier()
        self.stamp("hn_in")
        va.free(self.HG, self.aHw)
    def silu_list(self, acc, rt):
        a = self.a; tmp = self.SL; P = self.HP
        out = []
        for i in range(12): out.append(f"v_exp_f32 {R(tmp + i)}, -{R(acc + i)}")
        for i in range(12): out.append(f"v_add_f32 {R(tmp + i)}, 1.0, {R(tmp + i)}")
        for i in range(12): out.append(f"v_rcp_f32 {R(tmp + i)}, {R(tmp + i)}")
        for i in range(12): out.append(f"v_mul_f32 {R(tmp + i)}, {R(tmp + i)}, {R(acc + i)}")
        for i in range(6): out.append(f"v_cvt_pk_bf16_f32 {R(P + i)}, {R(tmp + 2 * i)}, {R(tmp + 2 * i + 1)}")
        out.append(f"s_add_u32 {S(sT0)}, {S(sHb)}, {rt * 45056}")
        out += [f"v_permlane32_swap_b32 {R(P)}, {R(P + 2)}", f"v_permlane32_swap_b32 {R(P + 1)}, {R(P + 3)}",
                f"v_permlane32_swap_b32 {R(P + 4)}, {R(P + 6)}", f"v_permlane32_swap_b32 {R(P + 5)}, {R(P + 7)}"]
        out.append(f"buffer_store_dwordx4 {R(P, 4)}, {R(self.aHs)}, {S(sWS, 4)}, {S(sT0)} offen sc1")
        out.append(f"buffer_store_dwordx4 {R(P + 4, 4)}, {R(self.aHs + 1)}, {S(sWS, 4)}, {S(sT0)} offen sc1")
        return out
    def run(self, lst):
        for x in lst:
            if callable(x): x()
            else: self.a(x)
    def gemm1(self):
        a = self.a; va = self.va
        ACC = va(24, "acc1"); BF = va(16, "bf"); self.SL = va(12, "silu"); self.HP = va(8, "hp")
        for i in (6, 7): a(f"v_mov_b32 {R(self.HP + i)}, 0")
        rd = lambda n: f"ds_read_b128 {R(BF + 4 * (n % 4), 4)}, {R(self.aHr)} offset:{(n // 16) * HTILE + (n % 16) * 16}"
        for n in range(3): a(rd(n))
        for rt in range(4):
            acc = ACC + 12 * (rt & 1)
            main = []
            for ks in range(16):
                n = rt * 16 + ks
                for T in range(3):
                    c = R(acc + 4 * T, 4) if ks else "0"
                    main.append(f"v_mfma_f32_16x16x32_bf16 {R(acc + 4 * T, 4)}, {R(self.W1(ks, T), 4)}, {R(BF + 4 * (n % 4), 4)}, {c}")
                    if T == 0 and n + 3 < 64: main.append(rd(n + 3))
            fill = self.silu_list(ACC + 12 * ((rt - 1) & 1), rt - 1) if rt else []
            self.run(merge(main, fill, 3))
        self.run(self.silu_list(ACC + 12, 3))
        a.barrier()
        self.stamp("g1_end")
        va.free(ACC, BF, self.SL, self.HP, self.aHr, self.aHs)
    def h_loads(self, rt, buf):
        out = []
        for i in range(11):
            out.append(f"buffer_load_dwordx4 {R(buf + 4 * i, 4)}, {R(self.aHl + rt)}, {S(sWS, 4)}, {S(sKap + i)} offen sc1")
        return out
    def gemm2(self):
        a = self.a; va = self.va; T = self.vT
        for i in range(11):
            a(f"s_cmp_eq_u32 {S(sKap + i)}, {43 * 1024}\ns_cselect_b32 {S(sKap + i)}, {OOB}, {S(sKap + i)}")
        self.aHl = va(4, "aHl", 1)
        for rt in range(4):
            a(f"s_add_u32 {S(sT0)}, {S(sHb)}, {rt * 45056}")
            a(f"v_add_u32 {R(self.aHl + rt)}, {S(sT0)}, {R(self.vL16)}")
        HB_ = [144, 188]
        ACC = va(16, "acc2"); RB = va(16, "rb"); RES = va(8, "res"); O = va(4, "o")
        resl = []
        for rt in range(4):
            a(f"s_add_u32 {S(sOff + 4 + rt)}, {S(sOff + 3)}, {HH + rt * 16384}")
            resl.append(f"buffer_load_dwordx2 {R(RES + 2 * rt, 2)}, {R(self.aRes)}, {S(sWS, 4)}, {S(sOff + 4 + rt)} offen sc1")
        a(f"s_mov_b32 {S(sT2)}, {fl(math.log(2.0))}")
        self.run(resl)
        self.run(self.h_loads(0, HB_[0]))
        self.run(self.h_loads(1, HB_[1]))
        self.poll("res", resl, self.check_sentinel(range(RES, RES + 8)))
        for rt in range(4):
            buf = HB_[rt & 1]
            self.poll("H%d" % rt, self.h_loads(rt, buf), self.check_sentinel([buf + 4 * i for i in range(11)]))
            for i in range(11):
                for t in range(4):
                    c = R(ACC + 4 * t, 4) if i else "0"
                    a(f"v_mfma_f32_16x16x32_bf16 {R(ACC + 4 * t, 4)}, {R(self.W2(i, t), 4)}, {R(buf + 4 * i, 4)}, {c}")
            if rt < 2: self.run(self.h_loads(rt + 2, buf))
            red = RED[rt & 1]
            for t in range(4):
                a(f"ds_write_b128 {R(self.aRw + (t & 1))}, {R(ACC + 4 * t, 4)} offset:{red + 128 * (t >> 1)}")
            a.barrier()
            for src in range(4):
                a(f"ds_read_b128 {R(RB + 4 * src, 4)}, {R(self.aRr)} offset:{red + 4096 * src}")
            a(f"v_lshlrev_b32 {R(O)}, 16, {R(RES + 2 * rt)}\nv_and_b32 {R(O + 1)}, 0xffff0000, {R(RES + 2 * rt)}")
            a(f"v_lshlrev_b32 {R(O + 2)}, 16, {R(RES + 2 * rt + 1)}\nv_and_b32 {R(O + 3)}, 0xffff0000, {R(RES + 2 * rt + 1)}")
            for k in (0, 2): a(f"v_pk_add_f32 {R(RB + k, 2)}, {R(RB + k, 2)}, {R(RB + 4 + k, 2)}")
            for k in (0, 2): a(f"v_pk_add_f32 {R(RB + 8 + k, 2)}, {R(RB + 8 + k, 2)}, {R(RB + 12 + k, 2)}")
            for k in (0, 2): a(f"v_pk_add_f32 {R(RB + k, 2)}, {R(RB + k, 2)}, {R(RB + 8 + k, 2)}")
            for k in range(4): a(f"v_fmac_f32 {R(O + k)}, {S(sT2)}, {R(RB + k)}")
            a(f"v_cvt_pk_bf16_f32 {R(O)}, {R(O)}, {R(O + 1)}\nv_cvt_pk_bf16_f32 {R(O + 1)}, {R(O + 2)}, {R(O + 3)}")
            a(f"s_add_u32 {S(sT0)}, {S(sOff)}, {2048 * rt}")
            a(f"buffer_store_dwordx2 {R(O, 2)}, {R(self.aOut)}, {S(sO, 4)}, {S(sT0)} offen")
        self.stamp("end")
    def build(self):
        a = self.a; va = self.va
        self.prologue()
        self.w_gather()
        self.tables_w()
        self.point("start")
        self.tables_p1()
        self.tags()
        self.p1()
        self.clear(HN); self.clear(HH)
        self.point("p1_end")
        self.tables_p2()
        self.w_coefs()
        self.p2_gather()
        self.p2()
        self.clear_H()
        self.xnat_load()
        va.free(self.vM1)
        self.point("p2_end")
        self.tables_p3()
        self.p3_gather()
        self.p3()
        self.point("p3_end")
        self.tables_ffn()
        self.hn_gather()
        self.hn_stage()
        self.point("g1_start")
        self.gemm1()
        self.point("g1_end")
        self.gemm2()
        if self.amp:
            i, j = (self.stnames.index(n) for n in self.amp)
            a("s_waitcnt lgkmcnt(0)")
            a(f"s_sub_u32 {S(sT0)}, {S(sStamp + 2 * j)}, {S(sStamp + 2 * i)}\ns_lshl_b32 {S(sT0)}, {S(sT0)}, 3\ns_min_u32 {S(sT0)}, {S(sT0)}, 100000")
            a(f"L_amp:\ns_memrealtime s[4:5]\ns_waitcnt lgkmcnt(0)\ns_sub_u32 {S(sT1)}, s4, {S(sStamp + 2 * (self.nst - 1))}\ns_cmp_lt_u32 {S(sT1)}, {S(sT0)}\ns_cbranch_scc1 L_amp")
        elif self.stamps:
            a("s_waitcnt lgkmcnt(0)")
            a(f"s_lshl_b32 {S(sT0)}, s2, 2\ns_add_u32 {S(sT0)}, {S(sT0)}, {S(sW)}\ns_lshl_b32 {S(sT0)}, {S(sT0)}, 6\ns_add_u32 {S(sT0)}, {S(sT0)}, {STAMP}")
            for i in range(self.nst):
                a(f"v_mov_b32 {R(self.vT)}, {S(sStamp + 2 * i)}")
                a(f"buffer_store_dword {R(self.vT)}, {R(self.vZero)}, {S(sWS, 4)}, {S(sT0)} offen offset:{4 * i}")
        a("L_end:")
        a("s_endpgm")
        for t in self.tail: t()
        body = a.finalize()
        hdr = open("sequential_preLN__spectral_gfnet__dense_activation_silu__prompt.s.ref").read().split("; Override")[0]
        s = hdr + f"; @launch grid=(256,1,1) block=(256,1,1) lds={LDS_SIZE}\n"
        s += f'.amdgcn_target "amdgcn-amd-amdhsa--gfx950"\n.text\n.globl {KN}\n.p2align 8\n.type {KN},@function\n{KN}:\n'
        s += body
        s += ".p2align 8\n.fill 4096, 4, 0xbf810000\n"
        s += f'''.section .rodata,"a"
.p2align 6
.amdhsa_kernel {KN}
  .amdhsa_next_free_vgpr 512
  .amdhsa_next_free_sgpr 102
  .amdhsa_accum_offset 256
  .amdhsa_group_segment_fixed_size 0
  .amdhsa_kernarg_size 72
  .amdhsa_user_sgpr_count 2
  .amdhsa_user_sgpr_kernarg_segment_ptr 1
  .amdhsa_system_sgpr_workgroup_id_x 1
  .amdhsa_float_denorm_mode_32 3
.end_amdhsa_kernel
'''
        return s

def simple_sched():
    D = lambda k, r: [("dma", (k, i)) for i in r]
    X = lambda k, r: [("drain", (k, i)) for i in r]
    return {
        "start": D(1, range(12, 16)),
        "p1_end": [],
        "p2_start": D(1, range(9, 12)),
        "p2_end": X(1, range(12, 16)) + X(1, range(9, 12)),
        "p3_start": D(1, range(0, 7)),
        "p3_end": X(1, range(0, 7)) + D(1, [7, 8]) + D(2, range(0, 4)),
        "g1_start": X(1, [7, 8]) + X(2, range(0, 4)) + D(2, range(4, 9)),
        "g1_end": X(2, range(4, 9)) + D(2, [9, 10]) + X(2, [9, 10]),
    }

if __name__ == "__main__":
    out = sys.argv[1] if len(sys.argv) > 1 else "k.s"
    stamps = "--stamps" in sys.argv
    amp = None
    for x in sys.argv:
        if x.startswith("--amp="): amp = x[6:].split(","); stamps = True
    g = Gen(stamps, simple_sched(), amp)
    s = g.build()
    open(out, "w").write(s)
    print("wrote", out, "instrs", len(g.a.ins), "nops", g.a.nops_added, "vgpr high", g.va.high, "stamps", g.stnames)
```

```python
import re

def R(n, cnt=1):
    p, b = ("v", n) if n < 256 else ("a", n - 256)
    assert 0 <= n and n + cnt <= 512 and (n >= 256 or n + cnt <= 256), (n, cnt)
    if cnt > 1: assert n % 2 == 0, ("unaligned tuple", n, cnt)
    return f"{p}{b}" if cnt == 1 else f"{p}[{b}:{b + cnt - 1}]"
def S(n, cnt=1):
    return f"s{n}" if cnt == 1 else f"s[{n}:{n + cnt - 1}]"

_reg = re.compile(r"^-?\|?(?:abs\()?([vas])(?:(\d+)|\[(\d+):(\d+)\])\)?\|?$")
def regs_of(op):
    op = op.strip()
    if op == "vcc": return {("s", 106), ("s", 107)}
    if op == "exec": return {("s", 126), ("s", 127)}
    if op == "m0": return {("s", 124)}
    m = _reg.match(op)
    if not m: return set()
    k = m.group(1)
    lo, hi = (int(m.group(2)),) * 2 if m.group(2) is not None else (int(m.group(3)), int(m.group(4)))
    if k == "s": return {("s", i) for i in range(lo, hi + 1)}
    off = 256 if k == "a" else 0
    return {("v", i + off) for i in range(lo, hi + 1)}

TRANS = ("v_exp_", "v_log_", "v_rcp_", "v_rsq_", "v_sqrt_", "v_sin_", "v_cos_")
class Ins:
    def __init__(self, text):
        self.text = text
        t = text.split(";")[0].strip()
        self.label = t[:-1] if t.endswith(":") else None
        self.raw = t.startswith(".") and self.label is None
        self.rd = set(); self.wr = set()
        self.kind = None; self.mn = ""; self.target = None
        self.passes = 0; self.A = self.B = self.C = self.D = set()
        self.dpp = False; self.data = set(); self.wide = False; self.dma = False; self.nop = 0
        if self.label or self.raw or not t: return
        sp = t.split(None, 1)
        mn = self.mn = sp[0]
        rest = sp[1] if len(sp) > 1 else ""
        parts = [p.strip() for p in rest.split(",")] if rest else []
        ops = []; mods = ""
        for i, p in enumerate(parts):
            q = p.split(None, 1)
            ops.append(q[0])
            if len(q) > 1:
                mods = q[1] + "," + ",".join(parts[i + 1:]); break
        self.ops = ops; self.mods = mods
        rs = [regs_of(o) for o in ops]
        U = lambda l: set().union(*l) if l else set()
        if mn.startswith("v_mfma"):
            self.kind = "mfma"
            self.passes = 8 if "32x32" in mn else 4
            self.D, self.A, self.B, self.C = rs[0], rs[1], rs[2], rs[3]
            self.wr = set(self.D); self.rd = self.A | self.B | self.C
        elif mn.startswith("v_"):
            self.kind = "valu"
            self.dpp = "_dpp" in mn or "row_" in mods or "quad_perm" in mods
            if "swap" in mn:
                self.wr = rs[0] | rs[1]; self.rd = rs[0] | rs[1]
            elif mn == "v_nop": pass
            else:
                self.wr = set(rs[0]); self.rd = U(rs[1:])
                if mn.startswith(("v_add_co", "v_sub_co", "v_addc_co", "v_subb_co")):
                    self.wr |= rs[1]; self.rd = U(rs[2:])
                if "fmac" in mn or "dot2c" in mn or self.dpp or mn.startswith("v_writelane"): self.rd |= rs[0]
        elif mn.startswith("ds_"):
            self.kind = "ds"
            if mn.startswith("ds_read"): self.wr = set(rs[0]); self.rd = U(rs[1:])
            else: self.rd = U(rs); self.data = U(rs[1:])
        elif mn.startswith(("buffer_", "global_")):
            self.kind = "vmem"
            words = mods.replace(",", " ").split()
            if "lds" in words:
                self.dma = True; self.rd = U(rs) | {("s", 124)}
            elif "_load" in mn:
                self.wr = set(rs[0]); self.rd = U(rs[1:])
                if "d16" in mn: self.rd |= rs[0]
            else:
                self.rd = U(rs)
                self.data = rs[0] if mn.startswith("buffer_") and rs else (rs[1] if len(rs) > 1 else set())
                self.wide = "x4" in mn or "x3" in mn
        elif mn.startswith("s_"):
            self.kind = "salu"
            if mn == "s_nop": self.nop = int(ops[0])
            elif mn.startswith(("s_cbranch", "s_branch")): self.target = ops[0]; self.kind = "branch"
            elif mn.startswith(("s_waitcnt", "s_barrier", "s_endpgm", "s_sleep", "s_setprio")): pass
            elif mn.startswith(("s_cmp", "s_bitcmp")): self.rd = U(rs)
            elif mn.startswith(("s_load", "s_memtime", "s_memrealtime")):
                self.kind = "smem"; self.wr = set(rs[0]); self.rd = U(rs[1:])
            else:
                self.wr = set(rs[0]); self.rd = U(rs[1:])
                if "saveexec" in mn: self.wr |= regs_of("exec")
        else:
            raise ValueError("unknown instruction: " + text)
        self.trans = mn.startswith(TRANS)
        self.dl = mn.startswith("v_dot")
    def states(self): return self.nop + 1

def vset(s): return {r for r in s if r[0] == "v"}
def sset(s): return {r for r in s if r[0] == "s"}

def need(p, c):
    n = 0
    if p.kind == "valu":
        vw = vset(p.wr); sw = sset(p.wr)
        if c.kind == "mfma" and vw & c.rd: n = max(n, 3 if p.dl else 2)
        if c.kind == "valu":
            if p.trans and not c.trans and vw & c.rd: n = max(n, 1)
            if "permlane" in c.mn and vw & c.rd: n = max(n, 2)
            if c.dpp and vw & c.rd: n = max(n, 2)
            if c.mn.startswith(("v_readlane", "v_readfirstlane")) and vw & c.rd: n = max(n, 1)
            if sw & c.rd: n = max(n, 4 if c.mn.startswith(("v_readlane", "v_writelane")) else 2)
        if p.dl and c.kind in ("valu", "vmem", "ds") and vw & (c.rd | c.wr):
            if c.mn == p.mn:
                ab = regs_of(c.ops[1]) | regs_of(c.ops[2])
                if vw & ab: n = max(n, 3)
            else: n = max(n, 3)
        if c.kind == "vmem" and sw & c.rd: n = max(n, 5)
    elif p.kind == "mfma":
        big = p.passes == 8
        if c.kind == "mfma":
            if p.D & (c.A | c.B): n = max(n, 12 if big else 8)
            same = p.passes == c.passes
            if p.D & c.C and not (p.D == c.C and same): n = max(n, 10 if big else 6)
            if p.D & c.D and not (p.D == c.D and same): n = max(n, 10 if big else 6)
        elif c.kind in ("valu", "vmem", "ds"):
            if p.D & (c.rd | c.wr): n = max(n, 12 if big else 8)
            if p.C & c.wr: n = max(n, 7 if big else 3)
    elif p.kind == "vmem":
        if p.wide and p.data & c.wr: n = max(n, 2)
    elif p.kind == "salu":
        if ("s", 124) in p.wr and c.dma: n = max(n, 1)
    return n

class Asm:
    def __init__(self):
        self.ins = []
        self.vm = []
        self.lg = []
        self.tok = 0
        self.auto = True
        self.nlabel = 0
        self.capt = None
    def _push(self, i): self.ins.append(i)
    def _waitvm(self, pos):
        n = min(len(self.vm) - 1 - pos, 63)
        self._push(Ins(f"s_waitcnt vmcnt({n})"))
        self.vm = self.vm[len(self.vm) - n:] if n else []
    def _waitlg(self, pos):
        n = min(len(self.lg) - 1 - pos, 15)
        self._push(Ins(f"s_waitcnt lgkmcnt({n})"))
        self.lg = self.lg[len(self.lg) - n:] if n else []
    def __call__(self, text):
        if self.capt is not None:
            self.capt.extend(l.strip() for l in text.split("\n") if l.strip()); return None
        tok = None
        for line in text.split("\n"):
            if line.strip(): tok = self.one(line.strip())
        return tok
    def one(self, text):
        i = Ins(text)
        if self.auto and i.kind:
            touch = vset(i.rd | i.wr)
            pos = max([k for k, (_, d) in enumerate(self.vm) if d & touch], default=-1)
            if pos >= 0: self._waitvm(pos)
            pos = max([k for k, (_, d) in enumerate(self.lg) if d & touch], default=-1)
            if pos >= 0: self._waitlg(pos)
        self._push(i)
        if not self.auto: return None
        if i.kind == "vmem":
            self.tok += 1; self.vm.append((self.tok, vset(i.wr))); return self.tok
        if i.kind == "ds":
            self.tok += 1; self.lg.append((self.tok, vset(i.wr))); return self.tok
        if i.mn == "s_waitcnt":
            m = re.search(r"vmcnt\((\d+)\)", text)
            if m:
                n = int(m.group(1)); self.vm = self.vm[max(0, len(self.vm) - n):] if n else []
            m = re.search(r"lgkmcnt\((\d+)\)", text)
            if m:
                n = int(m.group(1)); self.lg = self.lg[max(0, len(self.lg) - n):] if n else []
        return None
    def wait_vm(self, tok):
        for k, (t, _) in enumerate(self.vm):
            if t == tok: self._waitvm(k); return
    def wait_lg(self, tok):
        for k, (t, _) in enumerate(self.lg):
            if t == tok: self._waitlg(k); return
    def wait_vm_all(self):
        if self.vm: self._waitvm(len(self.vm) - 1)
    def wait_lg_all(self):
        if self.lg: self._waitlg(len(self.lg) - 1)
    def barrier(self):
        self.wait_lg_all(); self("s_barrier")
    def capture(self, fn, *args):
        old = self.capt; self.capt = []
        fn(*args)
        out = self.capt; self.capt = old
        return out
    def do(self, fn):
        if self.capt is not None: self.capt.append(fn)
        else: fn()
    def run(self, lst):
        for x in lst:
            if callable(x): self.do(x)
            else: self(x)
    def label(self, base):
        self.nlabel += 1
        return f"L_{base}_{self.nlabel}"
    def finalize(self):
        ins = self.ins
        self.nops_added = 0
        changed = True
        while changed:
            changed = False
            lab = {x.label: k for k, x in enumerate(ins) if x.label}
            preds = {}
            for k, x in enumerate(ins):
                if x.kind == "branch": preds.setdefault(lab[x.target], []).append(k)
            def worst(k):
                c = ins[k]; best = 0
                stack = [(k - 1, 0)]; seen = set()
                while stack:
                    j, dist = stack.pop()
                    while j >= 0 and dist < 20:
                        if (j, dist) in seen: break
                        seen.add((j, dist))
                        p = ins[j]
                        if p.label:
                            for b in preds.get(j, []): stack.append((b, dist))
                            q = j - 1
                            while q >= 0 and not ins[q].kind and not ins[q].label: q -= 1
                            if q >= 0 and ins[q].mn in ("s_branch", "s_endpgm"): break
                        elif p.kind:
                            best = max(best, need(p, c) - dist)
                            dist += p.states()
                        j -= 1
                return best
            k = 0
            while k < len(ins):
                if ins[k].kind in ("valu", "mfma", "vmem", "ds"):
                    n = worst(k)
                    if n > 0:
                        ins.insert(k, Ins(f"s_nop {n - 1}"))
                        self.nops_added += n
                        changed = True
                        lab = {x.label: kk for kk, x in enumerate(ins) if x.label}
                        preds = {}
                        for kk, x in enumerate(ins):
                            if x.kind == "branch": preds.setdefault(lab[x.target], []).append(kk)
                        k += 1
                k += 1
        return "\n".join((x.text if x.label or x.raw else "    " + x.text) for x in ins) + "\n"

class Alloc:
    def __init__(self, lo, hi):
        self.lo, self.hi = lo, hi
        self.used = {}
        self.high = lo
    def __call__(self, n=1, name="", align=None):
        al = align or (2 if n > 1 else 1)
        b = (self.lo + al - 1) // al * al
        while b + n <= self.hi:
            if all((b + i) not in self.used for i in range(n)):
                for i in range(n): self.used[b + i] = (b, n, name)
                self.high = max(self.high, b + n)
                return b
            b += al
        raise RuntimeError(f"out of registers allocating {n} ({name}); used={sorted(set(self.used.values()))}")
    def free(self, *bases):
        for b in bases:
            _, n, _ = self.used[b]
            assert self.used[b][0] == b
            for i in range(n): del self.used[b + i]

def merge(main, fill, lead=0):
    out = []
    nm = len(main) - lead
    k = 0
    for i, m in enumerate(main):
        out.append(m)
        if i >= lead:
            want = (i - lead + 1) * len(fill) // max(nm, 1)
            while k < want: out.append(fill[k]); k += 1
    out += fill[k:]
    return out

def spread(main, *fills):
    slots = [[] for _ in range(len(main) + 1)]
    for lst, f0, f1 in fills:
        n = len(lst)
        for k, x in enumerate(lst):
            pos = f0 + (k * (f1 - f0)) // max(n, 1)
            slots[min(pos, len(main))].append(x)
    out = []
    for i, m in enumerate(main):
        out += slots[i]; out.append(m)
    return out + slots[len(main)]
```

```python
import sys, struct, math
from asmlib import *

KN = "sequential_preLN__spectral_gfnet__dense_activation_silu__prompt_kernel"
def fl(x): return "0x%08x" % struct.unpack("<I", struct.pack("<f", x))[0]

Z1 = 0x0; Z2 = 0x200000; HN = 0x400000; HH = 0x600000; HB = 0x800000; EPO = 0xE00000; STAMP = 0xE80000
WS_SIZE = 0xF00000
HCL = 4 * 44 * 1024
OOB = 0x40000000
HNL = 0; HROW = 1040; HTILE = 16 * HROW
EA = 2 * HTILE; EB = EA + 10752
STG = 4 * HTILE; STGW = 24320
RED = (0, HTILE)
LDS_SIZE = 163840
sX, sWR, sWI, sW1, sW2, sO, sWS = 8, 12, 16, 20, 24, 28, 32
sW, sS2, sK1, sM, sMem, sRot, sT0, sT1, sT2, sOnes, sMask, sEp, sCnt, sStg, sN, sD0, sHb, sU0, sLn2, sOwn = range(36, 56)
sOff = 56
sKap = 68
sStamp = 80
sRet = 6
SPIN = 20000

class Gen:
    def __init__(self, cfg):
        self.cfg = cfg
        self.amp = cfg.get("amp"); self.stamps = cfg.get("stamps") or []
        self.a = Asm(); self.va = Alloc(1, 144); self.vb = Alloc(144, 252); self.nst = 0; self.stnames = []
        self.tail = []; self.npoll = 0; self.pollnames = []
        self.sched = cfg.get("sched", {})
        self.W2 = lambda i, t: 256 + (i * 4 + t) * 4
        def W1(ks, T):
            f = ks * 3 + T
            return 144 + f * 4 if f < 28 else 256 + 176 + (f - 28) * 4
        self.W1 = W1
        self.slots = {}; self.stg_used = []; self.stg_pend = []; self.drained = set(); self.cleared = set()
    def stamp(self, name):
        if name in self.stamps:
            k = self.stamps.index(name)
            self.a(f"s_memrealtime {S(sStamp + 2 * k, 2)}")
    def sincos(self, c, s, ang):
        self.a(f"v_cos_f32 {R(c)}, {R(ang)}"); self.a(f"v_sin_f32 {R(s)}, {R(ang)}")
    def poll(self, name, loads, check):
        a = self.a
        Lr = a.label(name + "_retry"); Lo = a.label(name + "_ok")
        site = self.npoll; self.npoll += 1; self.pollnames.append(name)
        check()
        a(f"s_cbranch_vccnz {Lr}")
        a(Lo + ":")
        def tail():
            a.auto = False
            a(Lr + ":")
            a(f"s_mov_b32 {S(sCnt)}, 0")
            Ll = a.label(name + "_loop")
            a(Ll + ":")
            if self.stamps: a(f"s_add_u32 {S(sRet + site // 10)}, {S(sRet + site // 10)}, {1 << (3 * (site % 10))}")
            if self.cfg.get("backoff"): a(f"s_sleep {self.cfg['backoff']}")
            for l in loads: a(l)
            a("s_waitcnt vmcnt(0)")
            check()
            a(f"s_cbranch_vccz {Lo}")
            a(f"s_add_u32 {S(sCnt)}, {S(sCnt)}, 1")
            a(f"s_cmp_lt_u32 {S(sCnt)}, {SPIN}")
            a(f"s_cbranch_scc1 {Ll}")
            a(f"s_branch {Lo}")
        self.tail.append(tail)
    def check_sentinel(self, regs):
        a = self.a; t = self.vT
        def chk():
            r = list(regs)
            if len(r) % 2 == 0:
                a(f"v_max_u32 {R(t)}, {R(r[0])}, {R(r[1])}"); r = r[2:]
            else:
                a(f"v_max3_u32 {R(t)}, {R(r[0])}, {R(r[1])}, {R(r[2])}"); r = r[3:]
            while r:
                a(f"v_max3_u32 {R(t)}, {R(t)}, {R(r[0])}, {R(r[1])}"); r = r[2:]
            a(f"v_cmp_eq_u32 vcc, -1, {R(t)}")
        return chk
    def cmul(self, ore, oim, re, im, c, s, conj, addend=None):
        a = self.a
        neg = " neg_lo:[0,1,0] neg_hi:[0,1,0]"
        for k in (0, 2):
            for o, x in ((ore, re), (oim, im)):
                if addend is None: a(f"v_pk_mul_f32 {R(o + k, 2)}, {R(x + k, 2)}, {R(c + k, 2)}")
                else: a(f"v_pk_fma_f32 {R(o + k, 2)}, {R(x + k, 2)}, {R(c + k, 2)}, {R(addend, 2)} op_sel_hi:[1,1,0] neg_lo:[0,0,1] neg_hi:[0,0,1]")
        for k in (0, 2):
            a(f"v_pk_fma_f32 {R(ore + k, 2)}, {R(im + k, 2)}, {R(s + k, 2)}, {R(ore + k, 2)}" + (neg if conj else ""))
            a(f"v_pk_fma_f32 {R(oim + k, 2)}, {R(re + k, 2)}, {R(s + k, 2)}, {R(oim + k, 2)}" + ("" if conj else neg))
    def stats(self, X, st, scale, mscale):
        a = self.a
        S0, S1, Q0, Q1 = st, st + 1, st + 2, st + 3
        for r in range(4):
            a(f"v_dot2c_f32_bf16 {R(S0)}, {S(sOnes)}, {R(X + r)}")
            a(f"v_dot2c_f32_bf16 {R(Q0)}, {R(X + r)}, {R(X + r)}")
        for r in range(4):
            a(f"v_dot2c_f32_bf16 {R(S1)}, {S(sOnes)}, {R(X + 4 + r)}")
            a(f"v_dot2c_f32_bf16 {R(Q1)}, {R(X + 4 + r)}, {R(X + 4 + r)}")
        a(f"v_permlane32_swap_b32 {R(S0)}, {R(S1)}")
        a(f"v_permlane32_swap_b32 {R(Q0)}, {R(Q1)}")
        a(f"v_add_f32 {R(S0)}, {R(S0)}, {R(S1)}")
        a(f"v_add_f32 {R(Q0)}, {R(Q0)}, {R(Q1)}")
        a(f"v_permlane16_swap_b32 {R(S0)}, {R(Q0)}")
        a(f"v_add_f32 {R(S0)}, {R(S0)}, {R(Q0)}")
        for sh in (8, 4, 2, 1):
            a(f"v_add_f32_dpp {R(S0)}, {R(S0)}, {R(S0)} row_ror:{sh} row_mask:0xf bank_mask:0xf")
        a(f"v_mul_f32 {R(Q0)}, {fl(1 / 512)}, {R(S0)}")
        a(f"v_mul_f32 {R(S0)}, {fl(1 / 512)}, {R(S0)}")
        a(f"v_permlane16_swap_b32 {R(S0)}, {R(Q0)}")
        a(f"v_fma_f32 {R(Q0)}, -{R(S0)}, {R(S0)}, {R(Q0)}")
        a(f"v_max_f32 {R(Q0)}, 0, {R(Q0)}")
        if scale != 1.0: a(f"v_fmamk_f32 {R(Q0)}, {R(Q0)}, {fl(1 / scale ** 2)}, {R(self.vEps)}")
        else: a(f"v_add_f32 {R(Q0)}, {fl(1e-5)}, {R(Q0)}")
        a(f"v_rsq_f32 {R(Q0)}, {R(Q0)}")
        if mscale is not None:
            a(f"v_mov_b32 {R(self.vMu)}, {R(S0)}")
            a(f"v_mul_f32 {R(S0)}, {R(mscale)}, {R(S0)}")
        a(f"v_mul_f32 {R(st + 4)}, {R(S0)}, {R(Q0)}")
        a(f"v_mul_f32 {R(st + 6)}, {R(S0)}, {R(Q0)}")
        a(f"v_mov_b32 {R(st)}, {R(Q0)}")
        a(f"v_permlane32_swap_b32 {R(st + 4)}, {R(st + 6)}")
        a(f"v_permlane32_swap_b32 {R(st)}, {R(st + 2)}")
    def stg_alloc(self, size):
        off = 0
        for (o, s_) in sorted(self.stg_used):
            if off + size <= o: break
            off = o + s_
        assert off + size <= STGW, "staging overflow"
        self.stg_used.append((off, size))
        keep = []
        for (o, s_, tok) in self.stg_pend:
            if o < off + size and off < o + s_: self.a.wait_lg(tok)
            else: keep.append((o, s_, tok))
        self.stg_pend = keep
        return off
    def dma_list(self, item):
        a = self.a; kind, i = item
        size = 3072 if kind == 1 else 4096
        def first():
            off = self.stg_alloc(size); self.slots[item] = [off, size, None]
            a(f"s_add_u32 m0, {S(sStg)}, {off}")
            if kind == 1:
                a(f"s_xor_b32 {S(sD0)}, {S(sRot)}, {i}")
                a(f"s_mul_i32 {S(sD0)}, {S(sD0)}, {8 * 2752}")
            else: a(f"s_lshl_b32 {S(sD0)}, {S(sKap + i)}, 5")
        def ld(p):
            if p == 0: first()
            if kind == 1: t = a(f"buffer_load_dwordx4 {R(self.vW1 + p)}, {S(sW1, 4)}, {S(sD0)} offen offset:{p * 1024} lds")
            else:
                if p: a(f"s_add_u32 {S(sD0)}, {S(sD0)}, 7168")
                t = a(f"buffer_load_dwordx4 {R(self.vW2)}, {S(sW2, 4)}, {S(sD0)} offen offset:{p * 1024} lds")
            self.slots[item][2] = t
        return [lambda p=p: ld(p) for p in range(size // 1024)]
    def drain_list(self, item):
        a = self.a; kind, i = item
        n = 6 if kind == 1 else 8
        def rd(q):
            off, size, tok = self.slots[item]
            T, h = q >> 1, q & 1
            if q == 0: a.wait_vm(tok)
            if kind == 1:
                assert not any((self.W1(i, T) + k) in self.vb.used for k in range(4)), "w1 registers still in use"
                t = a(f"ds_read_b64_tr_b16 {R(self.W1(i, T) + 2 * h, 2)}, {R(self.vTr1)} offset:{off + h * 1536 + 32 * T}")
            else:
                t = a(f"ds_read_b64_tr_b16 {R(self.W2(i, T) + 2 * h, 2)}, {R(self.vTr2 + T)} offset:{off + h * 1024}")
            if q == n - 1:
                self.stg_used.remove((off, size)); self.stg_pend.append((off, size, t)); self.drained.add(item)
        return [lambda q=q: rd(q) for q in range(n)]
    def plist(self, name):
        out = []
        for op, item in self.sched.get(name, []):
            if op == "dma": out += self.dma_list(item)
            elif op == "drain": out += self.drain_list(item)
            else: out.append(lambda op=op, item=item: getattr(self, op)(*item))
        return out
    def fake(self, *items):
        for it in items: self.cleared.add(it)
    def freeW(self): self.va.free(self.aW, self.aR)
    def sleep(self, n): self.a(f"s_sleep {n}")
    def drainvm(self, name):
        self.a.wait_vm_all(); self.stamp(name)
    def point(self, name): self.a.run(self.plist(name))
    def weave(self, mains, fills, f0=0.0, f1=1.0):
        a = self.a
        lst = []
        for op, item in mains: lst += a.capture(getattr(self, op), *item)
        glued = []
        for x in lst:
            if glued and isinstance(glued[-1], str) and glued[-1].split("\n")[-1].startswith("s_cmp"): glued[-1] += "\n" + x
            else: glued.append(x)
        self.sched["_w"] = fills
        a.run(spread(glued, (self.plist("_w"), int(f0 * len(glued)), int(f1 * len(glued)))))
    def prologue(self):
        a = self.a; va = self.va
        self.stamp("entry")
        a(f"s_cmp_ge_u32 s2, 256\ns_cbranch_scc1 L_end")
        for reg, off in ((sX, 0), (sWS, 64), (sWR, 8), (sWI, 16), (sW1, 32), (sW2, 40), (sO, 48)):
            a(f"s_load_dwordx2 {S(reg, 2)}, s[0:1], {off}")
        self.vW1 = va(3, "vW1", 1); self.vTr1 = va(1, "vTr1"); self.vW2 = va(1, "vW2"); self.vTr2 = va(4, "vTr2", 1)
        self.vZero = va(1, "zero"); self.vL16 = va(1, "l16")
        self.vL = va(1, "lane"); self.vLi = va(1, "li"); self.vG = va(1, "g"); self.vT = va(1, "T"); self.vPf = va(1, "pf")
        L, Li, G, T = self.vL, self.vLi, self.vG, self.vT
        a("s_getpc_b64 s[4:5]")
        a(f"s_lshr_b32 {S(sM)}, s2, 3\ns_and_b32 {S(sT0)}, {S(sM)}, 3\ns_lshl_b32 {S(sT0)}, {S(sT0)}, 13")
        a(f"v_lshrrev_b32 {R(T)}, 2, v0")
        a(f"v_lshl_add_u32 {R(T)}, {R(T)}, 7, {S(sT0)}")
        a(f"global_load_dword {R(self.vPf)}, {R(T)}, s[4:5]")
        a(f"v_lshrrev_b32 {R(T)}, 6, v0")
        a(f"v_and_b32 {R(L)}, 63, v0")
        a(f"v_readfirstlane_b32 {S(sW)}, {R(T)}")
        a(f"v_and_b32 {R(Li)}, 15, v0")
        a(f"v_bfe_u32 {R(G)}, v0, 4, 2")
        for reg, n in ((sX, 2097152), (sWS, WS_SIZE), (sWR, 2048 * 514), (sWI, 2048 * 514), (sW1, 512 * 2752), (sW2, 1376 * 1024), (sO, 2097152)):
            a(f"s_mov_b32 {S(reg + 2)}, {n}\ns_mov_b32 {S(reg + 3)}, 0x20000")
        if self.stamps: a(f"s_mov_b32 {S(sRet)}, 0\ns_mov_b32 {S(sRet + 1)}, 0")
        a(f"s_and_b32 {S(sK1)}, s2, 7")
        a(f"s_lshl_b32 {S(sN)}, {S(sK1)}, 5\ns_or_b32 {S(sN)}, {S(sN)}, {S(sM)}")
        a(f"s_and_b32 {S(sMem)}, {S(sM)}, 7")
        a(f"s_lshl_b32 {S(sS2)}, {S(sK1)}, 4\ns_and_b32 {S(sT0)}, {S(sM)}, 15\ns_or_b32 {S(sS2)}, {S(sS2)}, {S(sT0)}")
        a(f"s_lshr_b32 {S(sT0)}, {S(sM)}, 4\ns_lshl_b32 {S(sT0)}, {S(sT0)}, 7\ns_or_b32 {S(sS2)}, {S(sS2)}, {S(sT0)}")
        self.X = va(8, "X"); self.aX = va(1, "aX")
        a(f"v_lshlrev_b32 {R(self.aX)}, 2, {R(Li)}")
        a(f"v_lshl_add_u32 {R(self.aX)}, {R(G)}, 8, {R(self.aX)}")
        a(f"s_lshl_b32 {S(sT0)}, {S(sW)}, 19\ns_lshl_b32 {S(sT1)}, {S(sS2)}, 10")
        a(f"s_add_u32 {S(sOff)}, {S(sT0)}, {S(sT1)}\ns_add_u32 {S(sOff + 1)}, {S(sOff)}, 0x40000")
        self.vEp = va(1, "ep"); self.vM1 = va(4, "m1")
        a(f"v_mov_b32 {R(self.vZero)}, 0")
        a(f"v_lshlrev_b32 {R(self.vL16)}, 4, {R(L)}")
        for i in range(4): a(f"v_mov_b32 {R(self.vM1 + i)}, -1")
        a(f"s_lshl_b32 {S(sT0)}, {S(sN)}, 13\ns_lshl_b32 {S(sT1)}, {S(sW)}, 11\ns_add_u32 {S(sOwn)}, {S(sT0)}, {S(sT1)}")
        a(f"s_lshr_b32 {S(sHb)}, {S(sOwn)}, 2\ns_mul_i32 {S(sHb)}, {S(sHb)}, 11")
        a(f"s_mov_b32 {S(sOnes)}, 0x3f803f80\ns_mov_b32 {S(sMask)}, 0x00030003")
    def x_load(self):
        a = self.a; va = self.va
        a(f"s_mov_b32 {S(sT0)}, {EPO}")
        a("s_waitcnt lgkmcnt(0)")
        self.stamp("karg")
        for rho in range(2):
            for r in range(4):
                a(f"buffer_load_dword {R(self.X + 4 * rho + r)}, {R(self.aX)}, {S(sX, 4)}, {S(sOff + rho)} offen offset:{64 * r}")
        a(f"buffer_load_dword {R(self.vEp)}, {R(self.vZero)}, {S(sWS, 4)}, {S(sT0)} offen sc1")
        va.free(self.aX)
    def clear(self, base, i):
        a = self.a
        a(f"s_add_u32 {S(sU0)}, {S(sOwn)}, {base + 1024 * i}")
        t = a(f"buffer_store_dwordx4 {R(self.vM1, 4)}, {R(self.vL16)}, {S(sWS, 4)}, {S(sU0)} offen sc1")
        if base == Z2: self.tokclr = t
        self.cleared.add((base, i))
    def clear_H(self, i):
        a = self.a
        a(f"s_add_u32 {S(sU0)}, {S(sHb)}, {HB + 1024 * i}")
        if i == 5: a("s_mov_b32 exec_hi, 0")
        a(f"buffer_store_dwordx4 {R(self.vM1, 4)}, {R(self.vL16)}, {S(sWS, 4)}, {S(sU0)} offen sc1")
        if i == 5: a("s_mov_b32 exec_hi, -1")
        self.cleared.add((HB, i))
    def w_addr(self):
        a = self.a; va = self.va; L, T = self.vL, self.vT
        k = va(1, "k"); u = va(1, "u"); self.aW = va(1, "aW"); self.aR = va(1, "aR")
        a(f"s_lshl_b32 {S(sT0)}, {S(sW)}, 5\ns_and_b32 {S(sT1)}, s2, 15\ns_add_u32 {S(sT0)}, {S(sT0)}, {S(sT1)}")
        a(f"v_and_b32 {R(k)}, 0x19, {R(L)}")
        a(f"v_lshl_add_u32 {R(k)}, {R(k)}, 4, {S(sT0)}")
        a(f"v_and_b32 {R(T)}, 6, {R(L)}")
        a(f"v_lshl_add_u32 {R(k)}, {R(T)}, 8, {R(k)}")
        a(f"v_cmp_gt_u32 vcc, 32, {R(L)}")
        a(f"s_lshr_b32 {S(sT0)}, {S(sM)}, 1\ns_lshl_b32 {S(sT0)}, {S(sT0)}, 4\ns_sub_u32 {S(sT1)}, 498, {S(sT0)}")
        a(f"v_sub_u32 {R(u)}, 0, {R(k)}")
        a(f"v_and_b32 {R(u)}, 2047, {R(u)}")
        a(f"v_mul_u32_u24 {R(k)}, 514, {R(k)}")
        a(f"v_mul_u32_u24 {R(u)}, 514, {R(u)}")
        a(f"v_add_u32 {R(T)}, {S(sT0)}, {R(k)}")
        a(f"v_add_u32 {R(u)}, {S(sT1)}, {R(u)}")
        a(f"v_cndmask_b32 {R(self.aW)}, {R(u)}, {R(T)}, vcc")
        a(f"v_cndmask_b32 {R(self.aR)}, 2.0, {R(k)}, vcc")
        va.free(k, u)
        self.WL = self.vb(10, "WL"); self.wloaded = 0
    def w_load(self, x):
        a = self.a; srd = S((sWR, sWI)[x], 4)
        Ls = a.label("nor")
        a(f"s_cmp_ge_u32 {S(sM)}, 2\ns_cbranch_scc1 {Ls}")
        a.auto = False
        a(f"buffer_load_ushort {R(self.WL + 8 + x)}, {R(self.aR)}, {srd}, 0 offen offset:256")
        a.auto = True
        a(Ls + ":")
        a(f"buffer_load_dwordx4 {R(self.WL + 4 * x, 4)}, {R(self.aW)}, {srd}, 0 offen")
        self.wloaded += 1
        if self.wloaded == 2: self.va.free(self.aW, self.aR)
    def w_stage(self):
        a = self.a; va = self.va; L, Li, G, T = self.vL, self.vLi, self.vG, self.vT
        self.Wraw = self.vb(16, "Wraw")
        aw = va(1, "aw"); aP = va(1, "aP"); aQ = va(1, "aQ")
        a(f"s_mul_i32 {S(sT0)}, {S(sW)}, {4 * HROW}")
        a(f"v_add_u32 {R(aw)}, {S(sT0)}, {R(self.vL16)}")
        a(f"v_and_b32 {R(T)}, 1, {R(Li)}")
        a(f"v_lshl_add_u32 {R(T)}, {R(G)}, 1, {R(T)}")
        a(f"v_lshl_add_u32 {R(T)}, {R(T)}, 4, {S(sT0)}")
        a(f"v_and_or_b32 {R(aP)}, {R(Li)}, 14, {R(T)}")
        a(f"v_xor_b32 {R(aQ)}, 14, {R(aP)}")
        for i in range(16): a(f"v_mov_b32 {R(self.Wraw + i)}, 0")
        for x in range(2): a(f"ds_write_b128 {R(aw)}, {R(self.WL + 4 * x, 4)} offset:{1024 * x}")
        Ls = a.label("nor")
        a(f"s_cmp_ge_u32 {S(sM)}, 2\ns_cbranch_scc1 {Ls}")
        a.auto = False
        a("s_mov_b32 exec_hi, 0")
        for x in range(2): a(f"ds_write_b16 {R(aw)}, {R(self.WL + 8 + x)} offset:{1024 * x}")
        a("s_mov_b32 exec_hi, -1")
        a.auto = True
        a(Ls + ":")
        for r in range(4):
            for x in range(2):
                a(f"ds_read_u16_d16_hi {R(self.Wraw + 4 * x + r)}, {R(aP)} offset:{1024 * x + 128 * r}")
                a(f"ds_read_u16_d16_hi {R(self.Wraw + 8 + 4 * x + r)}, {R(aQ)} offset:{1024 * x + 128 * r + 512}")
        self.vb.free(self.WL); va.free(aw, aP, aQ)
    def w_coefs(self):
        a = self.a; va = self.va; T = self.vT; W = self.Wraw
        sc = 2.0 ** -19
        K = va(4, "K")
        al, be, c, s = (K + i for i in range(4))
        a(f"s_lshr_b32 {S(sT0)}, {S(sM)}, 1\ns_lshl_b32 {S(sT0)}, {S(sT0)}, 4")
        a(f"v_and_or_b32 {R(T)}, {R(self.vLi)}, 14, {S(sT0)}")
        a(f"v_cmp_ne_u32 vcc, 0, {R(T)}")
        a(f"v_mov_b32 {R(al)}, {fl(0.25)}")
        a(f"v_cvt_f32_u32 {R(T)}, {R(T)}")
        a(f"v_mul_f32 {R(T)}, {fl(1 / 1024)}, {R(T)}")
        a(f"v_cndmask_b32 {R(T)}, {R(al)}, {R(T)}, vcc")
        self.sincos(c, s, T)
        a(f"v_mul_f32 {R(c)}, {fl(sc / 2)}, {R(c)}")
        a(f"v_mul_f32 {R(s)}, {fl(sc / 2)}, {R(s)}")
        a(f"v_cndmask_b32 {R(c)}, 0, {R(c)}, vcc")
        a(f"v_sub_f32 {R(al)}, {fl(sc / 2)}, {R(s)}")
        a(f"v_add_f32 {R(be)}, {fl(sc / 2)}, {R(s)}")
        self.CF = self.vb(24, "CF")
        A1r, A1i, Br, Bi, A2r, A2i = (self.CF + 4 * i for i in range(6))
        Pr, Pi, Qr, Qi = (W + 4 * i for i in range(4))
        lo2 = " op_sel_hi:[1,0]"; hi2 = " op_sel:[0,1] op_sel_hi:[1,1]"
        lo3 = " op_sel_hi:[1,0,1]"; hi3 = " op_sel:[0,1,0] op_sel_hi:[1,1,1]"
        n2 = " neg_lo:[0,1] neg_hi:[0,1]"; n3 = " neg_lo:[0,1,0] neg_hi:[0,1,0]"
        P = lambda x: R(x, 2)
        for k in (0, 2):
            a(f"v_pk_mul_f32 {P(A1r + k)}, {P(Pr + k)}, {P(al)}" + lo2)
            a(f"v_pk_mul_f32 {P(A2r + k)}, {P(Pr + k)}, {P(al)}" + hi2)
            a(f"v_pk_add_f32 {P(Bi + k)}, {P(Pr + k)}, {P(Qr + k)}" + n2)
            a(f"v_pk_mul_f32 {P(A1i + k)}, {P(Pi + k)}, {P(al)}" + lo2)
            a(f"v_pk_mul_f32 {P(A2i + k)}, {P(Pi + k)}, {P(al)}" + hi2)
            a(f"v_pk_add_f32 {P(Br + k)}, {P(Pi + k)}, {P(Qi + k)}")
            a(f"v_pk_fma_f32 {P(A1r + k)}, {P(Qr + k)}, {P(al)}, {P(A1r + k)}" + hi3)
            a(f"v_pk_fma_f32 {P(A2r + k)}, {P(Qr + k)}, {P(al)}, {P(A2r + k)}" + lo3)
            a(f"v_pk_mul_f32 {P(Bi + k)}, {P(Bi + k)}, {P(c)}" + lo2)
            a(f"v_pk_fma_f32 {P(A1i + k)}, {P(Qi + k)}, {P(al)}, {P(A1i + k)}" + hi3 + n3)
            a(f"v_pk_fma_f32 {P(A2i + k)}, {P(Qi + k)}, {P(al)}, {P(A2i + k)}" + lo3 + n3)
            a(f"v_pk_mul_f32 {P(Br + k)}, {P(Br + k)}, {P(c)}" + lo2 + n2)
        va.free(K); self.vb.free(W)
    def tables_p1(self):
        a = self.a; va = self.va; Li, G, T = self.vLi, self.vG, self.vT
        self.M = va(8, "M"); self.M2 = va(8, "M2"); self.TW = va(8, "TW"); self.Gm = va(8, "G")
        p = va(1, "p"); c = va(1, "c"); s = va(1, "s"); u = va(1, "u"); f = va(1, "f")
        a(f"v_mul_u32_u24 {R(p)}, {R(Li)}, {R(G)}")
        a(f"v_cvt_f32_u32 {R(f)}, {R(Li)}")
        a(f"v_cvt_f32_u32 {R(p)}, {R(p)}")
        a(f"v_mul_f32 {R(p)}, {fl(1 / 64)}, {R(p)}")
        for r in range(4):
            if r: a(f"v_fmamk_f32 {R(p)}, {R(f)}, {fl(1 / 256)}, {R(p)}")
            a(f"v_mul_f32 {R(T)}, {fl(16.0)}, {R(p)}")
            a(f"v_fract_f32 {R(T)}, {R(T)}")
            self.sincos(c, s, T)
            self.sincos(self.TW + r, self.TW + 4 + r, p)
            a(f"v_cvt_pk_bf16_f32 {R(self.M + r)}, {R(c)}, {R(s)}")
            a(f"v_cvt_pk_bf16_f32 {R(self.M + 4 + r)}, -{R(s)}, {R(c)}")
            a(f"v_cvt_pk_f16_f32 {R(self.M2 + r)}, {R(c)}, {R(s)}")
            a(f"v_cvt_pk_f16_f32 {R(self.M2 + 4 + r)}, -{R(s)}, {R(c)}")
        msk = va(1, "msk"); sg = va(1, "sg")
        a(f"v_lshrrev_b32 {R(u)}, 1, {R(Li)}")
        a(f"v_and_b32 {R(p)}, 1, {R(G)}")
        a(f"v_lshl_add_u32 {R(p)}, {R(p)}, 10, {S(sS2)}")
        a(f"v_mul_u32_u24 {R(p)}, {R(p)}, {R(u)}")
        a(f"v_cvt_f32_u32 {R(f)}, {R(u)}")
        a(f"v_cvt_f32_u32 {R(p)}, {R(p)}")
        a(f"v_lshrrev_b32 {R(msk)}, 1, {R(G)}")
        a(f"v_mul_f32 {R(p)}, {fl(1 / 2048)}, {R(p)}")
        a(f"v_xor_b32 {R(msk)}, {R(msk)}, {R(Li)}")
        a(f"v_and_b32 {R(msk)}, 1, {R(msk)}")
        a(f"v_add_u32 {R(msk)}, -1, {R(msk)}")
        a(f"v_lshlrev_b32 {R(sg)}, 31, {R(Li)}")
        for r in range(4):
            if r: a(f"v_fmamk_f32 {R(p)}, {R(f)}, {fl(1 / 8)}, {R(p)}")
            self.sincos(c, s, p)
            a(f"v_cvt_pk_f16_f32 {R(self.Gm + r)}, {R(c)}, {R(s)}")
            a(f"v_cvt_pk_f16_f32 {R(self.Gm + 4 + r)}, -{R(s)}, {R(c)}")
            for q in (self.Gm + r, self.Gm + 4 + r):
                a(f"v_bitop3_b32 {R(q)}, {R(q)}, {R(sg)}, {R(msk)} bitop3:0x28")
        self.vMsk = msk
        va.free(sg, p, s, f)
        self.aE1w = va(1, "aE1w"); self.aE1r = va(2, "aE1r", 1); self.aZ1 = va(1, "aZ1"); self.v16 = va(1, "m16")
        a(f"s_lshr_b32 {S(sT0)}, {S(sW)}, 1\ns_lshl_b32 {S(sT0)}, {S(sT0)}, 12\ns_and_b32 {S(sT1)}, {S(sW)}, 1\ns_lshl_b32 {S(sT1)}, {S(sT1)}, 3")
        a(f"s_add_u32 {S(sT0)}, {S(sT0)}, {S(sT1)}\ns_add_u32 {S(sT0)}, {S(sT0)}, {EA}")
        a(f"v_lshl_add_u32 {R(self.aE1w)}, {R(Li)}, 4, {S(sT0)}")
        a(f"v_lshl_add_u32 {R(self.aE1w)}, {R(G)}, 10, {R(self.aE1w)}")
        hh = va(1, "hh")
        a(f"v_and_b32 {R(hh)}, 1, {R(G)}")
        a(f"v_lshlrev_b32 {R(u)}, 18, {R(u)}")
        a(f"v_lshl_add_u32 {R(u)}, {R(hh)}, 4, {R(u)}")
        a(f"v_and_b32 {R(T)}, 2, {R(G)}")
        a(f"v_and_or_b32 {R(T)}, {R(Li)}, 1, {R(T)}")
        a(f"v_lshl_add_u32 {R(self.aZ1)}, {R(T)}, 5, {R(u)}")
        a(f"s_movk_i32 {S(sT1)}, {EA // 16}")
        a(f"v_lshl_add_u32 {R(hh)}, {R(hh)}, 8, {S(sT1)}")
        a(f"s_lshl_b32 {S(sT0)}, {S(sW)}, 5")
        q = self.aE1r
        a(f"v_add_u32 {R(q)}, {S(sT0)}, {R(Li)}")
        a(f"v_cmp_eq_u32 vcc, 0, {R(q)}")
        a(f"v_cmp_lt_u32 s[4:5], 1, {R(G)}")
        a(f"v_sub_u32 {R(c)}, 256, {R(q)}")
        a(f"v_add_u32 {R(q + 1)}, 16, {R(q)}")
        a(f"v_add_u32 {R(u)}, -16, {R(c)}")
        a(f"v_mov_b32 {R(T)}, 128")
        a(f"v_cndmask_b32 {R(c)}, {R(c)}, {R(T)}, vcc")
        a(f"v_cndmask_b32 {R(q)}, {R(q)}, {R(c)}, s[4:5]")
        a(f"v_cndmask_b32 {R(q + 1)}, {R(q + 1)}, {R(u)}, s[4:5]")
        a(f"v_cmp_eq_u32 vcc, 0, {R(Li)}")
        a(f"v_add_lshl_u32 {R(q)}, {R(q)}, {R(hh)}, 4")
        a(f"v_add_lshl_u32 {R(q + 1)}, {R(q + 1)}, {R(hh)}, 4")
        a(f"v_mov_b32 {R(T)}, {fl(16.0)}")
        a(f"v_cndmask_b32 {R(self.v16)}, 0, {R(T)}, vcc")
        va.free(c, hh, u)
        self.ST = va(8, "ST"); self.vMu = va(1, "mu")
        for i in range(4): a(f"v_mov_b32 {R(self.ST + i)}, 0")
        a(f"s_lshl_b32 {S(sT0)}, {S(sW)}, 16\ns_lshl_b32 {S(sT1)}, {S(sS2)}, 7\ns_add_u32 {S(sOff + 2)}, {S(sT0)}, {S(sT1)}\ns_add_u32 {S(sOff + 3)}, {S(sOff + 2)}, 32768")
    def tags(self):
        a = self.a; va = self.va; Li, G = self.vLi, self.vG
        self.TG = va(4, "TG", 1); self.TG2 = va(1, "TG2"); u = self.vEp; T = self.vPf
        a(f"v_readfirstlane_b32 {S(sEp)}, {R(self.vEp)}")
        a(f"v_and_b32 {R(u)}, 1, {R(G)}")
        a(f"v_lshlrev_b32 {R(u)}, 4, {R(u)}")
        a(f"s_add_u32 {S(sT2)}, {S(sEp)}, 1\ns_and_b32 {S(sT2)}, {S(sT2)}, 15")
        a(f"s_and_b32 {S(sEp)}, {S(sEp)}, 0xfffffff0")
        a(f"s_and_b32 {S(sCnt)}, {S(sEp)}, 0xfffeffff\ns_or_b32 {S(sCnt)}, {S(sCnt)}, 0x00100010")
        a(f"s_or_b32 {S(sEp)}, {S(sEp)}, {S(sT2)}")
        a(f"s_mul_i32 {S(sT2)}, {S(sT2)}, 0x01010101")
        a(f"s_and_b32 {S(sU0)}, {S(sCnt)}, 0x0f0f0f0f\ns_add_u32 {S(sU0)}, {S(sU0)}, {S(sT2)}\ns_and_b32 {S(sU0)}, {S(sU0)}, 0x0f0f0f0f")
        a(f"s_lshr_b32 {S(sCnt)}, {S(sCnt)}, 4\ns_and_b32 {S(sCnt)}, {S(sCnt)}, 0x0f0f0f0f\ns_add_u32 {S(sCnt)}, {S(sCnt)}, {S(sT2)}\ns_and_b32 {S(sCnt)}, {S(sCnt)}, 0x0f0f0f0f")
        a(f"s_lshl_b32 {S(sCnt)}, {S(sCnt)}, 4\ns_or_b32 {S(sCnt)}, {S(sCnt)}, {S(sU0)}")
        a(f"v_bfe_u32 {R(u)}, {S(sCnt)}, {R(u)}, 16")
        a(f"v_and_b32 {R(T)}, 7, {R(Li)}")
        a(f"v_lshlrev_b32 {R(T)}, 2, {R(T)}")
        a(f"v_lshl_or_b32 {R(self.TG)}, {R(u)}, 14, {R(u)}")
        a(f"v_bfe_u32 {R(T)}, {S(sCnt)}, {R(T)}, 4")
        for r in range(1, 4): a(f"v_lshrrev_b32 {R(self.TG + r)}, {4 * r}, {R(self.TG)}")
        a(f"v_lshl_or_b32 {R(T)}, {R(T)}, 14, {R(T)}")
        a(f"v_and_b32 {R(self.TG2)}, {S(sMask)}, {R(T)}")
        self.later_free = [self.vEp, self.vPf]
    def p1(self):
        a = self.a; va = self.va; X = self.X; M = self.M; M2 = self.M2; ST = self.ST
        D = va(16, "D"); E = va(16, "E"); cs = va(8, "cs")
        for rho in range(2):
            for ri in range(2):
                a(f"v_mfma_f32_16x16x32_bf16 {R(D + 8 * rho + 4 * ri, 4)}, {R(X + 4 * rho, 4)}, {R(M + 4 * ri, 4)}, 0")
        self.stamp("x_in")
        st = a.capture(self.stats, X, ST, 1.0, self.v16)
        tg = a.capture(self.tags)
        a.run(spread(st, (tg, 16, len(st)), (self.plist("p1_a"), 16, len(st))))
        va.free(*self.later_free)
        for rho in range(2):
            for k in range(0, 8, 2):
                a(f"v_pk_mul_f32 {R(cs + k, 2)}, {R(self.TW + k, 2)}, {R(ST + 2 * rho, 2)} op_sel_hi:[1,0]")
            self.cmul(E + 8 * rho, E + 8 * rho + 4, D + 8 * rho, D + 8 * rho + 4, cs, cs + 4, False, addend=ST + 4 + 2 * rho)
            for r in range(4):
                a(f"v_cvt_pk_f16_f32 {R(X + 4 * rho + r)}, {R(E + 8 * rho + r)}, {R(E + 8 * rho + 4 + r)}")
            for ri in range(2):
                a(f"v_mfma_f32_16x16x32_f16 {R(D + 8 * rho + 4 * ri, 4)}, {R(M2 + 4 * ri, 4)}, {R(X + 4 * rho, 4)}, 0")
        for r in range(4): a(f"v_cvt_pk_f16_f32 {R(E + 2 * r)}, {R(D + r)}, {R(D + 4 + r)}")
        assert {(Z2, 0), (Z2, 1)} <= self.cleared
        a.wait_vm(self.tokclr)
        for r in range(4):
            a(f"v_cvt_pk_f16_f32 {R(E + 2 * r + 1)}, {R(D + 8 + r)}, {R(D + 12 + r)}")
            a(f"ds_write_b64 {R(self.aE1w)}, {R(E + 2 * r, 2)} offset:{256 * r}")
        a.barrier()
        for t in range(2):
            a(f"ds_read_b128 {R(X + 4 * t, 4)}, {R(self.aE1r + t)}")
        for t in range(2):
            for ri in range(2):
                a(f"v_mfma_f32_16x16x32_f16 {R(D + 8 * t + 4 * ri, 4)}, {R(X + 4 * t, 4)}, {R(self.Gm + 4 * ri, 4)}, 0")
        for t in range(2):
            for r in range(4):
                a(f"v_cvt_pk_f16_f32 {R(E + 4 * t + r)}, {R(D + 8 * t + r)}, {R(D + 8 * t + 4 + r)}")
            for r in range(4):
                a(f"v_bfi_b32 {R(E + 4 * t + r)}, {S(sMask)}, {R(self.TG + r)}, {R(E + 4 * t + r)}")
            a(f"buffer_store_dwordx4 {R(E + 4 * t, 4)}, {R(self.aZ1)}, {S(sWS, 4)}, {S(sOff + 2 + t)} offen sc1")
        self.stamp("z1_st")
        va.free(D, E, cs, X, self.Gm, self.aE1w, self.aE1r, self.aZ1, self.v16, self.TG)
    def tables_p2a(self):
        a = self.a; va = self.va; Li, G, T = self.vLi, self.vG, self.vT
        self.M1 = self.vb(16, "M1")
        ka = va(1, "ka"); f0 = va(1, "f0"); c = va(2, "c", 1); s = va(2, "s", 1)
        a(f"s_and_b32 {S(sT0)}, {S(sM)}, 1\ns_lshl_b32 {S(sT1)}, {S(sW)}, 2")
        a(f"v_and_or_b32 {R(ka)}, {R(Li)}, 14, {S(sT0)}")
        a(f"v_lshl_add_u32 {R(f0)}, {R(G)}, 6, {S(sT1)}")
        a(f"v_and_b32 {R(T)}, 1, {R(Li)}")
        a(f"v_lshlrev_b32 {R(T)}, 6, {R(T)}")
        a(f"v_mad_u32_u24 {R(f0)}, {R(f0)}, {R(ka)}, {R(T)}")
        a(f"v_and_b32 {R(f0)}, 255, {R(f0)}")
        a(f"v_cvt_f32_u32 {R(ka)}, {R(ka)}")
        a(f"v_cvt_f32_u32 {R(f0)}, {R(f0)}")
        a(f"v_mul_f32 {R(f0)}, {fl(1 / 256)}, {R(f0)}")
        for n in range(17):
            if n < 16:
                be, r = n >> 2, n & 3
                if n: a(f"v_fmamk_f32 {R(T)}, {R(ka)}, {fl(be / 256 + r / 16)}, {R(f0)}")
                self.sincos(c + (n & 1), s + (n & 1), T if n else f0)
            if n: a(f"v_cvt_pk_f16_f32 {R(self.M1 + n - 1)}, {R(c + ((n - 1) & 1))}, {R(s + ((n - 1) & 1))}")
        va.free(ka, f0, c, s)
    def tables_p2b(self):
        a = self.a; va = self.va; Li, G, T = self.vLi, self.vG, self.vT
        self.M5 = self.vb(16, "M5")
        b = va(1, "b"); st = va(1, "st"); f0 = va(1, "f0"); c = va(1, "c"); s = va(1, "s"); ih = va(1, "ih")
        a(f"s_and_b32 {S(sT0)}, {S(sM)}, 1\ns_lshl_b32 {S(sT1)}, {S(sW)}, 2")
        a(f"v_and_or_b32 {R(b)}, {R(Li)}, 1, {S(sT1)}")
        a(f"v_and_b32 {R(ih)}, 1, {R(G)}")
        a(f"v_lshlrev_b32 {R(ih)}, 2, {R(ih)}")
        for t in range(2):
            if t: a(f"v_add_u32 {R(b)}, 2, {R(b)}")
            a(f"v_and_b32 {R(st)}, 14, {R(Li)}")
            a(f"v_lshl_add_u32 {R(st)}, {R(st)}, 3, {R(b)}")
            a(f"v_lshlrev_b32 {R(st)}, 1, {R(st)}")
            a(f"v_mul_u32_u24 {R(f0)}, {S(sT0)}, {R(b)}")
            a(f"v_mad_u32_u24 {R(f0)}, {R(ih)}, {R(st)}, {R(f0)}")
            a(f"v_cvt_f32_u32 {R(st)}, {R(st)}")
            a(f"v_cvt_f32_u32 {R(f0)}, {R(f0)}")
            a(f"v_mul_f32 {R(f0)}, {fl(1 / 256)}, {R(f0)}")
            for r in range(4):
                if r: a(f"v_fmamk_f32 {R(f0)}, {R(st)}, {fl(1 / 256)}, {R(f0)}")
                self.sincos(c, s, f0)
                a(f"v_and_b32 {R(c)}, {R(self.vMsk)}, {R(c)}")
                a(f"v_and_b32 {R(s)}, {R(self.vMsk)}, {R(s)}")
                a(f"v_cvt_pk_bf16_f32 {R(self.M5 + 8 * t + r)}, {R(c)}, -{R(s)}")
                a(f"v_cvt_pk_bf16_f32 {R(self.M5 + 8 * t + 4 + r)}, {R(s)}, {R(c)}")
        va.free(b, st, f0, c, s, ih, self.vMsk)
    def addr_g1(self):
        a = self.a; va = self.va; Li, G, T = self.vLi, self.vG, self.vT
        self.aG1 = va(1, "aG1"); self.aG2 = va(1, "aG2")
        a(f"v_lshlrev_b32 {R(T)}, 2, {R(Li)}")
        a(f"v_lshl_add_u32 {R(self.aG1)}, {R(G)}, 13, {R(T)}")
        a(f"v_lshl_add_u32 {R(self.aG2)}, {R(G)}, 9, {R(T)}")
        a(f"s_lshr_b32 {S(sT0)}, {S(sN)}, 2\ns_lshl_b32 {S(sT0)}, {S(sT0)}, 15\ns_lshl_b32 {S(sT1)}, {S(sW)}, 9\ns_add_u32 {S(sT0)}, {S(sT0)}, {S(sT1)}")
        a(f"s_and_b32 {S(sT1)}, {S(sM)}, 2\ns_lshl_b32 {S(sT1)}, {S(sT1)}, 5\ns_add_u32 {S(sOff + 4)}, {S(sT0)}, {S(sT1)}\ns_add_u32 {S(sOff + 5)}, {S(sOff + 4)}, 4096")
    def addr_p2(self):
        a = self.a; va = self.va; Li, G, T = self.vLi, self.vG, self.vT
        self.aE2w = va(1, "aE2w"); self.aE2r = va(1, "aE2r"); self.aE3w = va(1, "aE3w"); self.aE3r = va(1, "aE3r"); self.aZ2 = va(1, "aZ2")
        p = va(1, "p"); h = va(1, "h"); o = va(1, "o")
        a(f"v_lshrrev_b32 {R(h)}, 1, {R(Li)}")
        a(f"v_and_b32 {R(o)}, 1, {R(Li)}")
        a(f"s_lshl_b32 {S(sT0)}, {S(sW)}, 11\ns_add_u32 {S(sT0)}, {S(sT0)}, {EB}")
        a(f"v_and_b32 {R(T)}, 8, {R(Li)}")
        a(f"v_add_lshl_u32 {R(p)}, {R(T)}, {R(Li)}, 4")
        a(f"v_lshl_add_u32 {R(p)}, {R(G)}, 9, {R(p)}")
        a(f"v_add_u32 {R(self.aE2w)}, {S(sT0)}, {R(p)}")
        a(f"s_lshl_b32 {S(sT0)}, {S(sW)}, 9\ns_add_u32 {S(sT0)}, {S(sT0)}, {EB}")
        a(f"v_lshl_add_u32 {R(p)}, {R(G)}, 11, {S(sT0)}")
        a(f"v_lshl_add_u32 {R(p)}, {R(o)}, 7, {R(p)}")
        a(f"v_lshl_add_u32 {R(self.aE2r)}, {R(h)}, 4, {R(p)}")
        a(f"s_lshr_b32 {S(sT0)}, {S(sW)}, 1\ns_lshl_b32 {S(sT0)}, {S(sT0)}, 8\ns_and_b32 {S(sT1)}, {S(sW)}, 1\ns_lshl_b32 {S(sT1)}, {S(sT1)}, 3")
        a(f"s_add_u32 {S(sT0)}, {S(sT0)}, {S(sT1)}\ns_add_u32 {S(sT0)}, {S(sT0)}, {EA}")
        a(f"v_mul_u32_u24 {R(p)}, 528, {R(Li)}")
        a(f"v_lshl_add_u32 {R(p)}, {R(G)}, 5, {R(p)}")
        a(f"v_add_u32 {R(self.aE3w)}, {S(sT0)}, {R(p)}")
        a(f"s_mul_i32 {S(sT0)}, {S(sW)}, {4 * 528}\ns_add_u32 {S(sT0)}, {S(sT0)}, {EA}")
        a(f"v_lshrrev_b32 {R(T)}, 1, {R(G)}")
        a(f"v_lshl_add_u32 {R(p)}, {R(T)}, 4, {S(sT0)}")
        a(f"v_add_u32 {R(self.aE3r)}, {R(self.vL16)}, {R(p)}")
        a(f"v_lshlrev_b32 {R(p)}, 18, {R(h)}")
        a(f"v_lshl_add_u32 {R(p)}, {R(o)}, 6, {R(p)}")
        a(f"v_lshl_add_u32 {R(self.aZ2)}, {R(G)}, 4, {R(p)}")
        va.free(p, h, o)
        a(f"s_lshl_b32 {S(sT0)}, {S(sW)}, 16\ns_lshl_b32 {S(sT1)}, s2, 7\ns_add_u32 {S(sT0)}, {S(sT0)}, {S(sT1)}")
        a(f"s_add_u32 {S(sOff + 6)}, {S(sT0)}, {Z2}\ns_add_u32 {S(sOff + 7)}, {S(sT0)}, {Z2 + 32768}")
        a(f"s_or_b32 {S(sT0)}, s2, {S(sW)}\ns_cmp_lg_u32 {S(sT0)}, 0\ns_cselect_b32 {S(sOff + 8)}, 2.0, {EPO}")
    def p2_gather(self):
        a = self.a; va = self.va
        self.Y = va(16, "Y")
        self.g1 = [f"buffer_load_dword {R(self.Y + 4 * be + r)}, {R(self.aG1)}, {S(sWS, 4)}, {S(sOff + 4 + (r >> 1))} offen offset:{(r & 1) * 2048 + 128 * be} sc1"
                   for be in range(4) for r in range(4)]
        assert {(HN, 0), (HN, 1)} <= self.cleared
        self.stamp("g1")
        for l in self.g1: a(l)
    def p2(self):
        a = self.a; va = self.va; Y = self.Y; M = self.M; M2 = self.M2; T = self.vT
        D = va(16, "D"); E = va(16, "E")
        def chk():
            for be in range(4):
                for i in range(4 * be, 4 * be + 4): a(f"v_xor_b32 {R(Y + i)}, {R(self.TG2)}, {R(Y + i)}")
                if be == 0: a(f"v_or_b32 {R(T)}, {R(Y)}, {R(Y + 1)}")
                else: a(f"v_or3_b32 {R(T)}, {R(T)}, {R(Y + 4 * be)}, {R(Y + 4 * be + 1)}")
                a(f"v_or3_b32 {R(T)}, {R(T)}, {R(Y + 4 * be + 2)}, {R(Y + 4 * be + 3)}")
                a(f"v_mfma_f32_16x16x32_f16 {R(D + 4 * be, 4)}, {R(self.M1 + 4 * be, 4)}, {R(Y + 4 * be, 4)}, 0")
            a(f"v_and_b32 {R(T)}, {S(sMask)}, {R(T)}")
            a(f"v_cmp_ne_u32 vcc, 0, {R(T)}")
        self.poll("z1", self.g1, chk)
        self.stamp("z1_in")
        for ip in range(2):
            for be in range(4):
                a(f"v_cvt_pk_f16_f32 {R(E + 4 * ip + be)}, {R(D + 4 * be + 2 * ip)}, {R(D + 4 * be + 2 * ip + 1)}")
            a(f"ds_write_b128 {R(self.aE2w)}, {R(E + 4 * ip, 4)} offset:{128 * ip}")
        self.point("p2_a")
        a.barrier()
        for uv in range(2):
            a(f"ds_read_b128 {R(Y + 4 * uv, 4)}, {R(self.aE2r)} offset:{256 * uv}")
        a(f"v_mov_b32 {R(T)}, {S(sEp)}")
        a(f"buffer_store_dword {R(T)}, {R(self.vZero)}, {S(sWS, 4)}, {S(sOff + 8)} offen sc1")
        self.point("p2_b")
        for uv in range(2):
            for ri in range(2):
                a(f"v_mfma_f32_16x16x32_f16 {R(D + 8 * uv + 4 * ri, 4)}, {R(M2 + 4 * ri, 4)}, {R(Y + 4 * uv, 4)}, 0")
        self.point("p2_c")
        Ur, Ui, Vr, Vi = D, D + 4, D + 8, D + 12
        A1r, A1i, Br, Bi, A2r, A2i = (self.CF + 4 * i for i in range(6))
        neg = " neg_lo:[0,1,0] neg_hi:[0,1,0]"; neg2 = " neg_lo:[0,1] neg_hi:[0,1]"
        terms = [(E, [(Ur, A1r, 0), (Ui, A1i, 1), (Vr, Br, 0), (Vi, Bi, 1)]),
                 (E + 4, [(Ur, A1i, 0), (Ui, A1r, 0), (Vr, Bi, 0), (Vi, Br, 0)]),
                 (E + 8, [(Ur, Br, 1), (Ui, Bi, 0), (Vr, A2r, 0), (Vi, A2i, 1)]),
                 (E + 12, [(Ur, Bi, 1), (Ui, Br, 1), (Vr, A2i, 0), (Vi, A2r, 0)])]
        def mix(tm, step):
            for o, tl in tm:
                x, cf, ng = tl[step]
                for k in (0, 2):
                    if step == 0: a(f"v_pk_mul_f32 {R(o + k, 2)}, {R(x + k, 2)}, {R(cf + k, 2)}" + (neg2 if ng else ""))
                    else: a(f"v_pk_fma_f32 {R(o + k, 2)}, {R(x + k, 2)}, {R(cf + k, 2)}, {R(o + k, 2)}" + (neg if ng else ""))
        D2 = Y + 8
        for step in range(2): mix(terms, step)
        for uv in range(2):
            for step in (2, 3): mix(terms[2 * uv:2 * uv + 2], step)
            for r in range(4):
                a(f"v_cvt_pk_bf16_f32 {R(Y + 4 * uv + r)}, {R(E + 8 * uv + 4 + r)}, {R(E + 8 * uv + r)}")
            dst = D2 if uv == 0 else D
            for ri in range(2):
                a(f"v_mfma_f32_16x16x32_bf16 {R(dst + 4 * ri, 4)}, {R(Y + 4 * uv, 4)}, {R(M + 4 * (1 - ri), 4)}, 0")
        for uv in range(2):
            dst = D2 if uv == 0 else D
            for sp in range(2):
                for r in (2 * sp, 2 * sp + 1):
                    a(f"v_cvt_pk_bf16_f32 {R(E + 4 * uv + r)}, {R(dst + r)}, {R(dst + 4 + r)}")
                a(f"ds_write_b64 {R(self.aE3w)}, {R(E + 4 * uv + 2 * sp, 2)} offset:{128 * uv + 16 * sp}")
        self.point("p2_d")
        a.barrier()
        for t in range(2):
            a(f"ds_read_b128 {R(Y + 4 * t, 4)}, {R(self.aE3r)} offset:{1056 * t}")
        for t in range(2):
            for ri in range(2):
                a(f"v_mfma_f32_16x16x32_bf16 {R(D + 8 * t + 4 * ri, 4)}, {R(Y + 4 * t, 4)}, {R(self.M5 + 8 * t + 4 * ri, 4)}, 0")
        for t in range(2):
            for r in range(4):
                a(f"v_cvt_pk_bf16_f32 {R(E + 4 * t + r)}, {R(D + 8 * t + r)}, {R(D + 8 * t + 4 + r)}")
            a(f"buffer_store_dwordx4 {R(E + 4 * t, 4)}, {R(self.aZ2)}, {S(sWS, 4)}, {S(sOff + 6 + t)} offen sc1")
        self.stamp("z2_st")
        self.vb.free(self.CF, self.M1, self.M5)
        va.free(D, E, Y, self.M2, self.TG2, self.aG1, self.aE2w, self.aE2r, self.aE3w, self.aE3r, self.aZ2)
    def xnat_load(self):
        a = self.a; va = self.va
        self.XN = va(8, "XN"); self.vNat = va(1, "nat")
        a(f"v_lshlrev_b32 {R(self.vNat)}, 6, {R(self.vLi)}")
        a(f"v_lshl_add_u32 {R(self.vNat)}, {R(self.vG)}, 4, {R(self.vNat)}")
        for rho in range(2):
            a(f"buffer_load_dwordx4 {R(self.XN + 4 * rho, 4)}, {R(self.vNat)}, {S(sX, 4)}, {S(sOff + rho)} offen")
    def addr_g2(self):
        a = self.a
        a(f"s_bfe_u32 {S(sT0)}, {S(sS2)}, 0x60001\ns_lshl_b32 {S(sT0)}, {S(sT0)}, 15\ns_lshl_b32 {S(sT1)}, {S(sW)}, 13\ns_add_u32 {S(sT0)}, {S(sT0)}, {S(sT1)}")
        a(f"s_and_b32 {S(sT1)}, {S(sM)}, 1\ns_lshl_b32 {S(sT1)}, {S(sT1)}, 6\ns_add_u32 {S(sT0)}, {S(sT0)}, {S(sT1)}")
        a(f"s_add_u32 {S(sOff + 4)}, {S(sT0)}, {Z2}\ns_add_u32 {S(sOff + 5)}, {S(sT0)}, {Z2 + 4096}")
    def tables_p3(self):
        a = self.a; va = self.va; Li, G, T = self.vLi, self.vG, self.vT
        self.M4 = va(8, "M4"); self.Gi = va(4, "Gi"); self.vEps = va(1, "eps")
        self.aE4w = va(4, "aE4w", 1); self.aE4r = va(2, "aE4r", 1)
        p = va(1, "p"); c = va(1, "c"); s = va(1, "s"); u = va(1, "u")
        a(f"v_lshrrev_b32 {R(u)}, 1, {R(Li)}")
        a(f"v_lshl_add_u32 {R(u)}, {R(u)}, 8, {S(sS2)}")
        a(f"v_and_b32 {R(T)}, 1, {R(G)}")
        a(f"v_mul_u32_u24 {R(p)}, {R(u)}, {R(T)}")
        a(f"s_lshr_b32 {S(sT0)}, {S(sS2)}, 4\ns_lshl_b32 {S(sT0)}, {S(sT0)}, 4")
        a(f"v_and_b32 {R(c)}, 2, {R(G)}")
        a(f"v_mad_u32_u24 {R(p)}, {R(c)}, {S(sT0)}, {R(p)}")
        a(f"v_and_b32 {R(T)}, 1, {R(Li)}")
        a(f"v_lshlrev_b32 {R(T)}, 7, {R(T)}")
        a(f"v_sub_u32 {R(p)}, {R(T)}, {R(p)}")
        a(f"v_and_b32 {R(p)}, 511, {R(p)}")
        a(f"v_cvt_f32_u32 {R(u)}, {R(u)}")
        a(f"v_cvt_f32_u32 {R(p)}, {R(p)}")
        a(f"v_lshlrev_b32 {R(c)}, 14, {R(c)}")
        a(f"v_mul_f32 {R(p)}, {fl(1 / 512)}, {R(p)}")
        for i in range(8): a(f"v_xor_b32 {R(self.M4 + i)}, {R(c)}, {R(self.M + i)}")
        for r in range(4):
            self.sincos(c, s, p)
            if r < 3: a(f"v_fmamk_f32 {R(p)}, {R(u)}, {fl(-1 / 2048)}, {R(p)}")
            a(f"v_cvt_pk_bf16_f32 {R(self.Gi + r)}, {R(c)}, {R(s)}")
        a(f"v_mul_u32_u24 {R(u)}, 2624, {R(G)}")
        a(f"v_add_u32 {R(u)}, {EB}, {R(u)}")
        a(f"s_lshl_b32 {S(sT0)}, {S(sW)}, 5")
        a(f"v_and_or_b32 {R(p)}, {R(Li)}, 7, {S(sT0)}")
        a(f"v_cmp_lt_u32 s[4:5], 7, {R(Li)}")
        a(f"v_cmp_eq_u32 vcc, 0, {R(p)}")
        a(f"v_sub_u32 {R(c)}, 256, {R(p)}")
        a(f"v_mov_b32 {R(T)}, 128")
        for t in range(4):
            q = self.aE4w + t
            if t:
                a(f"v_add_u32 {R(p)}, 8, {R(p)}\nv_add_u32 {R(c)}, -8, {R(c)}")
                a(f"v_cndmask_b32 {R(q)}, {R(p)}, {R(c)}, s[4:5]")
            else:
                a(f"v_cndmask_b32 {R(T)}, {R(c)}, {R(T)}, vcc")
                a(f"v_cndmask_b32 {R(q)}, {R(p)}, {R(T)}, s[4:5]")
            a(f"v_lshrrev_b32 {R(T)}, 6, {R(q)}")
            a(f"v_lshl_add_u32 {R(q)}, {R(T)}, 4, {R(q)}")
            a(f"v_lshl_add_u32 {R(q)}, {R(q)}, 2, {R(u)}")
        a(f"s_mul_i32 {S(sT0)}, {S(sW)}, 2624\ns_add_u32 {S(sT0)}, {S(sT0)}, {EB}")
        a(f"v_mul_u32_u24 {R(p)}, 320, {R(G)}")
        a(f"v_lshl_add_u32 {R(p)}, {R(Li)}, 2, {R(p)}")
        a(f"v_add_u32 {R(self.aE4r)}, {S(sT0)}, {R(p)}")
        a(f"v_add_u32 {R(self.aE4r + 1)}, 1280, {R(self.aE4r)}")
        va.free(p, c, s, u)
        for i in range(4): a(f"v_mov_b32 {R(self.ST + i)}, 0")
        a(f"v_mov_b32 {R(self.vEps)}, {fl(1e-5 / 1.4426950408889634 ** 2)}")
        a(f"s_add_u32 {S(sOff + 6)}, {S(sOwn)}, {HN}\ns_lshr_b32 {S(sOff + 7)}, {S(sOwn)}, 6\ns_add_u32 {S(sOff + 7)}, {S(sOff + 7)}, {HH}")
    def xnat_unpack(self):
        a = self.a; va = self.va
        self.XC = va(16, "XC")
        for rho in range(2):
            for r in range(4):
                a(f"v_lshlrev_b32 {R(self.XC + 8 * rho + r)}, 16, {R(self.XN + 4 * rho + r)}")
                a(f"v_and_b32 {R(self.XC + 8 * rho + 4 + r)}, 0xffff0000, {R(self.XN + 4 * rho + r)}")
        va.free(self.XN)
    def p3_gather(self):
        a = self.a; va = self.va
        self.Y = va(16, "Y")
        self.g2 = [f"buffer_load_dword {R(self.Y + 4 * t + r)}, {R(self.aG2)}, {S(sWS, 4)}, {S(sOff + 4 + (t >> 1))} offen offset:{(t & 1) * 2048 + 128 * r} sc1"
                   for t in range(4) for r in range(4)]
        assert {(HB, i) for i in range(6)} <= self.cleared
        self.stamp("g2")
        for l in self.g2: a(l)
    def p3(self):
        a = self.a; va = self.va; Y = self.Y; M = self.M; M4 = self.M4; ST = self.ST; XC = self.XC; T = self.vT
        D = va(16, "D"); E = va(16, "E")
        def chk():
            for t in range(4):
                a(f"v_mfma_f32_16x16x32_bf16 {R(D + 4 * t, 4)}, {R(self.Gi, 4)}, {R(Y + 4 * t, 4)}, 0")
                if t == 0: a(f"v_max_u32 {R(T)}, {R(Y)}, {R(Y + 1)}")
                else: a(f"v_max3_u32 {R(T)}, {R(T)}, {R(Y + 4 * t)}, {R(Y + 4 * t + 1)}")
                a(f"v_max3_u32 {R(T)}, {R(T)}, {R(Y + 4 * t + 2)}, {R(Y + 4 * t + 3)}")
            a(f"v_cmp_eq_u32 vcc, -1, {R(T)}")
        self.poll("z2", self.g2, chk)
        self.stamp("z2_in")
        for t in range(4):
            a(f"v_cvt_pk_bf16_f32 {R(E + 2 * t)}, {R(D + 4 * t + 1)}, {R(D + 4 * t)}")
            a(f"v_cvt_pk_bf16_f32 {R(E + 2 * t + 1)}, {R(D + 4 * t + 3)}, {R(D + 4 * t + 2)}")
            a(f"ds_write2st64_b32 {R(self.aE4w + t)}, {R(E + 2 * t)}, {R(E + 2 * t + 1)} offset0:0 offset1:5")
        self.point("p3_a")
        a.barrier()
        for rho in range(2):
            for h in range(2):
                a(f"ds_read2_b32 {R(Y + 4 * rho + 2 * h, 2)}, {R(self.aE4r + rho)} offset0:{32 * h} offset1:{32 * h + 16}")
        self.point("p3_b")
        for rho in range(2):
            for ri in range(2):
                a(f"v_mfma_f32_16x16x32_bf16 {R(D + 8 * rho + 4 * ri, 4)}, {R(Y + 4 * rho, 4)}, {R(M4 + 4 * (1 - ri), 4)}, 0")
        self.point("p3_c")
        for rho in range(2):
            self.cmul(E + 8 * rho, E + 8 * rho + 4, D + 8 * rho, D + 8 * rho + 4, self.TW, self.TW + 4, True)
            for r in range(4):
                a(f"v_cvt_pk_bf16_f32 {R(Y + 4 * rho + r)}, {R(E + 8 * rho + 4 + r)}, {R(E + 8 * rho + r)}")
            for ri in range(2):
                q = XC + 8 * rho + 4 * ri
                a(f"v_mfma_f32_16x16x32_bf16 {R(q, 4)}, {R(Y + 4 * rho, 4)}, {R(M + 4 * (1 - ri), 4)}, {R(q, 4)}")
        st = a.capture(self.stats, D, ST, 1.4426950408889634, None)
        cv = [[f"v_cvt_pk_bf16_f32 {R(D + 4 * rho + r)}, {R(XC + 8 * rho + r)}, {R(XC + 8 * rho + 4 + r)}" for r in range(4)] for rho in range(2)]
        a.run(cv[0] + st[:8] + cv[1] + st[8:16])
        a.run(spread(st[16:], (self.plist("p3_d"), 0, len(st) - 16)))
        for rho in range(2):
            for k in range(0, 8, 2):
                q = XC + 8 * rho + k
                a(f"v_pk_fma_f32 {R(q, 2)}, {R(q, 2)}, {R(ST + 2 * rho, 2)}, {R(ST + 4 + 2 * rho, 2)} op_sel_hi:[1,0,0] neg_lo:[0,0,1] neg_hi:[0,0,1]")
            for r in range(4):
                a(f"v_cvt_pk_bf16_f32 {R(E + 4 * rho + r)}, {R(XC + 8 * rho + r)}, {R(XC + 8 * rho + 4 + r)}")
            a(f"buffer_store_dwordx4 {R(E + 4 * rho, 4)}, {R(self.vNat)}, {S(sWS, 4)}, {S(sOff + 6)} offen offset:{1024 * rho} sc1")
        self.stamp("hn_st")
        a(f"v_cmp_gt_u32 vcc, 32, {R(self.vL)}")
        a(f"v_and_b32 {R(T)}, 31, {R(self.vL)}")
        a(f"v_mov_b32 {R(D + 2)}, {S(sEp)}")
        a(f"v_cndmask_b32 {R(D)}, {R(ST + 2)}, {R(ST)}, vcc")
        a(f"v_mov_b32 {R(D + 1)}, {R(self.vMu)}")
        a(f"v_rcp_f32 {R(D)}, {R(D)}")
        a(f"v_lshlrev_b32 {R(T)}, 25, {R(T)}")
        a(f"v_lshrrev_b32 {R(D + 3)}, 1, {R(self.vL)}")
        a(f"v_or_b32 {R(T)}, {R(T)}, {R(D + 3)}")
        a(f"buffer_store_dwordx4 {R(D, 4)}, {R(T)}, {S(sWS, 4)}, {S(sOff + 7)} offen sc1")
        va.free(D, E, Y, XC, ST, self.M, self.M4, self.TW, self.Gi, self.aE4w, self.aE4r, self.aG2, self.vNat, self.vEps, self.vMu)
    def tables_w1(self):
        a = self.a; va = self.va; L, Li, G, T = self.vL, self.vLi, self.vG, self.vT
        rho = va(1, "rho"); ch = va(1, "ch"); u = va(1, "u")
        a(f"s_mul_i32 {S(sStg)}, {S(sW)}, {STGW}\ns_add_u32 {S(sStg)}, {S(sStg)}, {STG}")
        a(f"s_lshr_b32 {S(sRot)}, {S(sM)}, 3\ns_lshl_b32 {S(sRot)}, {S(sRot)}, 2")
        a(f"s_lshl_b32 {S(sT0)}, {S(sMem)}, 2\ns_add_u32 {S(sT0)}, {S(sT0)}, {S(sW)}\ns_mul_i32 {S(sT0)}, {S(sT0)}, 96")
        a(f"s_and_b32 {S(sT1)}, {S(sW)}, 1\ns_lshl_b32 {S(sT1)}, {S(sT1)}, 1")
        a(f"s_movk_i32 {S(sT2)}, 2752")
        for p in range(3):
            q = self.vW1 + p
            if p: a(f"v_add_u32 {R(u)}, {64 * p}, {R(L)}")
            src = u if p else L
            a(f"v_mul_u32_u24 {R(rho)}, 10923, {R(src)}")
            a(f"v_lshrrev_b32 {R(rho)}, 16, {R(rho)}")
            a(f"v_mad_i32_i24 {R(ch)}, {R(rho)}, -6, {R(src)}")
            a(f"v_add_u32 {R(ch)}, {S(sT1)}, {R(ch)}")
            a(f"v_subrev_u32 {R(u)}, 6, {R(ch)}")
            a(f"v_min_u32 {R(ch)}, {R(ch)}, {R(u)}")
            a(f"v_lshl_add_u32 {R(ch)}, {R(ch)}, 4, {S(sT0)}")
            a(f"v_bfe_u32 {R(u)}, {R(rho)}, 2, 2")
            a(f"v_cmp_gt_u32 vcc, {S(sT2)}, {R(ch)}")
            a(f"v_lshlrev_b32 {R(u)}, 7, {R(u)}")
            a(f"v_and_or_b32 {R(u)}, {R(rho)}, 3, {R(u)}")
            if p:
                a(f"v_lshrrev_b32 {R(rho)}, 4, {R(rho)}")
                a(f"v_lshl_add_u32 {R(u)}, {R(rho)}, 2, {R(u)}")
                a(f"v_subrev_u32 {R(ch)}, {1024 * p}, {R(ch)}")
            a(f"v_mad_u32_u24 {R(q)}, {R(u)}, {S(sT2)}, {R(ch)}")
            a(f"v_cndmask_b32 {R(q)}, 2.0, {R(q)}, vcc")
        a(f"v_lshrrev_b32 {R(u)}, 2, {R(L)}")
        a(f"v_mul_u32_u24 {R(u)}, 96, {R(u)}")
        a(f"v_and_b32 {R(ch)}, 3, {R(L)}")
        a(f"v_lshl_add_u32 {R(ch)}, {R(ch)}, 3, {S(sStg)}")
        a(f"v_add_u32 {R(self.vTr1)}, {R(u)}, {R(ch)}")
        va.free(rho, ch, u)
    def tables_w2(self):
        a = self.a; va = self.va; L, Li, G, T = self.vL, self.vLi, self.vG, self.vT
        rho = va(1, "rho"); ch = va(1, "ch"); u = va(1, "u")
        a(f"s_lshr_b32 {S(sT2)}, {S(sM)}, 3\ns_mul_i32 {S(sT2)}, {S(sT2)}, 3072\ns_mul_i32 {S(sT1)}, {S(sW)}, 11264")
        a(f"s_add_u32 {S(sT0)}, {S(sT2)}, {S(sT1)}\ns_add_u32 {S(sT2)}, {S(sT1)}, 11264")
        sal = []
        for i in range(11):
            if i: sal += [f"s_add_u32 {S(sT0)}, {S(sT0)}, 1024", f"s_cmp_eq_u32 {S(sT0)}, {S(sT2)}", f"s_cselect_b32 {S(sT0)}, {S(sT1)}, {S(sT0)}"]
            sal += [f"s_cmp_eq_u32 {S(sT0)}, {43 * 1024}", f"s_cselect_b32 {S(sKap + i)}, 0x1000000, {S(sT0)}"]
        a.run(sal)
        a(f"v_lshlrev_b32 {R(u)}, 1, {R(G)}")
        a(f"v_bitop3_b32 {R(u)}, {R(u)}, {R(L)}, 7 bitop3:0x28")
        a(f"s_lshl_b32 {S(sT0)}, {S(sMem)}, 7")
        a(f"v_lshl_add_u32 {R(u)}, {R(u)}, 4, {S(sT0)}")
        a(f"v_lshrrev_b32 {R(T)}, 3, {R(L)}")
        a(f"v_lshl_add_u32 {R(self.vW2)}, {R(T)}, 10, {R(u)}")
        a(f"v_and_b32 {R(ch)}, 3, {R(L)}")
        a(f"v_lshl_add_u32 {R(ch)}, {R(ch)}, 3, {S(sStg)}")
        a(f"v_bfe_u32 {R(rho)}, {R(L)}, 2, 3")
        a(f"v_bfe_u32 {R(u)}, {R(L)}, 3, 2")
        a(f"v_lshl_add_u32 {R(ch)}, {R(rho)}, 7, {R(ch)}")
        a(f"v_lshrrev_b32 {R(T)}, 5, {R(L)}")
        a(f"v_lshl_add_u32 {R(ch)}, {R(T)}, 11, {R(ch)}")
        for t in range(4):
            if t: a(f"v_xor_b32 {R(T)}, {t}, {R(u)}")
            a(f"v_lshl_add_u32 {R(self.vTr2 + t)}, {R(T if t else u)}, 5, {R(ch)}")
        va.free(rho, ch, u)
    def addr_g3(self):
        a = self.a
        a(f"s_lshr_b32 {S(sT0)}, {S(sN)}, 3\ns_lshl_b32 {S(sT1)}, {S(sT0)}, 16\ns_lshl_b32 {S(sT2)}, {S(sW)}, 12\ns_add_u32 {S(sOff + 3)}, {S(sT1)}, {S(sT2)}")
        for rt in range(4):
            a(f"s_add_u32 {S(sOff + 8 + rt)}, {S(sOff + 3)}, {HN + rt * 16384}")
    def tables_ffn(self):
        a = self.a; va = self.va; L, Li, G, T = self.vL, self.vLi, self.vG, self.vT
        self.aHw = va(1, "aHw"); self.aHr = va(1, "aHr"); self.aHs = va(2, "aHs", 1)
        self.aRw = va(2, "aRw", 1); self.aRr = va(1, "aRr"); self.aRes = va(1, "aRes"); self.aOut = va(1, "aOut"); self.aHl = va(4, "aHl", 1); self.aSt = va(1, "aSt")
        a(f"s_mul_i32 {S(sT0)}, {S(sW)}, {4 * HROW}")
        a(f"v_xor_b32 {R(T)}, {S(sRot)}, {R(L)}")
        a(f"v_lshl_add_u32 {R(self.aHw)}, {R(T)}, 4, {S(sT0)}")
        a(f"v_mul_u32_u24 {R(T)}, {HROW}, {R(Li)}")
        a(f"v_lshl_add_u32 {R(self.aHr)}, {R(G)}, 8, {R(T)}")
        a(f"s_lshr_b32 {S(sHb)}, {S(sN)}, 3\ns_mul_i32 {S(sHb)}, {S(sHb)}, {HCL}\ns_add_u32 {S(sHb)}, {S(sHb)}, {HB}")
        a(f"s_lshl_b32 {S(sT0)}, {S(sMem)}, 2\ns_add_u32 {S(sT0)}, {S(sT0)}, {S(sW)}")
        a(f"s_lshr_b32 {S(sT1)}, {S(sT0)}, 1\ns_mul_i32 {S(sT1)}, {S(sT1)}, 3072\ns_and_b32 {S(sT2)}, {S(sW)}, 1")
        a(f"s_lshl_b32 s4, {S(sT2)}, 11\ns_add_u32 s4, s4, {S(sT1)}\ns_cmp_le_u32 {S(sT0)}, 28\ns_cselect_b32 s4, s4, 2.0")
        a(f"s_lshl_b32 s5, {S(sT2)}, 9\ns_add_u32 s5, s5, {S(sT1)}\ns_add_u32 s5, s5, 1024\ns_cmp_lt_u32 {S(sT0)}, 28\ns_cselect_b32 s5, s5, 2.0")
        a(f"v_cmp_gt_u32 vcc, 32, {R(L)}")
        a(f"v_add_u32 {R(self.aHs)}, s4, {R(self.vL16)}")
        a(f"v_add_u32 {R(self.aHs + 1)}, s5, {R(self.vL16)}")
        a(f"v_cndmask_b32 {R(self.aHs + 1)}, 2.0, {R(self.aHs + 1)}, vcc")
        a(f"v_add_u32 {R(self.aHl)}, {S(sHb)}, {R(self.vL16)}")
        for rt in range(1, 4): a(f"v_add_u32 {R(self.aHl + rt)}, {45056 * rt}, {R(self.aHl)}")
        a(f"s_lshl_b32 {S(sT0)}, {S(sW)}, 12")
        a(f"v_bitop3_b32 {R(T)}, {R(Li)}, {R(G)}, 7 bitop3:0x28")
        a(f"v_lshl_add_u32 {R(T)}, {R(T)}, 4, {S(sT0)}")
        a(f"v_lshl_add_u32 {R(self.aRw)}, {R(Li)}, 8, {R(T)}")
        a(f"v_xor_b32 {R(self.aRw + 1)}, 64, {R(self.aRw)}")
        a(f"s_lshl_b32 {S(sT0)}, {S(sW)}, 2")
        a(f"v_add_u32 {R(self.aRr)}, {S(sT0)}, {R(G)}")
        a(f"v_and_b32 {R(T)}, 7, {R(self.aRr)}")
        a(f"v_xor_b32 {R(T)}, {R(T)}, {R(Li)}")
        a(f"v_lshlrev_b32 {R(T)}, 4, {R(T)}")
        a(f"v_lshl_add_u32 {R(self.aRr)}, {R(self.aRr)}, 8, {R(T)}")
        a(f"s_lshl_b32 {S(sT1)}, {S(sMem)}, 7")
        a(f"v_lshl_add_u32 {R(T)}, {R(Li)}, 3, {S(sT1)}")
        a(f"v_lshl_add_u32 {R(self.aOut)}, {R(G)}, 18, {R(T)}")
        a(f"s_lshl_b32 {S(sT1)}, {S(sRot)}, 4\ns_mul_i32 {S(sT0)}, {S(sW)}, {4 * HROW}")
        a(f"v_xor_b32 {R(T)}, {S(sT1)}, {R(T)}")
        a(f"v_mul_u32_u24 {R(self.aRes)}, {HROW}, {R(G)}")
        a(f"v_add3_u32 {R(self.aRes)}, {R(self.aRes)}, {R(T)}, {S(sT0)}")
        a(f"s_lshr_b32 {S(sT0)}, {S(sN)}, 3\ns_lshl_b32 {S(sT0)}, {S(sT0)}, 10\ns_lshl_b32 {S(sT1)}, {S(sW)}, 6\ns_add_u32 {S(sT0)}, {S(sT0)}, {S(sT1)}\ns_add_u32 {S(sT0)}, {S(sT0)}, {HH}")
        a(f"v_and_b32 {R(T)}, 3, {R(Li)}")
        a(f"v_lshl_add_u32 {R(T)}, {R(T)}, 8, {S(sT0)}")
        a(f"v_lshl_add_u32 {R(self.aSt)}, {R(G)}, 4, {R(T)}")
        a(f"s_and_b32 {S(sT0)}, {S(sS2)}, 0xf8\ns_lshr_b32 {S(sT1)}, {S(sW)}, 1\ns_add_u32 {S(sT0)}, {S(sT0)}, {S(sT1)}\ns_lshl_b32 {S(sT0)}, {S(sT0)}, 10")
        a(f"s_and_b32 {S(sT1)}, {S(sW)}, 1\ns_lshl_b32 {S(sT1)}, {S(sT1)}, 20\ns_add_u32 {S(sOff + 2)}, {S(sT0)}, {S(sT1)}\ns_add_u32 {S(sOff + 3)}, {S(sOff + 2)}, 4096")
        a(f"s_mov_b32 {S(sLn2)}, {fl(math.log(2.0))}")
        va.free(L, Li, G)
    def hn_gather(self):
        a = self.a; va = self.va
        self.HG = va(64, "HG")
        self.g3 = [[f"buffer_load_dwordx4 {R(self.HG + 16 * rt + 4 * n, 4)}, {R(self.vL16)}, {S(sWS, 4)}, {S(sOff + 8 + rt)} offen offset:{1024 * n} sc1"
                    for n in range(4)] for rt in range(4)]
        self.stamp("g3")
        for l in self.g3: a.run(l)
    def hn_stage(self, rt):
        a = self.a
        out = [lambda: self.poll("hn%d" % rt, self.g3[rt], self.check_sentinel([self.HG + 16 * rt + 4 * i for i in range(4)]))]
        def wr(n): self.tokhw = a(f"ds_write_b128 {R(self.aHw)}, {R(self.HG + 16 * rt + 4 * n, 4)} offset:{rt * HTILE + n * HROW}")
        return out + [lambda n=n: wr(n) for n in range(4)]
    def bar_after(self, name):
        def f():
            self.a.wait_lg(getattr(self, name)); self.a("s_barrier")
        return [f]
    def pack(self, mf, fixed, floats, ops, g0, g1):
        n = len(mf)
        slot = [list(fixed.get(g, [])) for g in range(n)]
        for items, units, f0, f1 in floats:
            for k, x in enumerate(items):
                g = f0 + (k * (f1 - f0)) // max(len(items), 1)
                if units > 1:
                    last = g if k == 0 else max(g, prev)
                    cand = [q for q in range(last, min(last + 3, n)) if sum(u for _, u in slot[q]) + units <= 3]
                    g = cand[0] if cand else last
                elif k: g = max(g, prev)
                prev = g
                slot[g].append((x, units))
        base = [sum(u for _, u in sl) for sl in slot]
        best = None
        total = sum(o[1] for o in ops)
        for slack in range(0, 8):
            for span in range(min(g1, n) - g0, 8, -1):
                place = {}; out = [[] for _ in range(n)]; todo = list(range(len(ops))); done = 0; over = 0
                for g in range(g0, min(g1, n)):
                    used = base[g]
                    ready = [k for k in todo if all(d in place for d in ops[k][3])]
                    take = []
                    for k in ready:
                        if not ops[k][2] and (used == 0 or (used == 1 and ops[k][1] > 1)):
                            take.append(k); used += ops[k][1]; done += ops[k][1]
                    used = max(used, 1)
                    va_ = [k for k in ready if ops[k][2]]
                    while va_:
                        room = 3 - used
                        one = [k for k in va_ if ops[k][1] == 1]; two = [k for k in va_ if ops[k][1] == 2]
                        behind = done < total * (g - g0 + 1) / span - slack
                        if room >= 2 and two: k = two[0]
                        elif room == 1 and two and behind and len(one) < 2: k = two[0]
                        elif one and (room >= 1 or behind): k = one[0]
                        elif two and behind: k = two[0]
                        else: break
                        take.append(k); va_.remove(k); used += ops[k][1]; done += ops[k][1]
                    over += max(0, used - max(3, base[g]))
                    for k in take: todo.remove(k); out[g].append(ops[k][0])
                    for k in take: place[k] = g
                if not todo and (best is None or over < best[0]): best = (over, out)
                if not ops: break
            if not ops: break
        assert best, "could not pack"
        self.packinfo.append((best[0], sum(max(0, b - 3) for b in base)))
        for g in range(n):
            self.a.run([mf[g]] + [x for x, _ in slot[g]] + best[1][g])
    def silu_ops(self, acc, rt):
        tmp = self.SL; P = self.HP
        ops = []; idx = {}
        def add(key, x, u, v, deps): idx[key] = len(ops); ops.append((x, u, v, [idx[d] for d in deps]))
        add("s", f"s_add_u32 {S(sU0)}, {S(sHb)}, {rt * 45056}", 1, False, [])
        for i in range(12):
            add(("e", i), f"v_exp_f32 {R(tmp + i)}, -{R(acc + i)}", 2, True, [])
            add(("a", i), f"v_add_f32 {R(tmp + i)}, 1.0, {R(tmp + i)}", 1, True, [("e", i)])
            add(("r", i), f"v_rcp_f32 {R(tmp + i)}, {R(tmp + i)}", 2, True, [("a", i)])
            add(("m", i), f"v_mul_f32 {R(tmp + i)}, {R(tmp + i)}, {R(acc + i)}", 1, True, [("r", i)])
            if i & 1: add(("c", i // 2), f"v_cvt_pk_bf16_f32 {R(P + i // 2)}, {R(tmp + i - 1)}, {R(tmp + i)}", 1, True, [("m", i), ("m", i - 1)])
            if i == 5: add(("x", 0), f"v_permlane32_swap_b32 {R(P)}, {R(P + 2)}", 2, True, [("c", 0), ("c", 2)])
            if i == 7:
                add(("x", 1), f"v_permlane32_swap_b32 {R(P + 1)}, {R(P + 3)}", 2, True, [("c", 1), ("c", 3)])
                add("st0", f"buffer_store_dwordx4 {R(P, 4)}, {R(self.aHs)}, {S(sWS, 4)}, {S(sU0)} offen sc1", 3, False, [("x", 0), ("x", 1), "s"])
            if i == 9: add(("x", 2), f"v_permlane32_swap_b32 {R(P + 4)}, {R(P + 6)}", 2, True, [("c", 4)])
        add(("x", 3), f"v_permlane32_swap_b32 {R(P + 5)}, {R(P + 7)}", 2, True, [("c", 5)])
        add("st1", f"buffer_store_dwordx4 {R(P + 4, 4)}, {R(self.aHs + 1)}, {S(sWS, 4)}, {S(sU0)} offen sc1", 3, False, [("x", 2), ("x", 3), "st0"])
        return ops
    def silu_flat(self, acc, rt):
        ops = self.silu_ops(acc, rt)
        order = sorted(range(len(ops)), key=lambda k: (self._depth(ops, k), k))
        return [ops[k][0] for k in order]
    def _depth(self, ops, k): return 1 + max([self._depth(ops, d) for d in ops[k][3]], default=0)
    def pfloats(self, name, f0, f1):
        lst = self.sched.get(name, [])
        tot = sum({"dma": 3 + (it[0] == 2), "drain": 6 + 2 * (it[0] == 2)}[op] for op, it in lst)
        out = []; k = 0
        for op, it in lst:
            items = self.dma_list(it) if op == "dma" else self.drain_list(it)
            out.append((items, 3 if op == "dma" else 2, f0 + k * (f1 - f0) // tot, f0 + (k + len(items)) * (f1 - f0) // tot)); k += len(items)
        return out
    def h_loads(self, rt, fr=range(11)):
        return [f"buffer_load_dwordx4 {R(self.HBUF[rt] + 4 * i, 4)}, {R(self.aHl + rt)}, {S(sWS, 4)}, {S(sKap + i)} offen sc1" for i in fr]
    def gemm1(self):
        a = self.a; va = self.va; c = self.cfg
        self.packinfo = []
        ACC = va(24, "acc1"); BF = va(16, "bf")
        a.run(self.hn_stage(0))
        self.point("hn_a")
        a.run(self.bar_after("tokhw"))
        self.stamp("hn_in")
        tok = {}
        def rd(n): tok[n] = a(f"ds_read_b128 {R(BF + 4 * (n % 4), 4)}, {R(self.aHr)} offset:{(n // 16) * HTILE + (n % 16) * 16}")
        for n in range(3): rd(n)
        for rt in range(4):
            acc = ACC + 12 * (rt & 1)
            mf = []; fixed = {}
            for ks in range(16):
                n = rt * 16 + ks
                for T in range(3):
                    cc = R(acc + 4 * T, 4) if ks else "0"
                    def m(ks=ks, T=T, cc=cc, n=n, acc=acc):
                        assert (1, ks) in self.drained, ("w1 not staged", ks)
                        a(f"v_mfma_f32_16x16x32_bf16 {R(acc + 4 * T, 4)}, {R(self.W1(ks, T), 4)}, {R(BF + 4 * (n % 4), 4)}, {cc}")
                    mf.append(m)
                if n + 3 < 64: fixed[3 * ks] = [(lambda n=n: rd(n + 3), 2)]
                if n + 1 < 64: fixed[3 * ks + 2] = [(lambda n=n: a.wait_lg(tok[n + 1]), 1)]
            floats = []; ops = []
            if rt == 0:
                p = c.get("hn_pos", (1, 13, 25, 38))
                for k in range(3):
                    st = self.hn_stage(k + 1)
                    floats.append((st, 3, p[k], p[k] + 12))
                floats.append((self.bar_after("tokhw"), 1, p[3], p[3]))
            else: ops = self.silu_ops(ACC + 12 * ((rt - 1) & 1), rt - 1)
            if rt == 1:
                floats.append(([f"ds_read_b64 {R(self.RES + 2 * r, 2)}, {R(self.aRes)} offset:{r * HTILE}" for r in range(4)], 2, 1, 12))
                floats.append((self.stl, 3, 13, 13))
            if rt == 3:
                p = c.get("h0_pos", (4, 46))
                floats.append((self.h_loads(0), 3, p[0], p[1]))
            floats += self.pfloats("g1_%d" % rt, 1, 46)
            self.pack(mf, fixed, floats, ops, 2, 48)
            if rt == 0:
                va.free(self.HG, self.aHw)
                self.HBUF = [va(44, "H0"), 144, 188, None]; self.HBUF[3] = self.HBUF[0]
                self.SL = va(12, "silu", 1); self.HP = va(8, "hp"); self.RES = va(8, "res"); self.SV = va(3, "sv")
                self.stl = [f"buffer_load_dwordx3 {R(self.SV, 3)}, {R(self.aSt)}, {S(sWS, 4)}, 0 offen sc1"]
            if rt == 1: va.free(self.aRes)
            self.stamp("g1p%d" % rt)
        self.ACC1 = ACC
        va.free(BF, self.aHr)
        if not c.get("silu_in_g2"):
            sl = self.silu_flat(ACC + 12, 3)
            p = c.get("h1_pos", (10, 60))
            a.run(spread(sl, (self.h_loads(1), p[0], p[1]), (self.plist("g1_end"), 0, 60)))
        self.stamp("g1_end")
    def gemm2(self):
        a = self.a; va = self.va; c = self.cfg
        ACC = [232, va(16, "acc2")]; RES = self.RES; SV = self.SV
        chunks = [range(0, 4), range(4, 8), range(8, 11)]
        def hpoll(rt, k):
            return [lambda: self.poll("H%d%d" % (rt, k), self.h_loads(rt, chunks[k]), self.check_sentinel([self.HBUF[rt] + 4 * i for i in chunks[k]]))]
        def red_w(rt):
            def wr(t): self.tokrw = a(f"ds_write_b128 {R(self.aRw + (t & 1))}, {R(ACC[rt & 1] + 4 * t, 4)} offset:{RED[rt & 1] + 128 * (t >> 1)}")
            return [lambda t=t: wr(t) for t in range(4)]
        def red_r(rt):
            def rr(src): self.tokrr = a(f"ds_read_b128 {R(self.RB + 4 * src, 4)}, {R(self.aRr)} offset:{RED[rt & 1] + 4096 * src}")
            return [lambda src=src: rr(src) for src in range(4)]
        def unp(rt):
            O = self.O; dpp = f"row_newbcast:{rt} row_mask:0xf bank_mask:0xf"
            o = [f"v_mov_b32_dpp {R(O + 4)}, {R(SV)} {dpp}", f"v_mov_b32_dpp {R(O + 5)}, {R(SV + 1)} {dpp}",
                 f"v_lshlrev_b32 {R(O)}, 16, {R(RES + 2 * rt)}", f"v_and_b32 {R(O + 1)}, 0xffff0000, {R(RES + 2 * rt)}",
                 f"v_lshlrev_b32 {R(O + 2)}, 16, {R(RES + 2 * rt + 1)}", f"v_and_b32 {R(O + 3)}, 0xffff0000, {R(RES + 2 * rt + 1)}"]
            return o + [f"v_fma_f32 {R(O + k)}, {R(O + k)}, {R(O + 4)}, {R(O + 5)}" for k in range(4)]
        def fin(rt):
            O = self.O; RB = self.RB; o = []
            for src in range(4):
                for k in range(4): o.append(f"v_fmac_f32 {R(O + k)}, {S(sLn2)}, {R(RB + 4 * src + k)}")
            o += [f"v_cvt_pk_bf16_f32 {R(RB)}, {R(O)}, {R(O + 1)}", f"v_cvt_pk_bf16_f32 {R(RB + 1)}, {R(O + 2)}, {R(O + 3)}"]
            return o
        def ost(rt): return f"buffer_store_dwordx2 {R(self.RB, 2)}, {R(self.aOut)}, {S(sO, 4)}, {S(sOff + 2 + (rt >> 1))} offen offset:{2048 * (rt & 1)}{c.get('outflag', '')}"
        def pairs(lst, g):
            return {g + k // 2: None for k in range(len(lst))}
        def stchk():
            a(f"v_cmp_ne_u32 vcc, {S(sEp)}, {R(SV + 2)}")
        a.run([lambda: self.poll("st", self.stl, stchk)])
        a("s_barrier")
        a.run(hpoll(0, 0))
        for rt in range(4):
            acc = ACC[rt & 1]; buf = self.HBUF[rt]
            mf = []
            for i in range(11):
                for t in range(4):
                    cc = R(acc + 4 * t, 4) if i else "0"
                    def m(i=i, t=t, cc=cc, acc=acc, buf=buf):
                        assert (2, i) in self.drained, ("w2 not staged", i)
                        a(f"v_mfma_f32_16x16x32_bf16 {R(acc + 4 * t, 4)}, {R(self.W2(i, t), 4)}, {R(buf + 4 * i, 4)}, {cc}")
                    mf.append(m)
            fixed = {14: [(hpoll(rt, 1)[0], 3)], 30: [(hpoll(rt, 2)[0], 3)]}
            if rt < 3: fixed[42] = [(hpoll(rt + 1, 0)[0], 3)]
            floats = []; ops = []; g0 = 0
            if rt:
                for k, x in enumerate(red_w(rt - 1)): fixed[3 + 2 * k] = [(x, 3)]
                fixed[15] = [(self.bar_after("tokrw")[0], 2)]
                for k, x in enumerate(red_r(rt - 1)): fixed[16 + k] = [(x, 2)]
                fixed[23] = [(lambda: a.wait_lg(self.tokrr), 1)]
                u = unp(rt - 1); f = fin(rt - 1)
                for k in range(0, 10, 2): fixed[4 + k] = [("\n".join(u[k:k + 2]), 3)]
                ops = [(x, 1, True, [k - 4] if 4 <= k < 16 else ([12, 13] if k == 16 else [14, 15] if k == 17 else [])) for k, x in enumerate(f)]
                ops.append((ost(rt - 1), 3, False, [16, 17])); g0 = 23
            elif c.get("silu_in_g2"):
                ops = self.silu_ops(self.ACC1 + 12, 3)
            hp = c.get("h_pos", {0: [(2, 20, 44)], 1: [(3, 0, 40)]})
            for (r2, f0, f1) in hp.get(rt, []): floats.append((self.h_loads(r2), 3, f0, f1))
            floats += self.pfloats("g2_%d" % rt, 0, 40)
            self.pack(mf, fixed, floats, ops, g0, 44)
            if rt == 0:
                va.free(self.ACC1, self.SL, self.HP, self.aHs)
                self.RB = va(16, "rb"); self.O = va(6, "o")
            self.stamp("g2p%d" % rt)
        a.run(unp(3) + red_w(3) + self.bar_after("tokrw") + red_r(3) + fin(3) + [ost(3)])
        self.stamp("end")
    def build(self):
        a = self.a; va = self.va
        self.prologue()
        self.point("pre_karg")
        self.x_load()
        self.point("start")
        self.stamp("tabs")
        self.p1()
        self.point("p1_end")
        self.p2_gather()
        self.point("g1_wait")
        self.p2()
        self.point("p2_end")
        self.p3_gather()
        self.point("g2_wait")
        self.p3()
        va.free(self.vM1)
        self.point("p3_end")
        self.hn_gather()
        self.point("g3_wait")
        self.gemm1()
        self.gemm2()
        if self.amp:
            i, j = (self.stamps.index(n) for n in self.amp); e = self.stamps.index("end")
            a("s_waitcnt lgkmcnt(0)")
            a(f"s_sub_u32 {S(sT0)}, {S(sStamp + 2 * j)}, {S(sStamp + 2 * i)}\ns_lshl_b32 {S(sT0)}, {S(sT0)}, 3\ns_min_u32 {S(sT0)}, {S(sT0)}, 100000")
            a(f"L_amp:\ns_memrealtime s[4:5]\ns_waitcnt lgkmcnt(0)\ns_sub_u32 {S(sT1)}, s4, {S(sStamp + 2 * e)}\ns_cmp_lt_u32 {S(sT1)}, {S(sT0)}\ns_cbranch_scc1 L_amp")
        elif self.stamps:
            a("s_waitcnt lgkmcnt(0)")
            a(f"s_lshl_b32 {S(sT0)}, s2, 2\ns_add_u32 {S(sT0)}, {S(sT0)}, {S(sW)}\ns_lshl_b32 {S(sT0)}, {S(sT0)}, 6\ns_add_u32 {S(sT0)}, {S(sT0)}, {STAMP}")
            for i, sr in [(i, sStamp + 2 * i) for i in range(len(self.stamps))] + [(14, sRet), (15, sRet + 1)]:
                a(f"v_mov_b32 {R(self.vT)}, {S(sr)}")
                a(f"buffer_store_dword {R(self.vT)}, {R(self.vZero)}, {S(sWS, 4)}, {S(sT0)} offen offset:{4 * i}")
        a("L_end:")
        a("s_endpgm")
        for t in self.tail: t()
        body = a.finalize()
        hdr = open("header.txt").read()
        s = hdr + f"; @launch grid=(256,1,1) block=(256,1,1) lds={LDS_SIZE}\n"
        s += f'.amdgcn_target "amdgcn-amd-amdhsa--gfx950"\n.text\n.globl {KN}\n.p2align 8\n.type {KN},@function\n{KN}:\n'
        s += body
        s += ".p2align 8\n.fill 4096, 4, 0xbf810000\n"
        s += f'''.section .rodata,"a"
.p2align 6
.amdhsa_kernel {KN}
  .amdhsa_next_free_vgpr 512
  .amdhsa_next_free_sgpr 102
  .amdhsa_accum_offset 256
  .amdhsa_group_segment_fixed_size 0
  .amdhsa_kernarg_size 72
  .amdhsa_user_sgpr_count 2
  .amdhsa_user_sgpr_kernarg_segment_ptr 1
  .amdhsa_system_sgpr_workgroup_id_x 1
  .amdhsa_float_denorm_mode_32 3
.end_amdhsa_kernel
'''
        return s

D = lambda k, r: [("dma", (k, i)) for i in r]
X = lambda k, r: [("drain", (k, i)) for i in r]
F = lambda name, *args: [(name, args)]
def write(cfg, out):
    g = Gen(cfg)
    s = g.build()
    open(out, "w").write(s)
    return g
```

```python
from gen2 import *
ST_A = ['entry', 'karg', 'tabs', 'x_in', 'z1_st', 'g1', 'z1_in', 'z2_st', 'g2', 'z2_in', 'hn_st']
ST_B = ['entry', 'hn_st', 'g3', 'hn_in', 'g1p0', 'g1p2', 'g1p3', 'g1_end', 'g2p0', 'g2p2', 'end']
CL = lambda base, r: [("clear", (base, i)) for i in r]
CH = lambda r: [("clear_H", (i,)) for i in r]
def base():
    w = []
    for lo in range(0, 16, 4): w += D(1, range(lo, lo + 4)) + X(1, range(lo, lo + 4))
    for lo in range(0, 11, 4): w += D(2, range(lo, min(lo + 4, 11))) + X(2, range(lo, min(lo + 4, 11)))
    return {"sched": {
        "pre_karg": F("w_addr"),
        "start": [("w_load", (0,)), ("w_load", (1,))] + F("weave", F("tables_p1") + F("tables_p2a"), CL(Z2, (0, 1)) + CL(HN, (0, 1)) + CH((0, 1))),
        "p1_end": F("addr_g1") + F("w_stage") + F("tables_p2b") + F("w_coefs"),
        "g1_wait": F("weave", F("addr_p2") + F("tables_w1"), CH((2, 3, 4, 5))),
        "p2_end": F("xnat_load") + F("addr_g2") + F("tables_p3") + F("tables_w2"),
        "g2_wait": F("xnat_unpack"),
        "p3_end": F("addr_g3") + F("tables_ffn") + w,
    }}
def var(**kw):
    def f():
        c = base()
        for k, v in kw.items():
            if isinstance(v, list): c["sched"][k] = v
            else: c[k] = v
        return c
    return f
CFG = {"base": base}
WL = lambda *x: [("w_load", (i,)) for i in x]
common = dict(g1_wait=F("addr_p2") + F("w_stage") + F("w_coefs"),
              p2_a=CH((0, 1)), p2_b=CH((2,)), p2_c=CH((3,)),
              p2_end=F("xnat_load") + CH((4, 5)) + F("addr_g2") + F("tables_p3") + F("tables_w1"),
              g2_wait=F("xnat_unpack") + F("tables_w2"))
CFG["a"] = var(start=CL(Z2, (0, 1)) + WL(0, 1) + F("tables_p1"), p1_end=CL(HN, (0, 1)) + F("addr_g1") + F("tables_p2a") + F("tables_p2b"), **common)
CFG["b"] = var(start=CL(Z2, (0, 1)) + WL(0) + F("tables_p1"), p1_end=WL(1) + CL(HN, (0, 1)) + F("addr_g1") + F("tables_p2a") + F("tables_p2b"), **common)
CFG["c"] = var(start=WL(0) + CL(Z2, (0, 1)) + CL(HN, (0, 1)) + F("tables_p1"), p1_end=WL(1) + F("addr_g1") + F("tables_p2a") + F("tables_p2b"), **common)
CFG["d"] = var(start=WL(0, 1) + CL(Z2, (0, 1)) + F("tables_p1"), p1_end=CL(HN, (0, 1)) + F("addr_g1") + F("tables_p2a") + F("tables_p2b"), **common)
FK = F("fake", (HN, 0), (HN, 1), *[(HB, i) for i in range(6)])
for nm, d in (("f0", 0), ("f1", 4), ("f2", 8), ("f3", 12)):
    SL = F("sleep", d) if d else []
    CFG[nm] = var(start=CL(Z2, (0, 1)) + F("freeW") + F("tables_p1"), p1_end=FK + F("addr_g1") + F("tables_p2a") + F("tables_p2b") + SL,
                  g1_wait=F("addr_p2") + F("w_stage") + F("w_coefs"),
                  p2_end=F("xnat_load") + F("addr_g2") + F("tables_p3") + F("tables_w1") + SL, g2_wait=F("xnat_unpack") + F("tables_w2"))
if __name__ == "__main__":
    name, out = sys.argv[1], sys.argv[2]
    c = CFG[name]()
    for x in sys.argv[3:]:
        if x == "A": c["stamps"] = ST_A
        if x == "B": c["stamps"] = ST_B
        if x.startswith("--amp="):
            c["amp"] = x[6:].split(","); c["stamps"] = list(dict.fromkeys(c["amp"] + ["end"]))
    g = write(c, out)
    print("wrote", out, "instrs", len(g.a.ins), "nops", g.a.nops_added, "vgpr high", g.va.high, "pack", g.packinfo)
```

```python
import re

def R(n, cnt=1):
    p, b = ("v", n) if n < 256 else ("a", n - 256)
    assert 0 <= n and n + cnt <= 512 and (n >= 256 or n + cnt <= 256), (n, cnt)
    if cnt > 1: assert n % 2 == 0, ("unaligned tuple", n, cnt)
    return f"{p}{b}" if cnt == 1 else f"{p}[{b}:{b + cnt - 1}]"
def S(n, cnt=1):
    return f"s{n}" if cnt == 1 else f"s[{n}:{n + cnt - 1}]"

_reg = re.compile(r"^-?\|?(?:abs\()?([vas])(?:(\d+)|\[(\d+):(\d+)\])\)?\|?$")
def regs_of(op):
    op = op.strip()
    if op == "vcc": return {("s", 106), ("s", 107)}
    if op == "exec": return {("s", 126), ("s", 127)}
    if op == "m0": return {("s", 124)}
    m = _reg.match(op)
    if not m: return set()
    k = m.group(1)
    lo, hi = (int(m.group(2)),) * 2 if m.group(2) is not None else (int(m.group(3)), int(m.group(4)))
    if k == "s": return {("s", i) for i in range(lo, hi + 1)}
    off = 256 if k == "a" else 0
    return {("v", i + off) for i in range(lo, hi + 1)}

TRANS = ("v_exp_", "v_log_", "v_rcp_", "v_rsq_", "v_sqrt_", "v_sin_", "v_cos_")
class Ins:
    def __init__(self, text):
        self.text = text
        t = text.split(";")[0].strip()
        self.label = t[:-1] if t.endswith(":") else None
        self.raw = t.startswith(".") and self.label is None
        self.rd = set(); self.wr = set()
        self.kind = None; self.mn = ""; self.target = None
        self.passes = 0; self.A = self.B = self.C = self.D = set()
        self.dpp = False; self.data = set(); self.wide = False; self.dma = False; self.nop = 0
        if self.label or self.raw or not t: return
        sp = t.split(None, 1)
        mn = self.mn = sp[0]
        rest = sp[1] if len(sp) > 1 else ""
        parts = [p.strip() for p in rest.split(",")] if rest else []
        ops = []; mods = ""
        for i, p in enumerate(parts):
            q = p.split(None, 1)
            ops.append(q[0])
            if len(q) > 1:
                mods = q[1] + "," + ",".join(parts[i + 1:]); break
        self.ops = ops; self.mods = mods
        rs = [regs_of(o) for o in ops]
        U = lambda l: set().union(*l) if l else set()
        if mn.startswith("v_mfma"):
            self.kind = "mfma"
            self.passes = 8 if "32x32" in mn else 4
            self.D, self.A, self.B, self.C = rs[0], rs[1], rs[2], rs[3]
            self.wr = set(self.D); self.rd = self.A | self.B | self.C
        elif mn.startswith("v_"):
            self.kind = "valu"
            self.dpp = "_dpp" in mn or "row_" in mods or "quad_perm" in mods
            if "swap" in mn:
                self.wr = rs[0] | rs[1]; self.rd = rs[0] | rs[1]
            elif mn == "v_nop": pass
            else:
                self.wr = set(rs[0]); self.rd = U(rs[1:])
                if mn.startswith(("v_add_co", "v_sub_co", "v_addc_co", "v_subb_co")):
                    self.wr |= rs[1]; self.rd = U(rs[2:])
                if "fmac" in mn or "dot2c" in mn or self.dpp or mn.startswith("v_writelane"): self.rd |= rs[0]
        elif mn.startswith("ds_"):
            self.kind = "ds"
            if mn.startswith("ds_read"): self.wr = set(rs[0]); self.rd = U(rs[1:])
            else: self.rd = U(rs); self.data = U(rs[1:])
        elif mn.startswith(("buffer_", "global_")):
            self.kind = "vmem"
            words = mods.replace(",", " ").split()
            if "lds" in words:
                self.dma = True; self.rd = U(rs) | {("s", 124)}
            elif "_load" in mn:
                self.wr = set(rs[0]); self.rd = U(rs[1:])
                if "d16" in mn: self.rd |= rs[0]
            else:
                self.rd = U(rs)
                self.data = rs[0] if mn.startswith("buffer_") and rs else (rs[1] if len(rs) > 1 else set())
                self.wide = "x4" in mn or "x3" in mn
        elif mn.startswith("s_"):
            self.kind = "salu"
            if mn == "s_nop": self.nop = int(ops[0])
            elif mn.startswith(("s_cbranch", "s_branch")): self.target = ops[0]; self.kind = "branch"
            elif mn.startswith(("s_waitcnt", "s_barrier", "s_endpgm", "s_sleep", "s_setprio")): pass
            elif mn.startswith(("s_cmp", "s_bitcmp")): self.rd = U(rs)
            elif mn.startswith(("s_load", "s_memtime", "s_memrealtime")):
                self.kind = "smem"; self.wr = set(rs[0]); self.rd = U(rs[1:])
            else:
                self.wr = set(rs[0]); self.rd = U(rs[1:])
                if "saveexec" in mn: self.wr |= regs_of("exec")
        else:
            raise ValueError("unknown instruction: " + text)
        self.trans = mn.startswith(TRANS)
        self.dl = mn.startswith("v_dot")
    def states(self): return self.nop + 1

def vset(s): return {r for r in s if r[0] == "v"}
def sset(s): return {r for r in s if r[0] == "s"}

def need(p, c):
    n = 0
    if p.kind == "valu":
        vw = vset(p.wr); sw = sset(p.wr)
        if c.kind == "mfma" and vw & c.rd: n = max(n, 3 if p.dl else 2)
        if c.kind == "valu":
            if p.trans and not c.trans and vw & c.rd: n = max(n, 1)
            if "permlane" in c.mn and vw & c.rd: n = max(n, 2)
            if c.dpp and vw & c.rd: n = max(n, 2)
            if c.mn.startswith(("v_readlane", "v_readfirstlane")) and vw & c.rd: n = max(n, 1)
            if sw & c.rd: n = max(n, 4 if c.mn.startswith(("v_readlane", "v_writelane")) else 2)
        if p.dl and c.kind in ("valu", "vmem", "ds") and vw & (c.rd | c.wr):
            if c.mn == p.mn:
                ab = regs_of(c.ops[1]) | regs_of(c.ops[2])
                if vw & ab: n = max(n, 3)
            else: n = max(n, 3)
        if c.kind == "vmem" and sw & c.rd: n = max(n, 5)
    elif p.kind == "mfma":
        big = p.passes == 8
        if c.kind == "mfma":
            if p.D & (c.A | c.B): n = max(n, 12 if big else 8)
            same = p.passes == c.passes
            if p.D & c.C and not (p.D == c.C and same): n = max(n, 10 if big else 6)
            if p.D & c.D and not (p.D == c.D and same): n = max(n, 10 if big else 6)
        elif c.kind in ("valu", "vmem", "ds"):
            if p.D & (c.rd | c.wr): n = max(n, 12 if big else 8)
            if p.C & c.wr: n = max(n, 7 if big else 3)
    elif p.kind == "vmem":
        if p.wide and p.data & c.wr: n = max(n, 2)
    elif p.kind == "salu":
        if ("s", 124) in p.wr and c.dma: n = max(n, 1)
    return n

class Asm:
    def __init__(self):
        self.ins = []
        self.vm = []
        self.lg = []
        self.tok = 0
        self.auto = True
        self.nlabel = 0
        self.capt = None
    def _push(self, i): self.ins.append(i)
    def _waitvm(self, pos):
        n = min(len(self.vm) - 1 - pos, 63)
        self._push(Ins(f"s_waitcnt vmcnt({n})"))
        self.vm = self.vm[len(self.vm) - n:] if n else []
    def _waitlg(self, pos):
        n = min(len(self.lg) - 1 - pos, 15)
        self._push(Ins(f"s_waitcnt lgkmcnt({n})"))
        self.lg = self.lg[len(self.lg) - n:] if n else []
    def __call__(self, text):
        if self.capt is not None:
            self.capt.extend(l.strip() for l in text.split("\n") if l.strip()); return None
        tok = None
        for line in text.split("\n"):
            if line.strip(): tok = self.one(line.strip())
        return tok
    def one(self, text):
        i = Ins(text)
        if self.auto and i.kind:
            touch = vset(i.rd | i.wr)
            pos = max([k for k, (_, d) in enumerate(self.vm) if d & touch], default=-1)
            if pos >= 0: self._waitvm(pos)
            pos = max([k for k, (_, d) in enumerate(self.lg) if d & touch], default=-1)
            if pos >= 0: self._waitlg(pos)
        self._push(i)
        if not self.auto: return None
        if i.kind == "vmem":
            self.tok += 1; self.vm.append((self.tok, vset(i.wr))); return self.tok
        if i.kind == "ds":
            self.tok += 1; self.lg.append((self.tok, vset(i.wr))); return self.tok
        if i.mn == "s_waitcnt":
            m = re.search(r"vmcnt\((\d+)\)", text)
            if m:
                n = int(m.group(1)); self.vm = self.vm[max(0, len(self.vm) - n):] if n else []
            m = re.search(r"lgkmcnt\((\d+)\)", text)
            if m:
                n = int(m.group(1)); self.lg = self.lg[max(0, len(self.lg) - n):] if n else []
        return None
    def wait_vm(self, tok):
        for k, (t, _) in enumerate(self.vm):
            if t == tok: self._waitvm(k); return
    def wait_lg(self, tok):
        for k, (t, _) in enumerate(self.lg):
            if t == tok: self._waitlg(k); return
    def wait_vm_all(self):
        if self.vm: self._waitvm(len(self.vm) - 1)
    def wait_lg_all(self):
        if self.lg: self._waitlg(len(self.lg) - 1)
    def barrier(self):
        self.wait_lg_all(); self("s_barrier")
    def capture(self, fn, *args):
        old = self.capt; self.capt = []
        fn(*args)
        out = self.capt; self.capt = old
        return out
    def do(self, fn):
        if self.capt is not None: self.capt.append(fn)
        else: fn()
    def run(self, lst):
        for x in lst:
            if callable(x): self.do(x)
            else: self(x)
    def label(self, base):
        self.nlabel += 1
        return f"L_{base}_{self.nlabel}"
    def finalize(self):
        ins = self.ins
        self.nops_added = 0
        changed = True
        while changed:
            changed = False
            lab = {x.label: k for k, x in enumerate(ins) if x.label}
            preds = {}
            for k, x in enumerate(ins):
                if x.kind == "branch": preds.setdefault(lab[x.target], []).append(k)
            def worst(k):
                c = ins[k]; best = 0
                stack = [(k - 1, 0)]; seen = set()
                while stack:
                    j, dist = stack.pop()
                    while j >= 0 and dist < 20:
                        if (j, dist) in seen: break
                        seen.add((j, dist))
                        p = ins[j]
                        if p.label:
                            for b in preds.get(j, []): stack.append((b, dist))
                            q = j - 1
                            while q >= 0 and not ins[q].kind and not ins[q].label: q -= 1
                            if q >= 0 and ins[q].mn in ("s_branch", "s_endpgm"): break
                        elif p.kind:
                            best = max(best, need(p, c) - dist)
                            dist += p.states()
                        j -= 1
                return best
            k = 0
            while k < len(ins):
                if ins[k].kind in ("valu", "mfma", "vmem", "ds"):
                    n = worst(k)
                    if n > 0:
                        ins.insert(k, Ins(f"s_nop {n - 1}"))
                        self.nops_added += n
                        changed = True
                        lab = {x.label: kk for kk, x in enumerate(ins) if x.label}
                        preds = {}
                        for kk, x in enumerate(ins):
                            if x.kind == "branch": preds.setdefault(lab[x.target], []).append(kk)
                        k += 1
                k += 1
        return "\n".join((x.text if x.label or x.raw else "    " + x.text) for x in ins) + "\n"

class Alloc:
    def __init__(self, lo, hi):
        self.lo, self.hi = lo, hi
        self.used = {}
        self.high = lo
    def __call__(self, n=1, name="", align=None):
        al = align or (2 if n > 1 else 1)
        b = (self.lo + al - 1) // al * al
        while b + n <= self.hi:
            if all((b + i) not in self.used for i in range(n)):
                for i in range(n): self.used[b + i] = (b, n, name)
                self.high = max(self.high, b + n)
                return b
            b += al
        raise RuntimeError(f"out of registers allocating {n} ({name}); used={sorted(set(self.used.values()))}")
    def at(self, b, n, name=""):
        assert all((b + i) not in self.used for i in range(n)), (name, b, n, sorted(set(self.used.values())))
        for i in range(n): self.used[b + i] = (b, n, name)
        return b
    def free(self, *bases):
        for b in bases:
            _, n, _ = self.used[b]
            assert self.used[b][0] == b
            for i in range(n): del self.used[b + i]

def merge(main, fill, lead=0):
    out = []
    nm = len(main) - lead
    k = 0
    for i, m in enumerate(main):
        out.append(m)
        if i >= lead:
            want = (i - lead + 1) * len(fill) // max(nm, 1)
            while k < want: out.append(fill[k]); k += 1
    out += fill[k:]
    return out

def spread(main, *fills):
    slots = [[] for _ in range(len(main) + 1)]
    for lst, f0, f1 in fills:
        n = len(lst)
        for k, x in enumerate(lst):
            pos = f0 + (k * (f1 - f0)) // max(n, 1)
            slots[min(pos, len(main))].append(x)
    out = []
    for i, m in enumerate(main):
        out += slots[i]; out.append(m)
    return out + slots[len(main)]
```

```python
import sys, struct, math
from asmlib import *

KN = "sequential_preLN__spectral_gfnet__dense_activation_silu__prompt_kernel"
def fl(x): return "0x%08x" % struct.unpack("<I", struct.pack("<f", x))[0]

Z1 = 0x0; Z2 = 0x200000; HN = 0x400000; HH = 0x600000; HB = 0x800000; EPO = 0xE00000; STAMP = 0xE80000
WS_SIZE = 0xF00000
HCL = 4 * 44 * 1024
OOB = 0x40000000
HNL = 0; HROW = 1040; HTILE = 16 * HROW
EA = 0; EB = 8448
RED = (4 * HTILE, 4 * HTILE + 16384)
BST = HTILE; BSTW = 20672
AR = 4 * HTILE + 32768; ARW = 16128
CUE = AR + 15360
LDS_SIZE = 163840
sX, sWR, sWI, sW1, sW2, sO, sWS = 8, 12, 16, 20, 24, 28, 32
sW, sS2, sK1, sM, sMem, sRot, sT0, sT1, sT2, sOnes, sMask, sEp, sCnt, sStg, sN, sD0, sHb, sU0, sLn2, sOwn = range(36, 56)
sOff = 56
sKap = 68
sStamp = 80
sSel = 12

sRet = 6
SPIN = 20000

class Gen:
    def __init__(self, cfg):
        self.cfg = cfg
        self.amp = cfg.get("amp"); self.stamps = cfg.get("stamps") or []
        self.a = Asm(); self.va = Alloc(1, 256); self.vb = self.va
        self.tail = []; self.npoll = 0; self.pollnames = []
        self.sched = cfg.get("sched", {})
        self.W2 = lambda i, t: 80 + (i * 4 + t) * 4
        self.W1 = lambda ks, T: 64 + (ks * 3 + T) * 4
        self.slots = {}; self.stg_used = []; self.stg_pend = []; self.drained = set(); self.draining = set(); self.cleared = set(); self.stgw = 0
        self.packinfo = []; self.bars = []
    def stamp(self, name):
        if name in self.stamps:
            k = self.stamps.index(name)
            self.a(f"{'s_memtime' if self.cfg.get('cyc') else 's_memrealtime'} {S(sStamp + 2 * k, 2)}")
    def sincos(self, c, s, ang):
        self.a(f"v_cos_f32 {R(c)}, {R(ang)}"); self.a(f"v_sin_f32 {R(s)}, {R(ang)}")
    def poll(self, name, loads, check):
        a = self.a
        Lr = a.label(name + "_retry"); Lo = a.label(name + "_ok")
        site = self.npoll; self.npoll += 1; self.pollnames.append(name)
        check()
        a(f"s_cbranch_vccnz {Lr}")
        a(Lo + ":")
        def tail():
            a.auto = False
            a(Lr + ":")
            a(f"s_mov_b32 {S(sCnt)}, 0")
            Ll = a.label(name + "_loop")
            a(Ll + ":")
            if self.stamps: a(f"s_bitset1_b32 {S(sRet + site // 32)}, {site % 32}")
            if self.cfg.get("backoff"): a(f"s_sleep {self.cfg['backoff']}")
            for l in loads: a(l)
            a("s_waitcnt vmcnt(0)")
            check()
            a(f"s_cbranch_vccz {Lo}")
            a(f"s_add_u32 {S(sCnt)}, {S(sCnt)}, 1")
            a(f"s_cmp_lt_u32 {S(sCnt)}, {SPIN}")
            a(f"s_cbranch_scc1 {Ll}")
            a(f"s_branch {Lo}")
        self.tail.append(tail)
    def poll_sel(self, name, loads, check, bad, post, redo):
        a = self.a
        Lr = a.label(name + "_retry"); Lo = a.label(name + "_ok")
        site = self.npoll; self.npoll += 1; self.pollnames.append(name)
        check()
        a(f"s_cbranch_vccnz {Lr}")
        a(Lo + ":")
        def tail():
            a.auto = False
            Ll = a.label(name + "_loop"); Ld = a.label(name + "_redo")
            a(Lr + ":")
            a(f"s_mov_b32 {S(sCnt)}, 0")
            if self.stamps: a(f"s_bitset1_b32 {S(sRet + site // 32)}, {site % 32}")
            a(Ll + ":")
            for q in range(4): bad(q, S(sSel + 2 * q, 2))
            a(f"s_or_b64 vcc, {S(sSel, 2)}, {S(sSel + 2, 2)}\ns_or_b64 vcc, vcc, {S(sSel + 4, 2)}\ns_or_b64 vcc, vcc, {S(sSel + 6, 2)}")
            a(f"s_cbranch_scc0 {Ld}")
            if self.cfg.get("backoff"): a(f"s_sleep {self.cfg['backoff']}")
            for q in range(4):
                Ls = a.label(name + "_skip")
                a(f"s_mov_b64 exec, {S(sSel + 2 * q, 2)}\ns_cbranch_execz {Ls}")
                for l in loads[4 * q:4 * q + 4]: a(l)
                a(Ls + ":")
            a(f"s_add_u32 {S(sCnt)}, {S(sCnt)}, 1")
            a("s_waitcnt vmcnt(0)")
            if post:
                for q in range(4):
                    a(f"s_mov_b64 exec, {S(sSel + 2 * q, 2)}"); post(q)
            a("s_mov_b64 exec, -1")
            a(f"s_cmp_lt_u32 {S(sCnt)}, {SPIN}")
            a(f"s_cbranch_scc1 {Ll}")
            a(Ld + ":")
            redo()
            a(f"s_branch {Lo}")
        self.tail.append(tail)
    def check_sentinel(self, regs):
        a = self.a; t = self.vT
        def chk():
            r = list(regs)
            if len(r) % 2 == 0:
                a(f"v_max_u32 {R(t)}, {R(r[0])}, {R(r[1])}"); r = r[2:]
            else:
                a(f"v_max3_u32 {R(t)}, {R(r[0])}, {R(r[1])}, {R(r[2])}"); r = r[3:]
            while r:
                a(f"v_max3_u32 {R(t)}, {R(t)}, {R(r[0])}, {R(r[1])}"); r = r[2:]
            a(f"v_cmp_eq_u32 vcc, -1, {R(t)}")
        return chk
    def cmul(self, ore, oim, re, im, c, s, conj, addend=None):
        a = self.a
        neg = " neg_lo:[0,1,0] neg_hi:[0,1,0]"
        for k in (0, 2):
            for o, x in ((ore, re), (oim, im)):
                if addend is None: a(f"v_pk_mul_f32 {R(o + k, 2)}, {R(x + k, 2)}, {R(c + k, 2)}")
                else: a(f"v_pk_fma_f32 {R(o + k, 2)}, {R(x + k, 2)}, {R(c + k, 2)}, {R(addend, 2)} op_sel_hi:[1,1,0] neg_lo:[0,0,1] neg_hi:[0,0,1]")
        for k in (0, 2):
            a(f"v_pk_fma_f32 {R(ore + k, 2)}, {R(im + k, 2)}, {R(s + k, 2)}, {R(ore + k, 2)}" + (neg if conj else ""))
            a(f"v_pk_fma_f32 {R(oim + k, 2)}, {R(re + k, 2)}, {R(s + k, 2)}, {R(oim + k, 2)}" + ("" if conj else neg))
    def stats(self, X, st, scale, mscale):
        a = self.a
        S0, S1, Q0, Q1 = st, st + 1, st + 2, st + 3
        for r in range(4):
            a(f"v_dot2c_f32_bf16 {R(S0)}, {S(sOnes)}, {R(X + r)}")
            a(f"v_dot2c_f32_bf16 {R(Q0)}, {R(X + r)}, {R(X + r)}")
        for r in range(4):
            a(f"v_dot2c_f32_bf16 {R(S1)}, {S(sOnes)}, {R(X + 4 + r)}")
            a(f"v_dot2c_f32_bf16 {R(Q1)}, {R(X + 4 + r)}, {R(X + 4 + r)}")
        a(f"v_permlane32_swap_b32 {R(S0)}, {R(S1)}")
        a(f"v_permlane32_swap_b32 {R(Q0)}, {R(Q1)}")
        a(f"v_add_f32 {R(S0)}, {R(S0)}, {R(S1)}")
        a(f"v_add_f32 {R(Q0)}, {R(Q0)}, {R(Q1)}")
        a(f"v_permlane16_swap_b32 {R(S0)}, {R(Q0)}")
        a(f"v_add_f32 {R(S0)}, {R(S0)}, {R(Q0)}")
        for sh in (8, 4, 2, 1):
            a(f"v_add_f32_dpp {R(S0)}, {R(S0)}, {R(S0)} row_ror:{sh} row_mask:0xf bank_mask:0xf")
        a(f"v_mul_f32 {R(Q0)}, {fl(1 / 512)}, {R(S0)}")
        a(f"v_mul_f32 {R(S0)}, {fl(1 / 512)}, {R(S0)}")
        a(f"v_permlane16_swap_b32 {R(S0)}, {R(Q0)}")
        a(f"v_fma_f32 {R(Q0)}, -{R(S0)}, {R(S0)}, {R(Q0)}")
        a(f"v_max_f32 {R(Q0)}, 0, {R(Q0)}")
        if scale != 1.0: a(f"v_fmamk_f32 {R(Q0)}, {R(Q0)}, {fl(1 / scale ** 2)}, {R(self.vEps)}")
        else: a(f"v_add_f32 {R(Q0)}, {fl(1e-5)}, {R(Q0)}")
        a(f"v_rsq_f32 {R(Q0)}, {R(Q0)}")
        if mscale is not None:
            a(f"v_mov_b32 {R(self.vMu)}, {R(S0)}")
            a(f"v_mul_f32 {R(S0)}, {R(mscale)}, {R(S0)}")
        a(f"v_mul_f32 {R(st + 4)}, {R(S0)}, {R(Q0)}")
        a(f"v_mul_f32 {R(st + 6)}, {R(S0)}, {R(Q0)}")
        a(f"v_mov_b32 {R(st)}, {R(Q0)}")
        a(f"v_permlane32_swap_b32 {R(st + 4)}, {R(st + 6)}")
        a(f"v_permlane32_swap_b32 {R(st)}, {R(st + 2)}")
    def stg_alloc(self, size):
        free = [off for off in range(0, self.stgw - size + 1, size) if not any(o < off + size and off < o + s_ for o, s_ in self.stg_used)]
        assert free, "staging overflow"
        age = lambda off: max([tok for o, s_, tok in self.stg_pend if o < off + size and off < o + s_], default=0)
        off = min(free, key=age)
        self.stg_used.append((off, size))
        keep = []
        for (o, s_, tok) in self.stg_pend:
            if o < off + size and off < o + s_: self.a.wait_lg(tok)
            else: keep.append((o, s_, tok))
        self.stg_pend = keep
        return off
    def dma_list(self, item):
        a = self.a; kind, i = item
        size = 3072 if kind == 1 else 4096
        def first():
            off = self.stg_alloc(size); self.slots[item] = [off, size, None]
            a(f"s_add_u32 m0, {S(sStg)}, {off}")
            if kind == 1:
                a(f"s_xor_b32 {S(sD0)}, {S(sRot)}, {i}")
                a(f"s_mul_i32 {S(sD0)}, {S(sD0)}, {8 * 2752}")
            else: a(f"s_lshl_b32 {S(sD0)}, {S(sKap + i)}, 5")
        def ld(p):
            if p == 0: first()
            if kind == 1: t = a(f"buffer_load_dwordx4 {R(self.vW1 + p)}, {S(sW1, 4)}, {S(sD0)} offen offset:{p * 1024} lds")
            else:
                if p: a(f"s_add_u32 {S(sD0)}, {S(sD0)}, 7168")
                t = a(f"buffer_load_dwordx4 {R(self.vW2)}, {S(sW2, 4)}, {S(sD0)} offen offset:{p * 1024} lds")
            self.slots[item][2] = t
        return [lambda p=p: ld(p) for p in range(size // 1024)]
    def drain_list(self, item):
        a = self.a; kind, i = item
        n = 6 if kind == 1 else 8
        def rd(q):
            off, size, tok = self.slots[item]
            T, h = q >> 1, q & 1
            if q == 0: a.wait_vm(tok)
            base = self.W1(i, T) if kind == 1 else self.W2(i, T)
            assert not any((base + k) in self.va.used for k in range(4)), ("weight registers still in use", item, [self.va.used.get(base + k) for k in range(4)])
            if kind == 1:
                t = a(f"ds_read_b64_tr_b16 {R(self.W1(i, T) + 2 * h, 2)}, {R(self.vTr1)} offset:{off + h * 1536 + 32 * T}")
            else:
                t = a(f"ds_read_b64_tr_b16 {R(self.W2(i, T) + 2 * h, 2)}, {R(self.vTr2 + T)} offset:{off + h * 1024}")
            if q == n - 1:
                self.stg_used.remove((off, size)); self.stg_pend.append((off, size, t)); self.drained.add(item)
        return [lambda q=q: rd(q) for q in range(n)]
    def stream(self, kind, items, depth, finish=True):
        a = self.a
        def landed():
            out = []
            for it, (off, size, tok) in list(self.slots.items()):
                if it[0] == kind and it not in self.drained and it not in self.draining and it != cur and tok not in [t for t, _ in a.vm]:
                    self.draining.add(it); out += self.drain_list(it)
            return out
        pend = []
        for i in items:
            cur = (kind, i)
            for k, f in enumerate(self.dma_list(cur)):
                if len(a.vm) >= depth: a(f"s_waitcnt vmcnt({depth - 1})")
                pend += landed()
                if k == 0:
                    size = 3072 if kind == 1 else 4096
                    while not self.stg_fits(size):
                        if not pend:
                            old = [it for it in self.slots if it[0] == kind and it not in self.drained and it not in self.draining][0]
                            self.draining.add(old); pend += self.drain_list(old)
                        pend.pop(0)()
                f()
                for _ in range(3):
                    if pend: pend.pop(0)()
        for x in pend: x()
        if finish:
            for it in list(self.slots):
                if it[0] == kind and it not in self.drained: a.run(self.drain_list(it))
    def stg_fits(self, size):
        return any(not any(o < off + size and off < o + s_ for o, s_ in self.stg_used) for off in range(0, self.stgw - size + 1, size))
    def plist(self, name):
        out = []
        for op, item in self.sched.get(name, []):
            if op == "dma": out += self.dma_list(item)
            elif op == "drain": out += self.drain_list(item)
            else: out.append(lambda op=op, item=item: getattr(self, op)(*item))
        return out
    def fake(self, *items):
        for it in items: self.cleared.add(it)
        self.clrdone = set(self.cleared)
    def freeW(self): self.va.free(self.aW, self.aR)
    def mark(self, name): self.stamp(name)
    def sleep(self, n): self.a(f"s_sleep {n}")
    def drainvm(self, name):
        self.a.wait_vm_all(); self.stamp(name)
    def point(self, name): self.a.run(self.plist(name))
    def weave(self, mains, fills, f0=0.0, f1=1.0):
        a = self.a
        lst = []
        for op, item in mains: lst += a.capture(getattr(self, op), *item)
        glued = []
        for x in lst:
            if glued and isinstance(glued[-1], str) and glued[-1].split("\n")[-1].startswith("s_cmp"): glued[-1] += "\n" + x
            else: glued.append(x)
        self.sched["_w"] = fills
        a.run(spread(glued, (self.plist("_w"), int(f0 * len(glued)), int(f1 * len(glued)))))
    def prologue(self):
        a = self.a; va = self.va
        self.stamp("entry")
        a(f"s_load_dwordx2 {S(sX, 2)}, s[0:1], 0")
        a(f"s_load_dwordx2 {S(sWS, 2)}, s[0:1], 64")
        a(f"s_load_dwordx4 {S(sOff + 4, 4)}, s[0:1], 8")
        a(f"s_load_dwordx4 {S(sOff + 8, 4)}, s[0:1], 32")
        a(f"s_load_dwordx2 {S(sO, 2)}, s[0:1], 48")
        a(f"s_cmp_ge_u32 s2, 256\ns_cbranch_scc1 L_end")
        self.vT = va(1, "T"); self.vL16 = va(1, "l16"); self.vZero = va(1, "zero")
        self.vL = va(1, "lane"); self.vLi = va(1, "li"); self.vG = va(1, "g"); self.vPf = va(1, "pf"); self.vM1 = va(4, "m1")
        L, Li, G, T = self.vL, self.vLi, self.vG, self.vT
        a("s_getpc_b64 s[4:5]")
        a(f"s_lshr_b32 {S(sM)}, s2, 3\ns_and_b32 {S(sT0)}, {S(sM)}, 3\ns_lshl_b32 {S(sT0)}, {S(sT0)}, 13")
        a(f"v_lshrrev_b32 {R(T)}, 3, v0")
        a(f"v_lshl_add_u32 {R(T)}, {R(T)}, 7, {S(sT0)}")
        a(f"global_load_dword {R(self.vPf)}, {R(T)}, s[4:5]")
        a(f"v_lshrrev_b32 {R(T)}, 6, v0")
        a(f"v_and_b32 {R(Li)}, 15, v0")
        a(f"v_readfirstlane_b32 s3, {R(T)}")
        a(f"v_bfe_u32 {R(G)}, v0, 4, 2")
        a(f"s_and_b32 {S(sK1)}, s2, 7")
        a(f"s_cmp_ge_u32 s3, 4\ns_cbranch_scc1 L_roleB")
    def common(self):
        a = self.a; L = self.vL
        a(f"v_and_b32 {R(L)}, 63, v0")
        a(f"s_mov_b32 {S(sWS + 2)}, {WS_SIZE}\ns_mov_b32 {S(sWS + 3)}, 0x20000")
        if self.stamps:
            a(f"s_mov_b32 {S(sRet)}, 0\ns_mov_b32 {S(sRet + 1)}, 0")
            for k in range(1, len(self.stamps)):
                if self.stamps[k] != "karg" or self.bars: a(f"s_mov_b32 {S(sStamp + 2 * k)}, 0")
        a(f"s_and_b32 {S(sW)}, s3, 3")
        a(f"s_lshl_b32 {S(sN)}, {S(sK1)}, 5\ns_or_b32 {S(sN)}, {S(sN)}, {S(sM)}")
        a(f"s_and_b32 {S(sMem)}, {S(sM)}, 7")
        a(f"s_lshr_b32 {S(sRot)}, {S(sM)}, 3\ns_mul_i32 {S(sRot)}, {S(sRot)}, {self.cfg.get('rot1', 4)}")
        if self.cfg.get("xrot1"): a(f"s_mul_i32 {S(sT0)}, {S(sK1)}, {self.cfg['xrot1']}\ns_xor_b32 {S(sRot)}, {S(sRot)}, {S(sT0)}")
        a(f"v_mov_b32 {R(self.vZero)}, 0")
        a(f"v_lshlrev_b32 {R(self.vL16)}, 4, {R(L)}")
        for i in range(4): a(f"v_mov_b32 {R(self.vM1 + i)}, -1")
        a(f"s_lshl_b32 {S(sT0)}, {S(sN)}, 13\ns_lshl_b32 {S(sT1)}, {S(sW)}, 11\ns_add_u32 {S(sOwn)}, {S(sT0)}, {S(sT1)}")
    def srds(self, first=0):
        a = self.a
        for reg, src, n in ((sWR, sOff + 4, 2048 * 514), (sWI, sOff + 6, 2048 * 514), (sW1, sOff + 8, 512 * 2752), (sW2, sOff + 10, 1376 * 1024))[first:]:
            a(f"s_mov_b64 {S(reg, 2)}, {S(src, 2)}\ns_mov_b32 {S(reg + 2)}, {n}\ns_mov_b32 {S(reg + 3)}, 0x20000")
    def prologue_a(self):
        a = self.a; va = self.va; Li, G = self.vLi, self.vG
        self.aHl = va(4, "aHl", 1); self.aHf = va(1, "aHf"); self.aRw = va(2, "aRw", 1); self.aHw = va(1, "aHw")
        self.vW2 = va(1, "vW2"); self.vTr2 = va(4, "vTr2", 1)
        self.X = va(8, "X"); aX = va(1, "aX"); self.vEp = va(1, "ep")
        a(f"s_lshl_b32 {S(sS2)}, {S(sK1)}, 4\ns_and_b32 {S(sT0)}, {S(sM)}, 15\ns_or_b32 {S(sS2)}, {S(sS2)}, {S(sT0)}")
        a(f"s_and_b32 {S(sT0)}, s2, 0x80\ns_or_b32 {S(sS2)}, {S(sS2)}, {S(sT0)}")
        a(f"v_lshlrev_b32 {R(aX)}, 2, {R(Li)}")
        a(f"v_lshl_add_u32 {R(aX)}, {R(G)}, 8, {R(aX)}")
        a(f"s_lshl_b32 {S(sT0)}, s3, 19\ns_lshl_b32 {S(sT1)}, {S(sS2)}, 10")
        a(f"s_add_u32 {S(sOff)}, {S(sT0)}, {S(sT1)}\ns_add_u32 {S(sOff + 1)}, {S(sOff)}, 0x40000")
        a(f"s_mov_b32 {S(sX + 2)}, 0x200000\ns_mov_b32 {S(sX + 3)}, 0x20000")
        if self.cfg.get("prio", (1, 0, 2))[0]: a("s_setprio %d" % self.cfg.get("prio", (1, 0, 2))[0])
        self.point("pre_karg")
        a("s_waitcnt lgkmcnt(0)")
        self.stamp("karg")
        for rho in range(2):
            for r in range(4):
                a(f"buffer_load_dword {R(self.X + 4 * rho + r)}, {R(aX)}, {S(sX, 4)}, {S(sOff + rho)} offen offset:{64 * r}")
        va.free(aX)
        self.common()
        a(f"s_mov_b32 {S(sT0)}, {EPO}")
        a(f"buffer_load_dword {R(self.vEp)}, {R(self.vZero)}, {S(sWS, 4)}, {S(sT0)} offen sc1")
        self.srds(3)
        a(f"s_mul_i32 {S(sStg)}, {S(sW)}, {ARW}\ns_add_u32 {S(sStg)}, {S(sStg)}, {AR}")
        a(f"s_mov_b32 {S(sOnes)}, 0x3f803f80\ns_mov_b32 {S(sMask)}, 0x00030003")
        self.stgw = 15360; self.stg_used = [(0, 10240)]
        a(f"v_add_u32 {R(self.aHf)}, {S(sStg)}, {R(self.vL16)}")
        a(f"v_mov_b32 {R(self.vT)}, {S(sStg)}")
        a(f"ds_write_b32 {R(self.vT)}, {R(self.vZero)} offset:15360")
    def clear(self, base, i):
        a = self.a
        a(f"s_add_u32 {S(sU0)}, {S(sOwn)}, {base + 1024 * i}")
        t = a(f"buffer_store_dwordx4 {R(self.vM1, 4)}, {R(self.vL16)}, {S(sWS, 4)}, {S(sU0)} offen sc1")
        self.tokclr = t
        self.cleared.add((base, i))
    def clear_H(self, i):
        a = self.a
        a(f"s_add_u32 {S(sU0)}, {S(sHb)}, {HB + 1024 * i}")
        if i == 5: a("s_mov_b32 exec_hi, 0")
        self.tokclr = a(f"buffer_store_dwordx4 {R(self.vM1, 4)}, {R(self.vL16)}, {S(sWS, 4)}, {S(sU0)} offen sc1")
        if i == 5: a("s_mov_b32 exec_hi, -1")
        self.cleared.add((HB, i))
    def w_addr(self):
        a = self.a; va = self.va; L, T = self.vL, self.vT
        k = va(1, "k"); u = va(1, "u"); self.aW = va(1, "aW"); self.aR = va(1, "aR")
        a(f"s_lshl_b32 {S(sT0)}, {S(sW)}, 5\ns_and_b32 {S(sT1)}, s2, 15\ns_add_u32 {S(sT0)}, {S(sT0)}, {S(sT1)}")
        a(f"v_and_b32 {R(k)}, 0x19, {R(L)}")
        a(f"v_lshl_add_u32 {R(k)}, {R(k)}, 4, {S(sT0)}")
        a(f"v_and_b32 {R(T)}, 6, {R(L)}")
        a(f"v_lshl_add_u32 {R(k)}, {R(T)}, 8, {R(k)}")
        a(f"v_cmp_gt_u32 vcc, 32, {R(L)}")
        a(f"s_lshr_b32 {S(sT0)}, {S(sM)}, 1\ns_lshl_b32 {S(sT0)}, {S(sT0)}, 4\ns_sub_u32 {S(sT1)}, 498, {S(sT0)}")
        a(f"v_sub_u32 {R(u)}, 0, {R(k)}")
        a(f"v_and_b32 {R(u)}, 2047, {R(u)}")
        a(f"v_mul_u32_u24 {R(k)}, 514, {R(k)}")
        a(f"v_mul_u32_u24 {R(u)}, 514, {R(u)}")
        a(f"v_add_u32 {R(T)}, {S(sT0)}, {R(k)}")
        a(f"v_add_u32 {R(u)}, {S(sT1)}, {R(u)}")
        a(f"v_cndmask_b32 {R(self.aW)}, {R(u)}, {R(T)}, vcc")
        a(f"v_cndmask_b32 {R(self.aR)}, 2.0, {R(k)}, vcc")
        va.free(k, u)
        a(f"s_cmp_ge_u32 {S(sM)}, 2\ns_cselect_b32 {S(sEp)}, 2.0, 0")
        self.WL = self.vb(10, "WL")
    def w_load(self, x):
        self.a(f"buffer_load_dwordx4 {R(self.WL + 4 * x, 4)}, {R(self.aW)}, {S((sWR, sWI)[x], 4)}, 0 offen")
    def w_spec(self):
        for x in range(2): self.a(f"buffer_load_ushort {R(self.WL + 8 + x)}, {R(self.aR)}, {S((sWR, sWI)[x], 4)}, {S(sEp)} offen offset:256")
    def w_stage(self):
        a = self.a; va = self.va; L, Li, G, T = self.vL, self.vLi, self.vG, self.vT
        self.Wraw = self.vb(16, "Wraw")
        aw = va(1, "aw"); aP = va(1, "aP"); aQ = va(1, "aQ")
        a(f"s_add_u32 {S(sT0)}, {S(sStg)}, {6 * 3072}")
        a(f"v_add_u32 {R(aw)}, {S(sT0)}, {R(self.vL16)}")
        a(f"v_and_b32 {R(T)}, 1, {R(Li)}")
        a(f"v_lshl_add_u32 {R(T)}, {R(G)}, 1, {R(T)}")
        a(f"v_lshl_add_u32 {R(T)}, {R(T)}, 4, {S(sT0)}")
        a(f"v_and_or_b32 {R(aP)}, {R(Li)}, 14, {R(T)}")
        a(f"v_xor_b32 {R(aQ)}, 14, {R(aP)}")
        for i in range(16): a(f"v_mov_b32 {R(self.Wraw + i)}, 0")
        for x in range(2): a(f"ds_write_b128 {R(aw)}, {R(self.WL + 4 * x, 4)} offset:{1024 * x}")
        Ls = a.label("nor")
        a(f"v_mov_b32 {R(self.WL + 9)}, {R(self.WL + 9)}")
        a(f"s_cmp_ge_u32 {S(sM)}, 2\ns_cbranch_scc1 {Ls}")
        a.auto = False
        a("s_mov_b32 exec_hi, 0")
        for x in range(2): a(f"ds_write_b16 {R(aw)}, {R(self.WL + 8 + x)} offset:{1024 * x}")
        a("s_mov_b32 exec_hi, -1")
        a.auto = True
        a(Ls + ":")
        for r in range(4):
            for x in range(2):
                a(f"ds_read_u16_d16_hi {R(self.Wraw + 4 * x + r)}, {R(aP)} offset:{1024 * x + 128 * r}")
                a(f"ds_read_u16_d16_hi {R(self.Wraw + 8 + 4 * x + r)}, {R(aQ)} offset:{1024 * x + 128 * r + 512}")
        self.vb.free(self.WL); va.free(aw, aP, aQ, self.aW, self.aR)
    def w_coefs(self):
        a = self.a; va = self.va; T = self.vT; W = self.Wraw
        sc = 2.0 ** -19
        K = va(4, "K")
        al, be, c, s = (K + i for i in range(4))
        a(f"s_lshr_b32 {S(sT0)}, {S(sM)}, 1\ns_lshl_b32 {S(sT0)}, {S(sT0)}, 4")
        a(f"v_and_or_b32 {R(T)}, {R(self.vLi)}, 14, {S(sT0)}")
        a(f"v_cmp_ne_u32 vcc, 0, {R(T)}")
        a(f"v_mov_b32 {R(al)}, {fl(0.25)}")
        a(f"v_cvt_f32_u32 {R(T)}, {R(T)}")
        a(f"v_mul_f32 {R(T)}, {fl(1 / 1024)}, {R(T)}")
        a(f"v_cndmask_b32 {R(T)}, {R(al)}, {R(T)}, vcc")
        self.sincos(c, s, T)
        a(f"v_mul_f32 {R(c)}, {fl(sc / 2)}, {R(c)}")
        a(f"v_mul_f32 {R(s)}, {fl(sc / 2)}, {R(s)}")
        a(f"v_cndmask_b32 {R(c)}, 0, {R(c)}, vcc")
        a(f"v_sub_f32 {R(al)}, {fl(sc / 2)}, {R(s)}")
        a(f"v_add_f32 {R(be)}, {fl(sc / 2)}, {R(s)}")
        self.CF = self.vb(24, "CF")
        A1r, A1i, Br, Bi, A2r, A2i = (self.CF + 4 * i for i in range(6))
        Pr, Pi, Qr, Qi = (W + 4 * i for i in range(4))
        lo2 = " op_sel_hi:[1,0]"; hi2 = " op_sel:[0,1] op_sel_hi:[1,1]"
        lo3 = " op_sel_hi:[1,0,1]"; hi3 = " op_sel:[0,1,0] op_sel_hi:[1,1,1]"
        n2 = " neg_lo:[0,1] neg_hi:[0,1]"; n3 = " neg_lo:[0,1,0] neg_hi:[0,1,0]"
        P = lambda x: R(x, 2)
        for k in (0, 2):
            a(f"v_pk_mul_f32 {P(A1r + k)}, {P(Pr + k)}, {P(al)}" + lo2)
            a(f"v_pk_mul_f32 {P(A2r + k)}, {P(Pr + k)}, {P(al)}" + hi2)
            a(f"v_pk_add_f32 {P(Bi + k)}, {P(Pr + k)}, {P(Qr + k)}" + n2)
            a(f"v_pk_mul_f32 {P(A1i + k)}, {P(Pi + k)}, {P(al)}" + lo2)
            a(f"v_pk_mul_f32 {P(A2i + k)}, {P(Pi + k)}, {P(al)}" + hi2)
            a(f"v_pk_add_f32 {P(Br + k)}, {P(Pi + k)}, {P(Qi + k)}")
            a(f"v_pk_fma_f32 {P(A1r + k)}, {P(Qr + k)}, {P(al)}, {P(A1r + k)}" + hi3)
            a(f"v_pk_fma_f32 {P(A2r + k)}, {P(Qr + k)}, {P(al)}, {P(A2r + k)}" + lo3)
            a(f"v_pk_mul_f32 {P(Bi + k)}, {P(Bi + k)}, {P(c)}" + lo2)
            a(f"v_pk_fma_f32 {P(A1i + k)}, {P(Qi + k)}, {P(al)}, {P(A1i + k)}" + hi3 + n3)
            a(f"v_pk_fma_f32 {P(A2i + k)}, {P(Qi + k)}, {P(al)}, {P(A2i + k)}" + lo3 + n3)
            a(f"v_pk_mul_f32 {P(Br + k)}, {P(Br + k)}, {P(c)}" + lo2 + n2)
        a(f"s_mul_i32 {S(sT0)}, {S(sW)}, {ARW}\ns_add_u32 {S(sT0)}, {S(sT0)}, {AR + 4096}")
        a(f"v_add_u32 {R(T)}, {S(sT0)}, {R(self.vL16)}")
        for i in range(6): a(f"ds_write_b128 {R(T)}, {R(self.CF + 4 * i, 4)} offset:{1024 * i}")
        a.wait_lg_all()
        self.cf_sent = True
        va.free(K); self.vb.free(W, self.CF)
    def tables_p1(self):
        a = self.a; va = self.va; Li, G, T = self.vLi, self.vG, self.vT
        self.M = va(8, "M"); self.M2 = va(8, "M2"); self.TW = va(8, "TW"); self.Gm = va(8, "G")
        p = va(1, "p"); c = va(1, "c"); s = va(1, "s"); u = va(1, "u"); f = va(1, "f")
        a(f"v_mul_u32_u24 {R(p)}, {R(Li)}, {R(G)}")
        a(f"v_cvt_f32_u32 {R(f)}, {R(Li)}")
        a(f"v_cvt_f32_u32 {R(p)}, {R(p)}")
        a(f"v_mul_f32 {R(p)}, {fl(1 / 64)}, {R(p)}")
        for r in range(4):
            if r: a(f"v_fmamk_f32 {R(p)}, {R(f)}, {fl(1 / 256)}, {R(p)}")
            a(f"v_mul_f32 {R(T)}, {fl(16.0)}, {R(p)}")
            a(f"v_fract_f32 {R(T)}, {R(T)}")
            self.sincos(c, s, T)
            self.sincos(self.TW + r, self.TW + 4 + r, p)
            a(f"v_cvt_pk_bf16_f32 {R(self.M + r)}, {R(c)}, {R(s)}")
            a(f"v_cvt_pk_bf16_f32 {R(self.M + 4 + r)}, -{R(s)}, {R(c)}")
            a(f"v_cvt_pk_f16_f32 {R(self.M2 + r)}, {R(c)}, {R(s)}")
            a(f"v_cvt_pk_f16_f32 {R(self.M2 + 4 + r)}, -{R(s)}, {R(c)}")
        msk = va(1, "msk"); sg = va(1, "sg")
        a(f"v_lshrrev_b32 {R(u)}, 1, {R(Li)}")
        a(f"v_and_b32 {R(p)}, 1, {R(G)}")
        a(f"v_lshl_add_u32 {R(p)}, {R(p)}, 10, {S(sS2)}")
        a(f"v_mul_u32_u24 {R(p)}, {R(p)}, {R(u)}")
        a(f"v_cvt_f32_u32 {R(f)}, {R(u)}")
        a(f"v_cvt_f32_u32 {R(p)}, {R(p)}")
        a(f"v_lshrrev_b32 {R(msk)}, 1, {R(G)}")
        a(f"v_mul_f32 {R(p)}, {fl(1 / 2048)}, {R(p)}")
        a(f"v_xor_b32 {R(msk)}, {R(msk)}, {R(Li)}")
        a(f"v_and_b32 {R(msk)}, 1, {R(msk)}")
        a(f"v_add_u32 {R(msk)}, -1, {R(msk)}")
        a(f"v_lshlrev_b32 {R(sg)}, 31, {R(Li)}")
        for r in range(4):
            if r: a(f"v_fmamk_f32 {R(p)}, {R(f)}, {fl(1 / 8)}, {R(p)}")
            self.sincos(c, s, p)
            a(f"v_cvt_pk_f16_f32 {R(self.Gm + r)}, {R(c)}, {R(s)}")
            a(f"v_cvt_pk_f16_f32 {R(self.Gm + 4 + r)}, -{R(s)}, {R(c)}")
            for q in (self.Gm + r, self.Gm + 4 + r):
                a(f"v_bitop3_b32 {R(q)}, {R(q)}, {R(sg)}, {R(msk)} bitop3:0x28")
        self.vMsk = msk
        va.free(sg, p, s, f)
        self.aE1w = va(1, "aE1w"); self.aE1r = va(2, "aE1r", 1); self.aZ1 = va(1, "aZ1"); self.v16 = va(1, "m16")
        a(f"s_lshr_b32 {S(sT0)}, {S(sW)}, 1\ns_lshl_b32 {S(sT0)}, {S(sT0)}, 12\ns_and_b32 {S(sT1)}, {S(sW)}, 1\ns_lshl_b32 {S(sT1)}, {S(sT1)}, 3")
        a(f"s_add_u32 {S(sT0)}, {S(sT0)}, {S(sT1)}\ns_add_u32 {S(sT0)}, {S(sT0)}, {EA}")
        a(f"v_lshl_add_u32 {R(self.aE1w)}, {R(Li)}, 4, {S(sT0)}")
        a(f"v_lshl_add_u32 {R(self.aE1w)}, {R(G)}, 10, {R(self.aE1w)}")
        hh = va(1, "hh")
        a(f"v_and_b32 {R(hh)}, 1, {R(G)}")
        a(f"v_lshlrev_b32 {R(u)}, 18, {R(u)}")
        a(f"v_lshl_add_u32 {R(u)}, {R(hh)}, 4, {R(u)}")
        a(f"v_and_b32 {R(T)}, 2, {R(G)}")
        a(f"v_and_or_b32 {R(T)}, {R(Li)}, 1, {R(T)}")
        a(f"v_lshl_add_u32 {R(self.aZ1)}, {R(T)}, 5, {R(u)}")
        a(f"s_movk_i32 {S(sT1)}, {EA // 16}")
        a(f"v_lshl_add_u32 {R(hh)}, {R(hh)}, 8, {S(sT1)}")
        a(f"s_lshl_b32 {S(sT0)}, {S(sW)}, 5")
        q = self.aE1r
        a(f"v_add_u32 {R(q)}, {S(sT0)}, {R(Li)}")
        a(f"v_cmp_eq_u32 vcc, 0, {R(q)}")
        a(f"v_cmp_lt_u32 s[4:5], 1, {R(G)}")
        a(f"v_sub_u32 {R(c)}, 256, {R(q)}")
        a(f"v_add_u32 {R(q + 1)}, 16, {R(q)}")
        a(f"v_add_u32 {R(u)}, -16, {R(c)}")
        a(f"v_mov_b32 {R(T)}, 128")
        a(f"v_cndmask_b32 {R(c)}, {R(c)}, {R(T)}, vcc")
        a(f"v_cndmask_b32 {R(q)}, {R(q)}, {R(c)}, s[4:5]")
        a(f"v_cndmask_b32 {R(q + 1)}, {R(q + 1)}, {R(u)}, s[4:5]")
        a(f"v_cmp_eq_u32 vcc, 0, {R(Li)}")
        a(f"v_add_lshl_u32 {R(q)}, {R(q)}, {R(hh)}, 4")
        a(f"v_add_lshl_u32 {R(q + 1)}, {R(q + 1)}, {R(hh)}, 4")
        a(f"v_mov_b32 {R(T)}, {fl(16.0)}")
        a(f"v_cndmask_b32 {R(self.v16)}, 0, {R(T)}, vcc")
        va.free(c, hh, u)
        self.ST = va(8, "ST"); self.vMu = va(1, "mu")
        for i in range(4): a(f"v_mov_b32 {R(self.ST + i)}, 0")
        a(f"s_lshl_b32 {S(sT0)}, {S(sW)}, 16\ns_lshl_b32 {S(sT1)}, s2, 7\ns_add_u32 {S(sOff + 2)}, {S(sT0)}, {S(sT1)}\ns_add_u32 {S(sOff + 3)}, {S(sOff + 2)}, 32768")
    def tags(self):
        a = self.a; va = self.va; Li, G = self.vLi, self.vG
        self.TG = va(4, "TG", 1); self.TG2 = va(1, "TG2"); u = self.vEp; T = self.vPf
        a(f"v_readfirstlane_b32 {S(sEp)}, {R(self.vEp)}")
        a(f"v_and_b32 {R(u)}, 1, {R(G)}")
        a(f"v_lshlrev_b32 {R(u)}, 4, {R(u)}")
        a(f"s_add_u32 {S(sT2)}, {S(sEp)}, 1\ns_and_b32 {S(sT2)}, {S(sT2)}, 15")
        a(f"s_and_b32 {S(sEp)}, {S(sEp)}, 0xfffffff0")
        a(f"s_and_b32 {S(sCnt)}, {S(sEp)}, 0xfffeffff\ns_or_b32 {S(sCnt)}, {S(sCnt)}, 0x00100010")
        a(f"s_or_b32 {S(sEp)}, {S(sEp)}, {S(sT2)}")
        a(f"s_mul_i32 {S(sT2)}, {S(sT2)}, 0x01010101")
        a(f"s_and_b32 {S(sU0)}, {S(sCnt)}, 0x0f0f0f0f\ns_add_u32 {S(sU0)}, {S(sU0)}, {S(sT2)}\ns_and_b32 {S(sU0)}, {S(sU0)}, 0x0f0f0f0f")
        a(f"s_lshr_b32 {S(sCnt)}, {S(sCnt)}, 4\ns_and_b32 {S(sCnt)}, {S(sCnt)}, 0x0f0f0f0f\ns_add_u32 {S(sCnt)}, {S(sCnt)}, {S(sT2)}\ns_and_b32 {S(sCnt)}, {S(sCnt)}, 0x0f0f0f0f")
        a(f"s_lshl_b32 {S(sCnt)}, {S(sCnt)}, 4\ns_or_b32 {S(sCnt)}, {S(sCnt)}, {S(sU0)}")
        a(f"v_bfe_u32 {R(u)}, {S(sCnt)}, {R(u)}, 16")
        a(f"v_and_b32 {R(T)}, 7, {R(Li)}")
        a(f"v_lshlrev_b32 {R(T)}, 2, {R(T)}")
        a(f"v_lshl_or_b32 {R(self.TG)}, {R(u)}, 14, {R(u)}")
        a(f"v_bfe_u32 {R(T)}, {S(sCnt)}, {R(T)}, 4")
        for r in range(1, 4): a(f"v_lshrrev_b32 {R(self.TG + r)}, {4 * r}, {R(self.TG)}")
        a(f"v_lshl_or_b32 {R(T)}, {R(T)}, 14, {R(T)}")
        a(f"v_and_b32 {R(self.TG2)}, {S(sMask)}, {R(T)}")
        self.later_free = [self.vEp, self.vPf]
    def p1(self):
        a = self.a; va = self.va; X = self.X; M = self.M; M2 = self.M2; ST = self.ST
        D = va(16, "D"); E = va(16, "E"); cs = va(8, "cs")
        for rho in range(2):
            for ri in range(2):
                a(f"v_mfma_f32_16x16x32_bf16 {R(D + 8 * rho + 4 * ri, 4)}, {R(X + 4 * rho, 4)}, {R(M + 4 * ri, 4)}, 0")
        self.stamp("x_in")
        st = a.capture(self.stats, X, ST, 1.0, self.v16)
        tg = a.capture(self.tags)
        a.run(spread(st, (tg, 16, len(st)), (self.plist("p1_a"), 16, len(st))))
        va.free(*self.later_free)
        for rho in range(2):
            for k in range(0, 8, 2):
                a(f"v_pk_mul_f32 {R(cs + k, 2)}, {R(self.TW + k, 2)}, {R(ST + 2 * rho, 2)} op_sel_hi:[1,0]")
            self.cmul(E + 8 * rho, E + 8 * rho + 4, D + 8 * rho, D + 8 * rho + 4, cs, cs + 4, False, addend=ST + 4 + 2 * rho)
            for r in range(4):
                a(f"v_cvt_pk_f16_f32 {R(X + 4 * rho + r)}, {R(E + 8 * rho + r)}, {R(E + 8 * rho + 4 + r)}")
            for ri in range(2):
                a(f"v_mfma_f32_16x16x32_f16 {R(D + 8 * rho + 4 * ri, 4)}, {R(M2 + 4 * ri, 4)}, {R(X + 4 * rho, 4)}, 0")
        for r in range(4): a(f"v_cvt_pk_f16_f32 {R(E + 2 * r)}, {R(D + r)}, {R(D + 4 + r)}")
        if getattr(self, 'tokclr', None): a.wait_vm(self.tokclr)
        for r in range(4):
            a(f"v_cvt_pk_f16_f32 {R(E + 2 * r + 1)}, {R(D + 8 + r)}, {R(D + 12 + r)}")
            a(f"ds_write_b64 {R(self.aE1w)}, {R(E + 2 * r, 2)} offset:{256 * r}")
        a.wait_lg_all(); self.bar("b1")
        for t in range(2):
            a(f"ds_read_b128 {R(X + 4 * t, 4)}, {R(self.aE1r + t)}")
        for t in range(2):
            for ri in range(2):
                a(f"v_mfma_f32_16x16x32_f16 {R(D + 8 * t + 4 * ri, 4)}, {R(X + 4 * t, 4)}, {R(self.Gm + 4 * ri, 4)}, 0")
        for t in range(2):
            for r in range(4):
                a(f"v_cvt_pk_f16_f32 {R(E + 4 * t + r)}, {R(D + 8 * t + r)}, {R(D + 8 * t + 4 + r)}")
            for r in range(4):
                a(f"v_bfi_b32 {R(E + 4 * t + r)}, {S(sMask)}, {R(self.TG + r)}, {R(E + 4 * t + r)}")
            a(f"buffer_store_dwordx4 {R(E + 4 * t, 4)}, {R(self.aZ1)}, {S(sWS, 4)}, {S(sOff + 2 + t)} offen sc1")
        self.stamp("z1_st")
        va.free(D, E, cs, X, self.Gm, self.aE1w, self.aE1r, self.aZ1, self.v16, self.TG)
    def tables_p2a(self):
        a = self.a; va = self.va; Li, G, T = self.vLi, self.vG, self.vT
        self.M1 = self.vb(16, "M1")
        ka = va(1, "ka"); f0 = va(1, "f0"); c = va(2, "c", 1); s = va(2, "s", 1)
        a(f"s_and_b32 {S(sT0)}, {S(sM)}, 1\ns_lshl_b32 {S(sT1)}, {S(sW)}, 2")
        a(f"v_and_or_b32 {R(ka)}, {R(Li)}, 14, {S(sT0)}")
        a(f"v_lshl_add_u32 {R(f0)}, {R(G)}, 6, {S(sT1)}")
        a(f"v_and_b32 {R(T)}, 1, {R(Li)}")
        a(f"v_lshlrev_b32 {R(T)}, 6, {R(T)}")
        a(f"v_mad_u32_u24 {R(f0)}, {R(f0)}, {R(ka)}, {R(T)}")
        a(f"v_and_b32 {R(f0)}, 255, {R(f0)}")
        a(f"v_cvt_f32_u32 {R(ka)}, {R(ka)}")
        a(f"v_cvt_f32_u32 {R(f0)}, {R(f0)}")
        a(f"v_mul_f32 {R(f0)}, {fl(1 / 256)}, {R(f0)}")
        for n in range(17):
            if n < 16:
                be, r = n >> 2, n & 3
                if n: a(f"v_fmamk_f32 {R(T)}, {R(ka)}, {fl(be / 256 + r / 16)}, {R(f0)}")
                self.sincos(c + (n & 1), s + (n & 1), T if n else f0)
            if n: a(f"v_cvt_pk_f16_f32 {R(self.M1 + n - 1)}, {R(c + ((n - 1) & 1))}, {R(s + ((n - 1) & 1))}")
        va.free(ka, f0, c, s)
    def tables_p2b(self):
        a = self.a; va = self.va; Li, G, T = self.vLi, self.vG, self.vT
        self.M5 = self.vb(16, "M5")
        b = va(1, "b"); st = va(1, "st"); f0 = va(1, "f0"); c = va(1, "c"); s = va(1, "s"); ih = va(1, "ih")
        a(f"s_and_b32 {S(sT0)}, {S(sM)}, 1\ns_lshl_b32 {S(sT1)}, {S(sW)}, 2")
        a(f"v_and_or_b32 {R(b)}, {R(Li)}, 1, {S(sT1)}")
        a(f"v_and_b32 {R(ih)}, 1, {R(G)}")
        a(f"v_lshlrev_b32 {R(ih)}, 2, {R(ih)}")
        for t in range(2):
            if t: a(f"v_add_u32 {R(b)}, 2, {R(b)}")
            a(f"v_and_b32 {R(st)}, 14, {R(Li)}")
            a(f"v_lshl_add_u32 {R(st)}, {R(st)}, 3, {R(b)}")
            a(f"v_lshlrev_b32 {R(st)}, 1, {R(st)}")
            a(f"v_mul_u32_u24 {R(f0)}, {S(sT0)}, {R(b)}")
            a(f"v_mad_u32_u24 {R(f0)}, {R(ih)}, {R(st)}, {R(f0)}")
            a(f"v_cvt_f32_u32 {R(st)}, {R(st)}")
            a(f"v_cvt_f32_u32 {R(f0)}, {R(f0)}")
            a(f"v_mul_f32 {R(f0)}, {fl(1 / 256)}, {R(f0)}")
            for r in range(4):
                if r: a(f"v_fmamk_f32 {R(f0)}, {R(st)}, {fl(1 / 256)}, {R(f0)}")
                self.sincos(c, s, f0)
                a(f"v_and_b32 {R(c)}, {R(self.vMsk)}, {R(c)}")
                a(f"v_and_b32 {R(s)}, {R(self.vMsk)}, {R(s)}")
                a(f"v_cvt_pk_bf16_f32 {R(self.M5 + 8 * t + r)}, {R(c)}, -{R(s)}")
                a(f"v_cvt_pk_bf16_f32 {R(self.M5 + 8 * t + 4 + r)}, {R(s)}, {R(c)}")
        va.free(b, st, f0, c, s, ih, self.vMsk)
    def addr_g1(self):
        a = self.a; va = self.va; Li, G, T = self.vLi, self.vG, self.vT
        self.aG1 = va(1, "aG1"); self.aG2 = va(1, "aG2")
        a(f"v_lshlrev_b32 {R(T)}, 2, {R(Li)}")
        a(f"v_lshl_add_u32 {R(self.aG2)}, {R(G)}, 9, {R(T)}")
        a(f"v_lshrrev_b32 {R(T)}, 1, {R(G)}")
        a(f"v_mul_u32_u24 {R(T)}, {16384 - 1024}, {R(T)}")
        a(f"v_add_u32 {R(self.aG1)}, {R(T)}, {R(self.aG2)}")
        a(f"s_lshr_b32 {S(sT0)}, {S(sN)}, 2\ns_lshl_b32 {S(sT0)}, {S(sT0)}, 15\ns_lshl_b32 {S(sT1)}, {S(sW)}, 12\ns_add_u32 {S(sT0)}, {S(sT0)}, {S(sT1)}")
        a(f"s_and_b32 {S(sT1)}, {S(sM)}, 2\ns_lshl_b32 {S(sT1)}, {S(sT1)}, 5\ns_add_u32 {S(sOff + 4)}, {S(sT0)}, {S(sT1)}")
    def addr_p2(self):
        a = self.a; va = self.va; Li, G, T = self.vLi, self.vG, self.vT
        self.aE2w = va(1, "aE2w"); self.aE2r = va(1, "aE2r"); self.aE3w = va(1, "aE3w"); self.aE3r = va(1, "aE3r"); self.aZ2 = va(1, "aZ2")
        p = va(1, "p"); h = va(1, "h"); o = va(1, "o")
        a(f"v_lshrrev_b32 {R(h)}, 1, {R(Li)}")
        a(f"v_and_b32 {R(o)}, 1, {R(Li)}")
        a(f"s_lshl_b32 {S(sT0)}, {S(sW)}, 11\ns_add_u32 {S(sT0)}, {S(sT0)}, {EB}")
        a(f"v_and_b32 {R(T)}, 8, {R(Li)}")
        a(f"v_add_lshl_u32 {R(p)}, {R(T)}, {R(Li)}, 4")
        a(f"v_lshl_add_u32 {R(p)}, {R(G)}, 9, {R(p)}")
        a(f"v_add_u32 {R(self.aE2w)}, {S(sT0)}, {R(p)}")
        a(f"s_lshl_b32 {S(sT0)}, {S(sW)}, 9\ns_add_u32 {S(sT0)}, {S(sT0)}, {EB}")
        a(f"v_lshl_add_u32 {R(p)}, {R(G)}, 11, {S(sT0)}")
        a(f"v_lshl_add_u32 {R(p)}, {R(o)}, 7, {R(p)}")
        a(f"v_lshl_add_u32 {R(self.aE2r)}, {R(h)}, 4, {R(p)}")
        a(f"s_lshr_b32 {S(sT0)}, {S(sW)}, 1\ns_lshl_b32 {S(sT0)}, {S(sT0)}, 8\ns_and_b32 {S(sT1)}, {S(sW)}, 1\ns_lshl_b32 {S(sT1)}, {S(sT1)}, 3")
        a(f"s_add_u32 {S(sT0)}, {S(sT0)}, {S(sT1)}\ns_add_u32 {S(sT0)}, {S(sT0)}, {EA}")
        a(f"v_mul_u32_u24 {R(p)}, 528, {R(Li)}")
        a(f"v_lshl_add_u32 {R(p)}, {R(G)}, 5, {R(p)}")
        a(f"v_add_u32 {R(self.aE3w)}, {S(sT0)}, {R(p)}")
        a(f"s_mul_i32 {S(sT0)}, {S(sW)}, {4 * 528}\ns_add_u32 {S(sT0)}, {S(sT0)}, {EA}")
        a(f"v_lshrrev_b32 {R(T)}, 1, {R(G)}")
        a(f"v_lshl_add_u32 {R(p)}, {R(T)}, 4, {S(sT0)}")
        a(f"v_add_u32 {R(self.aE3r)}, {R(self.vL16)}, {R(p)}")
        a(f"v_lshlrev_b32 {R(p)}, 18, {R(h)}")
        a(f"v_lshl_add_u32 {R(p)}, {R(o)}, 6, {R(p)}")
        a(f"v_lshl_add_u32 {R(self.aZ2)}, {R(G)}, 4, {R(p)}")
        va.free(p, h, o)
        a(f"s_lshl_b32 {S(sT0)}, {S(sW)}, 16\ns_lshl_b32 {S(sT1)}, s2, 7\ns_add_u32 {S(sT0)}, {S(sT0)}, {S(sT1)}")
        a(f"s_add_u32 {S(sOff + 6)}, {S(sT0)}, {Z2}\ns_add_u32 {S(sOff + 7)}, {S(sT0)}, {Z2 + 32768}")
        a(f"s_or_b32 {S(sT0)}, s2, {S(sW)}\ns_cmp_lg_u32 {S(sT0)}, 0\ns_cselect_b32 {S(sOff + 8)}, 2.0, {EPO}")
    def p2_gather(self):
        a = self.a; va = self.va
        self.Y = va(16, "Y")
        self.g1 = [f"buffer_load_dword {R(self.Y + 4 * be + r)}, {R(self.aG1)}, {S(sWS, 4)}, {S(sOff + 4)} offen offset:{1024 * be + 128 * r} sc1"
                   for be in range(4) for r in range(4)]
        self.stamp("g1")
        for l in self.g1: a(l)
    def p2(self):
        a = self.a; va = self.va; Y = self.Y; M = self.M; M2 = self.M2; T = self.vT
        D = va(16, "D"); E = va(16, "E")
        def chk():
            for be in range(4):
                for i in range(4 * be, 4 * be + 4): a(f"v_xor_b32 {R(Y + i)}, {R(self.TG2)}, {R(Y + i)}")
                if be == 0: a(f"v_or_b32 {R(T)}, {R(Y)}, {R(Y + 1)}")
                else: a(f"v_or3_b32 {R(T)}, {R(T)}, {R(Y + 4 * be)}, {R(Y + 4 * be + 1)}")
                a(f"v_or3_b32 {R(T)}, {R(T)}, {R(Y + 4 * be + 2)}, {R(Y + 4 * be + 3)}")
                a(f"v_mfma_f32_16x16x32_f16 {R(D + 4 * be, 4)}, {R(self.M1 + 4 * be, 4)}, {R(Y + 4 * be, 4)}, 0")
            a(f"v_and_b32 {R(T)}, {S(sMask)}, {R(T)}")
            a(f"v_cmp_ne_u32 vcc, 0, {R(T)}")
        def bad(q, sd):
            a(f"v_or3_b32 {R(T)}, {R(Y + 4 * q)}, {R(Y + 4 * q + 1)}, {R(Y + 4 * q + 2)}")
            a(f"v_bitop3_b32 {R(T)}, {R(T)}, {R(Y + 4 * q + 3)}, {S(sMask)} bitop3:0xa8")
            a(f"v_cmp_ne_u32 {sd}, 0, {R(T)}")
        TG2 = self.TG2; M1 = self.M1
        def post(q):
            for i in range(4 * q, 4 * q + 4): a(f"v_xor_b32 {R(Y + i)}, {R(TG2)}, {R(Y + i)}")
        def redo():
            for be in range(4): a(f"v_mfma_f32_16x16x32_f16 {R(D + 4 * be, 4)}, {R(M1 + 4 * be, 4)}, {R(Y + 4 * be, 4)}, 0")
        if self.cfg.get("sel", 0): self.poll_sel("z1", self.g1, chk, bad, post, redo)
        else: self.poll("z1", self.g1, chk)
        self.stamp("z1_in")
        for ip in range(2):
            for be in range(4):
                a(f"v_cvt_pk_f16_f32 {R(E + 4 * ip + be)}, {R(D + 4 * be + 2 * ip)}, {R(D + 4 * be + 2 * ip + 1)}")
            a(f"ds_write_b128 {R(self.aE2w)}, {R(E + 4 * ip, 4)} offset:{128 * ip}")
        self.point("p2_a")
        a.wait_lg_all(); self.bar("b2")
        for uv in range(2):
            a(f"ds_read_b128 {R(Y + 4 * uv, 4)}, {R(self.aE2r)} offset:{256 * uv}")
        self.CF = va(24, "CF")
        for i in range(6): a(f"ds_read_b128 {R(self.CF + 4 * i, 4)}, {R(self.aHf)} offset:{4096 + 1024 * i}")
        a(f"v_mov_b32 {R(T)}, {S(sEp)}")
        a(f"buffer_store_dword {R(T)}, {R(self.vZero)}, {S(sWS, 4)}, {S(sOff + 8)} offen sc1")
        a(f"v_mov_b32 {R(E)}, {S(sStg)}")
        a(f"ds_write_b32 {R(E)}, {R(T)} offset:15364")
        self.point("p2_b")
        for uv in range(2):
            for ri in range(2):
                a(f"v_mfma_f32_16x16x32_f16 {R(D + 8 * uv + 4 * ri, 4)}, {R(M2 + 4 * ri, 4)}, {R(Y + 4 * uv, 4)}, 0")
        self.point("p2_c")
        Ur, Ui, Vr, Vi = D, D + 4, D + 8, D + 12
        A1r, A1i, Br, Bi, A2r, A2i = (self.CF + 4 * i for i in range(6))
        neg = " neg_lo:[0,1,0] neg_hi:[0,1,0]"; neg2 = " neg_lo:[0,1] neg_hi:[0,1]"
        terms = [(E, [(Ur, A1r, 0), (Ui, A1i, 1), (Vr, Br, 0), (Vi, Bi, 1)]),
                 (E + 4, [(Ur, A1i, 0), (Ui, A1r, 0), (Vr, Bi, 0), (Vi, Br, 0)]),
                 (E + 8, [(Ur, Br, 1), (Ui, Bi, 0), (Vr, A2r, 0), (Vi, A2i, 1)]),
                 (E + 12, [(Ur, Bi, 1), (Ui, Br, 1), (Vr, A2i, 0), (Vi, A2r, 0)])]
        def mix(tm, step):
            for o, tl in tm:
                x, cf, ng = tl[step]
                for k in (0, 2):
                    if step == 0: a(f"v_pk_mul_f32 {R(o + k, 2)}, {R(x + k, 2)}, {R(cf + k, 2)}" + (neg2 if ng else ""))
                    else: a(f"v_pk_fma_f32 {R(o + k, 2)}, {R(x + k, 2)}, {R(cf + k, 2)}, {R(o + k, 2)}" + (neg if ng else ""))
        D2 = Y + 8
        for step in range(2): mix(terms, step)
        for uv in range(2):
            for step in (2, 3): mix(terms[2 * uv:2 * uv + 2], step)
            for r in range(4):
                a(f"v_cvt_pk_bf16_f32 {R(Y + 4 * uv + r)}, {R(E + 8 * uv + 4 + r)}, {R(E + 8 * uv + r)}")
            dst = D2 if uv == 0 else D
            for ri in range(2):
                a(f"v_mfma_f32_16x16x32_bf16 {R(dst + 4 * ri, 4)}, {R(Y + 4 * uv, 4)}, {R(M + 4 * (1 - ri), 4)}, 0")
        for uv in range(2):
            dst = D2 if uv == 0 else D
            for sp in range(2):
                for r in (2 * sp, 2 * sp + 1):
                    a(f"v_cvt_pk_bf16_f32 {R(E + 4 * uv + r)}, {R(dst + r)}, {R(dst + 4 + r)}")
                a(f"ds_write_b64 {R(self.aE3w)}, {R(E + 4 * uv + 2 * sp, 2)} offset:{128 * uv + 16 * sp}")
        self.point("p2_d")
        a.wait_lg_all(); self.bar("b3")
        for t in range(2):
            a(f"ds_read_b128 {R(Y + 4 * t, 4)}, {R(self.aE3r)} offset:{1056 * t}")
        for t in range(2):
            for ri in range(2):
                a(f"v_mfma_f32_16x16x32_bf16 {R(D + 8 * t + 4 * ri, 4)}, {R(Y + 4 * t, 4)}, {R(self.M5 + 8 * t + 4 * ri, 4)}, 0")
        for t in range(2):
            for r in range(4):
                a(f"v_cvt_pk_bf16_f32 {R(E + 4 * t + r)}, {R(D + 8 * t + r)}, {R(D + 8 * t + 4 + r)}")
            a(f"buffer_store_dwordx4 {R(E + 4 * t, 4)}, {R(self.aZ2)}, {S(sWS, 4)}, {S(sOff + 6 + t)} offen sc1")
        self.stamp("z2_st")
        self.vb.free(self.CF, self.M1, self.M5)
        va.free(D, E, Y, self.M2, self.TG2, self.aG1, self.aE2w, self.aE2r, self.aE3w, self.aE3r, self.aZ2)
    def xnat_load(self):
        a = self.a; va = self.va
        self.XN = va(8, "XN"); self.vNat = va(1, "nat")
        a(f"v_lshlrev_b32 {R(self.vNat)}, 6, {R(self.vLi)}")
        a(f"v_lshl_add_u32 {R(self.vNat)}, {R(self.vG)}, 4, {R(self.vNat)}")
        for rho in range(2):
            a(f"buffer_load_dwordx4 {R(self.XN + 4 * rho, 4)}, {R(self.vNat)}, {S(sX, 4)}, {S(sOff + rho)} offen")
    def addr_g2(self):
        a = self.a
        a(f"s_bfe_u32 {S(sT0)}, {S(sS2)}, 0x60001\ns_lshl_b32 {S(sT0)}, {S(sT0)}, 15\ns_lshl_b32 {S(sT1)}, {S(sW)}, 13\ns_add_u32 {S(sT0)}, {S(sT0)}, {S(sT1)}")
        a(f"s_and_b32 {S(sT1)}, {S(sM)}, 1\ns_lshl_b32 {S(sT1)}, {S(sT1)}, 6\ns_add_u32 {S(sT0)}, {S(sT0)}, {S(sT1)}")
        a(f"s_add_u32 {S(sOff + 4)}, {S(sT0)}, {Z2}\ns_add_u32 {S(sOff + 5)}, {S(sT0)}, {Z2 + 4096}")
    def tables_p3(self):
        a = self.a; va = self.va; Li, G, T = self.vLi, self.vG, self.vT
        self.M4 = va(8, "M4"); self.Gi = va(4, "Gi"); self.vEps = va(1, "eps")
        self.aE4w = va(4, "aE4w", 1); self.aE4r = va(2, "aE4r", 1)
        p = va(1, "p"); c = va(1, "c"); s = va(1, "s"); u = va(1, "u")
        a(f"v_lshrrev_b32 {R(u)}, 1, {R(Li)}")
        a(f"v_lshl_add_u32 {R(u)}, {R(u)}, 8, {S(sS2)}")
        a(f"v_and_b32 {R(T)}, 1, {R(G)}")
        a(f"v_mul_u32_u24 {R(p)}, {R(u)}, {R(T)}")
        a(f"s_lshr_b32 {S(sT0)}, {S(sS2)}, 4\ns_lshl_b32 {S(sT0)}, {S(sT0)}, 4")
        a(f"v_and_b32 {R(c)}, 2, {R(G)}")
        a(f"v_mad_u32_u24 {R(p)}, {R(c)}, {S(sT0)}, {R(p)}")
        a(f"v_and_b32 {R(T)}, 1, {R(Li)}")
        a(f"v_lshlrev_b32 {R(T)}, 7, {R(T)}")
        a(f"v_sub_u32 {R(p)}, {R(T)}, {R(p)}")
        a(f"v_and_b32 {R(p)}, 511, {R(p)}")
        a(f"v_cvt_f32_u32 {R(u)}, {R(u)}")
        a(f"v_cvt_f32_u32 {R(p)}, {R(p)}")
        a(f"v_lshlrev_b32 {R(c)}, 14, {R(c)}")
        a(f"v_mul_f32 {R(p)}, {fl(1 / 512)}, {R(p)}")
        for i in range(8): a(f"v_xor_b32 {R(self.M4 + i)}, {R(c)}, {R(self.M + i)}")
        for r in range(4):
            self.sincos(c, s, p)
            if r < 3: a(f"v_fmamk_f32 {R(p)}, {R(u)}, {fl(-1 / 2048)}, {R(p)}")
            a(f"v_cvt_pk_bf16_f32 {R(self.Gi + r)}, {R(c)}, {R(s)}")
        a(f"v_mul_u32_u24 {R(u)}, {ARW + 64}, {R(G)}")
        a(f"v_add_u32 {R(u)}, {AR}, {R(u)}")
        a(f"s_lshl_b32 {S(sT0)}, {S(sW)}, 5")
        a(f"v_and_or_b32 {R(p)}, {R(Li)}, 7, {S(sT0)}")
        a(f"v_cmp_lt_u32 s[4:5], 7, {R(Li)}")
        a(f"v_cmp_eq_u32 vcc, 0, {R(p)}")
        a(f"v_sub_u32 {R(c)}, 256, {R(p)}")
        a(f"v_mov_b32 {R(T)}, 128")
        for t in range(4):
            q = self.aE4w + t
            if t:
                a(f"v_add_u32 {R(p)}, 8, {R(p)}\nv_add_u32 {R(c)}, -8, {R(c)}")
                a(f"v_cndmask_b32 {R(q)}, {R(p)}, {R(c)}, s[4:5]")
            else:
                a(f"v_cndmask_b32 {R(T)}, {R(c)}, {R(T)}, vcc")
                a(f"v_cndmask_b32 {R(q)}, {R(p)}, {R(T)}, s[4:5]")
            a(f"v_lshrrev_b32 {R(T)}, 6, {R(q)}")
            a(f"v_lshl_add_u32 {R(q)}, {R(T)}, 4, {R(q)}")
            a(f"v_lshl_add_u32 {R(q)}, {R(q)}, 2, {R(u)}")
        a(f"s_mul_i32 {S(sT0)}, {S(sW)}, {ARW + 64}\ns_add_u32 {S(sT0)}, {S(sT0)}, {AR}")
        a(f"v_mul_u32_u24 {R(p)}, 320, {R(G)}")
        a(f"v_lshl_add_u32 {R(p)}, {R(Li)}, 2, {R(p)}")
        a(f"v_add_u32 {R(self.aE4r)}, {S(sT0)}, {R(p)}")
        a(f"v_add_u32 {R(self.aE4r + 1)}, 1280, {R(self.aE4r)}")
        va.free(p, c, s, u)
        for i in range(4): a(f"v_mov_b32 {R(self.ST + i)}, 0")
        a(f"v_mov_b32 {R(self.vEps)}, {fl(1e-5 / 1.4426950408889634 ** 2)}")
        a(f"s_add_u32 {S(sOff + 6)}, {S(sOwn)}, {HN}\ns_lshr_b32 {S(sOff + 7)}, {S(sOwn)}, 6\ns_add_u32 {S(sOff + 7)}, {S(sOff + 7)}, {HH}")
    def xnat_unpack(self):
        a = self.a; va = self.va
        self.XC = va(16, "XC")
        for rho in range(2):
            for r in range(4):
                a(f"v_lshlrev_b32 {R(self.XC + 8 * rho + r)}, 16, {R(self.XN + 4 * rho + r)}")
                a(f"v_and_b32 {R(self.XC + 8 * rho + 4 + r)}, 0xffff0000, {R(self.XN + 4 * rho + r)}")
        va.free(self.XN)
    def p3_gather(self):
        a = self.a; va = self.va
        self.Y = va(16, "Y")
        self.g2 = [f"buffer_load_dword {R(self.Y + 4 * t + r)}, {R(self.aG2)}, {S(sWS, 4)}, {S(sOff + 4 + (t >> 1))} offen offset:{(t & 1) * 2048 + 128 * r} sc1"
                   for t in range(4) for r in range(4)]
        self.stamp("g2")
        for l in self.g2: a(l)
    def p3(self):
        a = self.a; va = self.va; Y = self.Y; M = self.M; M4 = self.M4; ST = self.ST; XC = self.XC; T = self.vT
        D = va(16, "D"); E = va(16, "E")
        def chk():
            for t in range(4):
                a(f"v_mfma_f32_16x16x32_bf16 {R(D + 4 * t, 4)}, {R(self.Gi, 4)}, {R(Y + 4 * t, 4)}, 0")
                if t == 0: a(f"v_max_u32 {R(T)}, {R(Y)}, {R(Y + 1)}")
                else: a(f"v_max3_u32 {R(T)}, {R(T)}, {R(Y + 4 * t)}, {R(Y + 4 * t + 1)}")
                a(f"v_max3_u32 {R(T)}, {R(T)}, {R(Y + 4 * t + 2)}, {R(Y + 4 * t + 3)}")
            a(f"v_cmp_eq_u32 vcc, -1, {R(T)}")
        def bad(q, sd):
            a(f"v_max3_u32 {R(T)}, {R(Y + 4 * q)}, {R(Y + 4 * q + 1)}, {R(Y + 4 * q + 2)}")
            a(f"v_max_u32 {R(T)}, {R(T)}, {R(Y + 4 * q + 3)}")
            a(f"v_cmp_eq_u32 {sd}, -1, {R(T)}")
        Gi = self.Gi
        def redo():
            for t in range(4): a(f"v_mfma_f32_16x16x32_bf16 {R(D + 4 * t, 4)}, {R(Gi, 4)}, {R(Y + 4 * t, 4)}, 0")
        if self.cfg.get("sel", 0): self.poll_sel("z2", self.g2, chk, bad, None, redo)
        else: self.poll("z2", self.g2, chk)
        self.stamp("z2_in")
        for t in range(4):
            a(f"v_cvt_pk_bf16_f32 {R(E + 2 * t)}, {R(D + 4 * t + 1)}, {R(D + 4 * t)}")
            a(f"v_cvt_pk_bf16_f32 {R(E + 2 * t + 1)}, {R(D + 4 * t + 3)}, {R(D + 4 * t + 2)}")
            a(f"ds_write2st64_b32 {R(self.aE4w + t)}, {R(E + 2 * t)}, {R(E + 2 * t + 1)} offset0:0 offset1:5")
        self.point("p3_a")
        a.wait_lg_all(); self.bar("b4")
        for rho in range(2):
            for h in range(2):
                tk = a(f"ds_read2_b32 {R(Y + 4 * rho + 2 * h, 2)}, {R(self.aE4r + rho)} offset0:{32 * h} offset1:{32 * h + 16}")
        self.stg_used.remove((0, 10240)); self.stg_pend.append((0, 10240, tk))
        self.point("p3_b")
        for rho in range(2):
            for ri in range(2):
                a(f"v_mfma_f32_16x16x32_bf16 {R(D + 8 * rho + 4 * ri, 4)}, {R(Y + 4 * rho, 4)}, {R(M4 + 4 * (1 - ri), 4)}, 0")
        self.point("p3_c")
        for rho in range(2):
            self.cmul(E + 8 * rho, E + 8 * rho + 4, D + 8 * rho, D + 8 * rho + 4, self.TW, self.TW + 4, True)
            for r in range(4):
                a(f"v_cvt_pk_bf16_f32 {R(Y + 4 * rho + r)}, {R(E + 8 * rho + 4 + r)}, {R(E + 8 * rho + r)}")
            for ri in range(2):
                q = XC + 8 * rho + 4 * ri
                a(f"v_mfma_f32_16x16x32_bf16 {R(q, 4)}, {R(Y + 4 * rho, 4)}, {R(M + 4 * (1 - ri), 4)}, {R(q, 4)}")
        st = a.capture(self.stats, D, ST, 1.4426950408889634, None)
        cv = [[f"v_cvt_pk_bf16_f32 {R(D + 4 * rho + r)}, {R(XC + 8 * rho + r)}, {R(XC + 8 * rho + 4 + r)}" for r in range(4)] for rho in range(2)]
        a.run(cv[0] + st[:8] + cv[1] + st[8:16])
        a.run(spread(st[16:], (self.plist("p3_d"), 0, len(st) - 16)))
        self.point("p3_e")
        for rho in range(2):
            for k in range(0, 8, 2):
                q = XC + 8 * rho + k
                a(f"v_pk_fma_f32 {R(q, 2)}, {R(q, 2)}, {R(ST + 2 * rho, 2)}, {R(ST + 4 + 2 * rho, 2)} op_sel_hi:[1,0,0] neg_lo:[0,0,1] neg_hi:[0,0,1]")
            for r in range(4):
                a(f"v_cvt_pk_bf16_f32 {R(E + 4 * rho + r)}, {R(XC + 8 * rho + r)}, {R(XC + 8 * rho + 4 + r)}")
            a(f"buffer_store_dwordx4 {R(E + 4 * rho, 4)}, {R(self.vNat)}, {S(sWS, 4)}, {S(sOff + 6)} offen offset:{1024 * rho} sc1")
        self.stamp("hn_st")
        a(f"v_cmp_gt_u32 vcc, 32, {R(self.vL)}")
        a(f"v_and_b32 {R(T)}, 31, {R(self.vL)}")
        a(f"v_mov_b32 {R(D + 2)}, {S(sEp)}")
        a(f"v_cndmask_b32 {R(D)}, {R(ST + 2)}, {R(ST)}, vcc")
        a(f"v_mov_b32 {R(D + 1)}, {R(self.vMu)}")
        a(f"v_rcp_f32 {R(D)}, {R(D)}")
        a(f"v_lshlrev_b32 {R(T)}, 25, {R(T)}")
        a(f"v_lshrrev_b32 {R(D + 3)}, 1, {R(self.vL)}")
        a(f"v_or_b32 {R(T)}, {R(T)}, {R(D + 3)}")
        a(f"buffer_store_dwordx4 {R(D, 4)}, {R(T)}, {S(sWS, 4)}, {S(sOff + 7)} offen sc1")
        va.free(D, E, Y, XC, ST, self.M, self.M4, self.TW, self.Gi, self.aE4w, self.aE4r, self.aG2, self.vNat, self.vEps, self.vMu)
    def tables_w1(self):
        a = self.a; va = self.va; L, Li, G, T = self.vL, self.vLi, self.vG, self.vT
        rho = va(1, "rho"); ch = va(1, "ch"); u = va(1, "u")
        a(f"s_lshl_b32 {S(sT0)}, {S(sMem)}, 2\ns_add_u32 {S(sT0)}, {S(sT0)}, {S(sW)}\ns_mul_i32 {S(sT0)}, {S(sT0)}, 96")
        a(f"s_and_b32 {S(sT1)}, {S(sW)}, 1\ns_lshl_b32 {S(sT1)}, {S(sT1)}, 1")
        a(f"s_movk_i32 {S(sT2)}, 2752")
        for p in range(3):
            q = self.vW1 + p
            if p: a(f"v_add_u32 {R(u)}, {64 * p}, {R(L)}")
            src = u if p else L
            a(f"v_mul_u32_u24 {R(rho)}, 10923, {R(src)}")
            a(f"v_lshrrev_b32 {R(rho)}, 16, {R(rho)}")
            a(f"v_mad_i32_i24 {R(ch)}, {R(rho)}, -6, {R(src)}")
            a(f"v_add_u32 {R(ch)}, {S(sT1)}, {R(ch)}")
            a(f"v_subrev_u32 {R(u)}, 6, {R(ch)}")
            a(f"v_min_u32 {R(ch)}, {R(ch)}, {R(u)}")
            a(f"v_lshl_add_u32 {R(ch)}, {R(ch)}, 4, {S(sT0)}")
            a(f"v_bfe_u32 {R(u)}, {R(rho)}, 2, 2")
            a(f"v_cmp_gt_u32 vcc, {S(sT2)}, {R(ch)}")
            a(f"v_lshlrev_b32 {R(u)}, 7, {R(u)}")
            a(f"v_and_or_b32 {R(u)}, {R(rho)}, 3, {R(u)}")
            if p:
                a(f"v_lshrrev_b32 {R(rho)}, 4, {R(rho)}")
                a(f"v_lshl_add_u32 {R(u)}, {R(rho)}, 2, {R(u)}")
                a(f"v_subrev_u32 {R(ch)}, {1024 * p}, {R(ch)}")
            a(f"v_mad_u32_u24 {R(q)}, {R(u)}, {S(sT2)}, {R(ch)}")
            a(f"v_cndmask_b32 {R(q)}, 2.0, {R(q)}, vcc")
        a(f"v_lshrrev_b32 {R(u)}, 2, {R(L)}")
        a(f"v_mul_u32_u24 {R(u)}, 96, {R(u)}")
        a(f"v_and_b32 {R(ch)}, 3, {R(L)}")
        a(f"v_lshl_add_u32 {R(ch)}, {R(ch)}, 3, {S(sStg)}")
        a(f"v_add_u32 {R(self.vTr1)}, {R(u)}, {R(ch)}")
        va.free(rho, ch, u)
    def tables_w2(self):
        a = self.a; va = self.va; L, Li, G, T = self.vL, self.vLi, self.vG, self.vT
        rho = va(1, "rho"); ch = va(1, "ch"); u = va(1, "u")
        a(f"s_lshr_b32 {S(sT2)}, {S(sM)}, 3\ns_mul_i32 {S(sT2)}, {S(sT2)}, {self.cfg.get('rot2', 3)}\ns_mul_i32 {S(sT1)}, {S(sK1)}, {self.cfg.get('xrot2', 0)}\ns_add_u32 {S(sT2)}, {S(sT2)}, {S(sT1)}")
        a(f"s_mul_i32 {S(sT1)}, {S(sT2)}, 373\ns_lshr_b32 {S(sT1)}, {S(sT1)}, 12\ns_mul_i32 {S(sT1)}, {S(sT1)}, 11\ns_sub_u32 {S(sT2)}, {S(sT2)}, {S(sT1)}")
        a(f"s_lshl_b32 {S(sT2)}, {S(sT2)}, 10\ns_mul_i32 {S(sT1)}, {S(sW)}, 11264")
        a(f"s_add_u32 {S(sT0)}, {S(sT2)}, {S(sT1)}\ns_add_u32 {S(sT2)}, {S(sT1)}, 11264")
        sal = []
        for i in range(11):
            if i: sal += [f"s_add_u32 {S(sT0)}, {S(sT0)}, 1024", f"s_cmp_eq_u32 {S(sT0)}, {S(sT2)}", f"s_cselect_b32 {S(sT0)}, {S(sT1)}, {S(sT0)}"]
            sal += [f"s_cmp_eq_u32 {S(sT0)}, {43 * 1024}", f"s_cselect_b32 {S(sKap + i)}, 0x1000000, {S(sT0)}"]
        a.run(sal)
        a(f"v_lshlrev_b32 {R(u)}, 1, {R(G)}")
        a(f"v_bitop3_b32 {R(u)}, {R(u)}, {R(L)}, 7 bitop3:0x28")
        a(f"s_lshl_b32 {S(sT0)}, {S(sMem)}, 7")
        a(f"v_lshl_add_u32 {R(u)}, {R(u)}, 4, {S(sT0)}")
        a(f"v_lshrrev_b32 {R(T)}, 3, {R(L)}")
        a(f"v_lshl_add_u32 {R(self.vW2)}, {R(T)}, 10, {R(u)}")
        a(f"v_and_b32 {R(ch)}, 3, {R(L)}")
        a(f"v_lshl_add_u32 {R(ch)}, {R(ch)}, 3, {S(sStg)}")
        a(f"v_bfe_u32 {R(rho)}, {R(L)}, 2, 3")
        a(f"v_bfe_u32 {R(u)}, {R(L)}, 3, 2")
        a(f"v_lshl_add_u32 {R(ch)}, {R(rho)}, 7, {R(ch)}")
        a(f"v_lshrrev_b32 {R(T)}, 5, {R(L)}")
        a(f"v_lshl_add_u32 {R(ch)}, {R(T)}, 11, {R(ch)}")
        for t in range(4):
            if t: a(f"v_xor_b32 {R(T)}, {t}, {R(u)}")
            a(f"v_lshl_add_u32 {R(self.vTr2 + t)}, {R(T if t else u)}, 5, {R(ch)}")
        va.free(rho, ch, u)
    def addr_g3(self):
        a = self.a
        a(f"s_lshr_b32 {S(sT0)}, {S(sN)}, 3\ns_lshl_b32 {S(sT1)}, {S(sT0)}, 16\ns_lshl_b32 {S(sT2)}, {S(sW)}, 12\ns_add_u32 {S(sT0)}, {S(sT1)}, {S(sT2)}")
        for rt in range(4):
            a(f"s_add_u32 {S(sOff + 8 + rt)}, {S(sT0)}, {HN + rt * 16384}")
    def tables_g1(self):
        a = self.a; va = self.va; L, Li, G, T = self.vL, self.vLi, self.vG, self.vT
        a(f"v_mul_u32_u24 {R(T)}, {HROW}, {R(Li)}")
        a(f"v_lshl_add_u32 {R(self.aHr)}, {R(G)}, 8, {R(T)}")
        a(f"s_lshr_b32 {S(sLn2)}, {S(sN)}, 3\ns_mul_i32 {S(sLn2)}, {S(sLn2)}, {HCL}\ns_add_u32 {S(sLn2)}, {S(sLn2)}, {HB}")
        a(f"s_lshl_b32 {S(sT0)}, {S(sMem)}, 2\ns_add_u32 {S(sT0)}, {S(sT0)}, {S(sW)}")
        a(f"s_lshr_b32 {S(sT1)}, {S(sT0)}, 1\ns_mul_i32 {S(sT1)}, {S(sT1)}, 3072\ns_and_b32 {S(sT2)}, {S(sW)}, 1")
        a(f"s_lshl_b32 s4, {S(sT2)}, 11\ns_add_u32 s4, s4, {S(sT1)}\ns_cmp_le_u32 {S(sT0)}, 28\ns_cselect_b32 s4, s4, 2.0")
        a(f"s_lshl_b32 s5, {S(sT2)}, 9\ns_add_u32 s5, s5, {S(sT1)}\ns_add_u32 s5, s5, 1024\ns_cmp_lt_u32 {S(sT0)}, 28\ns_cselect_b32 s5, s5, 2.0")
        a(f"v_cmp_gt_u32 vcc, 32, {R(L)}")
        a(f"v_add_u32 {R(self.aHs)}, s4, {R(self.vL16)}")
        a(f"v_add_u32 {R(self.aHs + 1)}, s5, {R(self.vL16)}")
        a(f"v_cndmask_b32 {R(self.aHs + 1)}, 2.0, {R(self.aHs + 1)}, vcc")
        for rt in range(4): a(f"s_add_u32 {S(sOff + rt)}, {S(sLn2)}, {rt * 45056}")
        a(f"s_mul_i32 {S(sT0)}, {S(sW)}, {ARW}\ns_add_u32 {S(sT0)}, {S(sT0)}, {CUE}")
        a(f"v_mov_b32 v60, {S(sT0)}")
    def tables_epi(self):
        a = self.a; va = self.va; L, Li, G, T = self.vL, self.vLi, self.vG, self.vT
        a(f"v_mbcnt_lo_u32_b32 {R(L)}, -1, 0\nv_mbcnt_hi_u32_b32 {R(L)}, -1, {R(L)}")
        a(f"v_and_b32 {R(Li)}, 15, {R(L)}\nv_lshrrev_b32 {R(G)}, 4, {R(L)}")
        a(f"s_lshl_b32 {S(sS2)}, {S(sK1)}, 4\ns_and_b32 {S(sT0)}, {S(sM)}, 15\ns_or_b32 {S(sS2)}, {S(sS2)}, {S(sT0)}")
        a(f"s_and_b32 {S(sT0)}, s2, 0x80\ns_or_b32 {S(sS2)}, {S(sS2)}, {S(sT0)}")
        a(f"s_mov_b32 {S(sO + 2)}, 0x200000\ns_mov_b32 {S(sO + 3)}, 0x20000")
        a(f"s_lshl_b32 {S(sT0)}, {S(sW)}, 2\ns_mov_b32 {S(sT1)}, {RED[0]}")
        a(f"v_add_u32 {R(self.aRr)}, {S(sT0)}, {R(G)}")
        a(f"v_and_b32 {R(T)}, 7, {R(self.aRr)}")
        a(f"v_xor_b32 {R(T)}, {R(T)}, {R(Li)}")
        a(f"v_lshl_add_u32 {R(T)}, {R(T)}, 4, {S(sT1)}")
        a(f"v_lshl_add_u32 {R(self.aRr)}, {R(self.aRr)}, 8, {R(T)}")
        a(f"s_lshl_b32 {S(sT1)}, {S(sMem)}, 7")
        a(f"v_lshl_add_u32 {R(T)}, {R(Li)}, 3, {S(sT1)}")
        a(f"v_lshl_add_u32 {R(self.aOut)}, {R(G)}, 18, {R(T)}")
        a(f"s_lshl_b32 {S(sT1)}, {S(sRot)}, 4\ns_mul_i32 {S(sT0)}, {S(sW)}, {4 * HROW}")
        a(f"v_xor_b32 {R(T)}, {S(sT1)}, {R(T)}")
        a(f"v_mul_u32_u24 {R(self.aRes)}, {HROW}, {R(G)}")
        a(f"v_add3_u32 {R(self.aRes)}, {R(self.aRes)}, {R(T)}, {S(sT0)}")
        a(f"s_lshr_b32 {S(sT0)}, {S(sN)}, 3\ns_lshl_b32 {S(sT0)}, {S(sT0)}, 10\ns_lshl_b32 {S(sT1)}, {S(sW)}, 6\ns_add_u32 {S(sT0)}, {S(sT0)}, {S(sT1)}\ns_add_u32 {S(sT0)}, {S(sT0)}, {HH}")
        a(f"v_and_b32 {R(T)}, 3, {R(Li)}")
        a(f"v_lshl_add_u32 {R(T)}, {R(T)}, 8, {S(sT0)}")
        a(f"v_lshl_add_u32 {R(self.aSt)}, {R(G)}, 4, {R(T)}")
        a(f"s_and_b32 {S(sT0)}, {S(sS2)}, 0xf8\ns_lshr_b32 {S(sT1)}, {S(sW)}, 1\ns_add_u32 {S(sT0)}, {S(sT0)}, {S(sT1)}\ns_lshl_b32 {S(sT0)}, {S(sT0)}, 10")
        a(f"s_and_b32 {S(sT1)}, {S(sW)}, 1\ns_lshl_b32 {S(sT1)}, {S(sT1)}, 20\ns_add_u32 {S(sOff + 2)}, {S(sT0)}, {S(sT1)}\ns_add_u32 {S(sOff + 3)}, {S(sOff + 2)}, 4096")
        a(f"s_mov_b32 {S(sLn2)}, {fl(math.log(2.0))}")
    def tables_g2(self):
        a = self.a; va = self.va; L, Li, G, T = self.vL, self.vLi, self.vG, self.vT
        a(f"s_mul_i32 {S(sT0)}, {S(sW)}, {4 * HROW}")
        a(f"v_xor_b32 {R(T)}, {S(sRot)}, {R(L)}")
        a(f"v_lshl_add_u32 {R(self.aHw)}, {R(T)}, 4, {S(sT0)}")
        a(f"s_lshr_b32 {S(sHb)}, {S(sN)}, 3\ns_mul_i32 {S(sHb)}, {S(sHb)}, {HCL}\ns_add_u32 {S(sHb)}, {S(sHb)}, {HB}")
        a(f"v_add_u32 {R(self.aHl)}, {S(sHb)}, {R(self.vL16)}")
        for rt in range(1, 4): a(f"v_add_u32 {R(self.aHl + rt)}, {45056 * rt}, {R(self.aHl)}")
        a(f"s_lshl_b32 {S(sT0)}, {S(sW)}, 12\ns_add_u32 {S(sT0)}, {S(sT0)}, {RED[0]}")
        a(f"v_bitop3_b32 {R(T)}, {R(Li)}, {R(G)}, 7 bitop3:0x28")
        a(f"v_lshl_add_u32 {R(T)}, {R(T)}, 4, {S(sT0)}")
        a(f"v_lshl_add_u32 {R(self.aRw)}, {R(Li)}, 8, {R(T)}")
        a(f"v_xor_b32 {R(self.aRw + 1)}, 64, {R(self.aRw)}")
    def hn_gather(self):
        a = self.a; va = self.va
        self.HG = va.at(192, 64, "HG")
        self.g3 = [[f"buffer_load_dwordx4 {R(self.HG + 16 * rt + 4 * n, 4)}, {R(self.vL16)}, {S(sWS, 4)}, {S(sOff + 8 + rt)} offen offset:{1024 * n} sc1"
                    for n in range(4)] for rt in range(4)]
        self.stamp("g3")
        for l in self.g3: a.run(l)
    def hn_stage(self, rt):
        a = self.a
        out = [lambda: self.poll("hn%d" % rt, self.g3[rt], self.check_sentinel([self.HG + 16 * rt + 4 * i for i in range(4)]))]
        def wr(n): self.tokhw = a(f"ds_write_b128 {R(self.aHw)}, {R(self.HG + 16 * rt + 4 * n, 4)} offset:{rt * HTILE + n * HROW}")
        return out + [lambda n=n: wr(n) for n in range(4)]
    def bar_after(self, name):
        def f():
            self.a.wait_lg(getattr(self, name)); self.a("s_barrier")
        return [f]
    def pack(self, mf, fixed, floats, ops, g0, g1):
        n = len(mf)
        slot = [list(fixed.get(g, [])) for g in range(n)]
        for items, units_, f0, f1 in floats:
            for k, x in enumerate(items):
                units = units_
                if isinstance(x, tuple): x, units = x
                g = f0 + (k * (f1 - f0)) // max(len(items), 1)
                if units > 1:
                    last = g if k == 0 else max(g, prev)
                    cand = [q for q in range(last, min(last + 3, n)) if sum(u for _, u in slot[q]) + units <= 3]
                    g = cand[0] if cand else last
                elif k: g = max(g, prev)
                prev = g
                slot[g].append((x, units))
        base = [sum(u for _, u in sl) for sl in slot]
        best = None
        total = sum(o[1] for o in ops)
        for slack in range(0, 8):
            for span in range(min(g1, n) - g0, 8, -1):
                place = {}; out = [[] for _ in range(n)]; todo = list(range(len(ops))); done = 0; over = 0
                for g in range(g0, min(g1, n)):
                    used = base[g]
                    ready = [k for k in todo if all(d in place for d in ops[k][3])]
                    take = []
                    for k in ready:
                        since = g - max([place[d] for d in ops[k][3]], default=g0)
                        if not ops[k][2] and (used == 0 or (used == 1 and ops[k][1] > 1) or since > 3):
                            take.append(k); used += ops[k][1]; done += ops[k][1]
                    used = max(used, 1)
                    va_ = [k for k in ready if ops[k][2]]
                    while va_:
                        room = 3 - used
                        one = [k for k in va_ if ops[k][1] == 1]; two = [k for k in va_ if ops[k][1] == 2]
                        behind = done < total * (g - g0 + 1) / span - slack
                        if room >= 2 and two: k = two[0]
                        elif room == 1 and two and behind and len(one) < 2: k = two[0]
                        elif one and (room >= 1 or behind): k = one[0]
                        elif two and behind: k = two[0]
                        else: break
                        take.append(k); va_.remove(k); used += ops[k][1]; done += ops[k][1]
                    over += max(0, used - max(3, base[g]))
                    for k in take: todo.remove(k); out[g].append(ops[k][0])
                    for k in take: place[k] = g
                if not todo and (best is None or over < best[0]): best = (over, out)
                if not ops: break
            if not ops: break
        assert best, "could not pack"
        self.packinfo.append((best[0], sum(max(0, b - 3) for b in base)))
        for g in range(n):
            self.a.run([mf[g]] + [x for x, _ in slot[g]] + best[1][g])
    def silu_ops(self, acc, rt):
        tmp = self.SL; P = self.HP
        ops = []; idx = {}
        def add(key, x, u, v, deps): idx[key] = len(ops); ops.append((x, u, v, [idx[d] for d in deps]))
        for i in range(12):
            add(("e", i), f"v_exp_f32 {R(tmp + i)}, -{R(acc + i)}", 2, True, [])
            add(("a", i), f"v_add_f32 {R(tmp + i)}, 1.0, {R(tmp + i)}", 1, True, [("e", i)])
            add(("r", i), f"v_rcp_f32 {R(tmp + i)}, {R(tmp + i)}", 2, True, [("a", i)])
            add(("m", i), f"v_mul_f32 {R(tmp + i)}, {R(tmp + i)}, {R(acc + i)}", 1, True, [("r", i)])
            if i & 1: add(("c", i // 2), f"v_cvt_pk_bf16_f32 {R(P + i // 2)}, {R(tmp + i - 1)}, {R(tmp + i)}", 1, True, [("m", i), ("m", i - 1)])
            if i == 5: add(("x", 0), f"v_permlane32_swap_b32 {R(P)}, {R(P + 2)}", 2, True, [("c", 0), ("c", 2)])
            if i == 7:
                add(("x", 1), f"v_permlane32_swap_b32 {R(P + 1)}, {R(P + 3)}", 2, True, [("c", 1), ("c", 3)])
                add("st0", f"buffer_store_dwordx4 {R(P, 4)}, {R(self.aHs)}, {S(sWS, 4)}, {S(sOff + rt)} offen sc1", 3, False, [("x", 0), ("x", 1)])
            if i == 9: add(("x", 2), f"v_permlane32_swap_b32 {R(P + 4)}, {R(P + 6)}", 2, True, [("c", 4)])
        add(("x", 3), f"v_permlane32_swap_b32 {R(P + 5)}, {R(P + 7)}", 2, True, [("c", 5)])
        add("st1", f"buffer_store_dwordx4 {R(P + 4, 4)}, {R(self.aHs + 1)}, {S(sWS, 4)}, {S(sOff + rt)} offen sc1", 3, False, [("x", 2), ("x", 3), "st0"])
        return ops
    def silu_flat(self, acc, rt):
        ops = self.silu_ops(acc, rt)
        order = sorted(range(len(ops)), key=lambda k: (self._depth(ops, k), k))
        return [ops[k][0] for k in order]
    def _depth(self, ops, k): return 1 + max([self._depth(ops, d) for d in ops[k][3]], default=0)
    def pfloats(self, name, f0, f1):
        lst = self.sched.get(name, [])
        items = []
        for op, it in lst:
            items += [(x, 3) for x in self.dma_list(it)] if op == "dma" else [(x, 2) for x in self.drain_list(it)]
        f0, f1 = self.cfg.get(name + "_pos", (f0, f1))
        return [(items, None, f0, f1)] if items else []
    def w_touch(self):
        a = self.a; va = self.va; L, T = self.vL, self.vT
        k = va(1, "k"); u = va(1, "u")
        a(f"s_lshl_b32 {S(sT0)}, {S(sM)}, 6\ns_add_u32 {S(sT0)}, {S(sT0)}, {S(sK1)}\ns_and_b32 {S(sT1)}, {S(sW)}, 2\ns_lshl_b32 {S(sT1)}, {S(sT1)}, 4\ns_add_u32 {S(sT0)}, {S(sT0)}, {S(sT1)}")
        a(f"v_and_or_b32 {R(k)}, {R(L)}, 24, {S(sT0)}")
        a(f"v_cmp_gt_u32 vcc, 32, {R(L)}")
        a(f"v_sub_u32 {R(u)}, 0, {R(k)}")
        a(f"v_and_b32 {R(u)}, 2047, {R(u)}")
        a(f"v_cndmask_b32 {R(k)}, {R(u)}, {R(k)}, vcc")
        a(f"v_mul_u32_u24 {R(k)}, 514, {R(k)}")
        a(f"v_and_b32 {R(u)}, 7, {R(L)}")
        a(f"v_mul_u32_u24 {R(u)}, 36, {R(u)}")
        a(f"v_and_b32 {R(T)}, 32, {R(L)}")
        a(f"v_lshl_add_u32 {R(u)}, {R(T)}, 3, {R(u)}")
        a(f"v_add_u32 {R(k)}, {R(k)}, {R(u)}")
        Ls = a.label("wi"); Le = a.label("we")
        a(f"s_bitcmp1_b32 {S(sW)}, 0\ns_cbranch_scc1 {Ls}")
        a.auto = False
        a(f"buffer_load_dword {R(u)}, {R(k)}, {S(sWR, 4)}, 0 offen offset:2")
        a(f"s_branch {Le}\n{Ls}:")
        a.auto = True
        a(f"buffer_load_dword {R(u)}, {R(k)}, {S(sWI, 4)}, 0 offen offset:2")
        a(Le + ":")
        va.free(k); self.junk.append(u)
    def mall_touch(self, srd):
        a = self.a; va = self.va; T = self.vT
        u = va(1, "u")
        a(f"s_mul_i32 {S(sT0)}, s2, {43 * 128}\ns_mul_i32 {S(sT1)}, {S(sW)}, {11 * 128}\ns_add_u32 {S(sT0)}, {S(sT0)}, {S(sT1)}")
        a(f"v_lshrrev_b32 {R(T)}, 2, {R(self.vL)}")
        a(f"v_min_u32 {R(T)}, 10, {R(T)}")
        a(f"v_lshlrev_b32 {R(T)}, 7, {R(T)}")
        a(f"buffer_load_dword {R(u)}, {R(T)}, {S(srd, 4)}, {S(sT0)} offen")
        self.junk.append(u)
    def w2_touch(self, part, nparts):
        a = self.a; va = self.va; T = self.vT
        u = va(1, "u"); per = -(-86 // nparts)
        a(f"s_lshl_b32 {S(sT0)}, {S(sM)}, 2\ns_add_u32 {S(sT0)}, {S(sT0)}, {S(sW)}\ns_mul_i32 {S(sT0)}, {S(sT0)}, {86 * 128}\ns_add_u32 {S(sT0)}, {S(sT0)}, {part * per * 128}")
        a(f"v_min_u32 {R(T)}, {min(per, 86 - part * per) - 1}, {R(self.vL)}")
        a(f"v_lshlrev_b32 {R(T)}, 7, {R(T)}")
        a(f"buffer_load_dword {R(u)}, {R(T)}, {S(sW2, 4)}, {S(sT0)} offen")
        self.junk.append(u)
    def bar(self, name):
        self.bars.append(name); self.a("s_barrier")
    def waitclr(self):
        self.a.wait_vm(self.tokclr); self.clrdone = set(self.cleared)
    def karg(self):
        self.a("s_waitcnt lgkmcnt(0)"); self.srds()
    def role_b(self):
        a = self.a; va = self.va; c = self.cfg
        self.junk = []
        va.hi = 64
        self.vb = Alloc(196, 256); self.vb.used = va.used
        self.common()
        va.at(60, 1, "cue"); self.aHr = va.at(61, 1, "aHr"); self.aHs = va.at(62, 2, "aHs")
        self.vW1 = va(3, "vW1", 1); self.vTr1 = va(1, "vTr1")
        a(f"s_mul_i32 {S(sStg)}, {S(sW)}, {BSTW}\ns_add_u32 {S(sStg)}, {S(sStg)}, {BST}")
        a(f"s_lshr_b32 {S(sHb)}, {S(sOwn)}, 2\ns_mul_i32 {S(sHb)}, {S(sHb)}, 11")
        self.stgw = 6 * 3072; self.cf_sent = False; self.stg_used = []; self.stg_pend = []
        for name in self.bars + ["b5"]:
            self.point("B_" + name)
            if name == "b1": assert {(Z2, 0), (Z2, 1)} <= self.clrdone
            if name == "b2": assert self.cf_sent
            if name == "b3": assert {(HN, 0), (HN, 1)} <= self.clrdone
            if name == ("e3" if "e3" in self.bars else "b4"): assert {(HB, i) for i in range(6)} <= self.clrdone
            if name == "b5":
                assert all((1, i) in self.drained for i in range(16))
                a.wait_vm_all(); a.wait_lg_all()
                va.free(self.vW1, self.vTr1, self.vT, self.vL16, self.vZero, self.vL, self.vLi, self.vG, self.vPf, self.vM1, *self.junk)
                a("s_setprio %d" % c.get("prio", (1, 0, 2))[2])
            self.stamp("B" + name)
            a("s_barrier")
        self.stamp("hn_in")
        self.SL = va.at(48, 12, "silu")
        ACC = va.at(0, 24, "acc1"); BF = va.at(24, 16, "bf"); self.HP = va.at(40, 8, "hp")
        NB = c.get("nb", 4)
        tok = {}
        def rd(n): tok[n] = a(f"ds_read_b128 {R(BF + 4 * (n % NB), 4)}, {R(self.aHr)} offset:{(n // 16) * HTILE + (n % 16) * 16}")
        for n in range(NB - 1): rd(n)
        cue = c.get("cue", (3, 4))
        for rt in range(4):
            acc = ACC + 12 * (rt & 1)
            mf = []; fixed = {}
            for ks in range(16):
                n = rt * 16 + ks
                for T in range(3):
                    cc = R(acc + 4 * T, 4) if ks else "0"
                    mf.append(f"v_mfma_f32_16x16x32_bf16 {R(acc + 4 * T, 4)}, {R(self.W1(ks, T), 4)}, {R(BF + 4 * (n % NB), 4)}, {cc}")
                if n + NB - 1 < 64: fixed[3 * ks] = [(lambda n=n: rd(n + NB - 1), 2)]
                if n + 1 < 64: fixed[3 * ks + 2] = [(lambda n=n: a.wait_lg(tok[n + 1]), 1)]
            if rt == 0: fixed[37] = [("s_barrier", 1)]
            if rt == cue[0]: fixed.setdefault(cue[1], []).append(("ds_write_b32 v60, v60", 2))
            ops = self.silu_ops(ACC + 12 * ((rt - 1) & 1), rt - 1) if rt else []
            self.pack(mf, fixed, [], ops, 1, 48)
            self.stamp("g1p%d" % rt)
        a.run(self.silu_flat(ACC + 12, 3))
        self.stamp("g1_end")
        a("s_setprio 0")
        va.hi = 256; va.lo = 64
        self.vL = va(1); self.vLi = va(1); self.vG = va(1); self.vT = va(1); self.vZero = va(1)
        self.aRr = va(1); self.aOut = va(1); self.aRes = va(1); self.aSt = va(1); ep = va(1)
        SV = va(4); RES = va(8); O = va(16); RB = va(16); K2 = va(2); P = va(2)
        a(f"ds_read_b32 {R(ep)}, v60 offset:4")
        self.tables_epi()
        stl = [f"buffer_load_dwordx3 {R(SV, 3)}, {R(self.aSt)}, {S(sWS, 4)}, 0 offen sc1"]
        a.run(stl)
        for r in range(4): a(f"ds_read_b64 {R(RES + 2 * r, 2)}, {R(self.aRes)} offset:{r * HTILE}")
        a(f"v_mov_b32 {R(self.vZero)}, 0\nv_mov_b32 {R(K2)}, {S(sLn2)}")
        for rt in range(4):
            for h in range(2):
                a(f"v_lshlrev_b32 {R(O + 4 * rt + 2 * h)}, 16, {R(RES + 2 * rt + h)}")
                a(f"v_and_b32 {R(O + 4 * rt + 2 * h + 1)}, 0xffff0000, {R(RES + 2 * rt + h)}")
        self.poll("st", stl, lambda: a(f"v_cmp_ne_u32 vcc, {R(ep)}, {R(SV + 2)}"))
        for rt in range(4):
            dpp = f"row_newbcast:{rt} row_mask:0xf bank_mask:0xf"
            a(f"v_mov_b32_dpp {R(RB)}, {R(SV)} {dpp}\nv_mov_b32_dpp {R(RB + 1)}, {R(SV + 1)} {dpp}")
            for k in range(4): a(f"v_fma_f32 {R(O + 4 * rt + k)}, {R(O + 4 * rt + k)}, {R(RB)}, {R(RB + 1)}")
        for rt in range(4):
            if rt == 3: a("s_setprio 3")
            a("s_barrier")
            for src in range(4): a(f"ds_read_b128 {R(RB + 4 * src, 4)}, {R(self.aRr)} offset:{16384 * (rt & 1) + 4096 * src}")
            for src in range(4):
                if rt == 3:
                    for k in (0, 2): a(f"v_pk_fma_f32 {R(O + 12 + k, 2)}, {R(RB + 4 * src + k, 2)}, {R(K2, 2)}, {R(O + 12 + k, 2)} op_sel_hi:[1,0,1]")
                else:
                    for k in range(4): a(f"v_fmac_f32 {R(O + 4 * rt + k)}, {S(sLn2)}, {R(RB + 4 * src + k)}")
            a(f"v_cvt_pk_bf16_f32 {R(RES + 2 * rt)}, {R(O + 4 * rt)}, {R(O + 4 * rt + 1)}\nv_cvt_pk_bf16_f32 {R(RES + 2 * rt + 1)}, {R(O + 4 * rt + 2)}, {R(O + 4 * rt + 3)}")
            a(f"buffer_store_dwordx2 {R(RES + 2 * rt, 2)}, {R(self.aOut)}, {S(sO, 4)}, {S(sOff + 2 + (rt >> 1))} offen offset:{2048 * (rt & 1)}{c.get('outflag', '')}")
        self.stamp("end")
    def ffn_a(self):
        a = self.a; va = self.va; c = self.cfg; T = self.vT
        a.run(self.hn_stage(0) + self.bar_after("tokhw"))
        a("s_setprio %d" % c.get("prio", (1, 0, 2))[1])
        a.run(self.hn_stage(1) + self.hn_stage(2) + self.hn_stage(3))
        va.free(self.HG, self.aHw, self.vL16, self.vL, self.vLi, self.vG)
        self.point("hn_a")
        a.run(self.bar_after("tokhw"))
        self.point("w2")
        self.stamp("w2_in")
        Lc = a.label("cue"); Ld = a.label("cued")
        a.wait_lg_all()
        a(f"v_mov_b32 {R(self.vW2)}, {S(sStg)}\ns_mov_b32 {S(sCnt)}, 0")
        a.auto = False
        a(f"{Lc}:\nds_read_b32 {R(T)}, {R(self.vW2)} offset:15360\ns_add_u32 {S(sCnt)}, {S(sCnt)}, 1\ns_waitcnt lgkmcnt(0)")
        a(f"v_cmp_ne_u32 vcc, 0, {R(T)}\ns_cbranch_vccnz {Ld}\ns_sleep 1\ns_cmp_lt_u32 {S(sCnt)}, {SPIN * 10}\ns_cbranch_scc1 {Lc}\n{Ld}:")
        a.auto = True
        self.stamp("cue")
        DH = c.get("hdepth", 11)
        hslot = {}; tok = {}
        def hm0(n): a(f"s_add_u32 m0, {S(sStg)}, {(n % 15) * 1024}")
        def hdma(n): hslot[n] = a(f"buffer_load_dwordx4 {R(self.aHl + n // 11)}, {S(sWS, 4)}, {S(sKap + n % 11)} offen sc1 lds")
        assert DH <= 15 and not self.stg_used
        for n in range(DH): hm0(n); hdma(n)
        hm0(DH)
        assert all((2, i) in self.drained for i in range(11))
        va.free(self.vW2, self.vTr2)
        ACC = [va.at(32, 16, "acc2a"), va.at(48, 16, "acc2b")]; HF = va.at(64, 16, "hf"); RD = va.at(20, 12, "redo")
        assert max(va.used) < 80, sorted(set(va.used.values()))
        def hrd(n):
            a.wait_vm(hslot[n])
            tok[n] = a(f"ds_read_b128 {R(HF + 4 * (n % 4), 4)}, {R(self.aHf)} offset:{(n % 15) * 1024}")
        def red_w(rt, t): self.tokrw = a(f"ds_write_b128 {R(self.aRw + (t & 1))}, {R(ACC[rt & 1] + 4 * t, 4)} offset:{16384 * (rt & 1) + 128 * (t >> 1)}")
        def nanchk(rt): a(f"v_cmp_u_f32 vcc, {R(ACC[rt & 1])}, {R(ACC[rt & 1])}")
        def nanbr(rt):
            Lr = a.label("redo"); Lo = a.label("redone"); acc = ACC[rt & 1]
            site = self.npoll; self.npoll += 1; self.pollnames.append("H%d" % rt)
            a(f"s_cbranch_vccnz {Lr}\n{Lo}:")
            def tail():
                a.auto = False
                a(Lr + ":")
                if self.stamps: a(f"s_bitset1_b32 {S(sRet + site // 32)}, {site % 32}")
                for i0 in range(0, 11, 3):
                    fr = range(i0, min(i0 + 3, 11)); Ll = a.label("redo_loop"); Lg = a.label("redo_got")
                    a(f"s_mov_b32 {S(sCnt)}, 0\n{Ll}:")
                    for i in fr: a(f"buffer_load_dwordx4 {R(RD + 4 * (i - i0), 4)}, {R(self.aHl + rt)}, {S(sWS, 4)}, {S(sKap + i)} offen sc1")
                    a(f"s_add_u32 {S(sCnt)}, {S(sCnt)}, 1\ns_waitcnt vmcnt(0)")
                    a(f"v_max3_u32 {R(T)}, {R(RD)}, {R(RD + 4)}, {R(RD + 4 * (len(fr) - 1))}")
                    a(f"v_cmp_eq_u32 vcc, -1, {R(T)}\ns_cbranch_vccz {Lg}\ns_cmp_lt_u32 {S(sCnt)}, {SPIN}\ns_cbranch_scc1 {Ll}\n{Lg}:")
                    for i in fr:
                        for t in range(4):
                            a(f"v_mfma_f32_16x16x32_bf16 {R(acc + 4 * t, 4)}, {R(self.W2(i, t), 4)}, {R(RD + 4 * (i - i0), 4)}, {R(acc + 4 * t, 4) if i else 0}")
                a(f"s_nop 7\ns_branch {Lo}")
            self.tail.append(tail)
        for n in range(3): hrd(n)
        self.stamp("g2_in")
        for rt in range(4):
            acc = ACC[rt & 1]
            order = [(i, t) for i in range(11) for t in range(4)]
            if rt == 3: order = order[:32] + [(i, t) for t in range(4) for i in (8, 9, 10)]
            mf = [f"v_mfma_f32_16x16x32_bf16 {R(acc + 4 * t, 4)}, {R(self.W2(i, t), 4)}, {R(HF + 4 * ((11 * rt + i) % 4), 4)}, {R(acc + 4 * t, 4) if i else 0}" for i, t in order]
            fixed = {}
            for i in range(11):
                n = 11 * rt + i
                if n + 3 < 44: fixed[4 * i] = [(lambda n=n: hrd(n + 3), 3)]
                if n + DH < 44: fixed[4 * i + 2] = [(lambda n=n: hdma(n + DH), 3)]
                fixed[4 * i + 3] = [(lambda n=n: a.wait_lg(tok[n + 1]), 1)] if n + 1 < 44 else []
                if n + DH + 1 < 44: fixed[4 * i + 3].append((lambda n=n: hm0(n + DH + 1), 1))
            if rt:
                fixed[1] = [(lambda rt=rt: nanchk(rt - 1), 2)]
                fixed[3].append((lambda rt=rt: nanbr(rt - 1), 1))
                for t in range(4): fixed[5 + 4 * t] = [(lambda rt=rt, t=t: red_w(rt - 1, t), 3)]
                fixed[21] = [(self.bar_after("tokrw")[0], 2)]
            if rt == 3:
                fixed[40] = [(lambda: red_w(3, 0), 3)]; fixed[42] = [(lambda: nanchk(3), 2)]; fixed[43] = [(lambda: red_w(3, 1), 3)]
            self.pack(mf, fixed, [], [], 0, 44)
            self.stamp("g2p%d" % rt)
        red_w(3, 2); red_w(3, 3)
        Lw = a.label("rewrite"); Lf = a.label("final")
        a(f"s_cbranch_vccz {Lf}")
        nanbr(3)
        a.auto = False
        for t in range(4): red_w(3, t)
        a.auto = True
        a(f"{Lf}:\ns_waitcnt lgkmcnt(0)\ns_barrier")
    def finish(self, role):
        a = self.a
        if self.amp and role == "A":
            i, j = (self.stamps.index(n) for n in self.amp)
            self.stamp("end")
        if self.amp and role != self.cfg.get("amprole", "A"): return
        if self.amp:
            i, j = (self.stamps.index(n) for n in self.amp); e = self.stamps.index("end")
            a("s_waitcnt lgkmcnt(0)")
            a(f"s_sub_u32 {S(sT0)}, {S(sStamp + 2 * j)}, {S(sStamp + 2 * i)}\ns_lshl_b32 {S(sT0)}, {S(sT0)}, 3\ns_min_u32 {S(sT0)}, {S(sT0)}, 100000")
            a(f"L_amp:\ns_memrealtime s[4:5]\ns_waitcnt lgkmcnt(0)\ns_sub_u32 {S(sT1)}, s4, {S(sStamp + 2 * e)}\ns_cmp_lt_u32 {S(sT1)}, {S(sT0)}\ns_cbranch_scc1 L_amp")
        elif self.stamps:
            a("s_waitcnt lgkmcnt(0)")
            a(f"s_lshl_b32 {S(sT0)}, s2, 3\ns_add_u32 {S(sT0)}, {S(sT0)}, s3\ns_lshl_b32 {S(sT0)}, {S(sT0)}, 6\ns_add_u32 {S(sT0)}, {S(sT0)}, {STAMP}")
            for i, sr in [(i, sStamp + 2 * i) for i in range(len(self.stamps))] + [(14, sRet), (15, sRet + 1)]:
                a(f"v_mov_b32 {R(self.vT)}, {S(sr)}")
                a(f"buffer_store_dword {R(self.vT)}, {R(self.vZero)}, {S(sWS, 4)}, {S(sT0)} offen offset:{4 * i}")
    def build(self):
        import copy
        a = self.a; va = self.va
        self.prologue()
        snap = (dict(va.used), list(a.vm), list(a.lg))
        self.prologue_a()
        self.point("start")
        self.stamp("tabs")
        self.p1()
        va.free(self.vM1)
        self.point("p1_end")
        self.p2_gather()
        self.point("g1_wait")
        self.p2()
        self.point("p2_end")
        self.p3_gather()
        self.point("g2_wait")
        self.p3()
        self.point("p3_end")
        self.hn_gather()
        self.point("g3_wait")
        self.ffn_a()
        self.finish("A")
        a("L_end:")
        a("s_endpgm")
        vTa = self.vT
        a("L_roleB:")
        va.used, a.vm, a.lg = snap
        self.clrdone = set(self.cleared)
        self.role_b()
        self.finish("B")
        a("s_endpgm")
        self.vT = vTa
        for t in self.tail: t()
        body = a.finalize()
        hdr = open("header.txt").read()
        s = hdr + f"; @launch grid=(256,1,1) block=(512,1,1) lds={LDS_SIZE}\n"
        s += f'.amdgcn_target "amdgcn-amd-amdhsa--gfx950"\n.text\n.globl {KN}\n.p2align 8\n.type {KN},@function\n{KN}:\n'
        s += body
        s += ".p2align 8\n.fill 4096, 4, 0xbf810000\n"
        s += f'''.section .rodata,"a"
.p2align 6
.amdhsa_kernel {KN}
  .amdhsa_next_free_vgpr 256
  .amdhsa_next_free_sgpr 102
  .amdhsa_accum_offset 256
  .amdhsa_group_segment_fixed_size 0
  .amdhsa_kernarg_size 72
  .amdhsa_user_sgpr_count 2
  .amdhsa_user_sgpr_kernarg_segment_ptr 1
  .amdhsa_system_sgpr_workgroup_id_x 1
  .amdhsa_float_denorm_mode_32 3
.end_amdhsa_kernel
'''
        return s

D = lambda k, r: [("dma", (k, i)) for i in r]
X = lambda k, r: [("drain", (k, i)) for i in r]
F = lambda name, *args: [(name, args)]
def write(cfg, out):
    g = Gen(cfg)
    s = g.build()
    open(out, "w").write(s)
    return g
```

```python
from gen3 import *
ST_A = ['entry', 'karg', 'tabs', 'x_in', 'z1_st', 'g1', 'z1_in', 'z2_st', 'g2', 'z2_in', 'hn_st']
ST_B = ['entry', 'hn_st', 'g3', 'hn_in', 'g1p0', 'g1p2', 'g1p3', 'g1_end', 'w2_in', 'cue', 'end']
ST_C = ['entry', 'Bb1', 'z1_st', 'Bb2', 'z1_in', 'Bb3', 'z2_st', 'Bb4', 'z2_in', 'Bb5', 'hn_in']
ST_D = ['entry', 'hn_in', 'w2_in', 'cue', 'g1_end', 'g2_in', 'g2p0', 'g2p1', 'g2p2', 'g2p3', 'end']
CL = lambda base, r: [("clear", (base, i)) for i in r]
CH = lambda r: [("clear_H", (i,)) for i in r]
WL = lambda *x: [("w_load", (i,)) for i in x]
def zipl(*ls):
    out = []
    for k in range(max(len(l) for l in ls)):
        for l in ls:
            if k < len(l): out.append(l[k])
    return out
allw1 = D(1, (0, 1, 2)) + zipl(X(1, range(16)), D(1, range(3, 16)))
MT = F("mall_touch", sW1) + F("mall_touch", sW2)
SL = lambda n: F("sleep", n) if n else []
BAR = lambda n: F("bar", n)
FK = F("fake", (HN, 0), (HN, 1), *[(HB, i) for i in range(6)])
B0 = F("w_addr") + F("karg"); B1 = F("tables_w1") + F("tables_g1")
WF = F("w_stage") + F("w_coefs"); WS = F("w_spec"); WT = F("w_touch"); WC = F("waitclr")
T1 = F("tables_p1") + CL(Z2, (0, 1))
T2 = F("addr_g1") + F("tables_p2a") + F("tables_p2b") + F("addr_p2")
T3 = F("xnat_load") + F("addr_g2") + F("tables_p3") + F("tables_g2") + F("tables_w2")
def base():
    return {"sched": dict(
        start=T1, p1_end=T2, g1_wait=[], p2_end=T3,
        g2_wait=F("xnat_unpack") + F("addr_g3"),
        p3_end=BAR("s3") + SL(14),
        hn_a=D(2, (0, 1, 2)),
        hn_b=[],
        w2=zipl(X(2, range(0, 11)), D(2, range(3, 11))),
        B_b1=B0 + B1 + WL(0, 1) + WS,
        B_b2=WF + CL(HN, (0, 1)),
        B_b3=WC + CH(range(3)),
        B_b4=CH(range(3, 6)) + WC,
        B_b5=allw1,
    )}
def var(**kw):
    def f():
        c = base()
        for k, v in kw.items():
            if isinstance(v, list): c["sched"][k] = v
            else: c[k] = v
        return c
    return f
CFG = {"base": base}
def fv(**kw): return var(**dict(dict(B_b1=B0 + B1 + FK, B_b2=WF, B_b3=[], B_b4=[]), **kw))
CFG["f0"] = fv()
DV = F("drainvm", "-")
def gv(**kw): return fv(**dict(dict(start=F("tables_p1") + F("fake", (Z2, 0), (Z2, 1))), **kw))
CFG["g0"] = gv()
def rest(done, pend=()):
    todo = [i for i in range(16) if i not in done and i not in pend]
    return X(1, pend) + D(1, todo[:3]) + zipl(X(1, todo), D(1, todo[3:]))
M1 = F("mall_touch", sW1); M2 = F("mall_touch", sW2)
m1 = dict(start=T1 + BAR("t1"), p1_end=BAR("s1") + T2, p2_end=BAR("s2") + T3, p3_end=BAR("s3") + SL(14), rot1=0, rot2=0,
          B_t1=B0 + B1, B_b1=WT + M1, B_s1=[], B_b2=WL(0, 1) + WS + CL(HN, (0, 1)) + WF + WC,
          B_b3=D(1, (0, 1, 2)) + CH((0, 1)), B_s2=[], B_b4=D(1, (3, 4, 5)) + CH((2, 3, 4, 5)) + X(1, range(6)) + WC,
          B_s3=D(1, (6, 7, 8)) + M2, B_b5=D(1, (9, 10, 11)) + zipl(X(1, range(6, 16)), D(1, range(12, 16))))
CFG["m1"] = var(**m1)
ST_F = ['entry', 'hn_in', 'g1p0', 'g1p1', 'g1p2', 'g1p3', 'g1_end']
ST_G = ['entry', 'cue', 'g2_in', 'g2p0', 'g2p1', 'g2p2', 'g2p3', 'end']
ST = lambda kind, items, depth, fin=True: F("stream", kind, tuple(items), depth, fin)
m2 = dict(m1, hn_a=D(2, (0,)), w2=ST(2, range(1, 11), 7), prio=(1, 1, 0), B_b5=ST(1, range(9, 16), 7))
CFG["m2"] = var(**m2)
CFG["q2"] = var(**dict(m2, cyc=1))
ST_H = ['entry', 'z1_st', 'z1_in', 'z2_st', 'z2_in', 'hn_st', 'Bb5', 'hn_in', 'w2_in', 'g1_end', 'end']
G2W = F("xnat_unpack") + F("addr_g3")
n0 = dict(start=F("tables_p1"), p1_end=BAR("s1") + T2, g1_wait=BAR("g1"), p2_end=BAR("s2") + T3, g2_wait=BAR("g2") + G2W, p3_end=BAR("s3") + SL(14),
          rot1=0, rot2=0, xrot1=2, xrot2=7, prio=(1, 1, 0), hn_a=D(2, (0, 1)), w2=ST(2, range(2, 11), 10),
          B_b1=B0 + CL(Z2, (0, 1)) + WT + M1 + B1 + WC, B_s1=[], B_g1=WL(0, 1) + WS, B_b2=D(1, (0,)) + CL(HN, (0, 1)) + WF,
          B_b3=D(1, (1, 2, 3)) + WC, B_s2=[], B_g2=D(1, (4, 5)) + X(1, (0, 1, 2, 3)) + D(1, (6,)), B_b4=D(1, (7,)) + CH(range(6)) + X(1, (4, 5, 6)) + WC,
          B_s3=D(1, (8, 9, 10)) + M2, B_b5=ST(1, range(11, 16), 10))
CFG["n0"] = var(**n0)
CFG["n1"] = var(**dict(n0, p3_e=BAR("e3"), B_b3=D(1, (1, 2, 3)) + WC + CH((0,)), B_g2=D(1, (4, 5)) + CH((1,)) + X(1, (0, 1, 2, 3)) + D(1, (6,)),
                       B_b4=D(1, (7,)) + CH((2, 3, 4, 5)) + X(1, (4, 5, 6)), B_e3=D(1, (8, 9, 10)) + WC, B_s3=[], B_b5=M2 + ST(1, range(11, 16), 10)))
CFG["n2"] = var(**dict(n0, B_b1=B0 + CL(Z2, (0, 1)) + WT + M1 + B1 + WC + CL(HN, (0, 1)) + CH((0,)), B_b2=D(1, (0, 1)) + WF + WC,
                       B_b3=D(1, (2, 3, 4)) + CH((1, 2)) + M2, B_g2=X(1, (0, 1)) + D(1, (5, 6, 7)) + CH((3, 4, 5)) + X(1, (2, 3, 4)), B_b4=D(1, (8, 9)) + WC + X(1, (5, 6, 7)),
                       B_s3=D(1, (10, 11, 12)) + X(1, (8, 9)), B_b5=D(1, (13, 14, 15)) + X(1, range(10, 16))))
if __name__ == "__main__":
    name, out = sys.argv[1], sys.argv[2]
    c = CFG[name]()
    for x in sys.argv[3:]:
        if len(x) == 1: c["stamps"] = globals()["ST_" + x]
        if x.startswith("--amp="):
            c["amp"] = x[6:].split(","); c["stamps"] = list(dict.fromkeys(["entry"] + c["amp"] + ["end"]))
    g = write(c, out)
    print("wrote", out, "instrs", len(g.a.ins), "nops", g.a.nops_added, "vgpr high", g.va.high, "pack", g.packinfo)
```

```python
import sys, struct, math
from asmlib import *

KN = "sequential_preLN__spectral_gfnet__dense_activation_silu__prompt_kernel"
def fl(x): return "0x%08x" % struct.unpack("<I", struct.pack("<f", x))[0]

Z1 = 0x0; Z2 = 0x200000; HN = 0x400000; HH = 0x600000; HB = 0x800000; EPO = 0xE00000; STAMP = 0xE80000; W1P = 0x1000000; W2P = 0x1200000
WS_SIZE = 0x1400000
HCL = 4 * 44 * 1024
OOB = 0x40000000
HNL = 0; HROW = 1040; HTILE = 16 * HROW
EA = 0; EB = 8448
RED = (4 * HTILE, 4 * HTILE + 16384)
BST = RED[0]; BSTW = 8192
AR = 4 * HTILE + 32768; ARW = 16128
CUE = AR + 15360
LDS_SIZE = 163840
sX, sWR, sWI, sW1, sW2, sO, sWS = 8, 12, 16, 20, 24, 28, 32
sW, sS2, sK1, sM, sMem, sRot, sT0, sT1, sT2, sOnes, sMask, sEp, sCnt, sStg, sN, sD0, sHb, sU0, sLn2, sOwn = range(36, 56)
sOff = 56
sTag = 79
sPk = 72; sPj = 76
sKap = 68
sStamp = 80
sSel = 12

sRet = 6
SPIN = 20000

class Gen:
    def __init__(self, cfg):
        self.cfg = cfg
        self.amp = cfg.get("amp"); self.stamps = cfg.get("stamps") or []
        self.a = Asm(); self.va = Alloc(1, 256); self.vb = self.va
        self.tail = []; self.npoll = 0; self.pollnames = []
        self.sched = cfg.get("sched", {})
        self.W2 = lambda i, t: 80 + (i * 4 + t) * 4
        self.W1 = lambda ks, T: 64 + (ks * 3 + T) * 4
        self.cleared = set(); self.loaded = set(); self.pkdone = None; self.role = 'A'; self.cf_own = False
        self.packinfo = []; self.bars = []
    def stamp(self, name):
        if name in self.stamps:
            k = self.stamps.index(name)
            self.a(f"{'s_memtime' if self.cfg.get('cyc') else 's_memrealtime'} {S(sStamp + 2 * k, 2)}")
    def sincos(self, c, s, ang):
        self.a(f"v_cos_f32 {R(c)}, {R(ang)}"); self.a(f"v_sin_f32 {R(s)}, {R(ang)}")
    def poll(self, name, loads, check):
        a = self.a
        Lr = a.label(name + "_retry"); Lo = a.label(name + "_ok")
        site = self.npoll; self.npoll += 1; self.pollnames.append(name)
        check()
        a(f"s_cbranch_vccnz {Lr}")
        a(Lo + ":")
        def tail():
            a.auto = False
            a(Lr + ":")
            a(f"s_mov_b32 {S(sCnt)}, 0")
            Ll = a.label(name + "_loop")
            a(Ll + ":")
            if self.stamps: a(f"s_bitset1_b32 {S(sRet + site // 32)}, {site % 32}")
            if self.cfg.get("backoff"): a(f"s_sleep {self.cfg['backoff']}")
            for l in loads: a(l)
            a("s_waitcnt vmcnt(0)")
            check()
            a(f"s_cbranch_vccz {Lo}")
            a(f"s_add_u32 {S(sCnt)}, {S(sCnt)}, 1")
            a(f"s_cmp_lt_u32 {S(sCnt)}, {SPIN}")
            a(f"s_cbranch_scc1 {Ll}")
            a(f"s_branch {Lo}")
        self.tail.append(tail)
    def check_sentinel(self, regs):
        a = self.a; t = self.vT
        def chk():
            r = list(regs)
            if len(r) % 2 == 0:
                a(f"v_max_u32 {R(t)}, {R(r[0])}, {R(r[1])}"); r = r[2:]
            else:
                a(f"v_max3_u32 {R(t)}, {R(r[0])}, {R(r[1])}, {R(r[2])}"); r = r[3:]
            while r:
                a(f"v_max3_u32 {R(t)}, {R(t)}, {R(r[0])}, {R(r[1])}"); r = r[2:]
            a(f"v_cmp_eq_u32 vcc, -1, {R(t)}")
        return chk
    def cmul(self, ore, oim, re, im, c, s, conj, addend=None):
        a = self.a
        neg = " neg_lo:[0,1,0] neg_hi:[0,1,0]"
        for k in (0, 2):
            for o, x in ((ore, re), (oim, im)):
                if addend is None: a(f"v_pk_mul_f32 {R(o + k, 2)}, {R(x + k, 2)}, {R(c + k, 2)}")
                else: a(f"v_pk_fma_f32 {R(o + k, 2)}, {R(x + k, 2)}, {R(c + k, 2)}, {R(addend, 2)} op_sel_hi:[1,1,0] neg_lo:[0,0,1] neg_hi:[0,0,1]")
        for k in (0, 2):
            a(f"v_pk_fma_f32 {R(ore + k, 2)}, {R(im + k, 2)}, {R(s + k, 2)}, {R(ore + k, 2)}" + (neg if conj else ""))
            a(f"v_pk_fma_f32 {R(oim + k, 2)}, {R(re + k, 2)}, {R(s + k, 2)}, {R(oim + k, 2)}" + ("" if conj else neg))
    def stats(self, X, st, scale, mscale):
        a = self.a
        S0, S1, Q0, Q1 = st, st + 1, st + 2, st + 3
        for r in range(4):
            a(f"v_dot2c_f32_bf16 {R(S0)}, {S(sOnes)}, {R(X + r)}")
            a(f"v_dot2c_f32_bf16 {R(Q0)}, {R(X + r)}, {R(X + r)}")
        for r in range(4):
            a(f"v_dot2c_f32_bf16 {R(S1)}, {S(sOnes)}, {R(X + 4 + r)}")
            a(f"v_dot2c_f32_bf16 {R(Q1)}, {R(X + 4 + r)}, {R(X + 4 + r)}")
        a(f"v_permlane32_swap_b32 {R(S0)}, {R(S1)}")
        a(f"v_permlane32_swap_b32 {R(Q0)}, {R(Q1)}")
        a(f"v_add_f32 {R(S0)}, {R(S0)}, {R(S1)}")
        a(f"v_add_f32 {R(Q0)}, {R(Q0)}, {R(Q1)}")
        a(f"v_permlane16_swap_b32 {R(S0)}, {R(Q0)}")
        a(f"v_add_f32 {R(S0)}, {R(S0)}, {R(Q0)}")
        for sh in (8, 4, 2, 1):
            a(f"v_add_f32_dpp {R(S0)}, {R(S0)}, {R(S0)} row_ror:{sh} row_mask:0xf bank_mask:0xf")
        a(f"v_mul_f32 {R(Q0)}, {fl(1 / 512)}, {R(S0)}")
        a(f"v_mul_f32 {R(S0)}, {fl(1 / 512)}, {R(S0)}")
        a(f"v_permlane16_swap_b32 {R(S0)}, {R(Q0)}")
        a(f"v_fma_f32 {R(Q0)}, -{R(S0)}, {R(S0)}, {R(Q0)}")
        a(f"v_max_f32 {R(Q0)}, 0, {R(Q0)}")
        if scale != 1.0: a(f"v_fmamk_f32 {R(Q0)}, {R(Q0)}, {fl(1 / scale ** 2)}, {R(self.vEps)}")
        else: a(f"v_add_f32 {R(Q0)}, {fl(1e-5)}, {R(Q0)}")
        a(f"v_rsq_f32 {R(Q0)}, {R(Q0)}")
        if mscale is not None:
            a(f"v_mov_b32 {R(self.vMu)}, {R(S0)}")
            a(f"v_mul_f32 {R(S0)}, {R(mscale)}, {R(S0)}")
        a(f"v_mul_f32 {R(st + 4)}, {R(S0)}, {R(Q0)}")
        a(f"v_mul_f32 {R(st + 6)}, {R(S0)}, {R(Q0)}")
        a(f"v_mov_b32 {R(st)}, {R(Q0)}")
        a(f"v_permlane32_swap_b32 {R(st + 4)}, {R(st + 6)}")
        a(f"v_permlane32_swap_b32 {R(st)}, {R(st + 2)}")
    def early_b(self):
        a = self.a; va = self.va; T = self.vT; L = self.vL
        self.vP = va(1, "vP"); u = va(2, "junk"); self.junk.append(u)
        L3 = a.label("w3"); Le = a.label("join")
        a(f"v_and_b32 {R(L)}, 63, v0")
        a(f"s_and_b32 {S(sW)}, s3, 3")
        a(f"s_cmp_eq_u32 s3, 7\ns_cbranch_scc1 {L3}")
        a(f"s_xor_b32 {S(sT0)}, s2, 255\ns_mul_i32 {S(sT0)}, {S(sT0)}, 3\ns_add_u32 {S(sPj)}, {S(sT0)}, {S(sW)}")
        a(f"s_and_b32 {S(sT0)}, {S(sPj)}, 15\ns_mul_i32 {S(sT0)}, {S(sT0)}, {8 * 2752}\ns_lshr_b32 {S(sT1)}, {S(sPj)}, 4\ns_lshl_b32 {S(sT1)}, {S(sT1)}, 7\ns_add_u32 {S(sT0)}, {S(sT0)}, {S(sT1)}")
        a(f"s_sub_u32 {S(sT1)}, {S(sPj)}, 352\ns_and_b32 {S(sT2)}, {S(sT1)}, 7\ns_lshl_b32 {S(sT2)}, {S(sT2)}, 7\ns_lshr_b32 {S(sT1)}, {S(sT1)}, 3\ns_lshl_b32 {S(sT1)}, {S(sT1)}, 15\ns_add_u32 {S(sT1)}, {S(sT1)}, {S(sT2)}")
        a(f"s_lshl_b32 {S(sStg)}, {S(sW)}, 13\ns_add_u32 {S(sStg)}, {S(sStg)}, {BST}\ns_mov_b32 m0, {S(sStg)}")
        a(f"s_movk_i32 {S(sCnt)}, 1024\ns_movk_i32 {S(sU0)}, 7168")
        a(f"v_lshrrev_b32 {R(T)}, 3, {R(L)}\nv_and_b32 {R(self.vP)}, 7, v0\nv_lshlrev_b32 {R(self.vP)}, 4, {R(self.vP)}")
        a(f"s_mov_b32 {S(sW1 + 2)}, {512 * 2752}\ns_mov_b32 {S(sW1 + 3)}, 0x20000")
        a(f"s_cmp_lt_u32 {S(sPj)}, 352\ns_cselect_b32 {S(sD0)}, {S(sT0)}, {S(sT1)}\ns_cselect_b32 {S(sCnt)}, 2752, {S(sCnt)}\ns_cselect_b32 {S(sU0)}, {128 * 2752 - 1024}, {S(sU0)}")
        a(f"v_mad_u32_u24 {R(self.vP)}, {R(T)}, {S(sCnt)}, {R(self.vP)}")
        a("s_waitcnt lgkmcnt(0)")
        a(f"s_cselect_b64 {S(sW1, 2)}, {S(sOff + 8, 2)}, {S(sOff + 10, 2)}")
        self.point("B_pre")
        a.auto = False
        for p in range(4):
            if p: a(f"s_add_u32 {S(sD0)}, {S(sD0)}, {S(sU0)}")
            a(f"buffer_load_dwordx4 {R(self.vP)}, {S(sW1, 4)}, {S(sD0)} offen offset:{p * 1024} lds")
        self.srds()
        a(f"s_branch {Le}\n{L3}:")
        k = self.vP
        a(f"s_lshl_b32 {S(sT0)}, {S(sM)}, 6\ns_add_u32 {S(sT0)}, {S(sT0)}, {S(sK1)}\ns_movk_i32 {S(sPj)}, 1023\ns_mov_b32 {S(sStg)}, {BST + 3 * BSTW}")
        a(f"v_and_b32 {R(k)}, 28, v0")
        a(f"v_lshl_add_u32 {R(k)}, {R(k)}, 1, {S(sT0)}")
        a(f"v_cmp_gt_u32 vcc, 32, {R(L)}")
        a(f"v_sub_u32 {R(u)}, 0, {R(k)}")
        a(f"v_and_b32 {R(u)}, 2047, {R(u)}")
        a(f"v_cndmask_b32 {R(k)}, {R(u)}, {R(k)}, vcc")
        a(f"v_mul_u32_u24 {R(k)}, 514, {R(k)}")
        a(f"v_and_b32 {R(u)}, 3, v0")
        a(f"v_mul_u32_u24 {R(u)}, 84, {R(u)}")
        a(f"v_and_b32 {R(T)}, 32, v0")
        a(f"v_lshl_add_u32 {R(u)}, {R(T)}, 3, {R(u)}")
        a(f"v_add_u32 {R(k)}, {R(k)}, {R(u)}")
        a("s_waitcnt lgkmcnt(0)")
        self.srds()
        self.point("B_pre3")
        a(f"buffer_load_dword {R(u)}, {R(k)}, {S(sWR, 4)}, 0 offen offset:2")
        a(f"buffer_load_dword {R(u + 1)}, {R(k)}, {S(sWI, 4)}, 0 offen offset:2")
        a.auto = True
        a(Le + ":")
        self.pkpos = a.tok
        va.free(self.vP)
    def pack_addr(self):
        a = self.a; va = self.va; L, G, T = self.vL, self.vG, self.vT
        self.vTr = va(2, "vTr", 1); self.PK = self.vb(16, "PK")
        a(f"s_lshr_b32 {S(sT0)}, {S(sPj)}, 4\ns_lshl_b32 {S(sT0)}, {S(sT0)}, 16\ns_and_b32 {S(sT1)}, {S(sPj)}, 15\ns_lshl_b32 {S(sT1)}, {S(sT1)}, 10\ns_add_u32 {S(sT0)}, {S(sT0)}, {S(sT1)}\ns_add_u32 {S(sT0)}, {S(sT0)}, {W1P}")
        a(f"s_sub_u32 {S(sT1)}, {S(sPj)}, 352\ns_and_b32 {S(sT2)}, {S(sT1)}, 7\ns_mul_i32 {S(sT2)}, {S(sT2)}, 43\ns_lshr_b32 {S(sT1)}, {S(sT1)}, 3\ns_add_u32 {S(sT1)}, {S(sT1)}, {S(sT2)}\ns_lshl_b32 {S(sT1)}, {S(sT1)}, 12\ns_add_u32 {S(sT1)}, {S(sT1)}, {W2P}")
        a(f"s_cmp_lt_u32 {S(sPj)}, 696\ns_cselect_b32 {S(sT1)}, {S(sT1)}, 2.0\ns_movk_i32 {S(sT2)}, 1024")
        a(f"s_cmp_lt_u32 {S(sPj)}, 352\ns_cselect_b32 {S(sPk)}, {S(sT0)}, {S(sT1)}\ns_cselect_b32 {S(sT0)}, 16384, {S(sT2)}\ns_cselect_b32 {S(sT1)}, 512, {S(sT2)}\ns_cselect_b32 {S(sT2)}, 0, 1")
        for t in range(1, 4): a(f"s_add_u32 {S(sPk + t)}, {S(sPk + t - 1)}, {S(sT0)}")
        a(f"v_and_b32 {R(T)}, {S(sT2)}, {R(G)}")
        a(f"v_lshlrev_b32 {R(self.vTr)}, 1, {R(G)}")
        a(f"v_sub_u32 {R(T)}, {R(self.vTr)}, {R(T)}")
        a(f"v_lshl_add_u32 {R(T)}, {R(T)}, 9, {S(sStg)}")
        a(f"v_and_b32 {R(self.vTr)}, 12, {R(L)}")
        a(f"v_lshl_add_u32 {R(T)}, {R(self.vTr)}, 5, {R(T)}")
        a(f"v_and_b32 {R(self.vTr)}, 3, {R(L)}")
        a(f"v_lshl_add_u32 {R(self.vTr)}, {R(self.vTr)}, 3, {R(T)}")
        a(f"v_add_u32 {R(self.vTr + 1)}, {S(sT1)}, {R(self.vTr)}")
    def pack_out(self):
        a = self.a; PK = self.PK
        a(f"s_waitcnt vmcnt({sum(1 for t, _ in a.vm if t > self.pkpos)})")
        self.stamp("pk_in")
        for t in range(4):
            for h in range(2): a(f"ds_read_b64_tr_b16 {R(PK + 4 * t + 2 * h, 2)}, {R(self.vTr + h)} offset:{32 * t}")
        for t in range(4):
            self.pktok = a(f"buffer_store_dwordx4 {R(PK + 4 * t, 4)}, {R(self.vL16)}, {S(sWS, 4)}, {S(sPk + t)} offen sc1")
        self.va.free(self.vTr); self.vb.free(self.PK)
    def pack_wait(self):
        self.a.wait_vm(self.pktok); self.pkdone = self.curbar
    def l1(self, ks):
        assert self.usable(1)
        for T in range(3):
            q = self.W1(ks, T)
            assert not any((q + k) in self.va.used for k in range(4)), ("w1 registers in use", ks)
            self.a(f"buffer_load_dwordx4 {R(q, 4)}, {R(self.vW1 + T)}, {S(sWS, 4)}, {S(sOff + 4 + (ks >> 2))} offen offset:{(ks & 3) * 1024}{self.cfg.get('wflag', ' sc1')}")
        self.loaded.add((1, ks))
    def l2(self, i):
        assert "b4" in self.bars
        self.a(f"s_lshl2_add_u32 {S(sD0)}, {S(sKap + i)}, {S(sU0)}")
        for t in range(4):
            q = self.W2(i, t)
            assert not any((q + k) in self.va.used for k in range(4)), ("w2 registers in use", i, self.va.used.get(q))
            self.a(f"buffer_load_dwordx4 {R(q, 4)}, {R(self.vL16)}, {S(sWS, 4)}, {S(sD0)} offen offset:{t * 1024}{self.cfg.get('wflag', ' sc1')}")
        self.loaded.add((2, i))
    def usable(self, k):
        idx = lambda n: (self.bars + ["b5"]).index(n)
        last1 = "e1" if "e1" in self.bars else "b1"
        if idx(self.pkdone) <= idx(last1): return idx(self.curbar) > idx("b2")
        assert idx(self.pkdone) <= idx("e2" if "e2" in self.bars else "b3")
        return idx(self.curbar) > idx("b4")
    def bcut(self):
        if self.cfg.get("bnear", 1):
            self.a("s_branch L_contB"); self.bend = len(self.a.ins); self.a("L_contB:")
    def vmwait(self, n): self.a(f"s_waitcnt vmcnt({n})")
    def plist(self, name):
        out = []
        for op, item in self.sched.get(name, []):
            out.append(lambda op=op, item=item: getattr(self, op)(*item))
        return out
    def fake(self, *items):
        for it in items: self.cleared.add(it)
        self.clrdone = set(self.cleared)
    def freeW(self): self.va.free(self.aW, self.aR)
    def mark(self, name): self.stamp(name)
    def sleep(self, n): self.a(f"s_sleep {n}")
    def drainvm(self, name):
        self.a.wait_vm_all(); self.stamp(name)
    def point(self, name): self.a.run(self.plist(name))
    def weave(self, mains, fills, f0=0.0, f1=1.0):
        a = self.a
        lst = []
        for op, item in mains: lst += a.capture(getattr(self, op), *item)
        glued = []
        for x in lst:
            if glued and isinstance(glued[-1], str) and glued[-1].split("\n")[-1].startswith("s_cmp"): glued[-1] += "\n" + x
            else: glued.append(x)
        self.sched["_w"] = fills
        a.run(spread(glued, (self.plist("_w"), int(f0 * len(glued)), int(f1 * len(glued)))))
    def prologue(self):
        a = self.a; va = self.va
        self.stamp("entry")
        a(f"s_load_dwordx2 {S(sX, 2)}, s[0:1], 0")
        a(f"s_load_dwordx2 {S(sWS, 2)}, s[0:1], 64")
        a(f"s_load_dwordx4 {S(sOff + 4, 4)}, s[0:1], 8")
        a(f"s_load_dwordx4 {S(sOff + 8, 4)}, s[0:1], 32")
        a(f"s_load_dwordx2 {S(sO, 2)}, s[0:1], 48")
        a(f"s_cmp_ge_u32 s2, 256\ns_cbranch_scc1 L_end")
        self.vT = va(1, "T"); self.vL16 = va(1, "l16"); self.vZero = va(1, "zero")
        self.vL = va(1, "lane"); self.vLi = va(1, "li"); self.vG = va(1, "g"); self.vPf = va(1, "pf"); self.vM1 = va(4, "m1")
        L, Li, G, T = self.vL, self.vLi, self.vG, self.vT
        a("s_getpc_b64 s[4:5]")
        a(f"s_lshr_b32 {S(sM)}, s2, 3\ns_and_b32 {S(sT0)}, {S(sM)}, 3\ns_lshl_b32 {S(sT0)}, {S(sT0)}, 13")
        a(f"v_lshrrev_b32 {R(T)}, 3, v0")
        a(f"v_lshl_add_u32 {R(T)}, {R(T)}, 7, {S(sT0)}")
        a(f"global_load_dword {R(self.vPf)}, {R(T)}, s[4:5]")
        a(f"v_lshrrev_b32 {R(T)}, 6, v0")
        a(f"v_and_b32 {R(Li)}, 15, v0")
        a(f"v_readfirstlane_b32 s3, {R(T)}")
        a(f"v_bfe_u32 {R(G)}, v0, 4, 2")
        a(f"s_and_b32 {S(sK1)}, s2, 7")
        a(f"s_cmp_ge_u32 s3, 4\ns_cbranch_scc1 L_roleB")
    def common(self):
        a = self.a; L = self.vL
        a(f"v_and_b32 {R(L)}, 63, v0")
        if self.role == "B": a(f"s_mov_b32 {S(sWS + 2)}, {WS_SIZE}\ns_mov_b32 {S(sWS + 3)}, 0x20000")
        if self.stamps:
            a(f"s_mov_b32 {S(sRet)}, 0\ns_mov_b32 {S(sRet + 1)}, 0")
            for k in range(1, len(self.stamps)):
                if self.stamps[k] != ("u0" if self.bars else "karg"): a(f"s_mov_b32 {S(sStamp + 2 * k)}, 0")
        a(f"s_and_b32 {S(sW)}, s3, 3")
        a(f"s_lshl_b32 {S(sN)}, {S(sK1)}, 5\ns_or_b32 {S(sN)}, {S(sN)}, {S(sM)}")
        a(f"s_and_b32 {S(sMem)}, {S(sM)}, 7")
        a(f"s_lshr_b32 {S(sRot)}, {S(sM)}, 3\ns_mul_i32 {S(sRot)}, {S(sRot)}, {self.cfg.get('rot1', 4)}")
        if self.cfg.get("xrot1"): a(f"s_mul_i32 {S(sT0)}, {S(sK1)}, {self.cfg['xrot1']}\ns_xor_b32 {S(sRot)}, {S(sRot)}, {S(sT0)}\ns_and_b32 {S(sRot)}, {S(sRot)}, 12")
        a(f"v_mov_b32 {R(self.vZero)}, 0")
        a(f"v_lshlrev_b32 {R(self.vL16)}, 4, {R(L)}")
        if self.bars:
            for i in range(4): a(f"v_mov_b32 {R(self.vM1 + i)}, -1")
        a(f"s_lshl_b32 {S(sT0)}, {S(sN)}, 13\ns_lshl_b32 {S(sT1)}, {S(sW)}, 11\ns_add_u32 {S(sOwn)}, {S(sT0)}, {S(sT1)}")
    def srds(self, first=0):
        a = self.a
        for reg, src, n in ((sWR, sOff + 4, 2048 * 514), (sWI, sOff + 6, 2048 * 514))[first:]:
            a(f"s_mov_b64 {S(reg, 2)}, {S(src, 2)}\ns_mov_b32 {S(reg + 2)}, {n}\ns_mov_b32 {S(reg + 3)}, 0x20000")
    def prologue_a(self):
        a = self.a; va = self.va; Li, G = self.vLi, self.vG
        self.aHf = va(1, "aHf"); self.aRw = va(2, "aRw", 1); self.aHw = va(1, "aHw")
        self.aHd = va(1, "aHd")
        self.X = va(8, "X"); aX = va(1, "aX"); self.vEp = va(1, "ep")
        a(f"s_lshl_b32 {S(sS2)}, {S(sK1)}, 4\ns_and_b32 {S(sT0)}, {S(sM)}, 15\ns_or_b32 {S(sS2)}, {S(sS2)}, {S(sT0)}")
        a(f"s_and_b32 {S(sT0)}, s2, 0x80\ns_or_b32 {S(sS2)}, {S(sS2)}, {S(sT0)}")
        a(f"v_lshlrev_b32 {R(aX)}, 2, {R(Li)}")
        a(f"v_lshl_add_u32 {R(aX)}, {R(G)}, 8, {R(aX)}")
        a(f"s_lshl_b32 {S(sT0)}, s3, 19\ns_lshl_b32 {S(sT1)}, {S(sS2)}, 10")
        a(f"s_add_u32 {S(sOff)}, {S(sT0)}, {S(sT1)}\ns_add_u32 {S(sOff + 1)}, {S(sOff)}, 0x40000")
        a(f"s_mov_b32 {S(sX + 2)}, 0x200000\ns_mov_b32 {S(sX + 3)}, 0x20000")
        a(f"s_mov_b32 {S(sWS + 2)}, {WS_SIZE}\ns_mov_b32 {S(sWS + 3)}, 0x20000\ns_mov_b32 {S(sT2)}, {EPO}")
        if self.cfg.get("prio", (1, 0, 2))[0]: a("s_setprio %d" % self.cfg.get("prio", (1, 0, 2))[0])
        self.point("pre_karg")
        a("s_waitcnt lgkmcnt(0)")
        self.stamp("karg")
        for rho in range(2):
            for r in range(4):
                a(f"buffer_load_dword {R(self.X + 4 * rho + r)}, {R(aX)}, {S(sX, 4)}, {S(sOff + rho)} offen offset:{64 * r}")
        a(f"buffer_load_dword {R(self.vEp)}, off, {S(sWS, 4)}, {S(sT2)} sc1")
        va.free(aX)
        if self.cfg.get("bnear", 1):
            a("s_branch L_contA"); self.splice = len(a.ins); a("L_contA:")
        self.common()
        a(f"s_mul_i32 {S(sStg)}, {S(sW)}, {ARW}\ns_add_u32 {S(sStg)}, {S(sStg)}, {AR}")
        a(f"s_mov_b32 {S(sOnes)}, 0x3f803f80\ns_mov_b32 {S(sMask)}, 0x00030003")
        a(f"v_add_u32 {R(self.aHf)}, {S(sStg)}, {R(self.vL16)}")
        a(f"v_mov_b32 {R(self.vT)}, {S(sStg)}")
        a(f"ds_write_b32 {R(self.vT)}, {R(self.vZero)} offset:15360")
    def clear(self, base, i):
        a = self.a
        a(f"s_add_u32 {S(sU0)}, {S(sOwn)}, {base + 1024 * i}")
        t = a(f"buffer_store_dwordx4 {R(self.vM1, 4)}, {R(self.vL16)}, {S(sWS, 4)}, {S(sU0)} offen sc1")
        self.tokclr = self.tokhn = t
        self.cleared.add((base, i))
    def preclr(self, n):
        a = self.a
        a(f"s_mov_b32 {S(sWS + 2)}, {WS_SIZE}\ns_mov_b32 {S(sWS + 3)}, 0x20000\ns_lshl_b32 s4, s2, 2\ns_or_b32 s4, s4, {S(sW)}\ns_lshl_b32 s4, s4, 12\ns_or_b32 s4, s4, {HB}")
        a(f"v_lshlrev_b32 {R(self.vL16)}, 4, {R(self.vL)}")
        for i in range(4): a(f"v_mov_b32 {R(self.vM1 + i)}, -1")
        au = a.auto; a.auto = False
        for i in range(n): a(f"buffer_store_dwordx4 {R(self.vM1, 4)}, {R(self.vL16)}, {S(sWS, 4)}, s4 offen offset:{1024 * i} sc1")
        a.auto = au
    def clear_H(self, i):
        a = self.a
        a(f"s_add_u32 {S(sU0)}, {S(sHb)}, {HB + 1024 * i}")
        if i == 5: a("s_mov_b32 exec_hi, 0")
        self.tokclr = a(f"buffer_store_dwordx4 {R(self.vM1, 4)}, {R(self.vL16)}, {S(sWS, 4)}, {S(sU0)} offen sc1")
        if i == 5: a("s_mov_b32 exec_hi, -1")
        self.cleared.add((HB, i))
    def w_addr(self):
        a = self.a; va = self.va; L, T = self.vL, self.vT
        k = va(1, "k"); u = va(1, "u"); self.aW = va(1, "aW"); self.aR = va(1, "aR")
        if self.role == "A": self.srds()
        a(f"s_lshl_b32 {S(sT0)}, {S(sW)}, 5\ns_and_b32 {S(sT1)}, s2, 15\ns_add_u32 {S(sT0)}, {S(sT0)}, {S(sT1)}")
        a(f"v_and_b32 {R(k)}, 0x19, {R(L)}")
        a(f"v_lshl_add_u32 {R(k)}, {R(k)}, 4, {S(sT0)}")
        a(f"v_and_b32 {R(T)}, 6, {R(L)}")
        a(f"v_lshl_add_u32 {R(k)}, {R(T)}, 8, {R(k)}")
        a(f"v_cmp_gt_u32 vcc, 32, {R(L)}")
        a(f"s_lshr_b32 {S(sT0)}, {S(sM)}, 1\ns_lshl_b32 {S(sT0)}, {S(sT0)}, 4\ns_sub_u32 {S(sT1)}, 498, {S(sT0)}")
        a(f"v_sub_u32 {R(u)}, 0, {R(k)}")
        a(f"v_and_b32 {R(u)}, 2047, {R(u)}")
        a(f"v_mul_u32_u24 {R(k)}, 514, {R(k)}")
        a(f"v_mul_u32_u24 {R(u)}, 514, {R(u)}")
        a(f"v_add_u32 {R(T)}, {S(sT0)}, {R(k)}")
        a(f"v_add_u32 {R(u)}, {S(sT1)}, {R(u)}")
        a(f"v_cndmask_b32 {R(self.aW)}, {R(u)}, {R(T)}, vcc")
        a(f"v_cndmask_b32 {R(self.aR)}, 2.0, {R(k)}, vcc")
        va.free(k, u)
        a(f"s_cmp_ge_u32 {S(sM)}, 2\ns_cselect_b32 {S(sOff + 9)}, 2.0, 0")
        self.WL = self.vb(10, "WL")
    def w_load(self, x):
        self.a(f"buffer_load_dwordx4 {R(self.WL + 4 * x, 4)}, {R(self.aW)}, {S((sWR, sWI)[x], 4)}, 0 offen")
    def w_spec(self):
        for x in range(2): self.a(f"buffer_load_ushort {R(self.WL + 8 + x)}, {R(self.aR)}, {S((sWR, sWI)[x], 4)}, {S(sOff + 9)} offen offset:256")
    def w_stage(self):
        a = self.a; va = self.va; L, Li, G, T = self.vL, self.vLi, self.vG, self.vT
        self.Wraw = self.vb(16, "Wraw")
        aw = va(1, "aw"); aP = va(1, "aP"); aQ = va(1, "aQ")
        a(f"s_add_u32 {S(sT0)}, {S(sStg)}, 4096")
        a(f"v_add_u32 {R(aw)}, {S(sT0)}, {R(self.vL16)}")
        a(f"v_and_b32 {R(T)}, 1, {R(Li)}")
        a(f"v_lshl_add_u32 {R(T)}, {R(G)}, 1, {R(T)}")
        a(f"v_lshl_add_u32 {R(T)}, {R(T)}, 4, {S(sT0)}")
        a(f"v_and_or_b32 {R(aP)}, {R(Li)}, 14, {R(T)}")
        a(f"v_xor_b32 {R(aQ)}, 14, {R(aP)}")
        for i in range(16): a(f"v_mov_b32 {R(self.Wraw + i)}, 0")
        for x in range(2): a(f"ds_write_b128 {R(aw)}, {R(self.WL + 4 * x, 4)} offset:{1024 * x}")
        Ls = a.label("nor")
        a(f"v_mov_b32 {R(self.WL + 9)}, {R(self.WL + 9)}")
        a(f"s_cmp_ge_u32 {S(sM)}, 2\ns_cbranch_scc1 {Ls}")
        a.auto = False
        a("s_mov_b32 exec_hi, 0")
        for x in range(2): a(f"ds_write_b16 {R(aw)}, {R(self.WL + 8 + x)} offset:{1024 * x}")
        a("s_mov_b32 exec_hi, -1")
        a.auto = True
        a(Ls + ":")
        for r in range(4):
            for x in range(2):
                a(f"ds_read_u16_d16_hi {R(self.Wraw + 4 * x + r)}, {R(aP)} offset:{1024 * x + 128 * r}")
                a(f"ds_read_u16_d16_hi {R(self.Wraw + 8 + 4 * x + r)}, {R(aQ)} offset:{1024 * x + 128 * r + 512}")
        self.vb.free(self.WL); va.free(aw, aP, aQ, self.aW, self.aR)
    def w_coefs(self):
        a = self.a; va = self.va; T = self.vT; W = self.Wraw
        sc = 2.0 ** -19 * 1.0039
        K = va(4, "K")
        al, be, c, s = (K + i for i in range(4))
        a(f"s_lshr_b32 {S(sT0)}, {S(sM)}, 1\ns_lshl_b32 {S(sT0)}, {S(sT0)}, 4")
        a(f"v_and_or_b32 {R(T)}, {R(self.vLi)}, 14, {S(sT0)}")
        a(f"v_cmp_ne_u32 vcc, 0, {R(T)}")
        a(f"v_mov_b32 {R(al)}, {fl(0.25)}")
        a(f"v_cvt_f32_u32 {R(T)}, {R(T)}")
        a(f"v_mul_f32 {R(T)}, {fl(1 / 1024)}, {R(T)}")
        a(f"v_cndmask_b32 {R(T)}, {R(al)}, {R(T)}, vcc")
        self.sincos(c, s, T)
        a(f"v_mul_f32 {R(c)}, {fl(sc / 2)}, {R(c)}")
        a(f"v_mul_f32 {R(s)}, {fl(sc / 2)}, {R(s)}")
        a(f"v_cndmask_b32 {R(c)}, 0, {R(c)}, vcc")
        a(f"v_sub_f32 {R(al)}, {fl(sc / 2)}, {R(s)}")
        a(f"v_add_f32 {R(be)}, {fl(sc / 2)}, {R(s)}")
        self.CF = self.vb(24, "CF")
        A1r, A1i, Br, Bi, A2r, A2i = (self.CF + 4 * i for i in range(6))
        Pr, Pi, Qr, Qi = (W + 4 * i for i in range(4))
        lo2 = " op_sel_hi:[1,0]"; hi2 = " op_sel:[0,1] op_sel_hi:[1,1]"
        lo3 = " op_sel_hi:[1,0,1]"; hi3 = " op_sel:[0,1,0] op_sel_hi:[1,1,1]"
        n2 = " neg_lo:[0,1] neg_hi:[0,1]"; n3 = " neg_lo:[0,1,0] neg_hi:[0,1,0]"
        P = lambda x: R(x, 2)
        for k in (0, 2):
            a(f"v_pk_mul_f32 {P(A1r + k)}, {P(Pr + k)}, {P(al)}" + lo2)
            a(f"v_pk_mul_f32 {P(A2r + k)}, {P(Pr + k)}, {P(al)}" + hi2)
            a(f"v_pk_add_f32 {P(Bi + k)}, {P(Pr + k)}, {P(Qr + k)}" + n2)
            a(f"v_pk_mul_f32 {P(A1i + k)}, {P(Pi + k)}, {P(al)}" + lo2)
            a(f"v_pk_mul_f32 {P(A2i + k)}, {P(Pi + k)}, {P(al)}" + hi2)
            a(f"v_pk_add_f32 {P(Br + k)}, {P(Pi + k)}, {P(Qi + k)}")
            a(f"v_pk_fma_f32 {P(A1r + k)}, {P(Qr + k)}, {P(al)}, {P(A1r + k)}" + hi3)
            a(f"v_pk_fma_f32 {P(A2r + k)}, {P(Qr + k)}, {P(al)}, {P(A2r + k)}" + lo3)
            a(f"v_pk_mul_f32 {P(Bi + k)}, {P(Bi + k)}, {P(c)}" + lo2)
            a(f"v_pk_fma_f32 {P(A1i + k)}, {P(Qi + k)}, {P(al)}, {P(A1i + k)}" + hi3 + n3)
            a(f"v_pk_fma_f32 {P(A2i + k)}, {P(Qi + k)}, {P(al)}, {P(A2i + k)}" + lo3 + n3)
            a(f"v_pk_mul_f32 {P(Br + k)}, {P(Br + k)}, {P(c)}" + lo2 + n2)
        if self.role == "A":
            self.cf_own = True; va.free(K); self.vb.free(W); return
        a(f"s_mul_i32 {S(sT0)}, {S(sW)}, {ARW}\ns_add_u32 {S(sT0)}, {S(sT0)}, {AR + 4096}")
        a(f"v_add_u32 {R(T)}, {S(sT0)}, {R(self.vL16)}")
        for i in range(6): a(f"ds_write_b128 {R(T)}, {R(self.CF + 4 * i, 4)} offset:{1024 * i}")
        a.wait_lg_all()
        self.cf_sent = True
        va.free(K); self.vb.free(W, self.CF)
    def tables_p1(self):
        a = self.a; va = self.va; Li, G, T = self.vLi, self.vG, self.vT
        self.M = va(8, "M"); self.M2 = va(8, "M2"); self.TW = va(8, "TW"); self.Gm = va(8, "G")
        p = va(1, "p"); c = va(1, "c"); s = va(1, "s"); u = va(1, "u"); f = va(1, "f")
        a(f"v_mul_u32_u24 {R(p)}, {R(Li)}, {R(G)}")
        a(f"v_cvt_f32_u32 {R(f)}, {R(Li)}")
        a(f"v_cvt_f32_u32 {R(p)}, {R(p)}")
        a(f"v_mul_f32 {R(p)}, {fl(1 / 64)}, {R(p)}")
        for r in range(4):
            if r: a(f"v_fmamk_f32 {R(p)}, {R(f)}, {fl(1 / 256)}, {R(p)}")
            a(f"v_mul_f32 {R(T)}, {fl(16.0)}, {R(p)}")
            a(f"v_fract_f32 {R(T)}, {R(T)}")
            self.sincos(c, s, T)
            self.sincos(self.TW + r, self.TW + 4 + r, p)
            a(f"v_cvt_pk_bf16_f32 {R(self.M + r)}, {R(c)}, {R(s)}")
            a(f"v_cvt_pk_bf16_f32 {R(self.M + 4 + r)}, -{R(s)}, {R(c)}")
            a(f"v_cvt_pk_f16_f32 {R(self.M2 + r)}, {R(c)}, {R(s)}")
            a(f"v_cvt_pk_f16_f32 {R(self.M2 + 4 + r)}, -{R(s)}, {R(c)}")
        msk = va(1, "msk"); sg = va(1, "sg")
        a(f"v_lshrrev_b32 {R(u)}, 1, {R(Li)}")
        a(f"v_and_b32 {R(p)}, 1, {R(G)}")
        a(f"v_lshl_add_u32 {R(p)}, {R(p)}, 10, {S(sS2)}")
        a(f"v_mul_u32_u24 {R(p)}, {R(p)}, {R(u)}")
        a(f"v_cvt_f32_u32 {R(f)}, {R(u)}")
        a(f"v_cvt_f32_u32 {R(p)}, {R(p)}")
        a(f"v_lshrrev_b32 {R(msk)}, 1, {R(G)}")
        a(f"v_mul_f32 {R(p)}, {fl(1 / 2048)}, {R(p)}")
        a(f"v_xor_b32 {R(msk)}, {R(msk)}, {R(Li)}")
        a(f"v_and_b32 {R(msk)}, 1, {R(msk)}")
        a(f"v_add_u32 {R(msk)}, -1, {R(msk)}")
        a(f"v_lshlrev_b32 {R(sg)}, 31, {R(Li)}")
        for r in range(4):
            if r: a(f"v_fmamk_f32 {R(p)}, {R(f)}, {fl(1 / 8)}, {R(p)}")
            self.sincos(c, s, p)
            a(f"v_cvt_pk_f16_f32 {R(self.Gm + r)}, {R(c)}, {R(s)}")
            a(f"v_cvt_pk_f16_f32 {R(self.Gm + 4 + r)}, -{R(s)}, {R(c)}")
            for q in (self.Gm + r, self.Gm + 4 + r):
                a(f"v_bitop3_b32 {R(q)}, {R(q)}, {R(sg)}, {R(msk)} bitop3:0x28")
        self.vMsk = msk
        va.free(sg, p, s, f)
        self.aE1w = va(1, "aE1w"); self.aE1r = va(2, "aE1r", 1); self.aZ1 = va(1, "aZ1"); self.v16 = va(1, "m16")
        a(f"s_lshr_b32 {S(sT0)}, {S(sW)}, 1\ns_lshl_b32 {S(sT0)}, {S(sT0)}, 12\ns_and_b32 {S(sT1)}, {S(sW)}, 1\ns_lshl_b32 {S(sT1)}, {S(sT1)}, 3")
        a(f"s_add_u32 {S(sT0)}, {S(sT0)}, {S(sT1)}\ns_add_u32 {S(sT0)}, {S(sT0)}, {EA}")
        a(f"v_lshl_add_u32 {R(self.aE1w)}, {R(Li)}, 4, {S(sT0)}")
        a(f"v_lshl_add_u32 {R(self.aE1w)}, {R(G)}, 10, {R(self.aE1w)}")
        hh = va(1, "hh")
        a(f"v_and_b32 {R(hh)}, 1, {R(G)}")
        a(f"v_lshlrev_b32 {R(u)}, 18, {R(u)}")
        a(f"v_lshl_add_u32 {R(u)}, {R(hh)}, 4, {R(u)}")
        a(f"v_and_b32 {R(T)}, 2, {R(G)}")
        a(f"v_and_or_b32 {R(T)}, {R(Li)}, 1, {R(T)}")
        a(f"v_lshl_add_u32 {R(self.aZ1)}, {R(T)}, 5, {R(u)}")
        a(f"s_movk_i32 {S(sT1)}, {EA // 16}")
        a(f"v_lshl_add_u32 {R(hh)}, {R(hh)}, 8, {S(sT1)}")
        a(f"s_lshl_b32 {S(sT0)}, {S(sW)}, 5")
        q = self.aE1r
        a(f"v_add_u32 {R(q)}, {S(sT0)}, {R(Li)}")
        a(f"v_cmp_eq_u32 vcc, 0, {R(q)}")
        a(f"v_cmp_lt_u32 s[4:5], 1, {R(G)}")
        a(f"v_sub_u32 {R(c)}, 256, {R(q)}")
        a(f"v_add_u32 {R(q + 1)}, 16, {R(q)}")
        a(f"v_add_u32 {R(u)}, -16, {R(c)}")
        a(f"v_mov_b32 {R(T)}, 128")
        a(f"v_cndmask_b32 {R(c)}, {R(c)}, {R(T)}, vcc")
        a(f"v_cndmask_b32 {R(q)}, {R(q)}, {R(c)}, s[4:5]")
        a(f"v_cndmask_b32 {R(q + 1)}, {R(q + 1)}, {R(u)}, s[4:5]")
        a(f"v_cmp_eq_u32 vcc, 0, {R(Li)}")
        a(f"v_add_lshl_u32 {R(q)}, {R(q)}, {R(hh)}, 4")
        a(f"v_add_lshl_u32 {R(q + 1)}, {R(q + 1)}, {R(hh)}, 4")
        a(f"v_mov_b32 {R(T)}, {fl(16.0)}")
        a(f"v_cndmask_b32 {R(self.v16)}, 0, {R(T)}, vcc")
        va.free(c, hh, u)
        self.ST = va(8, "ST"); self.vMu = va(1, "mu")
        for i in range(4): a(f"v_mov_b32 {R(self.ST + i)}, 0")
        a(f"s_lshl_b32 {S(sT0)}, {S(sW)}, 16\ns_lshl_b32 {S(sT1)}, s2, 7\ns_add_u32 {S(sOff + 2)}, {S(sT0)}, {S(sT1)}\ns_add_u32 {S(sOff + 3)}, {S(sOff + 2)}, 32768")
    def tags(self):
        a = self.a; va = self.va; Li, G = self.vLi, self.vG
        self.TG = va(4, "TG", 1); self.TG2 = va(1, "TG2"); u = self.vEp; T = self.vPf
        a(f"v_readfirstlane_b32 {S(sEp)}, {R(self.vEp)}")
        a(f"v_and_b32 {R(u)}, 1, {R(G)}")
        a(f"v_lshlrev_b32 {R(u)}, 4, {R(u)}")
        a(f"s_add_u32 {S(sT2)}, {S(sEp)}, 1\ns_and_b32 {S(sT2)}, {S(sT2)}, 15")
        a(f"s_and_b32 {S(sEp)}, {S(sEp)}, 0xfffffff0")
        a(f"s_and_b32 {S(sCnt)}, {S(sEp)}, 0xfefefef0\ns_or_b32 {S(sCnt)}, {S(sCnt)}, 0x10101010")
        a(f"s_or_b32 {S(sEp)}, {S(sEp)}, {S(sT2)}")
        a(f"s_mul_i32 {S(sT2)}, {S(sT2)}, 0x01010101")
        a(f"s_and_b32 {S(sU0)}, {S(sCnt)}, 0x0f0f0f0f\ns_add_u32 {S(sU0)}, {S(sU0)}, {S(sT2)}\ns_and_b32 {S(sU0)}, {S(sU0)}, 0x0f0f0f0f")
        a(f"s_lshr_b32 {S(sCnt)}, {S(sCnt)}, 4\ns_and_b32 {S(sCnt)}, {S(sCnt)}, 0x0f0f0f0f\ns_add_u32 {S(sCnt)}, {S(sCnt)}, {S(sT2)}\ns_and_b32 {S(sCnt)}, {S(sCnt)}, 0x0f0f0f0f")
        a(f"s_lshl_b32 {S(sCnt)}, {S(sCnt)}, 4\ns_or_b32 {S(sTag)}, {S(sCnt)}, {S(sU0)}")
        a(f"v_bfe_u32 {R(u)}, {S(sTag)}, {R(u)}, 16")
        a(f"v_and_b32 {R(T)}, 7, {R(Li)}")
        a(f"v_lshlrev_b32 {R(T)}, 2, {R(T)}")
        a(f"v_lshl_or_b32 {R(self.TG)}, {R(u)}, 14, {R(u)}")
        a(f"v_bfe_u32 {R(T)}, {S(sTag)}, {R(T)}, 4")
        for r in range(1, 4): a(f"v_lshrrev_b32 {R(self.TG + r)}, {4 * r}, {R(self.TG)}")
        a(f"v_lshl_or_b32 {R(T)}, {R(T)}, 14, {R(T)}")
        a(f"v_and_b32 {R(self.TG2)}, {S(sMask)}, {R(T)}")
        self.later_free = [self.vEp, self.vPf]
    def p1(self):
        a = self.a; va = self.va; X = self.X; M = self.M; M2 = self.M2; ST = self.ST
        D = va(16, "D"); E = va(16, "E"); cs = va(8, "cs")
        for rho in range(2):
            for ri in range(2):
                a(f"v_mfma_f32_16x16x32_bf16 {R(D + 8 * rho + 4 * ri, 4)}, {R(X + 4 * rho, 4)}, {R(M + 4 * ri, 4)}, 0")
        self.stamp("x_in")
        st = a.capture(self.stats, X, ST, 1.0, self.v16)
        tg = a.capture(self.tags)
        a.run(spread(st, (tg, 16, len(st)), (self.plist("p1_a"), 16, len(st))))
        va.free(*self.later_free)
        for rho in range(2):
            for k in range(0, 8, 2):
                a(f"v_pk_mul_f32 {R(cs + k, 2)}, {R(self.TW + k, 2)}, {R(ST + 2 * rho, 2)} op_sel_hi:[1,0]")
            self.cmul(E + 8 * rho, E + 8 * rho + 4, D + 8 * rho, D + 8 * rho + 4, cs, cs + 4, False, addend=ST + 4 + 2 * rho)
            for r in range(4):
                a(f"v_cvt_pk_f16_f32 {R(X + 4 * rho + r)}, {R(E + 8 * rho + r)}, {R(E + 8 * rho + 4 + r)}")
            for ri in range(2):
                a(f"v_mfma_f32_16x16x32_f16 {R(D + 8 * rho + 4 * ri, 4)}, {R(M2 + 4 * ri, 4)}, {R(X + 4 * rho, 4)}, 0")
        for r in range(4): a(f"v_cvt_pk_f16_f32 {R(E + 2 * r)}, {R(D + r)}, {R(D + 4 + r)}")
        for r in range(4):
            a(f"v_cvt_pk_f16_f32 {R(E + 2 * r + 1)}, {R(D + 8 + r)}, {R(D + 12 + r)}")
            a(f"ds_write_b64 {R(self.aE1w)}, {R(E + 2 * r, 2)} offset:{256 * r}")
        a.wait_lg_all(); self.bar("b1")
        for t in range(2):
            a(f"ds_read_b128 {R(X + 4 * t, 4)}, {R(self.aE1r + t)}")
        for t in range(2):
            for ri in range(2):
                a(f"v_mfma_f32_16x16x32_f16 {R(D + 8 * t + 4 * ri, 4)}, {R(X + 4 * t, 4)}, {R(self.Gm + 4 * ri, 4)}, 0")
        self.point("p1_e")
        for t in range(2):
            for r in range(4):
                a(f"v_cvt_pk_f16_f32 {R(E + 4 * t + r)}, {R(D + 8 * t + r)}, {R(D + 8 * t + 4 + r)}")
            for r in range(4):
                a(f"v_bfi_b32 {R(E + 4 * t + r)}, {S(sMask)}, {R(self.TG + r)}, {R(E + 4 * t + r)}")
            a(f"buffer_store_dwordx4 {R(E + 4 * t, 4)}, {R(self.aZ1)}, {S(sWS, 4)}, {S(sOff + 2 + t)} offen sc1")
        self.stamp("z1_st")
        va.free(D, E, cs, X, self.Gm, self.aE1w, self.aE1r, self.aZ1, self.v16, self.TG)
    def tables_p2a(self):
        a = self.a; va = self.va; Li, G, T = self.vLi, self.vG, self.vT
        self.M1 = self.vb(16, "M1")
        ka = va(1, "ka"); f0 = va(1, "f0"); c = va(2, "c", 1); s = va(2, "s", 1)
        a(f"s_and_b32 {S(sT0)}, {S(sM)}, 1\ns_lshl_b32 {S(sT1)}, {S(sW)}, 2")
        a(f"v_and_or_b32 {R(ka)}, {R(Li)}, 14, {S(sT0)}")
        a(f"v_lshl_add_u32 {R(f0)}, {R(G)}, 6, {S(sT1)}")
        a(f"v_and_b32 {R(T)}, 1, {R(Li)}")
        a(f"v_lshlrev_b32 {R(T)}, 6, {R(T)}")
        a(f"v_mad_u32_u24 {R(f0)}, {R(f0)}, {R(ka)}, {R(T)}")
        a(f"v_and_b32 {R(f0)}, 255, {R(f0)}")
        a(f"v_cvt_f32_u32 {R(ka)}, {R(ka)}")
        a(f"v_cvt_f32_u32 {R(f0)}, {R(f0)}")
        a(f"v_mul_f32 {R(f0)}, {fl(1 / 256)}, {R(f0)}")
        for n in range(17):
            if n < 16:
                be, r = n >> 2, n & 3
                if n: a(f"v_fmamk_f32 {R(T)}, {R(ka)}, {fl(be / 256 + r / 16)}, {R(f0)}")
                self.sincos(c + (n & 1), s + (n & 1), T if n else f0)
            if n: a(f"v_cvt_pk_f16_f32 {R(self.M1 + n - 1)}, {R(c + ((n - 1) & 1))}, {R(s + ((n - 1) & 1))}")
        va.free(ka, f0, c, s)
    def tables_p2b(self):
        a = self.a; va = self.va; Li, G, T = self.vLi, self.vG, self.vT
        self.M5 = self.vb(16, "M5")
        b = va(1, "b"); st = va(1, "st"); f0 = va(1, "f0"); c = va(1, "c"); s = va(1, "s"); ih = va(1, "ih")
        a(f"s_and_b32 {S(sT0)}, {S(sM)}, 1\ns_lshl_b32 {S(sT1)}, {S(sW)}, 2")
        a(f"v_and_or_b32 {R(b)}, {R(Li)}, 1, {S(sT1)}")
        a(f"v_and_b32 {R(ih)}, 1, {R(G)}")
        a(f"v_lshlrev_b32 {R(ih)}, 2, {R(ih)}")
        for t in range(2):
            if t: a(f"v_add_u32 {R(b)}, 2, {R(b)}")
            a(f"v_and_b32 {R(st)}, 14, {R(Li)}")
            a(f"v_lshl_add_u32 {R(st)}, {R(st)}, 3, {R(b)}")
            a(f"v_lshlrev_b32 {R(st)}, 1, {R(st)}")
            a(f"v_mul_u32_u24 {R(f0)}, {S(sT0)}, {R(b)}")
            a(f"v_mad_u32_u24 {R(f0)}, {R(ih)}, {R(st)}, {R(f0)}")
            a(f"v_cvt_f32_u32 {R(st)}, {R(st)}")
            a(f"v_cvt_f32_u32 {R(f0)}, {R(f0)}")
            a(f"v_mul_f32 {R(f0)}, {fl(1 / 256)}, {R(f0)}")
            for r in range(4):
                if r: a(f"v_fmamk_f32 {R(f0)}, {R(st)}, {fl(1 / 256)}, {R(f0)}")
                self.sincos(c, s, f0)
                a(f"v_and_b32 {R(c)}, {R(self.vMsk)}, {R(c)}")
                a(f"v_and_b32 {R(s)}, {R(self.vMsk)}, {R(s)}")
                a(f"v_cvt_pk_bf16_f32 {R(self.M5 + 8 * t + r)}, {R(c)}, -{R(s)}")
                a(f"v_cvt_pk_bf16_f32 {R(self.M5 + 8 * t + 4 + r)}, {R(s)}, {R(c)}")
        va.free(b, st, f0, c, s, ih, self.vMsk)
    def addr_g1(self):
        a = self.a; va = self.va; Li, G, T = self.vLi, self.vG, self.vT
        self.aG1 = va(1, "aG1"); self.aG2 = va(1, "aG2")
        a(f"v_lshlrev_b32 {R(T)}, 2, {R(Li)}")
        a(f"v_lshl_add_u32 {R(self.aG2)}, {R(G)}, 9, {R(T)}")
        a(f"v_lshrrev_b32 {R(T)}, 1, {R(G)}")
        a(f"v_mul_u32_u24 {R(T)}, {16384 - 1024}, {R(T)}")
        a(f"v_add_u32 {R(self.aG1)}, {R(T)}, {R(self.aG2)}")
        a(f"s_lshr_b32 {S(sT0)}, {S(sN)}, 2\ns_lshl_b32 {S(sT0)}, {S(sT0)}, 15\ns_lshl_b32 {S(sT1)}, {S(sW)}, 12\ns_add_u32 {S(sT0)}, {S(sT0)}, {S(sT1)}")
        a(f"s_and_b32 {S(sT1)}, {S(sM)}, 2\ns_lshl_b32 {S(sT1)}, {S(sT1)}, 5\ns_add_u32 {S(sOff + 4)}, {S(sT0)}, {S(sT1)}")
    def addr_p2(self):
        a = self.a; va = self.va; Li, G, T = self.vLi, self.vG, self.vT
        self.aE2w = va(1, "aE2w"); self.aE2r = va(1, "aE2r"); self.aE3w = va(1, "aE3w"); self.aE3r = va(1, "aE3r"); self.aZ2 = va(1, "aZ2")
        p = va(1, "p"); h = va(1, "h"); o = va(1, "o")
        a(f"v_lshrrev_b32 {R(h)}, 1, {R(Li)}")
        a(f"v_and_b32 {R(o)}, 1, {R(Li)}")
        a(f"s_lshl_b32 {S(sT0)}, {S(sW)}, 11\ns_add_u32 {S(sT0)}, {S(sT0)}, {EB}")
        a(f"v_and_b32 {R(T)}, 8, {R(Li)}")
        a(f"v_add_lshl_u32 {R(p)}, {R(T)}, {R(Li)}, 4")
        a(f"v_lshl_add_u32 {R(p)}, {R(G)}, 9, {R(p)}")
        a(f"v_add_u32 {R(self.aE2w)}, {S(sT0)}, {R(p)}")
        a(f"s_lshl_b32 {S(sT0)}, {S(sW)}, 9\ns_add_u32 {S(sT0)}, {S(sT0)}, {EB}")
        a(f"v_lshl_add_u32 {R(p)}, {R(G)}, 11, {S(sT0)}")
        a(f"v_lshl_add_u32 {R(p)}, {R(o)}, 7, {R(p)}")
        a(f"v_lshl_add_u32 {R(self.aE2r)}, {R(h)}, 4, {R(p)}")
        a(f"s_lshr_b32 {S(sT0)}, {S(sW)}, 1\ns_lshl_b32 {S(sT0)}, {S(sT0)}, 8\ns_and_b32 {S(sT1)}, {S(sW)}, 1\ns_lshl_b32 {S(sT1)}, {S(sT1)}, 3")
        a(f"s_add_u32 {S(sT0)}, {S(sT0)}, {S(sT1)}\ns_add_u32 {S(sT0)}, {S(sT0)}, {EA}")
        a(f"v_mul_u32_u24 {R(p)}, 528, {R(Li)}")
        a(f"v_lshl_add_u32 {R(p)}, {R(G)}, 5, {R(p)}")
        a(f"v_add_u32 {R(self.aE3w)}, {S(sT0)}, {R(p)}")
        a(f"s_mul_i32 {S(sT0)}, {S(sW)}, {4 * 528}\ns_add_u32 {S(sT0)}, {S(sT0)}, {EA}")
        a(f"v_lshrrev_b32 {R(T)}, 1, {R(G)}")
        a(f"v_lshl_add_u32 {R(p)}, {R(T)}, 4, {S(sT0)}")
        a(f"v_add_u32 {R(self.aE3r)}, {R(self.vL16)}, {R(p)}")
        a(f"v_lshlrev_b32 {R(p)}, 18, {R(h)}")
        a(f"v_lshl_add_u32 {R(p)}, {R(o)}, 6, {R(p)}")
        a(f"v_lshl_add_u32 {R(self.aZ2)}, {R(G)}, 4, {R(p)}")
        self.TG3 = va(4, "TG3", 1); self.TG4 = va(1, "TG4")
        a(f"v_lshlrev_b32 {R(p)}, 3, {R(G)}")
        a(f"v_bfe_u32 {R(p)}, {S(sTag)}, {R(p)}, 8")
        a(f"v_lshl_or_b32 {R(self.TG3)}, {R(p)}, 15, {R(p)}")
        for r in range(1, 4): a(f"v_lshrrev_b32 {R(self.TG3 + r)}, {2 * r}, {R(self.TG3)}")
        a(f"v_lshlrev_b32 {R(p)}, 1, {R(Li)}")
        a(f"v_bfe_u32 {R(p)}, {S(sTag)}, {R(p)}, 2")
        a(f"v_lshl_or_b32 {R(p)}, {R(p)}, 15, {R(p)}")
        a(f"v_and_b32 {R(self.TG4)}, 0x10001, {R(p)}")
        va.free(p, h, o)
        a(f"s_lshl_b32 {S(sT0)}, {S(sW)}, 16\ns_lshl_b32 {S(sT1)}, s2, 7\ns_add_u32 {S(sT0)}, {S(sT0)}, {S(sT1)}")
        a(f"s_add_u32 {S(sOff + 6)}, {S(sT0)}, {Z2}\ns_add_u32 {S(sOff + 7)}, {S(sT0)}, {Z2 + 32768}")
        a(f"s_or_b32 {S(sT0)}, s2, {S(sW)}\ns_cmp_lg_u32 {S(sT0)}, 0\ns_cselect_b32 {S(sOff + 8)}, 2.0, {EPO}")
    def prewrite(self, which):
        a = self.a; E = self.va(4, "pre")
        tg = self.TG if which == 1 else self.TG3
        for r in range(4): a(f"v_not_b32 {R(E + r)}, {R(tg + r)}")
        for t in range(2): a(f"buffer_store_dwordx4 {R(E, 4)}, {R(self.aZ1 if which == 1 else self.aZ2)}, {S(sWS, 4)}, {S(sOff + (2 if which == 1 else 6) + t)} offen sc1")
        self.va.free(E)
    def p2_gather(self):
        a = self.a; va = self.va
        self.Y = va(16, "Y")
        self.g1 = [f"buffer_load_dword {R(self.Y + 4 * be + r)}, {R(self.aG1)}, {S(sWS, 4)}, {S(sOff + 4)} offen offset:{1024 * be + 128 * r} sc1"
                   for be in range(4) for r in range(4)]
        self.stamp("g1")
        for l in self.g1: a(l)
    def p2(self):
        a = self.a; va = self.va; Y = self.Y; M = self.M; M2 = self.M2; T = self.vT
        D = va(16, "D"); E = va(16, "E")
        def chk():
            for be in range(4):
                for i in range(4 * be, 4 * be + 4): a(f"v_xor_b32 {R(Y + i)}, {R(self.TG2)}, {R(Y + i)}")
                if be == 0: a(f"v_or_b32 {R(T)}, {R(Y)}, {R(Y + 1)}")
                else: a(f"v_or3_b32 {R(T)}, {R(T)}, {R(Y + 4 * be)}, {R(Y + 4 * be + 1)}")
                a(f"v_or3_b32 {R(T)}, {R(T)}, {R(Y + 4 * be + 2)}, {R(Y + 4 * be + 3)}")
                a(f"v_mfma_f32_16x16x32_f16 {R(D + 4 * be, 4)}, {R(self.M1 + 4 * be, 4)}, {R(Y + 4 * be, 4)}, 0")
            a(f"v_and_b32 {R(T)}, {S(sMask)}, {R(T)}")
            a(f"v_cmp_ne_u32 vcc, 0, {R(T)}")
        self.poll("z1", self.g1, chk)
        self.stamp("z1_in")
        for ip in range(2):
            for be in range(4):
                a(f"v_cvt_pk_f16_f32 {R(E + 4 * ip + be)}, {R(D + 4 * be + 2 * ip)}, {R(D + 4 * be + 2 * ip + 1)}")
            a(f"ds_write_b128 {R(self.aE2w)}, {R(E + 4 * ip, 4)} offset:{128 * ip}")
        self.point("p2_a")
        a.wait_lg_all(); self.bar("b2")
        for uv in range(2):
            a(f"ds_read_b128 {R(Y + 4 * uv, 4)}, {R(self.aE2r)} offset:{256 * uv}")
        if not self.cf_own: self.CF = va(24, "CF")
        for i in range(0 if self.cf_own else 6): a(f"ds_read_b128 {R(self.CF + 4 * i, 4)}, {R(self.aHf)} offset:{4096 + 1024 * i}")
        a(f"v_mov_b32 {R(T)}, {S(sEp)}")
        a(f"buffer_store_dword {R(T)}, {R(self.vZero)}, {S(sWS, 4)}, {S(sOff + 8)} offen sc1")
        self.point("p2_b")
        for uv in range(2):
            for ri in range(2):
                a(f"v_mfma_f32_16x16x32_f16 {R(D + 8 * uv + 4 * ri, 4)}, {R(M2 + 4 * ri, 4)}, {R(Y + 4 * uv, 4)}, 0")
        self.point("p2_c")
        Ur, Ui, Vr, Vi = D, D + 4, D + 8, D + 12
        A1r, A1i, Br, Bi, A2r, A2i = (self.CF + 4 * i for i in range(6))
        neg = " neg_lo:[0,1,0] neg_hi:[0,1,0]"; neg2 = " neg_lo:[0,1] neg_hi:[0,1]"
        terms = [(E, [(Ur, A1r, 0), (Ui, A1i, 1), (Vr, Br, 0), (Vi, Bi, 1)]),
                 (E + 4, [(Ur, A1i, 0), (Ui, A1r, 0), (Vr, Bi, 0), (Vi, Br, 0)]),
                 (E + 8, [(Ur, Br, 1), (Ui, Bi, 0), (Vr, A2r, 0), (Vi, A2i, 1)]),
                 (E + 12, [(Ur, Bi, 1), (Ui, Br, 1), (Vr, A2i, 0), (Vi, A2r, 0)])]
        def mix(tm, step):
            for o, tl in tm:
                x, cf, ng = tl[step]
                for k in (0, 2):
                    if step == 0: a(f"v_pk_mul_f32 {R(o + k, 2)}, {R(x + k, 2)}, {R(cf + k, 2)}" + (neg2 if ng else ""))
                    else: a(f"v_pk_fma_f32 {R(o + k, 2)}, {R(x + k, 2)}, {R(cf + k, 2)}, {R(o + k, 2)}" + (neg if ng else ""))
        D2 = Y + 8
        for step in range(2): mix(terms, step)
        for uv in range(2):
            for step in (2, 3): mix(terms[2 * uv:2 * uv + 2], step)
            for r in range(4):
                a(f"v_cvt_pk_bf16_f32 {R(Y + 4 * uv + r)}, {R(E + 8 * uv + 4 + r)}, {R(E + 8 * uv + r)}")
            dst = D2 if uv == 0 else D
            for ri in range(2):
                a(f"v_mfma_f32_16x16x32_bf16 {R(dst + 4 * ri, 4)}, {R(Y + 4 * uv, 4)}, {R(M + 4 * (1 - ri), 4)}, 0")
        for uv in range(2):
            dst = D2 if uv == 0 else D
            for sp in range(2):
                for r in (2 * sp, 2 * sp + 1):
                    a(f"v_cvt_pk_bf16_f32 {R(E + 4 * uv + r)}, {R(dst + r)}, {R(dst + 4 + r)}")
                a(f"ds_write_b64 {R(self.aE3w)}, {R(E + 4 * uv + 2 * sp, 2)} offset:{128 * uv + 16 * sp}")
        a(f"s_mov_b32 {S(sMask)}, 0x10001")
        self.point("p2_d")
        a.wait_lg_all(); self.bar("b3")
        for t in range(2):
            a(f"ds_read_b128 {R(Y + 4 * t, 4)}, {R(self.aE3r)} offset:{1056 * t}")
        for t in range(2):
            for ri in range(2):
                a(f"v_mfma_f32_16x16x32_bf16 {R(D + 8 * t + 4 * ri, 4)}, {R(Y + 4 * t, 4)}, {R(self.M5 + 8 * t + 4 * ri, 4)}, 0")
        self.point("p2_e")
        for t in range(2):
            for r in range(4):
                a(f"v_cvt_pk_bf16_f32 {R(E + 4 * t + r)}, {R(D + 8 * t + r)}, {R(D + 8 * t + 4 + r)}")
            for r in range(4):
                a(f"v_bfi_b32 {R(E + 4 * t + r)}, {S(sMask)}, {R(self.TG3 + r)}, {R(E + 4 * t + r)}")
            a(f"buffer_store_dwordx4 {R(E + 4 * t, 4)}, {R(self.aZ2)}, {S(sWS, 4)}, {S(sOff + 6 + t)} offen sc1")
        self.stamp("z2_st")
        self.vb.free(self.CF, self.M1, self.M5)
        va.free(D, E, Y, self.M2, self.TG2, self.aG1, self.aE2w, self.aE2r, self.aE3w, self.aE3r, self.aZ2, self.TG3)
    def xnat_load(self):
        a = self.a; va = self.va
        self.XN = va(8, "XN"); self.vNat = va(1, "nat")
        a(f"v_lshlrev_b32 {R(self.vNat)}, 6, {R(self.vLi)}")
        a(f"v_lshl_add_u32 {R(self.vNat)}, {R(self.vG)}, 4, {R(self.vNat)}")
        for rho in range(2):
            a(f"buffer_load_dwordx4 {R(self.XN + 4 * rho, 4)}, {R(self.vNat)}, {S(sX, 4)}, {S(sOff + rho)} offen")
    def addr_g2(self):
        a = self.a
        a(f"s_bfe_u32 {S(sT0)}, {S(sS2)}, 0x60001\ns_lshl_b32 {S(sT0)}, {S(sT0)}, 15\ns_lshl_b32 {S(sT1)}, {S(sW)}, 13\ns_add_u32 {S(sT0)}, {S(sT0)}, {S(sT1)}")
        a(f"s_and_b32 {S(sT1)}, {S(sM)}, 1\ns_lshl_b32 {S(sT1)}, {S(sT1)}, 6\ns_add_u32 {S(sT0)}, {S(sT0)}, {S(sT1)}")
        a(f"s_add_u32 {S(sOff + 4)}, {S(sT0)}, {Z2}\ns_add_u32 {S(sOff + 5)}, {S(sT0)}, {Z2 + 4096}")
    def tables_p3(self):
        a = self.a; va = self.va; Li, G, T = self.vLi, self.vG, self.vT
        self.M4 = va(8, "M4"); self.Gi = va(4, "Gi"); self.vEps = va(1, "eps")
        self.aE4w = va(4, "aE4w", 1); self.aE4r = va(2, "aE4r", 1)
        p = va(1, "p"); c = va(1, "c"); s = va(1, "s"); u = va(1, "u")
        a(f"v_lshrrev_b32 {R(u)}, 1, {R(Li)}")
        a(f"v_lshl_add_u32 {R(u)}, {R(u)}, 8, {S(sS2)}")
        a(f"v_and_b32 {R(T)}, 1, {R(G)}")
        a(f"v_mul_u32_u24 {R(p)}, {R(u)}, {R(T)}")
        a(f"s_lshr_b32 {S(sT0)}, {S(sS2)}, 4\ns_lshl_b32 {S(sT0)}, {S(sT0)}, 4")
        a(f"v_and_b32 {R(c)}, 2, {R(G)}")
        a(f"v_mad_u32_u24 {R(p)}, {R(c)}, {S(sT0)}, {R(p)}")
        a(f"v_and_b32 {R(T)}, 1, {R(Li)}")
        a(f"v_lshlrev_b32 {R(T)}, 7, {R(T)}")
        a(f"v_sub_u32 {R(p)}, {R(T)}, {R(p)}")
        a(f"v_and_b32 {R(p)}, 511, {R(p)}")
        a(f"v_cvt_f32_u32 {R(u)}, {R(u)}")
        a(f"v_cvt_f32_u32 {R(p)}, {R(p)}")
        a(f"v_lshlrev_b32 {R(c)}, 14, {R(c)}")
        a(f"v_mul_f32 {R(p)}, {fl(1 / 512)}, {R(p)}")
        for i in range(8): a(f"v_xor_b32 {R(self.M4 + i)}, {R(c)}, {R(self.M + i)}")
        for r in range(4):
            self.sincos(c, s, p)
            if r < 3: a(f"v_fmamk_f32 {R(p)}, {R(u)}, {fl(-1 / 2048)}, {R(p)}")
            a(f"v_cvt_pk_bf16_f32 {R(self.Gi + r)}, {R(c)}, {R(s)}")
        a(f"v_mul_u32_u24 {R(u)}, {ARW + 64}, {R(G)}")
        a(f"v_add_u32 {R(u)}, {AR}, {R(u)}")
        a(f"s_lshl_b32 {S(sT0)}, {S(sW)}, 5")
        a(f"v_and_or_b32 {R(p)}, {R(Li)}, 7, {S(sT0)}")
        a(f"v_cmp_lt_u32 s[4:5], 7, {R(Li)}")
        a(f"v_cmp_eq_u32 vcc, 0, {R(p)}")
        a(f"v_sub_u32 {R(c)}, 256, {R(p)}")
        a(f"v_mov_b32 {R(T)}, 128")
        for t in range(4):
            q = self.aE4w + t
            if t:
                a(f"v_add_u32 {R(p)}, 8, {R(p)}\nv_add_u32 {R(c)}, -8, {R(c)}")
                a(f"v_cndmask_b32 {R(q)}, {R(p)}, {R(c)}, s[4:5]")
            else:
                a(f"v_cndmask_b32 {R(T)}, {R(c)}, {R(T)}, vcc")
                a(f"v_cndmask_b32 {R(q)}, {R(p)}, {R(T)}, s[4:5]")
            a(f"v_lshrrev_b32 {R(T)}, 6, {R(q)}")
            a(f"v_lshl_add_u32 {R(q)}, {R(T)}, 4, {R(q)}")
            a(f"v_lshl_add_u32 {R(q)}, {R(q)}, 2, {R(u)}")
        a(f"s_mul_i32 {S(sT0)}, {S(sW)}, {ARW + 64}\ns_add_u32 {S(sT0)}, {S(sT0)}, {AR}")
        a(f"v_mul_u32_u24 {R(p)}, 320, {R(G)}")
        a(f"v_lshl_add_u32 {R(p)}, {R(Li)}, 2, {R(p)}")
        a(f"v_add_u32 {R(self.aE4r)}, {S(sT0)}, {R(p)}")
        a(f"v_add_u32 {R(self.aE4r + 1)}, 1280, {R(self.aE4r)}")
        va.free(p, c, s, u)
        for i in range(4): a(f"v_mov_b32 {R(self.ST + i)}, 0")
        a(f"v_mov_b32 {R(self.vEps)}, {fl(1e-5 / 1.4426950408889634 ** 2)}")
        a(f"s_add_u32 {S(sOff + 6)}, {S(sOwn)}, {HN}\ns_lshr_b32 {S(sOff + 7)}, {S(sOwn)}, 4\ns_add_u32 {S(sOff + 7)}, {S(sOff + 7)}, {HH}")
    def pre_st(self):
        a = self.a; T = self.vT; E = self.va(2, "pre")
        a(f"v_not_b32 {R(E)}, {S(sEp)}")
        a(f"v_lshlrev_b32 {R(T)}, 2, {R(self.vL)}")
        a(f"s_mov_b32 exec_hi, 0")
        a(f"buffer_store_dword {R(E)}, {R(T)}, {S(sWS, 4)}, {S(sOff + 7)} offen sc1")
        a(f"s_mov_b32 exec_hi, -1")
        self.va.free(E)
    def xnat_unpack(self):
        a = self.a; va = self.va
        self.XC = va(16, "XC")
        for rho in range(2):
            for r in range(4):
                a(f"v_lshlrev_b32 {R(self.XC + 8 * rho + r)}, 16, {R(self.XN + 4 * rho + r)}")
                a(f"v_and_b32 {R(self.XC + 8 * rho + 4 + r)}, 0xffff0000, {R(self.XN + 4 * rho + r)}")
        va.free(self.XN)
    def p3_gather(self):
        a = self.a; va = self.va
        self.Y = va(16, "Y")
        self.g2 = [f"buffer_load_dword {R(self.Y + 4 * t + r)}, {R(self.aG2)}, {S(sWS, 4)}, {S(sOff + 4 + (t >> 1))} offen offset:{(t & 1) * 2048 + 128 * r} sc1"
                   for t in range(4) for r in range(4)]
        self.stamp("g2")
        for l in self.g2: a(l)
    def p3(self):
        a = self.a; va = self.va; Y = self.Y; M = self.M; M4 = self.M4; ST = self.ST; XC = self.XC; T = self.vT
        D = va(16, "D"); E = va(16, "E")
        TG4 = self.TG4; Gi = self.Gi
        def chk():
            for t in range(4):
                for i in range(4 * t, 4 * t + 4): a(f"v_xor_b32 {R(Y + i)}, {R(TG4)}, {R(Y + i)}")
                if t == 0: a(f"v_or_b32 {R(T)}, {R(Y)}, {R(Y + 1)}")
                else: a(f"v_or3_b32 {R(T)}, {R(T)}, {R(Y + 4 * t)}, {R(Y + 4 * t + 1)}")
                a(f"v_or3_b32 {R(T)}, {R(T)}, {R(Y + 4 * t + 2)}, {R(Y + 4 * t + 3)}")
                a(f"v_mfma_f32_16x16x32_bf16 {R(D + 4 * t, 4)}, {R(Gi, 4)}, {R(Y + 4 * t, 4)}, 0")
            a(f"v_and_b32 {R(T)}, {S(sMask)}, {R(T)}")
            a(f"v_cmp_ne_u32 vcc, 0, {R(T)}")
        self.poll("z2", self.g2, chk)
        self.stamp("z2_in")
        for t in range(4):
            a(f"v_cvt_pk_bf16_f32 {R(E + 2 * t)}, {R(D + 4 * t + 1)}, {R(D + 4 * t)}")
            a(f"v_cvt_pk_bf16_f32 {R(E + 2 * t + 1)}, {R(D + 4 * t + 3)}, {R(D + 4 * t + 2)}")
            a(f"ds_write2st64_b32 {R(self.aE4w + t)}, {R(E + 2 * t)}, {R(E + 2 * t + 1)} offset0:0 offset1:5")
        self.point("p3_a")
        a.wait_lg_all(); self.bar("b4")
        for rho in range(2):
            for h in range(2):
                tk = a(f"ds_read2_b32 {R(Y + 4 * rho + 2 * h, 2)}, {R(self.aE4r + rho)} offset0:{32 * h} offset1:{32 * h + 16}")
        self.point("p3_b")
        for rho in range(2):
            for ri in range(2):
                a(f"v_mfma_f32_16x16x32_bf16 {R(D + 8 * rho + 4 * ri, 4)}, {R(Y + 4 * rho, 4)}, {R(M4 + 4 * (1 - ri), 4)}, 0")
        self.point("p3_c")
        for rho in range(2):
            self.cmul(E + 8 * rho, E + 8 * rho + 4, D + 8 * rho, D + 8 * rho + 4, self.TW, self.TW + 4, True)
            for r in range(4):
                a(f"v_cvt_pk_bf16_f32 {R(Y + 4 * rho + r)}, {R(E + 8 * rho + 4 + r)}, {R(E + 8 * rho + r)}")
            for ri in range(2):
                q = XC + 8 * rho + 4 * ri
                a(f"v_mfma_f32_16x16x32_bf16 {R(q, 4)}, {R(Y + 4 * rho, 4)}, {R(M + 4 * (1 - ri), 4)}, {R(q, 4)}")
        st = a.capture(self.stats, D, ST, 1.4426950408889634, None)
        cv = [[f"v_cvt_pk_bf16_f32 {R(D + 4 * rho + r)}, {R(XC + 8 * rho + r)}, {R(XC + 8 * rho + 4 + r)}" for r in range(4)] for rho in range(2)]
        a.run(cv[0] + st[:8] + cv[1] + st[8:16])
        a.run(spread(st[16:], (self.plist("p3_d"), 0, len(st) - 16)))
        self.point("p3_e")
        for rho in range(2):
            for k in range(0, 8, 2):
                q = XC + 8 * rho + k
                a(f"v_pk_fma_f32 {R(q, 2)}, {R(q, 2)}, {R(ST + 2 * rho, 2)}, {R(ST + 4 + 2 * rho, 2)} op_sel_hi:[1,0,0] neg_lo:[0,0,1] neg_hi:[0,0,1]")
            for r in range(4):
                a(f"v_cvt_pk_bf16_f32 {R(E + 4 * rho + r)}, {R(XC + 8 * rho + r)}, {R(XC + 8 * rho + 4 + r)}")
            tokhn = a(f"buffer_store_dwordx4 {R(E + 4 * rho, 4)}, {R(self.vNat)}, {S(sWS, 4)}, {S(sOff + 6)} offen offset:{1024 * rho} sc1")
        self.stamp("hn_st")
        self.point("p3_s")
        a(f"v_cmp_gt_u32 vcc, 32, {R(self.vL)}")
        a(f"v_and_b32 {R(T)}, 28, {R(self.vL)}")
        a(f"v_mov_b32 {R(D + 2)}, {S(sEp)}")
        a(f"v_cndmask_b32 {R(D)}, {R(ST + 2)}, {R(ST)}, vcc")
        a(f"v_mov_b32 {R(D + 1)}, {R(self.vMu)}")
        a(f"v_rcp_f32 {R(D)}, {R(D)}")
        a(f"v_lshlrev_b32 {R(T)}, 25, {R(T)}")
        a(f"v_and_or_b32 {R(T)}, {R(self.vL16)}, 48, {R(T)}")
        a(f"v_and_b32 {R(D + 3)}, 32, {R(self.vL)}")
        a(f"v_lshl_add_u32 {R(T)}, {R(D + 3)}, 1, {R(T)}")
        self.point("p3_t")
        a.wait_vm(tokhn)
        a(f"buffer_store_dwordx4 {R(D, 4)}, {R(T)}, {S(sWS, 4)}, {S(sOff + 7)} offen sc1")
        self.stamp("st_st")
        va.free(D, E, Y, XC, ST, self.M, self.M4, self.TW, self.Gi, self.aE4w, self.aE4r, self.aG2, self.vNat, self.vEps, self.vMu, self.TG4)
    def tables_w2(self):
        a = self.a; va = self.va; L, Li, G, T = self.vL, self.vLi, self.vG, self.vT
        a(f"s_lshr_b32 {S(sT2)}, {S(sM)}, 3\ns_mul_i32 {S(sT2)}, {S(sT2)}, {self.cfg.get('rot2', 3)}\ns_mul_i32 {S(sT1)}, {S(sK1)}, {self.cfg.get('xrot2', 0)}\ns_add_u32 {S(sT2)}, {S(sT2)}, {S(sT1)}")
        if self.cfg.get("mrot"): a(f"s_mul_i32 {S(sT1)}, {S(sMem)}, {self.cfg['mrot']}\ns_add_u32 {S(sT2)}, {S(sT2)}, {S(sT1)}")
        a(f"s_mul_i32 {S(sT1)}, {S(sT2)}, 373\ns_lshr_b32 {S(sT1)}, {S(sT1)}, 12\ns_mul_i32 {S(sT1)}, {S(sT1)}, 11\ns_sub_u32 {S(sT2)}, {S(sT2)}, {S(sT1)}")
        a(f"s_lshl_b32 {S(sT2)}, {S(sT2)}, 10\ns_mul_i32 {S(sT1)}, {S(sW)}, 11264")
        a(f"s_add_u32 {S(sT0)}, {S(sT2)}, {S(sT1)}\ns_add_u32 {S(sT2)}, {S(sT1)}, 11264")
        sal = []
        for i in range(11):
            if i: sal += [f"s_add_u32 {S(sT0)}, {S(sT0)}, 1024", f"s_cmp_eq_u32 {S(sT0)}, {S(sT2)}", f"s_cselect_b32 {S(sT0)}, {S(sT1)}, {S(sT0)}"]
            sal += [f"s_cmp_eq_u32 {S(sT0)}, {43 * 1024}", f"s_cselect_b32 {S(sKap + i)}, 0x2000000, {S(sT0)}"]
        a.run(sal)
        a(f"s_mul_i32 {S(sU0)}, {S(sMem)}, {43 * 4096}\ns_add_u32 {S(sU0)}, {S(sU0)}, {W2P}")
    def addr_g3(self):
        a = self.a
        a(f"s_lshr_b32 {S(sT0)}, {S(sN)}, 3\ns_lshl_b32 {S(sT1)}, {S(sT0)}, 16\ns_lshl_b32 {S(sT2)}, {S(sW)}, 12\ns_add_u32 {S(sT0)}, {S(sT1)}, {S(sT2)}")
        for rt in range(4):
            a(f"s_add_u32 {S(sOff + 8 + rt)}, {S(sT0)}, {HN + rt * 16384}")
    def tables_g1(self):
        a = self.a; va = self.va; L, Li, G, T = self.vL, self.vLi, self.vG, self.vT
        a(f"v_mul_u32_u24 {R(T)}, {HROW}, {R(Li)}")
        a(f"v_lshl_add_u32 {R(self.aHr)}, {R(G)}, 8, {R(T)}")
        a(f"s_lshr_b32 {S(sLn2)}, {S(sN)}, 3\ns_mul_i32 {S(sLn2)}, {S(sLn2)}, {HCL}\ns_add_u32 {S(sLn2)}, {S(sLn2)}, {HB}")
        a(f"s_lshl_b32 {S(sT0)}, {S(sMem)}, 2\ns_add_u32 {S(sT0)}, {S(sT0)}, {S(sW)}")
        a(f"s_lshl_b32 s4, {S(sT0)}, 10\ns_lshl_b32 {S(sT0)}, {S(sT0)}, 15")
        a(f"s_mul_i32 {S(sT1)}, {S(sMem)}, 3\ns_add_u32 {S(sT1)}, {S(sT1)}, {S(sW)}")
        a(f"s_cmp_eq_u32 {S(sMem)}, 7\ns_subb_u32 {S(sT1)}, {S(sT1)}, 0")
        a(f"s_cmp_ge_u32 {S(sMem)}, 6\ns_addc_u32 {S(sT2)}, {S(sW)}, 0")
        a(f"s_lshl_b32 s5, {S(sT1)}, 9\ns_add_u32 s5, s5, 32768\ns_lshl_b32 {S(sT1)}, {S(sT1)}, 14\ns_add_u32 {S(sT1)}, {S(sT1)}, {64 * 16384}")
        a(f"s_cmp_lt_u32 {S(sT2)}, 3\ns_cselect_b32 s5, s5, 2.0\ns_cselect_b32 {S(sT1)}, {S(sT1)}, 2.0")
        a(f"v_add_u32 {R(self.vW1)}, {S(sT0)}, {R(self.vL16)}")
        a(f"v_add_u32 {R(self.vW1 + 1)}, 16384, {R(self.vW1)}")
        a(f"v_add_u32 {R(self.vW1 + 2)}, {S(sT1)}, {R(self.vL16)}")
        for q in range(4): a(f"s_xor_b32 {S(sT0)}, {S(sRot)}, {4 * q}\ns_lshl_b32 {S(sT0)}, {S(sT0)}, 10\ns_add_u32 {S(sOff + 4 + q)}, {S(sT0)}, {W1P}")
        a(f"v_cmp_gt_u32 vcc, 32, {R(L)}")
        a(f"v_add_u32 {R(self.aHs)}, s4, {R(self.vL16)}")
        a(f"v_add_u32 {R(self.aHs + 1)}, s5, {R(self.vL16)}")
        a(f"v_cndmask_b32 {R(self.aHs + 1)}, 2.0, {R(self.aHs + 1)}, vcc")
        for rt in range(4): a(f"s_add_u32 {S(sOff + rt)}, {S(sLn2)}, {rt * 45056}")
        a(f"s_mul_i32 {S(sT0)}, {S(sW)}, {ARW}\ns_add_u32 {S(sT0)}, {S(sT0)}, {CUE}")
        a(f"v_mov_b32 v60, {S(sT0)}")
    def tables_epi(self):
        a = self.a; va = self.va; L, Li, G, T = self.vL, self.vLi, self.vG, self.vT
        a(f"v_mbcnt_lo_u32_b32 {R(L)}, -1, 0\nv_mbcnt_hi_u32_b32 {R(L)}, -1, {R(L)}")
        a(f"v_and_b32 {R(Li)}, 15, {R(L)}\nv_lshrrev_b32 {R(G)}, 4, {R(L)}")
        a(f"s_lshl_b32 {S(sS2)}, {S(sK1)}, 4\ns_and_b32 {S(sT0)}, {S(sM)}, 15\ns_or_b32 {S(sS2)}, {S(sS2)}, {S(sT0)}")
        a(f"s_and_b32 {S(sT0)}, s2, 0x80\ns_or_b32 {S(sS2)}, {S(sS2)}, {S(sT0)}")
        a(f"s_mov_b32 {S(sO + 2)}, 0x200000\ns_mov_b32 {S(sO + 3)}, 0x20000")
        a(f"s_lshl_b32 {S(sT0)}, {S(sW)}, 2\ns_mov_b32 {S(sT1)}, {RED[0]}")
        a(f"v_add_u32 {R(self.aRr)}, {S(sT0)}, {R(G)}")
        a(f"v_and_b32 {R(T)}, 7, {R(self.aRr)}")
        a(f"v_xor_b32 {R(T)}, {R(T)}, {R(Li)}")
        a(f"v_lshl_add_u32 {R(T)}, {R(T)}, 4, {S(sT1)}")
        a(f"v_lshl_add_u32 {R(self.aRr)}, {R(self.aRr)}, 8, {R(T)}")
        a(f"s_lshl_b32 {S(sT1)}, {S(sMem)}, 7")
        a(f"v_lshl_add_u32 {R(T)}, {R(Li)}, 3, {S(sT1)}")
        a(f"v_lshl_add_u32 {R(self.aOut)}, {R(G)}, 18, {R(T)}")
        a(f"s_lshl_b32 {S(sT1)}, {S(sRot)}, 4\ns_mul_i32 {S(sT0)}, {S(sW)}, {4 * HROW}")
        a(f"v_xor_b32 {R(T)}, {S(sT1)}, {R(T)}")
        a(f"v_mul_u32_u24 {R(self.aRes)}, {HROW}, {R(G)}")
        a(f"v_add3_u32 {R(self.aRes)}, {R(self.aRes)}, {R(T)}, {S(sT0)}")
        a(f"s_lshr_b32 {S(sT0)}, {S(sN)}, 3\ns_lshl_b32 {S(sT0)}, {S(sT0)}, 12\ns_lshl_b32 {S(sT1)}, {S(sW)}, 8\ns_add_u32 {S(sT0)}, {S(sT0)}, {S(sT1)}\ns_add_u32 {S(sT0)}, {S(sT0)}, {HH}")
        a(f"v_and_b32 {R(T)}, 3, {R(Li)}")
        a(f"v_lshl_add_u32 {R(T)}, {R(T)}, 10, {S(sT0)}")
        a(f"v_lshl_add_u32 {R(self.aSt)}, {R(G)}, 6, {R(T)}")
        a(f"s_and_b32 {S(sT0)}, {S(sS2)}, 0xf8\ns_lshr_b32 {S(sT1)}, {S(sW)}, 1\ns_add_u32 {S(sT0)}, {S(sT0)}, {S(sT1)}\ns_lshl_b32 {S(sT0)}, {S(sT0)}, 10")
        a(f"s_and_b32 {S(sT1)}, {S(sW)}, 1\ns_lshl_b32 {S(sT1)}, {S(sT1)}, 20\ns_add_u32 {S(sOff + 2)}, {S(sT0)}, {S(sT1)}\ns_add_u32 {S(sOff + 3)}, {S(sOff + 2)}, 4096")
        a(f"s_mov_b32 {S(sLn2)}, {fl(math.log(2.0))}")
    def tables_g2(self):
        a = self.a; va = self.va; L, Li, G, T = self.vL, self.vLi, self.vG, self.vT
        a(f"s_mul_i32 {S(sLn2)}, {S(sW)}, {4 * HROW}")
        a(f"v_xor_b32 {R(T)}, {S(sRot)}, {R(L)}")
        a(f"v_lshlrev_b32 {R(self.aHd)}, 4, {R(T)}")
        a(f"s_lshr_b32 {S(sT0)}, {S(sN)}, 3\ns_lshl_b32 {S(sT0)}, {S(sT0)}, 12\ns_lshl_b32 {S(sT1)}, {S(sW)}, 8\ns_add_u32 {S(sT0)}, {S(sT0)}, {S(sT1)}\ns_add_u32 {S(sT0)}, {S(sT0)}, {HH + 8}")
        a(f"v_and_b32 {R(T)}, 3, {R(Li)}")
        a(f"v_lshl_add_u32 {R(T)}, {R(T)}, 6, {S(sT0)}")
        a(f"v_lshl_add_u32 {R(self.aHw)}, {R(G)}, 10, {R(T)}")
        a(f"s_lshr_b32 {S(sHb)}, {S(sN)}, 3\ns_mul_i32 {S(sHb)}, {S(sHb)}, {HCL}\ns_add_u32 {S(sHb)}, {S(sHb)}, {HB}")
        a(f"s_lshl_b32 {S(sT0)}, {S(sW)}, 12\ns_add_u32 {S(sT0)}, {S(sT0)}, {RED[0]}")
        a(f"v_bitop3_b32 {R(T)}, {R(Li)}, {R(G)}, 7 bitop3:0x28")
        a(f"v_lshl_add_u32 {R(T)}, {R(T)}, 4, {S(sT0)}")
        a(f"v_lshl_add_u32 {R(self.aRw)}, {R(Li)}, 8, {R(T)}")
        a(f"v_xor_b32 {R(self.aRw + 1)}, 64, {R(self.aRw)}")
    def hn_dma(self, rt):
        out = []
        for n in range(4):
            out += [f"s_add_u32 m0, {S(sLn2)}, {rt * HTILE + 16 * n}",
                    f"buffer_load_dwordx4 {R(self.aHd)}, {S(sWS, 4)}, {S(sOff + 8 + rt)} offen offset:{1024 * n} sc1 lds"]
        return out
    def hn_load(self, rt):
        for l in self.hn_dma(rt): t = self.a(l)
        self.hntok[rt] = t
    def hn_check(self, rt):
        self.a.wait_vm(self.hntok[rt]); self.hnok.add(rt)
    def hn_poll(self):
        a = self.a; q = self.HC
        ld = [f"buffer_load_dword {R(q)}, {R(self.aHw)}, {S(sWS, 4)}, 0 offen sc1"]
        a.run(ld)
        self.point("hn_p")
        self.poll("hn", ld, lambda: a(f"v_cmp_ne_u32 vcc, {S(sEp)}, {R(q)}"))
    def bar_after(self, name):
        def f():
            self.a.wait_lg(getattr(self, name)); self.a("s_barrier")
        return [f]
    def pack(self, mf, fixed, floats, ops, g0, g1):
        n = len(mf)
        slot = [list(fixed.get(g, [])) for g in range(n)]
        for items, units_, f0, f1 in floats:
            for k, x in enumerate(items):
                units = units_
                if isinstance(x, tuple): x, units = x
                g = f0 + (k * (f1 - f0)) // max(len(items), 1)
                if units > 1:
                    last = g if k == 0 else max(g, prev)
                    cand = [q for q in range(last, min(last + 3, n)) if sum(u for _, u in slot[q]) + units <= 3]
                    g = cand[0] if cand else last
                elif k: g = max(g, prev)
                prev = g
                slot[g].append((x, units))
        base = [sum(u for _, u in sl) for sl in slot]
        best = None
        total = sum(o[1] for o in ops)
        for slack in range(0, 8):
            for span in range(min(g1, n) - g0, 8, -1):
                place = {}; out = [[] for _ in range(n)]; todo = list(range(len(ops))); done = 0; over = 0
                for g in range(g0, min(g1, n)):
                    used = base[g]
                    ready = [k for k in todo if all(d in place for d in ops[k][3])]
                    take = []
                    for k in ready:
                        since = g - max([place[d] for d in ops[k][3]], default=g0)
                        if not ops[k][2] and (used == 0 or (used == 1 and ops[k][1] > 1) or since > 3):
                            take.append(k); used += ops[k][1]; done += ops[k][1]
                    used = max(used, 1)
                    va_ = [k for k in ready if ops[k][2]]
                    while va_:
                        room = 3 - used
                        one = [k for k in va_ if ops[k][1] == 1]; two = [k for k in va_ if ops[k][1] == 2]
                        behind = done < total * (g - g0 + 1) / span - slack
                        if room >= 2 and two: k = two[0]
                        elif room == 1 and two and behind and len(one) < 2: k = two[0]
                        elif one and (room >= 1 or behind): k = one[0]
                        elif two and behind: k = two[0]
                        else: break
                        take.append(k); va_.remove(k); used += ops[k][1]; done += ops[k][1]
                    over += max(0, used - max(3, base[g]))
                    for k in take: todo.remove(k); out[g].append(ops[k][0])
                    for k in take: place[k] = g
                if not todo and (best is None or over < best[0]): best = (over, out)
                if not ops: break
            if not ops: break
        assert best, "could not pack"
        self.packinfo.append((best[0], sum(max(0, b - 3) for b in base)))
        for g in range(n):
            self.a.run([mf[g]] + [x for x, _ in slot[g]] + best[1][g])
    def silu_ops(self, acc, rt):
        tmp = self.SL; P = self.HP
        ops = []; idx = {}
        def add(key, x, u, v, deps): idx[key] = len(ops); ops.append((x, u, v, [idx[d] for d in deps]))
        for i in range(12):
            add(("e", i), f"v_exp_f32 {R(tmp + i)}, -{R(acc + i)}", 2, True, [])
            add(("a", i), f"v_add_f32 {R(tmp + i)}, 1.0, {R(tmp + i)}", 1, True, [("e", i)])
            add(("r", i), f"v_rcp_f32 {R(tmp + i)}, {R(tmp + i)}", 2, True, [("a", i)])
            add(("m", i), f"v_mul_f32 {R(tmp + i)}, {R(tmp + i)}, {R(acc + i)}", 1, True, [("r", i)])
            if i & 1: add(("c", i // 2), f"v_cvt_pk_bf16_f32 {R(P + i // 2)}, {R(tmp + i - 1)}, {R(tmp + i)}", 1, True, [("m", i), ("m", i - 1)])
            if i == 5: add(("x", 0), f"v_permlane32_swap_b32 {R(P)}, {R(P + 2)}", 2, True, [("c", 0), ("c", 2)])
            if i == 7:
                add(("x", 1), f"v_permlane32_swap_b32 {R(P + 1)}, {R(P + 3)}", 2, True, [("c", 1), ("c", 3)])
                if not self.cfg.get("st2"): add("st0", f"buffer_store_dwordx4 {R(P, 4)}, {R(self.aHs)}, {S(sWS, 4)}, {S(sOff + rt)} offen sc1", 3, False, [("x", 0), ("x", 1)])
            if i == 9: add(("x", 2), f"v_permlane32_swap_b32 {R(P + 4)}, {R(P + 6)}", 2, True, [("c", 4)])
        add(("x", 3), f"v_permlane32_swap_b32 {R(P + 5)}, {R(P + 7)}", 2, True, [("c", 5)])
        if self.cfg.get("st2"): add("st0", f"buffer_store_dwordx4 {R(P, 4)}, {R(self.aHs)}, {S(sWS, 4)}, {S(sOff + rt)} offen sc1", 3, False, [("x", 0), ("x", 1), ("c", 5)])
        add("st1", f"buffer_store_dwordx4 {R(P + 4, 4)}, {R(self.aHs + 1)}, {S(sWS, 4)}, {S(sOff + rt)} offen sc1", 3, False, [("x", 2), ("x", 3), "st0"])
        return ops
    def silu_flat(self, acc, rt):
        ops = self.silu_ops(acc, rt)
        order = sorted(range(len(ops)), key=lambda k: (self._depth(ops, k), k))
        return [ops[k][0] for k in order]
    def _depth(self, ops, k): return 1 + max([self._depth(ops, d) for d in ops[k][3]], default=0)
    def bar(self, name):
        self.bars.append(name); self.a("s_barrier")
    def waithn(self):
        self.a.wait_vm(self.tokhn); self.clrdone |= {(HN, 0), (HN, 1)} & self.cleared
    def waitclr(self):
        self.a.wait_vm(self.tokclr); self.clrdone = set(self.cleared)
    def karg(self):
        self.a("s_waitcnt lgkmcnt(0)"); self.srds()
    def role_b(self):
        a = self.a; va = self.va; c = self.cfg
        self.junk = []; self.role = "B"
        va.hi = 64
        self.vb = Alloc(180, 256); self.vb.used = va.used
        a("s_setprio %d" % c.get("prio_b0", 2))
        self.early_b()
        self.stamp("u0")
        a("s_setprio 0")
        self.bcut()
        self.common()
        va.at(60, 1, "cue"); self.aHr = va.at(61, 1, "aHr"); self.aHs = va.at(62, 2, "aHs")
        self.vW1 = va.at(48, 3, "vW1")
        a(f"s_lshr_b32 {S(sHb)}, {S(sOwn)}, 2\ns_mul_i32 {S(sHb)}, {S(sHb)}, 11")
        self.cf_sent = self.cf_own
        for name in self.bars + ["b5"]:
            self.curbar = name
            self.point("B_" + name)
            if name == "b2": assert self.cf_sent
            if name == ("e2" if "e2" in self.bars else "b3"): assert self.pkdone
            if name == [b for b in self.bars if b in ("b4", "e3", "s3", "t3")][-1]: assert {(HB, i) for i in range(6)} <= self.clrdone
            if name == "b5":
                assert all((1, i) in self.loaded for i in range(16))
                va.free(self.vW1, self.vT, self.vL16, self.vZero, self.vL, self.vLi, self.vG, self.vPf, self.vM1, *self.junk)
                a("s_setprio %d" % c.get("prio", (1, 0, 2))[2])
            self.stamp("B" + name)
            a("s_barrier")
        self.stamp("hn_in")
        self.SL = va.at(48, 12, "silu")
        ACC = va.at(0, 24, "acc1"); BF = va.at(24, 16, "bf"); self.HP = va.at(40, 8, "hp")
        NB = c.get("nb", 4)
        tok = {}
        def rd(n): tok[n] = a(f"ds_read_b128 {R(BF + 4 * (n % NB), 4)}, {R(self.aHr)} offset:{(n // 16) * HTILE + (n % 16) * 16}")
        for n in range(NB - 1): rd(n)
        cue = c.get("cue", (3, 4))
        for rt in range(4):
            acc = ACC + 12 * (rt & 1)
            mf = []; fixed = {}
            for ks in range(16):
                n = rt * 16 + ks
                for T in range(3):
                    cc = R(acc + 4 * T, 4) if ks else "0"
                    mf.append(f"v_mfma_f32_16x16x32_bf16 {R(acc + 4 * T, 4)}, {R(self.W1(ks, T), 4)}, {R(BF + 4 * (n % NB), 4)}, {cc}")
                if n + NB - 1 < 64: fixed[3 * ks] = [(lambda n=n: rd(n + NB - 1), 2)]
                if n + 1 < 64: fixed[3 * ks + 2] = [(lambda n=n: a.wait_lg(tok[n + 1]), 1)]
            if rt == 0: fixed[37] = [("s_barrier", 1)]
            if rt == cue[0]: fixed.setdefault(cue[1], []).append(("ds_write_b32 v60, v60", 2))
            ops = self.silu_ops(ACC + 12 * ((rt - 1) & 1), rt - 1) if rt else []
            self.pack(mf, fixed, [], ops, 1, 48)
            self.stamp("g1p%d" % rt)
        a.run(self.silu_flat(ACC + 12, 3))
        self.stamp("g1_end")
        a("s_setprio %d" % c.get("prio_epi", 2))
        va.hi = 256; va.lo = 64
        self.vL = va(1); self.vLi = va(1); self.vG = va(1); self.vT = va(1); self.vZero = va(1)
        self.aRr = va(1); self.aOut = va(1); self.aRes = va(1); self.aSt = va(1); ep = va(1)
        SV = va(4); RES = va(8); O = va(16); RB = va(16); K2 = va(2); P = va(2)
        self.tables_epi()
        stl = [f"buffer_load_dwordx2 {R(SV, 2)}, {R(self.aSt)}, {S(sWS, 4)}, 0 offen sc1"]
        a.run(stl)
        for r in range(4): a(f"ds_read_b64 {R(RES + 2 * r, 2)}, {R(self.aRes)} offset:{r * HTILE}")
        a(f"v_mov_b32 {R(self.vZero)}, 0\nv_mov_b32 {R(K2)}, {S(sLn2)}")
        def resid(rt):
            dpp = f"row_newbcast:{rt} row_mask:0xf bank_mask:0xf"
            a(f"v_mov_b32_dpp {R(P)}, {R(SV)} {dpp}\nv_mov_b32_dpp {R(P + 1)}, {R(SV + 1)} {dpp}")
            for h in range(2):
                a(f"v_lshlrev_b32 {R(O + 2 * h)}, 16, {R(RES + 2 * rt + h)}")
                a(f"v_and_b32 {R(O + 2 * h + 1)}, 0xffff0000, {R(RES + 2 * rt + h)}")
            for k in range(4): a(f"v_fma_f32 {R(O + k)}, {R(O + k)}, {R(P)}, {R(P + 1)}")
        for rt in range(4):
            if rt: resid(rt)
            if rt == 3: a("s_setprio 3")
            a("s_barrier")
            for src in range(4): a(f"ds_read_b128 {R(RB + 4 * src, 4)}, {R(self.aRr)} offset:{16384 * (rt & 1) + 4096 * src}")
            if rt == 0:
                resid(0)
            for src in range(4):
                if rt == 3:
                    for k in (0, 2): a(f"v_pk_fma_f32 {R(O + k, 2)}, {R(RB + 4 * src + k, 2)}, {R(K2, 2)}, {R(O + k, 2)} op_sel_hi:[1,0,1]")
                else:
                    for k in range(4): a(f"v_fmac_f32 {R(O + k)}, {S(sLn2)}, {R(RB + 4 * src + k)}")
            a(f"v_cvt_pk_bf16_f32 {R(RES + 2 * rt)}, {R(O)}, {R(O + 1)}\nv_cvt_pk_bf16_f32 {R(RES + 2 * rt + 1)}, {R(O + 2)}, {R(O + 3)}")
            a(f"buffer_store_dwordx2 {R(RES + 2 * rt, 2)}, {R(self.aOut)}, {S(sO, 4)}, {S(sOff + 2 + (rt >> 1))} offen offset:{2048 * (rt & 1)}{c.get('outflag', '')}")
        self.stamp("end")
    def ffn_a(self):
        a = self.a; va = self.va; c = self.cfg; T = self.vT
        self.HC = va(4, "hc"); self.hntok = {}; self.hnok = set()
        self.hn_poll()
        self.stamp("g3")
        self.point("hn_0")
        assert 0 in self.hnok
        a("s_barrier")
        a("s_setprio %d" % c.get("prio", (1, 0, 2))[1])
        self.point("hn_1")
        assert len(self.hnok) == 4
        a("s_barrier")
        self.point("w2")
        va.free(self.HC, self.aHw, self.vL, self.vLi, self.vG)
        self.stamp("w2_in")
        Lc = a.label("cue"); Ld = a.label("cued")
        a.wait_lg_all()
        a(f"v_mov_b32 {R(self.aHd)}, {S(sStg)}\ns_mov_b32 {S(sCnt)}, 0")
        a.auto = False
        a(f"{Lc}:\nds_read_b32 {R(T)}, {R(self.aHd)} offset:15360\ns_add_u32 {S(sCnt)}, {S(sCnt)}, 1\ns_waitcnt lgkmcnt(0)")
        a(f"v_cmp_ne_u32 vcc, 0, {R(T)}\ns_cbranch_vccnz {Ld}\ns_sleep 1\ns_cmp_lt_u32 {S(sCnt)}, {SPIN * 10}\ns_cbranch_scc1 {Lc}\n{Ld}:")
        a.auto = True
        self.stamp("cue")
        assert all((2, i) in self.loaded for i in range(11))
        a(f"v_add_u32 v0, {S(sHb)}, {R(self.vL16)}")
        va.free(self.aHd, self.vL16, self.vZero, self.aHf)
        a(f"v_mov_b32 v2, {R(self.aRw)}\nv_mov_b32 v3, {R(self.aRw + 1)}")
        va.free(self.aRw); self.aRw = va.at(2, 2, "aRw")
        HF = va.at(4, 44, "hf"); ACC = [va.at(48, 16, "acc2a"), va.at(64, 16, "acc2b")]; RD = HF + 32
        assert max(va.used) < 80, sorted(set(va.used.values()))
        tok = {}
        hso = lambda n: f"s_add_u32 {S(sD0)}, {S(sKap + n % 11)}, {45056 * (n // 11)}"
        hld = lambda q: f"buffer_load_dwordx4 {R(q, 4)}, v0, {S(sWS, 4)}, {S(sD0)} offen sc1"
        def hload(n): tok[n] = a(hld(HF + 4 * (n % 11)))
        for n in range(11):
            if c.get("hthr") and len(a.vm) > c["hthr"]: a(f"s_waitcnt vmcnt({c['hthr']})")
            a(hso(n)); hload(n)
        def red_w(rt, t): self.tokrw = a(f"ds_write_b128 {R(self.aRw + (t & 1))}, {R(ACC[rt & 1] + 4 * t, 4)} offset:{16384 * (rt & 1) + 128 * (t >> 1)}")
        def nanchk(rt): a(f"v_cmp_u_f32 vcc, {R(ACC[rt & 1])}, {R(ACC[rt & 1])}")
        def nanbr(rt):
            Lr = a.label("redo"); Lo = a.label("redone"); acc = ACC[rt & 1]
            site = self.npoll; self.npoll += 1; self.pollnames.append("H%d" % rt)
            a(f"s_cbranch_vccnz {Lr}\n{Lo}:")
            def tail():
                a.auto = False
                a(Lr + ":")
                if self.stamps: a(f"s_bitset1_b32 {S(sRet + site // 32)}, {site % 32}")
                a("s_waitcnt vmcnt(0)")
                for i0 in range(0, 11, 3):
                    fr = range(i0, min(i0 + 3, 11)); Ll = a.label("redo_loop"); Lg = a.label("redo_got")
                    a(f"s_mov_b32 {S(sCnt)}, 0\n{Ll}:")
                    for i in fr: a(hso(11 * rt + i)); a(hld(RD + 4 * (i - i0)))
                    a(f"s_add_u32 {S(sCnt)}, {S(sCnt)}, 1\ns_waitcnt vmcnt(0)")
                    a(f"v_max3_u32 {R(T)}, {R(RD)}, {R(RD + 4)}, {R(RD + 4 * (len(fr) - 1))}")
                    a(f"v_cmp_eq_u32 vcc, -1, {R(T)}\ns_cbranch_vccz {Lg}\ns_cmp_lt_u32 {S(sCnt)}, {SPIN}\ns_cbranch_scc1 {Ll}\n{Lg}:")
                    for i in fr:
                        for t in range(4):
                            a(f"v_mfma_f32_16x16x32_bf16 {R(acc + 4 * t, 4)}, {R(self.W2(i, t), 4)}, {R(RD + 4 * (i - i0), 4)}, {R(acc + 4 * t, 4) if i else 0}")
                if rt < 3:
                    for i in (8, 9, 10): a(hso(11 * (rt + 1) + i)); a(hld(HF + 4 * i))
                    a("s_waitcnt vmcnt(0)")
                a(f"s_nop 7\ns_branch {Lo}")
            self.tail.append(tail)
        self.stamp("g2_in")
        for rt in range(4):
            acc = ACC[rt & 1]
            order = [(i, t) for i in range(11) for t in range(4)]
            if rt == 3: order = order[:32] + [(i, t) for t in range(4) for i in (8, 9, 10)]
            mf = [f"v_mfma_f32_16x16x32_bf16 {R(acc + 4 * t, 4)}, {R(self.W2(i, t), 4)}, {R(HF + 4 * i, 4)}, {R(acc + 4 * t, 4) if i else 0}" for i, t in order]
            fixed = {}
            for i in range(11):
                n = 11 * rt + i
                if 1 <= n and n + 10 < 44: fixed[4 * i] = [(lambda n=n: hload(n + 10), 3)]
                fixed[4 * i + 3] = [(lambda n=n: a.wait_vm(tok[n + 1]), 1)] if n + 1 < 44 else []
                if n + 11 < 44: fixed[4 * i + 3].append((hso(n + 11), 1))
            if rt:
                fixed[1] = [(lambda rt=rt: nanchk(rt - 1), 2)]
                fixed[3].insert(0, (lambda rt=rt: nanbr(rt - 1), 1))
                for t in range(4): fixed[5 + 4 * t] = [(lambda rt=rt, t=t: red_w(rt - 1, t), 3)]
                fixed[c.get("rbar", 21)] = [(self.bar_after("tokrw")[0], 2)]
            if rt == 3:
                fixed[40] = [(lambda: red_w(3, 0), 3)]; fixed[42] = [(lambda: nanchk(3), 2)]; fixed[43] = [(lambda: red_w(3, 1), 3)]
            self.pack(mf, fixed, [], [], 0, 44)
            self.stamp("g2p%d" % rt)
        red_w(3, 2); red_w(3, 3)
        Lw = a.label("rewrite"); Lf = a.label("final")
        a(f"s_cbranch_vccz {Lf}")
        nanbr(3)
        a.auto = False
        for t in range(4): red_w(3, t)
        a.auto = True
        a(f"{Lf}:\ns_waitcnt lgkmcnt(0)\ns_barrier")
        if self.stamps: a(f"v_mov_b32 {R(self.vZero)}, 0")
    def finish(self, role):
        a = self.a
        if self.amp and role == "A":
            i, j = (self.stamps.index(n) for n in self.amp)
            self.stamp("end")
        if self.amp and role != self.cfg.get("amprole", "A"): return
        if self.amp:
            i, j = (self.stamps.index(n) for n in self.amp); e = self.stamps.index("end")
            a("s_waitcnt lgkmcnt(0)")
            a(f"s_sub_u32 {S(sT0)}, {S(sStamp + 2 * j)}, {S(sStamp + 2 * i)}\ns_lshl_b32 {S(sT0)}, {S(sT0)}, 3\ns_min_u32 {S(sT0)}, {S(sT0)}, 100000")
            a(f"L_amp:\ns_memrealtime s[4:5]\ns_waitcnt lgkmcnt(0)\ns_sub_u32 {S(sT1)}, s4, {S(sStamp + 2 * e)}\ns_cmp_lt_u32 {S(sT1)}, {S(sT0)}\ns_cbranch_scc1 L_amp")
        elif self.stamps:
            a("s_waitcnt lgkmcnt(0)")
            a(f"s_lshl_b32 {S(sT0)}, s2, 3\ns_add_u32 {S(sT0)}, {S(sT0)}, s3\ns_lshl_b32 {S(sT0)}, {S(sT0)}, 6\ns_add_u32 {S(sT0)}, {S(sT0)}, {STAMP}")
            for i, sr in [(i, sStamp + 2 * i) for i in range(len(self.stamps))] + [(14, sRet), (15, sRet + 1)]:
                a(f"v_mov_b32 {R(self.vT)}, {S(sr)}")
                a(f"buffer_store_dword {R(self.vT)}, {R(self.vZero)}, {S(sWS, 4)}, {S(sT0)} offen offset:{4 * i}")
    def build(self):
        import copy
        a = self.a; va = self.va
        self.prologue()
        snap = (dict(va.used), list(a.vm), list(a.lg))
        self.prologue_a()
        self.point("start")
        self.stamp("tabs")
        self.p1()
        va.free(self.vM1)
        self.point("p1_end")
        self.p2_gather()
        self.point("g1_wait")
        self.p2()
        self.point("p2_end")
        self.p3_gather()
        self.point("g2_wait")
        self.p3()
        self.point("p3_end")
        self.ffn_a()
        self.finish("A")
        a("L_end:")
        a("s_endpgm")
        vTa = self.vT
        bstart = len(a.ins)
        a("L_roleB:")
        va.used, a.vm, a.lg = snap
        self.clrdone = set(self.cleared)
        self.role_b()
        self.finish("B")
        a("s_endpgm")
        self.vT = vTa
        for t in self.tail: t()
        if self.cfg.get("bnear", 1):
            blk = a.ins[bstart:self.bend]
            a.ins = a.ins[:self.splice] + blk + a.ins[self.splice:bstart] + a.ins[self.bend:]
        body = a.finalize()
        hdr = open("header.txt").read()
        s = hdr + f"; @launch grid=(256,1,1) block=(512,1,1) lds={LDS_SIZE}\n"
        s += f'.amdgcn_target "amdgcn-amd-amdhsa--gfx950"\n.text\n.globl {KN}\n.p2align 8\n.type {KN},@function\n{KN}:\n'
        s += body
        s += ".p2align 8\n.fill 4096, 4, 0xbf810000\n"
        s += f'''.section .rodata,"a"
.p2align 6
.amdhsa_kernel {KN}
  .amdhsa_next_free_vgpr 256
  .amdhsa_next_free_sgpr 102
  .amdhsa_accum_offset 256
  .amdhsa_group_segment_fixed_size 0
  .amdhsa_kernarg_size 72
  .amdhsa_user_sgpr_count 2
  .amdhsa_user_sgpr_kernarg_segment_ptr 1
  .amdhsa_system_sgpr_workgroup_id_x 1
  .amdhsa_float_denorm_mode_32 3
.end_amdhsa_kernel
'''
        return s

F = lambda name, *args: [(name, args)]
def write(cfg, out):
    g = Gen(cfg)
    s = g.build()
    open(out, "w").write(s)
    return g
```

```python
from gen4 import *
ST_A = ['entry', 'karg', 'tabs', 'x_in', 'z1_st', 'g1', 'z1_in', 'z2_st', 'g2', 'z2_in', 'hn_st']
ST_B = ['entry', 'hn_st', 'g3', 'hn_in', 'g1p0', 'g1p2', 'g1p3', 'g1_end', 'w2_in', 'cue', 'end']
ST_C = ['entry', 'Bb1', 'z1_st', 'Bb2', 'z1_in', 'Bb3', 'z2_st', 'Bb4', 'z2_in', 'Bb5', 'hn_in']
ST_D = ['entry', 'hn_in', 'w2_in', 'cue', 'g1_end', 'g2_in', 'g2p0', 'g2p1', 'g2p2', 'g2p3', 'end']
ST_H = ['entry', 'z1_st', 'z1_in', 'z2_st', 'z2_in', 'hn_st', 'hn_in', 'g1p0', 'g1_end', 'g2_in', 'end']
CL = lambda base, r: [("clear", (base, i)) for i in r]
CH = lambda r: [("clear_H", (i,)) for i in r]
WL = lambda *x: [("w_load", (i,)) for i in x]
L1 = lambda r: [("l1", (i,)) for i in r]
L2 = lambda r: [("l2", (i,)) for i in r]
HL = lambda *r: [("hn_load", (i,)) for i in r]
HK = lambda *r: [("hn_check", (i,)) for i in r]
SL = lambda n: F("sleep", n) if n else []
BAR = lambda n: F("bar", n)
PO = F("pack_out"); PW = F("pack_wait")
WF = F("w_stage") + F("w_coefs"); WS = F("w_spec"); WT = F("w_touch"); WC = F("waitclr")
T1 = F("tables_p1")
T2 = F("addr_g1") + F("tables_p2a") + F("tables_p2b") + F("addr_p2")
T3 = F("xnat_load") + F("addr_g2") + F("tables_p3") + F("tables_g2") + F("tables_w2")
G2W = F("xnat_unpack") + F("addr_g3")
KA = F("karg"); PA = F("pack_addr"); WA = F("w_addr"); TG = F("tables_g1")
VW = lambda n: F("vmwait", n)
def thr(f, r, n):
    out = []
    for i in r: out += VW(n) + f((i,))
    return out
MK = lambda n: F("mark", n)
HNC = CL(HN, (0, 1))
BE = PA + WA + TG
def base():
    return {"rot1": 0, "rot2": 0, "xrot1": 4, "xrot2": 7, "hdepth": 14, "prio": (1, 1, 0), "sched": dict(
        start=T1 + WA, p1_end=BAR("s1") + WL(0, 1) + WS + T2, g1_wait=WF, p2_end=T3 + SL(6), g2_wait=BAR("g2") + G2W,
        p3_s=BAR("s3"), p3_end=SL(10),
        hn_0=HL(0, 1, 2, 3) + HK(0), hn_1=L2((0, 1)) + HK(1, 2, 3), w2=thr(L2, range(2, 11), 4),
        B_pre=SL(8), B_pre3=SL(8), B_b1=PA + TG, B_b2=PO, B_b3=CH((0, 1, 2)) + PW, B_b4=CH((3, 4, 5)),
        B_s3=L1(range(3)) + WC, B_b5=L1(range(3, 16)),
    )}
def var(**kw):
    def f():
        c = base()
        for k, v in kw.items():
            if isinstance(v, list): c["sched"][k] = v
            else: c[k] = v
        return c
    return f
CFG = {"base": base}
ST_K = ['entry', 'u0', 'x_in', 'z1_st', 'Bb2', 'z1_in', 'Bb3', 'z2_st', 'g2', 'z2_in', 'hn_st']
ST_M = ['entry', 'z2_in', 'hn_st', 'st_st', 'g3', 'Bb5', 'hn_in', 'g1p0', 'g1_end', 'g2_in', 'end']
e0 = dict(B_b5=thr(L1, range(3, 16), 7), p3_end=SL(16), g2_wait=BAR("g2") + F("pre_st") + G2W)
e0.update(p3_end=SL(24), B_b5=thr(L1, range(3, 16), 10), st2=1)
e0.update(w2=thr(L2, range(2, 11), 6), hthr=9)
CFG["e0"] = var(**e0)
CFG["e1"] = var(**dict(e0, rbar=37))
CFG["e2"] = var(**dict(e0, outflag=" sc1"))
CFG["e3"] = var(**dict(e0, prio=(1, 0, 2)))
CFG["e4"] = var(**dict(e0, mrot=7))
ST_F = ['entry', 'u0', 'Bb2', 'Bb4', 'hn_in', 'g1p0', 'g1p1', 'g1p2', 'g1p3', 'g1_end', 'end']
ST_G = ['entry', 'x_in', 'z1_st', 'z2_in', 'hn_st', 'cue', 'g2_in', 'g2p0', 'g2p1', 'g2p2', 'g2p3']
CFG["e0c"] = lambda: dict(CFG["e0"](), cyc=1)
CFG["redo"] = var(**dict(e0, hn_p=L2(range(11)), hn_1=HK(1, 2, 3), w2=[], cue=(1, 4)))
if __name__ == "__main__":
    name, out = sys.argv[1], sys.argv[2]
    c = CFG[name]()
    for x in sys.argv[3:]:
        if len(x) == 1: c["stamps"] = globals()["ST_" + x]
        if x.startswith("--amp="):
            c["amp"] = x[6:].split(","); c["stamps"] = list(dict.fromkeys(["entry"] + c["amp"] + ["end"]))
    g = write(c, out)
    print("wrote", out, "instrs", len(g.a.ins), "nops", g.a.nops_added, "vgpr high", g.va.high, "pack", g.packinfo)
```

```python
import sys, struct, math
from asmlib import *

KN = "sequential_preLN__spectral_gfnet__dense_activation_silu__prompt_kernel"
def fl(x): return "0x%08x" % struct.unpack("<I", struct.pack("<f", x))[0]

Z1 = 0x0; Z2 = 0x200000; HN = 0x400000; HH = 0x600000; HB = 0x800000; EPO = 0xE00000; STAMP = 0xE80000; W1P = 0x1000000; W2P = 0x1200000
WS_SIZE = 0x1400000
HCL = 4 * 44 * 1024
OOB = 0x40000000
HNL = 0; HROW = 1040; HTILE = 16 * HROW
EA = 0; EB = 8448
RED = (4 * HTILE, 4 * HTILE + 16384)
BST = RED[0]; BSTW = 8192
AR = 4 * HTILE + 32768; ARW = 16128
CUE = AR + 15360
LDS_SIZE = 163840
sX, sWR, sWI, sW1, sW2, sO, sWS = 8, 12, 16, 20, 24, 28, 32
sW, sS2, sK1, sM, sMem, sRot, sT0, sT1, sT2, sOnes, sMask, sEp, sCnt, sStg, sN, sD0, sHb, sU0, sLn2, sOwn = range(36, 56)
sOff = 56
sTag = 79
sPk = 72; sPj = 76
sKap = 68
sStamp = 80
sSel = 12

sRet = 6
SPIN = 20000

class Gen:
    def __init__(self, cfg):
        self.cfg = cfg
        self.amp = cfg.get("amp"); self.stamps = cfg.get("stamps") or []
        self.a = Asm(); self.va = Alloc(1, 256); self.vb = self.va
        self.tail = []; self.npoll = 0; self.pollnames = []
        self.sched = cfg.get("sched", {})
        self.W2 = lambda i, t: 80 + (i * 4 + t) * 4
        self.W1 = lambda ks, T: 64 + (ks * 3 + T) * 4
        self.cleared = set(); self.loaded = set(); self.pkdone = None; self.role = 'A'; self.cf_own = False
        self.packinfo = []; self.bars = []
    def stamp(self, name):
        if name in self.stamps:
            k = self.stamps.index(name)
            self.a(f"{'s_memtime' if self.cfg.get('cyc') else 's_memrealtime'} {S(sStamp + 2 * k, 2)}")
    def sincos(self, c, s, ang):
        self.a(f"v_cos_f32 {R(c)}, {R(ang)}"); self.a(f"v_sin_f32 {R(s)}, {R(ang)}")
    def poll(self, name, loads, check):
        a = self.a
        Lr = a.label(name + "_retry"); Lo = a.label(name + "_ok")
        site = self.npoll; self.npoll += 1; self.pollnames.append(name)
        check()
        a(f"s_cbranch_vccnz {Lr}")
        a(Lo + ":")
        def tail():
            a.auto = False
            a(Lr + ":")
            a(f"s_mov_b32 {S(sCnt)}, 0")
            Ll = a.label(name + "_loop")
            a(Ll + ":")
            if self.stamps: a(f"s_bitset1_b32 {S(sRet + site // 32)}, {site % 32}")
            if self.cfg.get("backoff"): a(f"s_sleep {self.cfg['backoff']}")
            for l in loads: a(l)
            a("s_waitcnt vmcnt(0)")
            check()
            a(f"s_cbranch_vccz {Lo}")
            a(f"s_add_u32 {S(sCnt)}, {S(sCnt)}, 1")
            a(f"s_cmp_lt_u32 {S(sCnt)}, {SPIN}")
            a(f"s_cbranch_scc1 {Ll}")
            a(f"s_branch {Lo}")
        self.tail.append(tail)
    def check_sentinel(self, regs):
        a = self.a; t = self.vT
        def chk():
            r = list(regs)
            if len(r) % 2 == 0:
                a(f"v_max_u32 {R(t)}, {R(r[0])}, {R(r[1])}"); r = r[2:]
            else:
                a(f"v_max3_u32 {R(t)}, {R(r[0])}, {R(r[1])}, {R(r[2])}"); r = r[3:]
            while r:
                a(f"v_max3_u32 {R(t)}, {R(t)}, {R(r[0])}, {R(r[1])}"); r = r[2:]
            a(f"v_cmp_eq_u32 vcc, -1, {R(t)}")
        return chk
    def cmul(self, ore, oim, re, im, c, s, conj, addend=None):
        a = self.a
        neg = " neg_lo:[0,1,0] neg_hi:[0,1,0]"
        for k in (0, 2):
            for o, x in ((ore, re), (oim, im)):
                if addend is None: a(f"v_pk_mul_f32 {R(o + k, 2)}, {R(x + k, 2)}, {R(c + k, 2)}")
                else: a(f"v_pk_fma_f32 {R(o + k, 2)}, {R(x + k, 2)}, {R(c + k, 2)}, {R(addend, 2)} op_sel_hi:[1,1,0] neg_lo:[0,0,1] neg_hi:[0,0,1]")
        for k in (0, 2):
            a(f"v_pk_fma_f32 {R(ore + k, 2)}, {R(im + k, 2)}, {R(s + k, 2)}, {R(ore + k, 2)}" + (neg if conj else ""))
            a(f"v_pk_fma_f32 {R(oim + k, 2)}, {R(re + k, 2)}, {R(s + k, 2)}, {R(oim + k, 2)}" + ("" if conj else neg))
    def stats(self, X, st, scale, mscale):
        a = self.a
        S0, S1, Q0, Q1 = st, st + 1, st + 2, st + 3
        for r in range(4):
            a(f"v_dot2c_f32_bf16 {R(S0)}, {S(sOnes)}, {R(X + r)}")
            a(f"v_dot2c_f32_bf16 {R(Q0)}, {R(X + r)}, {R(X + r)}")
        for r in range(4):
            a(f"v_dot2c_f32_bf16 {R(S1)}, {S(sOnes)}, {R(X + 4 + r)}")
            a(f"v_dot2c_f32_bf16 {R(Q1)}, {R(X + 4 + r)}, {R(X + 4 + r)}")
        a(f"v_permlane32_swap_b32 {R(S0)}, {R(S1)}")
        a(f"v_permlane32_swap_b32 {R(Q0)}, {R(Q1)}")
        a(f"v_add_f32 {R(S0)}, {R(S0)}, {R(S1)}")
        a(f"v_add_f32 {R(Q0)}, {R(Q0)}, {R(Q1)}")
        a(f"v_permlane16_swap_b32 {R(S0)}, {R(Q0)}")
        a(f"v_add_f32 {R(S0)}, {R(S0)}, {R(Q0)}")
        for sh in (8, 4, 2, 1):
            a(f"v_add_f32_dpp {R(S0)}, {R(S0)}, {R(S0)} row_ror:{sh} row_mask:0xf bank_mask:0xf")
        a(f"v_mul_f32 {R(Q0)}, {fl(1 / 512)}, {R(S0)}")
        a(f"v_mul_f32 {R(S0)}, {fl(1 / 512)}, {R(S0)}")
        a(f"v_permlane16_swap_b32 {R(S0)}, {R(Q0)}")
        a(f"v_fma_f32 {R(Q0)}, -{R(S0)}, {R(S0)}, {R(Q0)}")
        a(f"v_max_f32 {R(Q0)}, 0, {R(Q0)}")
        if scale != 1.0: a(f"v_fmamk_f32 {R(Q0)}, {R(Q0)}, {fl(1 / scale ** 2)}, {R(self.vEps)}")
        else: a(f"v_add_f32 {R(Q0)}, {fl(1e-5)}, {R(Q0)}")
        a(f"v_rsq_f32 {R(Q0)}, {R(Q0)}")
        if mscale is not None:
            a(f"v_mov_b32 {R(self.vMu)}, {R(S0)}")
            a(f"v_mul_f32 {R(S0)}, {R(mscale)}, {R(S0)}")
        a(f"v_mul_f32 {R(st + 4)}, {R(S0)}, {R(Q0)}")
        a(f"v_mul_f32 {R(st + 6)}, {R(S0)}, {R(Q0)}")
        a(f"v_mov_b32 {R(st)}, {R(Q0)}")
        a(f"v_permlane32_swap_b32 {R(st + 4)}, {R(st + 6)}")
        a(f"v_permlane32_swap_b32 {R(st)}, {R(st + 2)}")
    def early_b(self):
        a = self.a; va = self.va; T = self.vT; L = self.vL
        self.vP = va(1, "vP"); u = va(2, "junk"); self.junk.append(u)
        L3 = a.label("w3"); Le = a.label("join")
        a(f"v_and_b32 {R(L)}, 63, v0")
        a(f"s_and_b32 {S(sW)}, s3, 3")
        a(f"s_cmp_eq_u32 s3, 7\ns_cbranch_scc1 {L3}")
        a(f"s_xor_b32 {S(sT0)}, s2, 255\ns_mul_i32 {S(sT0)}, {S(sT0)}, 3\ns_add_u32 {S(sPj)}, {S(sT0)}, {S(sW)}")
        a(f"s_and_b32 {S(sT0)}, {S(sPj)}, 15\ns_mul_i32 {S(sT0)}, {S(sT0)}, {8 * 2752}\ns_lshr_b32 {S(sT1)}, {S(sPj)}, 4\ns_lshl_b32 {S(sT1)}, {S(sT1)}, 7\ns_add_u32 {S(sT0)}, {S(sT0)}, {S(sT1)}")
        a(f"s_sub_u32 {S(sT1)}, {S(sPj)}, 352\ns_and_b32 {S(sT2)}, {S(sT1)}, 7\ns_lshl_b32 {S(sT2)}, {S(sT2)}, 7\ns_lshr_b32 {S(sT1)}, {S(sT1)}, 3\ns_lshl_b32 {S(sT1)}, {S(sT1)}, 15\ns_add_u32 {S(sT1)}, {S(sT1)}, {S(sT2)}")
        a(f"s_lshl_b32 {S(sStg)}, {S(sW)}, 13\ns_add_u32 {S(sStg)}, {S(sStg)}, {BST}\ns_mov_b32 m0, {S(sStg)}")
        a(f"s_movk_i32 {S(sCnt)}, 1024\ns_movk_i32 {S(sU0)}, 7168")
        a(f"v_lshrrev_b32 {R(T)}, 3, {R(L)}\nv_and_b32 {R(self.vP)}, 7, v0\nv_lshlrev_b32 {R(self.vP)}, 4, {R(self.vP)}")
        a(f"s_mov_b32 {S(sW1 + 2)}, {512 * 2752}\ns_mov_b32 {S(sW1 + 3)}, 0x20000")
        a(f"s_cmp_lt_u32 {S(sPj)}, 352\ns_cselect_b32 {S(sD0)}, {S(sT0)}, {S(sT1)}\ns_cselect_b32 {S(sCnt)}, 2752, {S(sCnt)}\ns_cselect_b32 {S(sU0)}, {128 * 2752 - 1024}, {S(sU0)}")
        a(f"v_mad_u32_u24 {R(self.vP)}, {R(T)}, {S(sCnt)}, {R(self.vP)}")
        a("s_waitcnt lgkmcnt(0)")
        a(f"s_cselect_b64 {S(sW1, 2)}, {S(sOff + 8, 2)}, {S(sOff + 10, 2)}")
        self.point("B_pre")
        a.auto = False
        for p in range(4):
            if p: a(f"s_add_u32 {S(sD0)}, {S(sD0)}, {S(sU0)}")
            a(f"buffer_load_dwordx4 {R(self.vP)}, {S(sW1, 4)}, {S(sD0)} offen offset:{p * 1024} lds")
        self.srds()
        a(f"s_branch {Le}\n{L3}:")
        k = self.vP
        a(f"s_lshl_b32 {S(sT0)}, {S(sM)}, 6\ns_add_u32 {S(sT0)}, {S(sT0)}, {S(sK1)}\ns_movk_i32 {S(sPj)}, 1023\ns_mov_b32 {S(sStg)}, {BST + 3 * BSTW}")
        a(f"v_and_b32 {R(k)}, 28, v0")
        a(f"v_lshl_add_u32 {R(k)}, {R(k)}, 1, {S(sT0)}")
        a(f"v_cmp_gt_u32 vcc, 32, {R(L)}")
        a(f"v_sub_u32 {R(u)}, 0, {R(k)}")
        a(f"v_and_b32 {R(u)}, 2047, {R(u)}")
        a(f"v_cndmask_b32 {R(k)}, {R(u)}, {R(k)}, vcc")
        a(f"v_mul_u32_u24 {R(k)}, 514, {R(k)}")
        a(f"v_and_b32 {R(u)}, 3, v0")
        a(f"v_mul_u32_u24 {R(u)}, 84, {R(u)}")
        a(f"v_and_b32 {R(T)}, 32, v0")
        a(f"v_lshl_add_u32 {R(u)}, {R(T)}, 3, {R(u)}")
        a(f"v_add_u32 {R(k)}, {R(k)}, {R(u)}")
        a("s_waitcnt lgkmcnt(0)")
        self.srds()
        self.point("B_pre3")
        a(f"buffer_load_dword {R(u)}, {R(k)}, {S(sWR, 4)}, 0 offen offset:2")
        a(f"buffer_load_dword {R(u + 1)}, {R(k)}, {S(sWI, 4)}, 0 offen offset:2")
        a.auto = True
        a(Le + ":")
        self.pkpos = a.tok
        va.free(self.vP)
    def pack_addr(self):
        a = self.a; va = self.va; L, G, T = self.vL, self.vG, self.vT
        self.vTr = va(2, "vTr", 1); self.PK = self.vb(16, "PK")
        a(f"s_lshr_b32 {S(sT0)}, {S(sPj)}, 4\ns_lshl_b32 {S(sT0)}, {S(sT0)}, 16\ns_and_b32 {S(sT1)}, {S(sPj)}, 15\ns_lshl_b32 {S(sT1)}, {S(sT1)}, 10\ns_add_u32 {S(sT0)}, {S(sT0)}, {S(sT1)}\ns_add_u32 {S(sT0)}, {S(sT0)}, {W1P}")
        a(f"s_sub_u32 {S(sT1)}, {S(sPj)}, 352\ns_and_b32 {S(sT2)}, {S(sT1)}, 7\ns_mul_i32 {S(sT2)}, {S(sT2)}, 43\ns_lshr_b32 {S(sT1)}, {S(sT1)}, 3\ns_add_u32 {S(sT1)}, {S(sT1)}, {S(sT2)}\ns_lshl_b32 {S(sT1)}, {S(sT1)}, 12\ns_add_u32 {S(sT1)}, {S(sT1)}, {W2P}")
        a(f"s_cmp_lt_u32 {S(sPj)}, 696\ns_cselect_b32 {S(sT1)}, {S(sT1)}, 2.0\ns_movk_i32 {S(sT2)}, 1024")
        a(f"s_cmp_lt_u32 {S(sPj)}, 352\ns_cselect_b32 {S(sPk)}, {S(sT0)}, {S(sT1)}\ns_cselect_b32 {S(sT0)}, 16384, {S(sT2)}\ns_cselect_b32 {S(sT1)}, 512, {S(sT2)}\ns_cselect_b32 {S(sT2)}, 0, 1")
        for t in range(1, 4): a(f"s_add_u32 {S(sPk + t)}, {S(sPk + t - 1)}, {S(sT0)}")
        a(f"v_and_b32 {R(T)}, {S(sT2)}, {R(G)}")
        a(f"v_lshlrev_b32 {R(self.vTr)}, 1, {R(G)}")
        a(f"v_sub_u32 {R(T)}, {R(self.vTr)}, {R(T)}")
        a(f"v_lshl_add_u32 {R(T)}, {R(T)}, 9, {S(sStg)}")
        a(f"v_and_b32 {R(self.vTr)}, 12, {R(L)}")
        a(f"v_lshl_add_u32 {R(T)}, {R(self.vTr)}, 5, {R(T)}")
        a(f"v_and_b32 {R(self.vTr)}, 3, {R(L)}")
        a(f"v_lshl_add_u32 {R(self.vTr)}, {R(self.vTr)}, 3, {R(T)}")
        a(f"v_add_u32 {R(self.vTr + 1)}, {S(sT1)}, {R(self.vTr)}")
    def pack_out(self):
        a = self.a; PK = self.PK
        a(f"s_waitcnt vmcnt({sum(1 for t, _ in a.vm if t > self.pkpos)})")
        self.stamp("pk_in")
        for t in range(4):
            for h in range(2): a(f"ds_read_b64_tr_b16 {R(PK + 4 * t + 2 * h, 2)}, {R(self.vTr + h)} offset:{32 * t}")
        for t in range(4):
            self.pktok = a(f"buffer_store_dwordx4 {R(PK + 4 * t, 4)}, {R(self.vL16)}, {S(sWS, 4)}, {S(sPk + t)} offen sc1")
        self.va.free(self.vTr); self.vb.free(self.PK)
    def pack_wait(self):
        self.a.wait_vm(self.pktok); self.pkdone = self.curbar
    def l1(self, ks):
        assert self.usable(1)
        for T in range(3):
            q = self.W1(ks, T)
            assert not any((q + k) in self.va.used for k in range(4)), ("w1 registers in use", ks)
            self.a(f"buffer_load_dwordx4 {R(q, 4)}, {R(self.vW1 + T)}, {S(sWS, 4)}, {S(sOff + 4 + (ks >> 2))} offen offset:{(ks & 3) * 1024}{self.cfg.get('wflag', ' sc1')}")
        self.loaded.add((1, ks))
    def l2(self, i):
        assert "b4" in self.bars
        self.a(f"s_lshl2_add_u32 {S(sD0)}, {S(sKap + i)}, {S(sU0)}")
        for t in range(4):
            q = self.W2(i, t)
            assert not any((q + k) in self.va.used for k in range(4)), ("w2 registers in use", i, self.va.used.get(q))
            self.a(f"buffer_load_dwordx4 {R(q, 4)}, {R(self.vL16)}, {S(sWS, 4)}, {S(sD0)} offen offset:{t * 1024}{self.cfg.get('wflag', ' sc1')}")
        self.loaded.add((2, i))
    def usable(self, k):
        idx = lambda n: (self.bars + ["b5"]).index(n)
        last1 = "e1" if "e1" in self.bars else "b1"
        if idx(self.pkdone) <= idx(last1): return idx(self.curbar) > idx("b2")
        assert idx(self.pkdone) <= idx("e2" if "e2" in self.bars else "b3")
        return idx(self.curbar) > idx("b4")
    def bcut(self):
        if self.cfg.get("bnear", 1):
            self.a("s_branch L_contB"); self.bend = len(self.a.ins); self.a("L_contB:")
    def skew_pub(self, name):
        a = self.a; k = self.stamps.index(name)
        a(f"s_waitcnt lgkmcnt(0)\ns_lshl_b32 s4, s2, 7\ns_add_u32 s4, s4, {STAMP}\nv_mov_b32 {R(self.vT)}, {S(sStamp + 2 * k)}")
        a(f"buffer_store_dword {R(self.vT)}, off, {S(sWS, 4)}, s4 sc1")
    def vmwait(self, n): self.a(f"s_waitcnt vmcnt({n})")
    def plist(self, name):
        out = []
        for op, item in self.sched.get(name, []):
            out.append(lambda op=op, item=item: getattr(self, op)(*item))
        return out
    def fake(self, *items):
        for it in items: self.cleared.add(it)
        self.clrdone = set(self.cleared)
    def freeW(self): self.va.free(self.aW, self.aR)
    def mark(self, name): self.stamp(name)
    def sleep(self, n): self.a(f"s_sleep {n}")
    def drainvm(self, name):
        self.a.wait_vm_all(); self.stamp(name)
    def point(self, name): self.a.run(self.plist(name))
    def weave(self, mains, fills, f0=0.0, f1=1.0):
        a = self.a
        lst = []
        for op, item in mains: lst += a.capture(getattr(self, op), *item)
        glued = []
        for x in lst:
            if glued and isinstance(glued[-1], str) and glued[-1].split("\n")[-1].startswith("s_cmp"): glued[-1] += "\n" + x
            else: glued.append(x)
        self.sched["_w"] = fills
        a.run(spread(glued, (self.plist("_w"), int(f0 * len(glued)), int(f1 * len(glued)))))
    def prologue(self):
        a = self.a; va = self.va
        self.stamp("entry")
        a(f"s_load_dwordx2 {S(sX, 2)}, s[0:1], 0")
        a(f"s_load_dwordx2 {S(sWS, 2)}, s[0:1], 64")
        a(f"s_load_dwordx4 {S(sOff + 4, 4)}, s[0:1], 8")
        a(f"s_load_dwordx4 {S(sOff + 8, 4)}, s[0:1], 32")
        a(f"s_load_dwordx2 {S(sO, 2)}, s[0:1], 48")
        a(f"s_cmp_ge_u32 s2, 256\ns_cbranch_scc1 L_end")
        self.vT = va(1, "T"); self.vL16 = va(1, "l16"); self.vZero = va(1, "zero")
        self.vL = va(1, "lane"); self.vLi = va(1, "li"); self.vG = va(1, "g"); self.vPf = va(1, "pf"); self.vM1 = va(4, "m1")
        L, Li, G, T = self.vL, self.vLi, self.vG, self.vT
        a("s_getpc_b64 s[4:5]")
        a(f"s_lshr_b32 {S(sM)}, s2, 3\ns_and_b32 {S(sT0)}, {S(sM)}, 3\ns_lshl_b32 {S(sT0)}, {S(sT0)}, 13")
        a(f"v_lshrrev_b32 {R(T)}, 3, v0")
        a(f"v_lshl_add_u32 {R(T)}, {R(T)}, 7, {S(sT0)}")
        a(f"global_load_dword {R(self.vPf)}, {R(T)}, s[4:5]")
        a(f"v_lshrrev_b32 {R(T)}, 6, v0")
        a(f"v_and_b32 {R(Li)}, 15, v0")
        a(f"v_readfirstlane_b32 s3, {R(T)}")
        a(f"v_bfe_u32 {R(G)}, v0, 4, 2")
        a(f"s_and_b32 {S(sK1)}, s2, 7")
        a(f"s_cmp_ge_u32 s3, 4\ns_cbranch_scc1 L_roleB")
    def common(self):
        a = self.a; L = self.vL
        a(f"v_and_b32 {R(L)}, 63, v0")
        if self.role == "B": a(f"s_mov_b32 {S(sWS + 2)}, {WS_SIZE}\ns_mov_b32 {S(sWS + 3)}, 0x20000")
        if self.stamps:
            a(f"s_mov_b32 {S(sRet)}, 0\ns_mov_b32 {S(sRet + 1)}, 0")
            for k in range(1, len(self.stamps)):
                if self.stamps[k] != ("u0" if self.bars else "karg"): a(f"s_mov_b32 {S(sStamp + 2 * k)}, 0")
        a(f"s_and_b32 {S(sW)}, s3, 3")
        a(f"s_lshl_b32 {S(sN)}, {S(sK1)}, 5\ns_or_b32 {S(sN)}, {S(sN)}, {S(sM)}")
        a(f"s_and_b32 {S(sMem)}, {S(sM)}, 7")
        a(f"s_lshr_b32 {S(sRot)}, {S(sM)}, 3\ns_mul_i32 {S(sRot)}, {S(sRot)}, {self.cfg.get('rot1', 4)}")
        if self.cfg.get("xrot1"): a(f"s_mul_i32 {S(sT0)}, {S(sK1)}, {self.cfg['xrot1']}\ns_xor_b32 {S(sRot)}, {S(sRot)}, {S(sT0)}\ns_and_b32 {S(sRot)}, {S(sRot)}, 12")
        a(f"v_mov_b32 {R(self.vZero)}, 0")
        a(f"v_lshlrev_b32 {R(self.vL16)}, 4, {R(L)}")
        if self.bars:
            for i in range(4): a(f"v_mov_b32 {R(self.vM1 + i)}, -1")
        a(f"s_lshl_b32 {S(sT0)}, {S(sN)}, 13\ns_lshl_b32 {S(sT1)}, {S(sW)}, 11\ns_add_u32 {S(sOwn)}, {S(sT0)}, {S(sT1)}")
    def srds(self, first=0):
        a = self.a
        for reg, src, n in ((sWR, sOff + 4, 2048 * 514), (sWI, sOff + 6, 2048 * 514))[first:]:
            a(f"s_mov_b64 {S(reg, 2)}, {S(src, 2)}\ns_mov_b32 {S(reg + 2)}, {n}\ns_mov_b32 {S(reg + 3)}, 0x20000")
    def prologue_a(self):
        a = self.a; va = self.va; Li, G = self.vLi, self.vG
        self.aHf = va(1, "aHf"); self.aRw = va(2, "aRw", 1); self.aHw = va(1, "aHw")
        self.aHd = va(1, "aHd")
        self.X = va(8, "X"); aX = va(1, "aX"); self.vEp = va(1, "ep")
        a(f"s_lshl_b32 {S(sS2)}, {S(sK1)}, 4\ns_and_b32 {S(sT0)}, {S(sM)}, 15\ns_or_b32 {S(sS2)}, {S(sS2)}, {S(sT0)}")
        a(f"s_and_b32 {S(sT0)}, s2, 0x80\ns_or_b32 {S(sS2)}, {S(sS2)}, {S(sT0)}")
        a(f"v_lshlrev_b32 {R(aX)}, 2, {R(Li)}")
        a(f"v_lshl_add_u32 {R(aX)}, {R(G)}, 8, {R(aX)}")
        a(f"s_lshl_b32 {S(sT0)}, s3, 19\ns_lshl_b32 {S(sT1)}, {S(sS2)}, 10")
        a(f"s_add_u32 {S(sOff)}, {S(sT0)}, {S(sT1)}\ns_add_u32 {S(sOff + 1)}, {S(sOff)}, 0x40000")
        a(f"s_mov_b32 {S(sX + 2)}, 0x200000\ns_mov_b32 {S(sX + 3)}, 0x20000")
        a(f"s_mov_b32 {S(sWS + 2)}, {WS_SIZE}\ns_mov_b32 {S(sWS + 3)}, 0x20000\ns_mov_b32 {S(sT2)}, {EPO}")
        if self.cfg.get("prio", (1, 0, 2))[0]: a("s_setprio %d" % self.cfg.get("prio", (1, 0, 2))[0])
        self.point("pre_karg")
        a("s_waitcnt lgkmcnt(0)")
        self.stamp("karg")
        for rho in range(2):
            for r in range(4):
                a(f"buffer_load_dword {R(self.X + 4 * rho + r)}, {R(aX)}, {S(sX, 4)}, {S(sOff + rho)} offen offset:{64 * r}")
        a(f"buffer_load_dword {R(self.vEp)}, off, {S(sWS, 4)}, {S(sT2)} sc1")
        va.free(aX)
        if self.cfg.get("bnear", 1):
            a("s_branch L_contA"); self.splice = len(a.ins); a("L_contA:")
        self.common()
        a(f"s_mul_i32 {S(sStg)}, {S(sW)}, {ARW}\ns_add_u32 {S(sStg)}, {S(sStg)}, {AR}")
        a(f"s_mov_b32 {S(sOnes)}, 0x3f803f80\ns_mov_b32 {S(sMask)}, 0x00030003")
        a(f"v_add_u32 {R(self.aHf)}, {S(sStg)}, {R(self.vL16)}")
        a(f"v_mov_b32 {R(self.vT)}, {S(sStg)}")
        a(f"ds_write_b32 {R(self.vT)}, {R(self.vZero)} offset:15360")
    def clear(self, base, i):
        a = self.a
        a(f"s_add_u32 {S(sU0)}, {S(sOwn)}, {base + 1024 * i}")
        t = a(f"buffer_store_dwordx4 {R(self.vM1, 4)}, {R(self.vL16)}, {S(sWS, 4)}, {S(sU0)} offen sc1")
        self.tokclr = self.tokhn = t
        self.cleared.add((base, i))
    def preclr(self, n):
        a = self.a
        a(f"s_mov_b32 {S(sWS + 2)}, {WS_SIZE}\ns_mov_b32 {S(sWS + 3)}, 0x20000\ns_lshl_b32 s4, s2, 2\ns_or_b32 s4, s4, {S(sW)}\ns_lshl_b32 s4, s4, 12\ns_or_b32 s4, s4, {HB}")
        a(f"v_lshlrev_b32 {R(self.vL16)}, 4, {R(self.vL)}")
        for i in range(4): a(f"v_mov_b32 {R(self.vM1 + i)}, -1")
        au = a.auto; a.auto = False
        for i in range(n): a(f"buffer_store_dwordx4 {R(self.vM1, 4)}, {R(self.vL16)}, {S(sWS, 4)}, s4 offen offset:{1024 * i} sc1")
        a.auto = au
    def clear_H(self, i):
        a = self.a
        a(f"s_add_u32 {S(sU0)}, {S(sHb)}, {HB + 1024 * i}")
        if i == 5: a("s_mov_b32 exec_hi, 0")
        self.tokclr = a(f"buffer_store_dwordx4 {R(self.vM1, 4)}, {R(self.vL16)}, {S(sWS, 4)}, {S(sU0)} offen sc1")
        if i == 5: a("s_mov_b32 exec_hi, -1")
        self.cleared.add((HB, i))
    def w_addr(self):
        a = self.a; va = self.va; L, T = self.vL, self.vT
        k = va(1, "k"); u = va(1, "u"); self.aW = va(1, "aW"); self.aR = va(1, "aR")
        if self.role == "A": self.srds()
        a(f"s_lshl_b32 {S(sT0)}, {S(sW)}, 5\ns_and_b32 {S(sT1)}, s2, 15\ns_add_u32 {S(sT0)}, {S(sT0)}, {S(sT1)}")
        a(f"v_and_b32 {R(k)}, 0x19, {R(L)}")
        a(f"v_lshl_add_u32 {R(k)}, {R(k)}, 4, {S(sT0)}")
        a(f"v_and_b32 {R(T)}, 6, {R(L)}")
        a(f"v_lshl_add_u32 {R(k)}, {R(T)}, 8, {R(k)}")
        a(f"v_cmp_gt_u32 vcc, 32, {R(L)}")
        a(f"s_lshr_b32 {S(sT0)}, {S(sM)}, 1\ns_lshl_b32 {S(sT0)}, {S(sT0)}, 4\ns_sub_u32 {S(sT1)}, 498, {S(sT0)}")
        a(f"v_sub_u32 {R(u)}, 0, {R(k)}")
        a(f"v_and_b32 {R(u)}, 2047, {R(u)}")
        a(f"v_mul_u32_u24 {R(k)}, 514, {R(k)}")
        a(f"v_mul_u32_u24 {R(u)}, 514, {R(u)}")
        a(f"v_add_u32 {R(T)}, {S(sT0)}, {R(k)}")
        a(f"v_add_u32 {R(u)}, {S(sT1)}, {R(u)}")
        a(f"v_cndmask_b32 {R(self.aW)}, {R(u)}, {R(T)}, vcc")
        a(f"v_cndmask_b32 {R(self.aR)}, 2.0, {R(k)}, vcc")
        va.free(k, u)
        a(f"s_cmp_ge_u32 {S(sM)}, 2\ns_cselect_b32 {S(sOff + 9)}, 2.0, 0")
        self.WL = self.vb(10, "WL")
    def w_load(self, x):
        self.a(f"buffer_load_dwordx4 {R(self.WL + 4 * x, 4)}, {R(self.aW)}, {S((sWR, sWI)[x], 4)}, 0 offen")
    def w_spec(self):
        for x in range(2): self.a(f"buffer_load_ushort {R(self.WL + 8 + x)}, {R(self.aR)}, {S((sWR, sWI)[x], 4)}, {S(sOff + 9)} offen offset:256")
    def w_stage(self):
        a = self.a; va = self.va; L, Li, G, T = self.vL, self.vLi, self.vG, self.vT
        self.Wraw = self.vb(16, "Wraw")
        aw = va(1, "aw"); aP = va(1, "aP"); aQ = va(1, "aQ")
        a(f"s_add_u32 {S(sT0)}, {S(sStg)}, 4096")
        a(f"v_add_u32 {R(aw)}, {S(sT0)}, {R(self.vL16)}")
        a(f"v_and_b32 {R(T)}, 1, {R(Li)}")
        a(f"v_lshl_add_u32 {R(T)}, {R(G)}, 1, {R(T)}")
        a(f"v_lshl_add_u32 {R(T)}, {R(T)}, 4, {S(sT0)}")
        a(f"v_and_or_b32 {R(aP)}, {R(Li)}, 14, {R(T)}")
        a(f"v_xor_b32 {R(aQ)}, 14, {R(aP)}")
        for i in range(16): a(f"v_mov_b32 {R(self.Wraw + i)}, 0")
        for x in range(2): a(f"ds_write_b128 {R(aw)}, {R(self.WL + 4 * x, 4)} offset:{1024 * x}")
        Ls = a.label("nor")
        a(f"v_mov_b32 {R(self.WL + 9)}, {R(self.WL + 9)}")
        a(f"s_cmp_ge_u32 {S(sM)}, 2\ns_cbranch_scc1 {Ls}")
        a.auto = False
        a("s_mov_b32 exec_hi, 0")
        for x in range(2): a(f"ds_write_b16 {R(aw)}, {R(self.WL + 8 + x)} offset:{1024 * x}")
        a("s_mov_b32 exec_hi, -1")
        a.auto = True
        a(Ls + ":")
        for r in range(4):
            for x in range(2):
                a(f"ds_read_u16_d16_hi {R(self.Wraw + 4 * x + r)}, {R(aP)} offset:{1024 * x + 128 * r}")
                a(f"ds_read_u16_d16_hi {R(self.Wraw + 8 + 4 * x + r)}, {R(aQ)} offset:{1024 * x + 128 * r + 512}")
        self.vb.free(self.WL); va.free(aw, aP, aQ, self.aW, self.aR)
    def w_coefs(self):
        a = self.a; va = self.va; T = self.vT; W = self.Wraw
        sc = 2.0 ** -19 * 1.0039
        K = va(4, "K")
        al, be, c, s = (K + i for i in range(4))
        a(f"s_lshr_b32 {S(sT0)}, {S(sM)}, 1\ns_lshl_b32 {S(sT0)}, {S(sT0)}, 4")
        a(f"v_and_or_b32 {R(T)}, {R(self.vLi)}, 14, {S(sT0)}")
        a(f"v_cmp_ne_u32 vcc, 0, {R(T)}")
        a(f"v_mov_b32 {R(al)}, {fl(0.25)}")
        a(f"v_cvt_f32_u32 {R(T)}, {R(T)}")
        a(f"v_mul_f32 {R(T)}, {fl(1 / 1024)}, {R(T)}")
        a(f"v_cndmask_b32 {R(T)}, {R(al)}, {R(T)}, vcc")
        self.sincos(c, s, T)
        a(f"v_mul_f32 {R(c)}, {fl(sc / 2)}, {R(c)}")
        a(f"v_mul_f32 {R(s)}, {fl(sc / 2)}, {R(s)}")
        a(f"v_cndmask_b32 {R(c)}, 0, {R(c)}, vcc")
        a(f"v_sub_f32 {R(al)}, {fl(sc / 2)}, {R(s)}")
        a(f"v_add_f32 {R(be)}, {fl(sc / 2)}, {R(s)}")
        self.CF = self.vb(24, "CF")
        A1r, A1i, Br, Bi, A2r, A2i = (self.CF + 4 * i for i in range(6))
        Pr, Pi, Qr, Qi = (W + 4 * i for i in range(4))
        lo2 = " op_sel_hi:[1,0]"; hi2 = " op_sel:[0,1] op_sel_hi:[1,1]"
        lo3 = " op_sel_hi:[1,0,1]"; hi3 = " op_sel:[0,1,0] op_sel_hi:[1,1,1]"
        n2 = " neg_lo:[0,1] neg_hi:[0,1]"; n3 = " neg_lo:[0,1,0] neg_hi:[0,1,0]"
        P = lambda x: R(x, 2)
        for k in (0, 2):
            a(f"v_pk_mul_f32 {P(A1r + k)}, {P(Pr + k)}, {P(al)}" + lo2)
            a(f"v_pk_mul_f32 {P(A2r + k)}, {P(Pr + k)}, {P(al)}" + hi2)
            a(f"v_pk_add_f32 {P(Bi + k)}, {P(Pr + k)}, {P(Qr + k)}" + n2)
            a(f"v_pk_mul_f32 {P(A1i + k)}, {P(Pi + k)}, {P(al)}" + lo2)
            a(f"v_pk_mul_f32 {P(A2i + k)}, {P(Pi + k)}, {P(al)}" + hi2)
            a(f"v_pk_add_f32 {P(Br + k)}, {P(Pi + k)}, {P(Qi + k)}")
            a(f"v_pk_fma_f32 {P(A1r + k)}, {P(Qr + k)}, {P(al)}, {P(A1r + k)}" + hi3)
            a(f"v_pk_fma_f32 {P(A2r + k)}, {P(Qr + k)}, {P(al)}, {P(A2r + k)}" + lo3)
            a(f"v_pk_mul_f32 {P(Bi + k)}, {P(Bi + k)}, {P(c)}" + lo2)
            a(f"v_pk_fma_f32 {P(A1i + k)}, {P(Qi + k)}, {P(al)}, {P(A1i + k)}" + hi3 + n3)
            a(f"v_pk_fma_f32 {P(A2i + k)}, {P(Qi + k)}, {P(al)}, {P(A2i + k)}" + lo3 + n3)
            a(f"v_pk_mul_f32 {P(Br + k)}, {P(Br + k)}, {P(c)}" + lo2 + n2)
        if self.role == "A":
            self.cf_own = True; va.free(K); self.vb.free(W); return
        a(f"s_mul_i32 {S(sT0)}, {S(sW)}, {ARW}\ns_add_u32 {S(sT0)}, {S(sT0)}, {AR + 4096}")
        a(f"v_add_u32 {R(T)}, {S(sT0)}, {R(self.vL16)}")
        for i in range(6): a(f"ds_write_b128 {R(T)}, {R(self.CF + 4 * i, 4)} offset:{1024 * i}")
        a.wait_lg_all()
        self.cf_sent = True
        va.free(K); self.vb.free(W, self.CF)
    def tables_p1(self):
        a = self.a; va = self.va; Li, G, T = self.vLi, self.vG, self.vT
        self.M = va(8, "M"); self.M2 = va(8, "M2"); self.TW = va(8, "TW"); self.Gm = va(8, "G")
        p = va(1, "p"); c = va(1, "c"); s = va(1, "s"); u = va(1, "u"); f = va(1, "f")
        a(f"v_mul_u32_u24 {R(p)}, {R(Li)}, {R(G)}")
        a(f"v_cvt_f32_u32 {R(f)}, {R(Li)}")
        a(f"v_cvt_f32_u32 {R(p)}, {R(p)}")
        a(f"v_mul_f32 {R(p)}, {fl(1 / 64)}, {R(p)}")
        for r in range(4):
            if r: a(f"v_fmamk_f32 {R(p)}, {R(f)}, {fl(1 / 256)}, {R(p)}")
            a(f"v_mul_f32 {R(T)}, {fl(16.0)}, {R(p)}")
            a(f"v_fract_f32 {R(T)}, {R(T)}")
            self.sincos(c, s, T)
            self.sincos(self.TW + r, self.TW + 4 + r, p)
            a(f"v_cvt_pk_bf16_f32 {R(self.M + r)}, {R(c)}, {R(s)}")
            a(f"v_cvt_pk_bf16_f32 {R(self.M + 4 + r)}, -{R(s)}, {R(c)}")
            a(f"v_cvt_pk_f16_f32 {R(self.M2 + r)}, {R(c)}, {R(s)}")
            a(f"v_cvt_pk_f16_f32 {R(self.M2 + 4 + r)}, -{R(s)}, {R(c)}")
        msk = va(1, "msk"); sg = va(1, "sg")
        a(f"v_lshrrev_b32 {R(u)}, 1, {R(Li)}")
        a(f"v_and_b32 {R(p)}, 1, {R(G)}")
        a(f"v_lshl_add_u32 {R(p)}, {R(p)}, 10, {S(sS2)}")
        a(f"v_mul_u32_u24 {R(p)}, {R(p)}, {R(u)}")
        a(f"v_cvt_f32_u32 {R(f)}, {R(u)}")
        a(f"v_cvt_f32_u32 {R(p)}, {R(p)}")
        a(f"v_lshrrev_b32 {R(msk)}, 1, {R(G)}")
        a(f"v_mul_f32 {R(p)}, {fl(1 / 2048)}, {R(p)}")
        a(f"v_xor_b32 {R(msk)}, {R(msk)}, {R(Li)}")
        a(f"v_and_b32 {R(msk)}, 1, {R(msk)}")
        a(f"v_add_u32 {R(msk)}, -1, {R(msk)}")
        a(f"v_lshlrev_b32 {R(sg)}, 31, {R(Li)}")
        for r in range(4):
            if r: a(f"v_fmamk_f32 {R(p)}, {R(f)}, {fl(1 / 8)}, {R(p)}")
            self.sincos(c, s, p)
            a(f"v_cvt_pk_f16_f32 {R(self.Gm + r)}, {R(c)}, {R(s)}")
            a(f"v_cvt_pk_f16_f32 {R(self.Gm + 4 + r)}, -{R(s)}, {R(c)}")
            for q in (self.Gm + r, self.Gm + 4 + r):
                a(f"v_bitop3_b32 {R(q)}, {R(q)}, {R(sg)}, {R(msk)} bitop3:0x28")
        self.vMsk = msk
        va.free(sg, p, s, f)
        self.aE1w = va(1, "aE1w"); self.aE1r = va(2, "aE1r", 1); self.aZ1 = va(1, "aZ1"); self.v16 = va(1, "m16")
        a(f"s_lshr_b32 {S(sT0)}, {S(sW)}, 1\ns_lshl_b32 {S(sT0)}, {S(sT0)}, 12\ns_and_b32 {S(sT1)}, {S(sW)}, 1\ns_lshl_b32 {S(sT1)}, {S(sT1)}, 3")
        a(f"s_add_u32 {S(sT0)}, {S(sT0)}, {S(sT1)}\ns_add_u32 {S(sT0)}, {S(sT0)}, {EA}")
        a(f"v_lshl_add_u32 {R(self.aE1w)}, {R(Li)}, 4, {S(sT0)}")
        a(f"v_lshl_add_u32 {R(self.aE1w)}, {R(G)}, 10, {R(self.aE1w)}")
        hh = va(1, "hh")
        a(f"v_and_b32 {R(hh)}, 1, {R(G)}")
        a(f"v_lshlrev_b32 {R(u)}, 18, {R(u)}")
        a(f"v_lshl_add_u32 {R(u)}, {R(hh)}, 4, {R(u)}")
        a(f"v_and_b32 {R(T)}, 2, {R(G)}")
        a(f"v_and_or_b32 {R(T)}, {R(Li)}, 1, {R(T)}")
        a(f"v_lshl_add_u32 {R(self.aZ1)}, {R(T)}, 5, {R(u)}")
        a(f"s_movk_i32 {S(sT1)}, {EA // 16}")
        a(f"v_lshl_add_u32 {R(hh)}, {R(hh)}, 8, {S(sT1)}")
        a(f"s_lshl_b32 {S(sT0)}, {S(sW)}, 5")
        q = self.aE1r
        a(f"v_add_u32 {R(q)}, {S(sT0)}, {R(Li)}")
        a(f"v_cmp_eq_u32 vcc, 0, {R(q)}")
        a(f"v_cmp_lt_u32 s[4:5], 1, {R(G)}")
        a(f"v_sub_u32 {R(c)}, 256, {R(q)}")
        a(f"v_add_u32 {R(q + 1)}, 16, {R(q)}")
        a(f"v_add_u32 {R(u)}, -16, {R(c)}")
        a(f"v_mov_b32 {R(T)}, 128")
        a(f"v_cndmask_b32 {R(c)}, {R(c)}, {R(T)}, vcc")
        a(f"v_cndmask_b32 {R(q)}, {R(q)}, {R(c)}, s[4:5]")
        a(f"v_cndmask_b32 {R(q + 1)}, {R(q + 1)}, {R(u)}, s[4:5]")
        a(f"v_cmp_eq_u32 vcc, 0, {R(Li)}")
        a(f"v_add_lshl_u32 {R(q)}, {R(q)}, {R(hh)}, 4")
        a(f"v_add_lshl_u32 {R(q + 1)}, {R(q + 1)}, {R(hh)}, 4")
        a(f"v_mov_b32 {R(T)}, {fl(16.0)}")
        a(f"v_cndmask_b32 {R(self.v16)}, 0, {R(T)}, vcc")
        va.free(c, hh, u)
        self.ST = va(8, "ST"); self.vMu = va(1, "mu")
        for i in range(4): a(f"v_mov_b32 {R(self.ST + i)}, 0")
        a(f"s_lshl_b32 {S(sT0)}, {S(sW)}, 16\ns_lshl_b32 {S(sT1)}, s2, 7\ns_add_u32 {S(sOff + 2)}, {S(sT0)}, {S(sT1)}\ns_add_u32 {S(sOff + 3)}, {S(sOff + 2)}, 32768")
    def tags(self):
        a = self.a; va = self.va; Li, G = self.vLi, self.vG
        self.TG = va(4, "TG", 1); self.TG2 = va(1, "TG2"); u = self.vEp; T = self.vPf
        a(f"v_readfirstlane_b32 {S(sEp)}, {R(self.vEp)}")
        a(f"v_and_b32 {R(u)}, 1, {R(G)}")
        a(f"v_lshlrev_b32 {R(u)}, 4, {R(u)}")
        a(f"s_add_u32 {S(sT2)}, {S(sEp)}, 1\ns_and_b32 {S(sT2)}, {S(sT2)}, 15")
        a(f"s_and_b32 {S(sEp)}, {S(sEp)}, 0xfffffff0")
        a(f"s_and_b32 {S(sCnt)}, {S(sEp)}, 0xfefefef0\ns_or_b32 {S(sCnt)}, {S(sCnt)}, 0x10101010")
        a(f"s_or_b32 {S(sEp)}, {S(sEp)}, {S(sT2)}")
        a(f"s_mul_i32 {S(sT2)}, {S(sT2)}, 0x01010101")
        a(f"s_and_b32 {S(sU0)}, {S(sCnt)}, 0x0f0f0f0f\ns_add_u32 {S(sU0)}, {S(sU0)}, {S(sT2)}\ns_and_b32 {S(sU0)}, {S(sU0)}, 0x0f0f0f0f")
        a(f"s_lshr_b32 {S(sCnt)}, {S(sCnt)}, 4\ns_and_b32 {S(sCnt)}, {S(sCnt)}, 0x0f0f0f0f\ns_add_u32 {S(sCnt)}, {S(sCnt)}, {S(sT2)}\ns_and_b32 {S(sCnt)}, {S(sCnt)}, 0x0f0f0f0f")
        a(f"s_lshl_b32 {S(sCnt)}, {S(sCnt)}, 4\ns_or_b32 {S(sTag)}, {S(sCnt)}, {S(sU0)}")
        a(f"v_bfe_u32 {R(u)}, {S(sTag)}, {R(u)}, 16")
        a(f"v_and_b32 {R(T)}, 7, {R(Li)}")
        a(f"v_lshlrev_b32 {R(T)}, 2, {R(T)}")
        a(f"v_lshl_or_b32 {R(self.TG)}, {R(u)}, 14, {R(u)}")
        a(f"v_bfe_u32 {R(T)}, {S(sTag)}, {R(T)}, 4")
        for r in range(1, 4): a(f"v_lshrrev_b32 {R(self.TG + r)}, {4 * r}, {R(self.TG)}")
        a(f"v_lshl_or_b32 {R(T)}, {R(T)}, 14, {R(T)}")
        a(f"v_and_b32 {R(self.TG2)}, {S(sMask)}, {R(T)}")
        self.later_free = [self.vEp, self.vPf]
    def p1(self):
        a = self.a; va = self.va; X = self.X; M = self.M; M2 = self.M2; ST = self.ST
        D = va(16, "D"); E = va(16, "E"); cs = va(8, "cs")
        for rho in range(2):
            for ri in range(2):
                a(f"v_mfma_f32_16x16x32_bf16 {R(D + 8 * rho + 4 * ri, 4)}, {R(X + 4 * rho, 4)}, {R(M + 4 * ri, 4)}, 0")
        self.stamp("x_in")
        st = a.capture(self.stats, X, ST, 1.0, self.v16)
        tg = a.capture(self.tags)
        a.run(spread(st, (tg, 16, len(st)), (self.plist("p1_a"), 16, len(st))))
        va.free(*self.later_free)
        for rho in range(2):
            for k in range(0, 8, 2):
                a(f"v_pk_mul_f32 {R(cs + k, 2)}, {R(self.TW + k, 2)}, {R(ST + 2 * rho, 2)} op_sel_hi:[1,0]")
            self.cmul(E + 8 * rho, E + 8 * rho + 4, D + 8 * rho, D + 8 * rho + 4, cs, cs + 4, False, addend=ST + 4 + 2 * rho)
            for r in range(4):
                a(f"v_cvt_pk_f16_f32 {R(X + 4 * rho + r)}, {R(E + 8 * rho + r)}, {R(E + 8 * rho + 4 + r)}")
            for ri in range(2):
                a(f"v_mfma_f32_16x16x32_f16 {R(D + 8 * rho + 4 * ri, 4)}, {R(M2 + 4 * ri, 4)}, {R(X + 4 * rho, 4)}, 0")
        for r in range(4): a(f"v_cvt_pk_f16_f32 {R(E + 2 * r)}, {R(D + r)}, {R(D + 4 + r)}")
        for r in range(4):
            a(f"v_cvt_pk_f16_f32 {R(E + 2 * r + 1)}, {R(D + 8 + r)}, {R(D + 12 + r)}")
            a(f"ds_write_b64 {R(self.aE1w)}, {R(E + 2 * r, 2)} offset:{256 * r}")
        a.wait_lg_all(); self.bar("b1")
        for t in range(2):
            a(f"ds_read_b128 {R(X + 4 * t, 4)}, {R(self.aE1r + t)}")
        for t in range(2):
            for ri in range(2):
                a(f"v_mfma_f32_16x16x32_f16 {R(D + 8 * t + 4 * ri, 4)}, {R(X + 4 * t, 4)}, {R(self.Gm + 4 * ri, 4)}, 0")
        self.point("p1_e")
        for t in range(2):
            for r in range(4):
                a(f"v_cvt_pk_f16_f32 {R(E + 4 * t + r)}, {R(D + 8 * t + r)}, {R(D + 8 * t + 4 + r)}")
            for r in range(4):
                a(f"v_bfi_b32 {R(E + 4 * t + r)}, {S(sMask)}, {R(self.TG + r)}, {R(E + 4 * t + r)}")
            a(f"buffer_store_dwordx4 {R(E + 4 * t, 4)}, {R(self.aZ1)}, {S(sWS, 4)}, {S(sOff + 2 + t)} offen sc1")
        self.stamp("z1_st")
        va.free(D, E, cs, X, self.Gm, self.aE1w, self.aE1r, self.aZ1, self.v16, self.TG)
    def tables_p2a(self):
        a = self.a; va = self.va; Li, G, T = self.vLi, self.vG, self.vT
        self.M1 = self.vb(16, "M1")
        ka = va(1, "ka"); f0 = va(1, "f0"); c = va(2, "c", 1); s = va(2, "s", 1)
        a(f"s_and_b32 {S(sT0)}, {S(sM)}, 1\ns_lshl_b32 {S(sT1)}, {S(sW)}, 2")
        a(f"v_and_or_b32 {R(ka)}, {R(Li)}, 14, {S(sT0)}")
        a(f"v_lshl_add_u32 {R(f0)}, {R(G)}, 6, {S(sT1)}")
        a(f"v_and_b32 {R(T)}, 1, {R(Li)}")
        a(f"v_lshlrev_b32 {R(T)}, 6, {R(T)}")
        a(f"v_mad_u32_u24 {R(f0)}, {R(f0)}, {R(ka)}, {R(T)}")
        a(f"v_and_b32 {R(f0)}, 255, {R(f0)}")
        a(f"v_cvt_f32_u32 {R(ka)}, {R(ka)}")
        a(f"v_cvt_f32_u32 {R(f0)}, {R(f0)}")
        a(f"v_mul_f32 {R(f0)}, {fl(1 / 256)}, {R(f0)}")
        for n in range(17):
            if n < 16:
                be, r = n >> 2, n & 3
                if n: a(f"v_fmamk_f32 {R(T)}, {R(ka)}, {fl(be / 256 + r / 16)}, {R(f0)}")
                self.sincos(c + (n & 1), s + (n & 1), T if n else f0)
            if n: a(f"v_cvt_pk_f16_f32 {R(self.M1 + n - 1)}, {R(c + ((n - 1) & 1))}, {R(s + ((n - 1) & 1))}")
        va.free(ka, f0, c, s)
    def tables_p2b(self):
        a = self.a; va = self.va; Li, G, T = self.vLi, self.vG, self.vT
        self.M5 = self.vb(16, "M5")
        b = va(1, "b"); st = va(1, "st"); f0 = va(1, "f0"); c = va(1, "c"); s = va(1, "s"); ih = va(1, "ih")
        a(f"s_and_b32 {S(sT0)}, {S(sM)}, 1\ns_lshl_b32 {S(sT1)}, {S(sW)}, 2")
        a(f"v_and_or_b32 {R(b)}, {R(Li)}, 1, {S(sT1)}")
        a(f"v_and_b32 {R(ih)}, 1, {R(G)}")
        a(f"v_lshlrev_b32 {R(ih)}, 2, {R(ih)}")
        for t in range(2):
            if t: a(f"v_add_u32 {R(b)}, 2, {R(b)}")
            a(f"v_and_b32 {R(st)}, 14, {R(Li)}")
            a(f"v_lshl_add_u32 {R(st)}, {R(st)}, 3, {R(b)}")
            a(f"v_lshlrev_b32 {R(st)}, 1, {R(st)}")
            a(f"v_mul_u32_u24 {R(f0)}, {S(sT0)}, {R(b)}")
            a(f"v_mad_u32_u24 {R(f0)}, {R(ih)}, {R(st)}, {R(f0)}")
            a(f"v_cvt_f32_u32 {R(st)}, {R(st)}")
            a(f"v_cvt_f32_u32 {R(f0)}, {R(f0)}")
            a(f"v_mul_f32 {R(f0)}, {fl(1 / 256)}, {R(f0)}")
            for r in range(4):
                if r: a(f"v_fmamk_f32 {R(f0)}, {R(st)}, {fl(1 / 256)}, {R(f0)}")
                self.sincos(c, s, f0)
                a(f"v_and_b32 {R(c)}, {R(self.vMsk)}, {R(c)}")
                a(f"v_and_b32 {R(s)}, {R(self.vMsk)}, {R(s)}")
                a(f"v_cvt_pk_bf16_f32 {R(self.M5 + 8 * t + r)}, {R(c)}, -{R(s)}")
                a(f"v_cvt_pk_bf16_f32 {R(self.M5 + 8 * t + 4 + r)}, {R(s)}, {R(c)}")
        va.free(b, st, f0, c, s, ih, self.vMsk)
    def addr_g1(self):
        a = self.a; va = self.va; Li, G, T = self.vLi, self.vG, self.vT
        self.aG1 = va(1, "aG1"); self.aG2 = va(1, "aG2")
        a(f"v_lshlrev_b32 {R(T)}, 2, {R(Li)}")
        a(f"v_lshl_add_u32 {R(self.aG2)}, {R(G)}, 9, {R(T)}")
        a(f"v_lshrrev_b32 {R(T)}, 1, {R(G)}")
        a(f"v_mul_u32_u24 {R(T)}, {16384 - 1024}, {R(T)}")
        a(f"v_add_u32 {R(self.aG1)}, {R(T)}, {R(self.aG2)}")
        a(f"s_lshr_b32 {S(sT0)}, {S(sN)}, 2\ns_lshl_b32 {S(sT0)}, {S(sT0)}, 15\ns_lshl_b32 {S(sT1)}, {S(sW)}, 12\ns_add_u32 {S(sT0)}, {S(sT0)}, {S(sT1)}")
        a(f"s_and_b32 {S(sT1)}, {S(sM)}, 2\ns_lshl_b32 {S(sT1)}, {S(sT1)}, 5\ns_add_u32 {S(sOff + 4)}, {S(sT0)}, {S(sT1)}")
    def addr_p2(self):
        a = self.a; va = self.va; Li, G, T = self.vLi, self.vG, self.vT
        self.aE2w = va(1, "aE2w"); self.aE2r = va(1, "aE2r"); self.aE3w = va(1, "aE3w"); self.aE3r = va(1, "aE3r"); self.aZ2 = va(1, "aZ2")
        p = va(1, "p"); h = va(1, "h"); o = va(1, "o")
        a(f"v_lshrrev_b32 {R(h)}, 1, {R(Li)}")
        a(f"v_and_b32 {R(o)}, 1, {R(Li)}")
        a(f"s_lshl_b32 {S(sT0)}, {S(sW)}, 11\ns_add_u32 {S(sT0)}, {S(sT0)}, {EB}")
        a(f"v_and_b32 {R(T)}, 8, {R(Li)}")
        a(f"v_add_lshl_u32 {R(p)}, {R(T)}, {R(Li)}, 4")
        a(f"v_lshl_add_u32 {R(p)}, {R(G)}, 9, {R(p)}")
        a(f"v_add_u32 {R(self.aE2w)}, {S(sT0)}, {R(p)}")
        a(f"s_lshl_b32 {S(sT0)}, {S(sW)}, 9\ns_add_u32 {S(sT0)}, {S(sT0)}, {EB}")
        a(f"v_lshl_add_u32 {R(p)}, {R(G)}, 11, {S(sT0)}")
        a(f"v_lshl_add_u32 {R(p)}, {R(o)}, 7, {R(p)}")
        a(f"v_lshl_add_u32 {R(self.aE2r)}, {R(h)}, 4, {R(p)}")
        a(f"s_lshr_b32 {S(sT0)}, {S(sW)}, 1\ns_lshl_b32 {S(sT0)}, {S(sT0)}, 8\ns_and_b32 {S(sT1)}, {S(sW)}, 1\ns_lshl_b32 {S(sT1)}, {S(sT1)}, 3")
        a(f"s_add_u32 {S(sT0)}, {S(sT0)}, {S(sT1)}\ns_add_u32 {S(sT0)}, {S(sT0)}, {EA}")
        a(f"v_mul_u32_u24 {R(p)}, 528, {R(Li)}")
        a(f"v_lshl_add_u32 {R(p)}, {R(G)}, 5, {R(p)}")
        a(f"v_add_u32 {R(self.aE3w)}, {S(sT0)}, {R(p)}")
        a(f"s_mul_i32 {S(sT0)}, {S(sW)}, {4 * 528}\ns_add_u32 {S(sT0)}, {S(sT0)}, {EA}")
        a(f"v_lshrrev_b32 {R(T)}, 1, {R(G)}")
        a(f"v_lshl_add_u32 {R(p)}, {R(T)}, 4, {S(sT0)}")
        a(f"v_add_u32 {R(self.aE3r)}, {R(self.vL16)}, {R(p)}")
        a(f"v_lshlrev_b32 {R(p)}, 18, {R(h)}")
        a(f"v_lshl_add_u32 {R(p)}, {R(o)}, 6, {R(p)}")
        a(f"v_lshl_add_u32 {R(self.aZ2)}, {R(G)}, 4, {R(p)}")
        self.TG3 = va(4, "TG3", 1); self.TG4 = va(1, "TG4")
        a(f"v_lshlrev_b32 {R(p)}, 3, {R(G)}")
        a(f"v_bfe_u32 {R(p)}, {S(sTag)}, {R(p)}, 8")
        a(f"v_lshl_or_b32 {R(self.TG3)}, {R(p)}, 15, {R(p)}")
        for r in range(1, 4): a(f"v_lshrrev_b32 {R(self.TG3 + r)}, {2 * r}, {R(self.TG3)}")
        a(f"v_lshlrev_b32 {R(p)}, 1, {R(Li)}")
        a(f"v_bfe_u32 {R(p)}, {S(sTag)}, {R(p)}, 2")
        a(f"v_lshl_or_b32 {R(p)}, {R(p)}, 15, {R(p)}")
        a(f"v_and_b32 {R(self.TG4)}, 0x10001, {R(p)}")
        va.free(p, h, o)
        a(f"s_lshl_b32 {S(sT0)}, {S(sW)}, 16\ns_lshl_b32 {S(sT1)}, s2, 7\ns_add_u32 {S(sT0)}, {S(sT0)}, {S(sT1)}")
        a(f"s_add_u32 {S(sOff + 6)}, {S(sT0)}, {Z2}\ns_add_u32 {S(sOff + 7)}, {S(sT0)}, {Z2 + 32768}")
        a(f"s_or_b32 {S(sT0)}, s2, {S(sW)}\ns_cmp_lg_u32 {S(sT0)}, 0\ns_cselect_b32 {S(sOff + 8)}, 2.0, {EPO}")
    def prewrite(self, which):
        a = self.a; E = self.va(4, "pre")
        tg = self.TG if which == 1 else self.TG3
        for r in range(4): a(f"v_not_b32 {R(E + r)}, {R(tg + r)}")
        for t in range(2): a(f"buffer_store_dwordx4 {R(E, 4)}, {R(self.aZ1 if which == 1 else self.aZ2)}, {S(sWS, 4)}, {S(sOff + (2 if which == 1 else 6) + t)} offen sc1")
        self.va.free(E)
    def p2_gather(self):
        a = self.a; va = self.va
        self.Y = va(16, "Y")
        self.g1 = [f"buffer_load_dword {R(self.Y + 4 * be + r)}, {R(self.aG1)}, {S(sWS, 4)}, {S(sOff + 4)} offen offset:{1024 * be + 128 * r} sc1"
                   for be in range(4) for r in range(4)]
        self.stamp("g1")
        for l in self.g1: a(l)
    def p2(self):
        a = self.a; va = self.va; Y = self.Y; M = self.M; M2 = self.M2; T = self.vT
        D = va(16, "D"); E = va(16, "E")
        def chk():
            for be in range(4):
                for i in range(4 * be, 4 * be + 4): a(f"v_xor_b32 {R(Y + i)}, {R(self.TG2)}, {R(Y + i)}")
                if be == 0: a(f"v_or_b32 {R(T)}, {R(Y)}, {R(Y + 1)}")
                else: a(f"v_or3_b32 {R(T)}, {R(T)}, {R(Y + 4 * be)}, {R(Y + 4 * be + 1)}")
                a(f"v_or3_b32 {R(T)}, {R(T)}, {R(Y + 4 * be + 2)}, {R(Y + 4 * be + 3)}")
                a(f"v_mfma_f32_16x16x32_f16 {R(D + 4 * be, 4)}, {R(self.M1 + 4 * be, 4)}, {R(Y + 4 * be, 4)}, 0")
            a(f"v_and_b32 {R(T)}, {S(sMask)}, {R(T)}")
            a(f"v_cmp_ne_u32 vcc, 0, {R(T)}")
        self.poll("z1", self.g1, chk)
        self.stamp("z1_in")
        for ip in range(2):
            for be in range(4):
                a(f"v_cvt_pk_f16_f32 {R(E + 4 * ip + be)}, {R(D + 4 * be + 2 * ip)}, {R(D + 4 * be + 2 * ip + 1)}")
            a(f"ds_write_b128 {R(self.aE2w)}, {R(E + 4 * ip, 4)} offset:{128 * ip}")
        self.point("p2_a")
        a.wait_lg_all(); self.bar("b2")
        for uv in range(2):
            a(f"ds_read_b128 {R(Y + 4 * uv, 4)}, {R(self.aE2r)} offset:{256 * uv}")
        if not self.cf_own: self.CF = va(24, "CF")
        for i in range(0 if self.cf_own else 6): a(f"ds_read_b128 {R(self.CF + 4 * i, 4)}, {R(self.aHf)} offset:{4096 + 1024 * i}")
        a(f"v_mov_b32 {R(T)}, {S(sEp)}")
        a(f"buffer_store_dword {R(T)}, {R(self.vZero)}, {S(sWS, 4)}, {S(sOff + 8)} offen sc1")
        self.point("p2_b")
        for uv in range(2):
            for ri in range(2):
                a(f"v_mfma_f32_16x16x32_f16 {R(D + 8 * uv + 4 * ri, 4)}, {R(M2 + 4 * ri, 4)}, {R(Y + 4 * uv, 4)}, 0")
        self.point("p2_c")
        Ur, Ui, Vr, Vi = D, D + 4, D + 8, D + 12
        A1r, A1i, Br, Bi, A2r, A2i = (self.CF + 4 * i for i in range(6))
        neg = " neg_lo:[0,1,0] neg_hi:[0,1,0]"; neg2 = " neg_lo:[0,1] neg_hi:[0,1]"
        terms = [(E, [(Ur, A1r, 0), (Ui, A1i, 1), (Vr, Br, 0), (Vi, Bi, 1)]),
                 (E + 4, [(Ur, A1i, 0), (Ui, A1r, 0), (Vr, Bi, 0), (Vi, Br, 0)]),
                 (E + 8, [(Ur, Br, 1), (Ui, Bi, 0), (Vr, A2r, 0), (Vi, A2i, 1)]),
                 (E + 12, [(Ur, Bi, 1), (Ui, Br, 1), (Vr, A2i, 0), (Vi, A2r, 0)])]
        def mix(tm, step):
            for o, tl in tm:
                x, cf, ng = tl[step]
                for k in (0, 2):
                    if step == 0: a(f"v_pk_mul_f32 {R(o + k, 2)}, {R(x + k, 2)}, {R(cf + k, 2)}" + (neg2 if ng else ""))
                    else: a(f"v_pk_fma_f32 {R(o + k, 2)}, {R(x + k, 2)}, {R(cf + k, 2)}, {R(o + k, 2)}" + (neg if ng else ""))
        D2 = Y + 8
        for step in range(2): mix(terms, step)
        for uv in range(2):
            for step in (2, 3): mix(terms[2 * uv:2 * uv + 2], step)
            for r in range(4):
                a(f"v_cvt_pk_bf16_f32 {R(Y + 4 * uv + r)}, {R(E + 8 * uv + 4 + r)}, {R(E + 8 * uv + r)}")
            dst = D2 if uv == 0 else D
            for ri in range(2):
                a(f"v_mfma_f32_16x16x32_bf16 {R(dst + 4 * ri, 4)}, {R(Y + 4 * uv, 4)}, {R(M + 4 * (1 - ri), 4)}, 0")
        for uv in range(2):
            dst = D2 if uv == 0 else D
            for sp in range(2):
                for r in (2 * sp, 2 * sp + 1):
                    a(f"v_cvt_pk_bf16_f32 {R(E + 4 * uv + r)}, {R(dst + r)}, {R(dst + 4 + r)}")
                a(f"ds_write_b64 {R(self.aE3w)}, {R(E + 4 * uv + 2 * sp, 2)} offset:{128 * uv + 16 * sp}")
        a(f"s_mov_b32 {S(sMask)}, 0x10001")
        self.point("p2_d")
        a.wait_lg_all(); self.bar("b3")
        for t in range(2):
            a(f"ds_read_b128 {R(Y + 4 * t, 4)}, {R(self.aE3r)} offset:{1056 * t}")
        for t in range(2):
            for ri in range(2):
                a(f"v_mfma_f32_16x16x32_bf16 {R(D + 8 * t + 4 * ri, 4)}, {R(Y + 4 * t, 4)}, {R(self.M5 + 8 * t + 4 * ri, 4)}, 0")
        self.point("p2_e")
        for t in range(2):
            for r in range(4):
                a(f"v_cvt_pk_bf16_f32 {R(E + 4 * t + r)}, {R(D + 8 * t + r)}, {R(D + 8 * t + 4 + r)}")
            for r in range(4):
                a(f"v_bfi_b32 {R(E + 4 * t + r)}, {S(sMask)}, {R(self.TG3 + r)}, {R(E + 4 * t + r)}")
            a(f"buffer_store_dwordx4 {R(E + 4 * t, 4)}, {R(self.aZ2)}, {S(sWS, 4)}, {S(sOff + 6 + t)} offen sc1")
        self.stamp("z2_st")
        self.vb.free(self.CF, self.M1, self.M5)
        va.free(D, E, Y, self.M2, self.TG2, self.aG1, self.aE2w, self.aE2r, self.aE3w, self.aE3r, self.aZ2, self.TG3)
    def xnat_load(self):
        a = self.a; va = self.va
        self.XN = va(8, "XN"); self.vNat = va(1, "nat")
        a(f"v_lshlrev_b32 {R(self.vNat)}, 6, {R(self.vLi)}")
        a(f"v_lshl_add_u32 {R(self.vNat)}, {R(self.vG)}, 4, {R(self.vNat)}")
        for rho in range(2):
            a(f"buffer_load_dwordx4 {R(self.XN + 4 * rho, 4)}, {R(self.vNat)}, {S(sX, 4)}, {S(sOff + rho)} offen")
    def addr_g2(self):
        a = self.a
        a(f"s_bfe_u32 {S(sT0)}, {S(sS2)}, 0x60001\ns_lshl_b32 {S(sT0)}, {S(sT0)}, 15\ns_lshl_b32 {S(sT1)}, {S(sW)}, 13\ns_add_u32 {S(sT0)}, {S(sT0)}, {S(sT1)}")
        a(f"s_and_b32 {S(sT1)}, {S(sM)}, 1\ns_lshl_b32 {S(sT1)}, {S(sT1)}, 6\ns_add_u32 {S(sT0)}, {S(sT0)}, {S(sT1)}")
        a(f"s_add_u32 {S(sOff + 4)}, {S(sT0)}, {Z2}\ns_add_u32 {S(sOff + 5)}, {S(sT0)}, {Z2 + 4096}")
    def tables_p3(self):
        a = self.a; va = self.va; Li, G, T = self.vLi, self.vG, self.vT
        self.M4 = va(8, "M4"); self.Gi = va(4, "Gi"); self.vEps = va(1, "eps")
        self.aE4w = va(4, "aE4w", 1); self.aE4r = va(2, "aE4r", 1)
        p = va(1, "p"); c = va(1, "c"); s = va(1, "s"); u = va(1, "u")
        a(f"v_lshrrev_b32 {R(u)}, 1, {R(Li)}")
        a(f"v_lshl_add_u32 {R(u)}, {R(u)}, 8, {S(sS2)}")
        a(f"v_and_b32 {R(T)}, 1, {R(G)}")
        a(f"v_mul_u32_u24 {R(p)}, {R(u)}, {R(T)}")
        a(f"s_lshr_b32 {S(sT0)}, {S(sS2)}, 4\ns_lshl_b32 {S(sT0)}, {S(sT0)}, 4")
        a(f"v_and_b32 {R(c)}, 2, {R(G)}")
        a(f"v_mad_u32_u24 {R(p)}, {R(c)}, {S(sT0)}, {R(p)}")
        a(f"v_and_b32 {R(T)}, 1, {R(Li)}")
        a(f"v_lshlrev_b32 {R(T)}, 7, {R(T)}")
        a(f"v_sub_u32 {R(p)}, {R(T)}, {R(p)}")
        a(f"v_and_b32 {R(p)}, 511, {R(p)}")
        a(f"v_cvt_f32_u32 {R(u)}, {R(u)}")
        a(f"v_cvt_f32_u32 {R(p)}, {R(p)}")
        a(f"v_lshlrev_b32 {R(c)}, 14, {R(c)}")
        a(f"v_mul_f32 {R(p)}, {fl(1 / 512)}, {R(p)}")
        for i in range(8): a(f"v_xor_b32 {R(self.M4 + i)}, {R(c)}, {R(self.M + i)}")
        for r in range(4):
            self.sincos(c, s, p)
            if r < 3: a(f"v_fmamk_f32 {R(p)}, {R(u)}, {fl(-1 / 2048)}, {R(p)}")
            a(f"v_cvt_pk_bf16_f32 {R(self.Gi + r)}, {R(c)}, {R(s)}")
        a(f"v_mul_u32_u24 {R(u)}, {ARW + 64}, {R(G)}")
        a(f"v_add_u32 {R(u)}, {AR}, {R(u)}")
        a(f"s_lshl_b32 {S(sT0)}, {S(sW)}, 5")
        a(f"v_and_or_b32 {R(p)}, {R(Li)}, 7, {S(sT0)}")
        a(f"v_cmp_lt_u32 s[4:5], 7, {R(Li)}")
        a(f"v_cmp_eq_u32 vcc, 0, {R(p)}")
        a(f"v_sub_u32 {R(c)}, 256, {R(p)}")
        a(f"v_mov_b32 {R(T)}, 128")
        for t in range(4):
            q = self.aE4w + t
            if t:
                a(f"v_add_u32 {R(p)}, 8, {R(p)}\nv_add_u32 {R(c)}, -8, {R(c)}")
                a(f"v_cndmask_b32 {R(q)}, {R(p)}, {R(c)}, s[4:5]")
            else:
                a(f"v_cndmask_b32 {R(T)}, {R(c)}, {R(T)}, vcc")
                a(f"v_cndmask_b32 {R(q)}, {R(p)}, {R(T)}, s[4:5]")
            a(f"v_lshrrev_b32 {R(T)}, 6, {R(q)}")
            a(f"v_lshl_add_u32 {R(q)}, {R(T)}, 4, {R(q)}")
            a(f"v_lshl_add_u32 {R(q)}, {R(q)}, 2, {R(u)}")
        a(f"s_mul_i32 {S(sT0)}, {S(sW)}, {ARW + 64}\ns_add_u32 {S(sT0)}, {S(sT0)}, {AR}")
        a(f"v_mul_u32_u24 {R(p)}, 320, {R(G)}")
        a(f"v_lshl_add_u32 {R(p)}, {R(Li)}, 2, {R(p)}")
        a(f"v_add_u32 {R(self.aE4r)}, {S(sT0)}, {R(p)}")
        a(f"v_add_u32 {R(self.aE4r + 1)}, 1280, {R(self.aE4r)}")
        va.free(p, c, s, u)
        for i in range(4): a(f"v_mov_b32 {R(self.ST + i)}, 0")
        a(f"v_mov_b32 {R(self.vEps)}, {fl(1e-5 / 1.4426950408889634 ** 2)}")
        a(f"s_add_u32 {S(sOff + 6)}, {S(sOwn)}, {HN}\ns_lshr_b32 {S(sOff + 7)}, {S(sOwn)}, 4\ns_add_u32 {S(sOff + 7)}, {S(sOff + 7)}, {HH}")
    def pre_st(self):
        a = self.a; T = self.vT; E = self.va(2, "pre")
        a(f"v_not_b32 {R(E)}, {S(sEp)}")
        a(f"v_lshlrev_b32 {R(T)}, 2, {R(self.vL)}")
        a(f"s_mov_b32 exec_hi, 0")
        a(f"buffer_store_dword {R(E)}, {R(T)}, {S(sWS, 4)}, {S(sOff + 7)} offen sc1")
        a(f"s_mov_b32 exec_hi, -1")
        self.va.free(E)
    def xnat_unpack(self):
        a = self.a; va = self.va
        self.XC = va(16, "XC")
        for rho in range(2):
            for r in range(4):
                a(f"v_lshlrev_b32 {R(self.XC + 8 * rho + r)}, 16, {R(self.XN + 4 * rho + r)}")
                a(f"v_and_b32 {R(self.XC + 8 * rho + 4 + r)}, 0xffff0000, {R(self.XN + 4 * rho + r)}")
        va.free(self.XN)
    def p3_gather(self):
        a = self.a; va = self.va
        self.Y = va(16, "Y")
        self.g2 = [f"buffer_load_dword {R(self.Y + 4 * t + r)}, {R(self.aG2)}, {S(sWS, 4)}, {S(sOff + 4 + (t >> 1))} offen offset:{(t & 1) * 2048 + 128 * r} sc1"
                   for t in range(4) for r in range(4)]
        self.stamp("g2")
        for l in self.g2: a(l)
    def p3(self):
        a = self.a; va = self.va; Y = self.Y; M = self.M; M4 = self.M4; ST = self.ST; XC = self.XC; T = self.vT
        D = va(16, "D"); E = va(16, "E")
        TG4 = self.TG4; Gi = self.Gi
        def chk():
            for t in range(4):
                for i in range(4 * t, 4 * t + 4): a(f"v_xor_b32 {R(Y + i)}, {R(TG4)}, {R(Y + i)}")
                if t == 0: a(f"v_or_b32 {R(T)}, {R(Y)}, {R(Y + 1)}")
                else: a(f"v_or3_b32 {R(T)}, {R(T)}, {R(Y + 4 * t)}, {R(Y + 4 * t + 1)}")
                a(f"v_or3_b32 {R(T)}, {R(T)}, {R(Y + 4 * t + 2)}, {R(Y + 4 * t + 3)}")
                a(f"v_mfma_f32_16x16x32_bf16 {R(D + 4 * t, 4)}, {R(Gi, 4)}, {R(Y + 4 * t, 4)}, 0")
            a(f"v_and_b32 {R(T)}, {S(sMask)}, {R(T)}")
            a(f"v_cmp_ne_u32 vcc, 0, {R(T)}")
        self.poll("z2", self.g2, chk)
        self.stamp("z2_in")
        for t in range(4):
            a(f"v_cvt_pk_bf16_f32 {R(E + 2 * t)}, {R(D + 4 * t + 1)}, {R(D + 4 * t)}")
            a(f"v_cvt_pk_bf16_f32 {R(E + 2 * t + 1)}, {R(D + 4 * t + 3)}, {R(D + 4 * t + 2)}")
            a(f"ds_write2st64_b32 {R(self.aE4w + t)}, {R(E + 2 * t)}, {R(E + 2 * t + 1)} offset0:0 offset1:5")
        self.point("p3_a")
        a.wait_lg_all(); self.bar("b4")
        for rho in range(2):
            for h in range(2):
                tk = a(f"ds_read2_b32 {R(Y + 4 * rho + 2 * h, 2)}, {R(self.aE4r + rho)} offset0:{32 * h} offset1:{32 * h + 16}")
        self.point("p3_b")
        for rho in range(2):
            for ri in range(2):
                a(f"v_mfma_f32_16x16x32_bf16 {R(D + 8 * rho + 4 * ri, 4)}, {R(Y + 4 * rho, 4)}, {R(M4 + 4 * (1 - ri), 4)}, 0")
        self.point("p3_c")
        for rho in range(2):
            self.cmul(E + 8 * rho, E + 8 * rho + 4, D + 8 * rho, D + 8 * rho + 4, self.TW, self.TW + 4, True)
            for r in range(4):
                a(f"v_cvt_pk_bf16_f32 {R(Y + 4 * rho + r)}, {R(E + 8 * rho + 4 + r)}, {R(E + 8 * rho + r)}")
            for ri in range(2):
                q = XC + 8 * rho + 4 * ri
                a(f"v_mfma_f32_16x16x32_bf16 {R(q, 4)}, {R(Y + 4 * rho, 4)}, {R(M + 4 * (1 - ri), 4)}, {R(q, 4)}")
        st = a.capture(self.stats, D, ST, 1.4426950408889634, None)
        cv = [[f"v_cvt_pk_bf16_f32 {R(D + 4 * rho + r)}, {R(XC + 8 * rho + r)}, {R(XC + 8 * rho + 4 + r)}" for r in range(4)] for rho in range(2)]
        a.run(cv[0] + st[:8] + cv[1] + st[8:16])
        a.run(spread(st[16:], (self.plist("p3_d"), 0, len(st) - 16)))
        self.point("p3_e")
        for rho in range(2):
            for k in range(0, 8, 2):
                q = XC + 8 * rho + k
                a(f"v_pk_fma_f32 {R(q, 2)}, {R(q, 2)}, {R(ST + 2 * rho, 2)}, {R(ST + 4 + 2 * rho, 2)} op_sel_hi:[1,0,0] neg_lo:[0,0,1] neg_hi:[0,0,1]")
            for r in range(4):
                a(f"v_cvt_pk_bf16_f32 {R(E + 4 * rho + r)}, {R(XC + 8 * rho + r)}, {R(XC + 8 * rho + 4 + r)}")
            tokhn = a(f"buffer_store_dwordx4 {R(E + 4 * rho, 4)}, {R(self.vNat)}, {S(sWS, 4)}, {S(sOff + 6)} offen offset:{1024 * rho} sc1")
        self.stamp("hn_st")
        self.point("p3_s")
        a(f"v_cmp_gt_u32 vcc, 32, {R(self.vL)}")
        a(f"v_and_b32 {R(T)}, 28, {R(self.vL)}")
        a(f"v_mov_b32 {R(D + 2)}, {S(sEp)}")
        a(f"v_cndmask_b32 {R(D)}, {R(ST + 2)}, {R(ST)}, vcc")
        a(f"v_mov_b32 {R(D + 1)}, {R(self.vMu)}")
        a(f"v_rcp_f32 {R(D)}, {R(D)}")
        a(f"v_lshlrev_b32 {R(T)}, 25, {R(T)}")
        a(f"v_and_or_b32 {R(T)}, {R(self.vL16)}, 48, {R(T)}")
        a(f"v_and_b32 {R(D + 3)}, 32, {R(self.vL)}")
        a(f"v_lshl_add_u32 {R(T)}, {R(D + 3)}, 1, {R(T)}")
        self.point("p3_t")
        a.wait_vm(tokhn)
        a(f"buffer_store_dwordx4 {R(D, 4)}, {R(T)}, {S(sWS, 4)}, {S(sOff + 7)} offen sc1")
        self.stamp("st_st")
        va.free(D, E, Y, XC, ST, self.M, self.M4, self.TW, self.Gi, self.aE4w, self.aE4r, self.aG2, self.vNat, self.vEps, self.vMu, self.TG4)
    def tables_w2(self):
        a = self.a; va = self.va; L, Li, G, T = self.vL, self.vLi, self.vG, self.vT
        a(f"s_lshr_b32 {S(sT2)}, {S(sM)}, 3\ns_mul_i32 {S(sT2)}, {S(sT2)}, {self.cfg.get('rot2', 3)}\ns_mul_i32 {S(sT1)}, {S(sK1)}, {self.cfg.get('xrot2', 0)}\ns_add_u32 {S(sT2)}, {S(sT2)}, {S(sT1)}")
        if self.cfg.get("mrot"): a(f"s_mul_i32 {S(sT1)}, {S(sMem)}, {self.cfg['mrot']}\ns_add_u32 {S(sT2)}, {S(sT2)}, {S(sT1)}")
        a(f"s_mul_i32 {S(sT1)}, {S(sT2)}, 373\ns_lshr_b32 {S(sT1)}, {S(sT1)}, 12\ns_mul_i32 {S(sT1)}, {S(sT1)}, 11\ns_sub_u32 {S(sT2)}, {S(sT2)}, {S(sT1)}")
        a(f"s_lshl_b32 {S(sT2)}, {S(sT2)}, 10\ns_mul_i32 {S(sT1)}, {S(sW)}, 11264")
        a(f"s_add_u32 {S(sT0)}, {S(sT2)}, {S(sT1)}\ns_add_u32 {S(sT2)}, {S(sT1)}, 11264")
        sal = []
        for i in range(11):
            if i: sal += [f"s_add_u32 {S(sT0)}, {S(sT0)}, 1024", f"s_cmp_eq_u32 {S(sT0)}, {S(sT2)}", f"s_cselect_b32 {S(sT0)}, {S(sT1)}, {S(sT0)}"]
            sal += [f"s_cmp_eq_u32 {S(sT0)}, {43 * 1024}", f"s_cselect_b32 {S(sKap + i)}, 0x2000000, {S(sT0)}"]
        a.run(sal)
        a(f"s_mul_i32 {S(sU0)}, {S(sMem)}, {43 * 4096}\ns_add_u32 {S(sU0)}, {S(sU0)}, {W2P}")
    def addr_g3(self):
        a = self.a
        a(f"s_lshr_b32 {S(sT0)}, {S(sN)}, 3\ns_lshl_b32 {S(sT1)}, {S(sT0)}, 16\ns_lshl_b32 {S(sT2)}, {S(sW)}, 12\ns_add_u32 {S(sT0)}, {S(sT1)}, {S(sT2)}")
        for rt in range(4):
            a(f"s_add_u32 {S(sOff + 8 + rt)}, {S(sT0)}, {HN + rt * 16384}")
    def tables_g1(self):
        a = self.a; va = self.va; L, Li, G, T = self.vL, self.vLi, self.vG, self.vT
        a(f"v_mul_u32_u24 {R(T)}, {HROW}, {R(Li)}")
        a(f"v_lshl_add_u32 {R(self.aHr)}, {R(G)}, 8, {R(T)}")
        a(f"s_lshr_b32 {S(sLn2)}, {S(sN)}, 3\ns_mul_i32 {S(sLn2)}, {S(sLn2)}, {HCL}\ns_add_u32 {S(sLn2)}, {S(sLn2)}, {HB}")
        a(f"s_lshl_b32 {S(sT0)}, {S(sMem)}, 2\ns_add_u32 {S(sT0)}, {S(sT0)}, {S(sW)}")
        a(f"s_lshl_b32 s4, {S(sT0)}, 10\ns_lshl_b32 {S(sT0)}, {S(sT0)}, 15")
        a(f"s_mul_i32 {S(sT1)}, {S(sMem)}, 3\ns_add_u32 {S(sT1)}, {S(sT1)}, {S(sW)}")
        a(f"s_cmp_eq_u32 {S(sMem)}, 7\ns_subb_u32 {S(sT1)}, {S(sT1)}, 0")
        a(f"s_cmp_ge_u32 {S(sMem)}, 6\ns_addc_u32 {S(sT2)}, {S(sW)}, 0")
        a(f"s_lshl_b32 s5, {S(sT1)}, 9\ns_add_u32 s5, s5, 32768\ns_lshl_b32 {S(sT1)}, {S(sT1)}, 14\ns_add_u32 {S(sT1)}, {S(sT1)}, {64 * 16384}")
        a(f"s_cmp_lt_u32 {S(sT2)}, 3\ns_cselect_b32 s5, s5, 2.0\ns_cselect_b32 {S(sT1)}, {S(sT1)}, 2.0")
        a(f"v_add_u32 {R(self.vW1)}, {S(sT0)}, {R(self.vL16)}")
        a(f"v_add_u32 {R(self.vW1 + 1)}, 16384, {R(self.vW1)}")
        a(f"v_add_u32 {R(self.vW1 + 2)}, {S(sT1)}, {R(self.vL16)}")
        for q in range(4): a(f"s_xor_b32 {S(sT0)}, {S(sRot)}, {4 * q}\ns_lshl_b32 {S(sT0)}, {S(sT0)}, 10\ns_add_u32 {S(sOff + 4 + q)}, {S(sT0)}, {W1P}")
        a(f"v_cmp_gt_u32 vcc, 32, {R(L)}")
        a(f"v_add_u32 {R(self.aHs)}, s4, {R(self.vL16)}")
        a(f"v_add_u32 {R(self.aHs + 1)}, s5, {R(self.vL16)}")
        a(f"v_cndmask_b32 {R(self.aHs + 1)}, 2.0, {R(self.aHs + 1)}, vcc")
        for rt in range(4): a(f"s_add_u32 {S(sOff + rt)}, {S(sLn2)}, {rt * 45056}")
        a(f"s_mul_i32 {S(sT0)}, {S(sW)}, {ARW}\ns_add_u32 {S(sT0)}, {S(sT0)}, {CUE}")
        a(f"v_mov_b32 v60, {S(sT0)}")
    def tables_epi(self):
        a = self.a; va = self.va; L, Li, G, T = self.vL, self.vLi, self.vG, self.vT
        a(f"v_mbcnt_lo_u32_b32 {R(L)}, -1, 0\nv_mbcnt_hi_u32_b32 {R(L)}, -1, {R(L)}")
        a(f"v_and_b32 {R(Li)}, 15, {R(L)}\nv_lshrrev_b32 {R(G)}, 4, {R(L)}")
        a(f"s_lshl_b32 {S(sS2)}, {S(sK1)}, 4\ns_and_b32 {S(sT0)}, {S(sM)}, 15\ns_or_b32 {S(sS2)}, {S(sS2)}, {S(sT0)}")
        a(f"s_and_b32 {S(sT0)}, s2, 0x80\ns_or_b32 {S(sS2)}, {S(sS2)}, {S(sT0)}")
        a(f"s_mov_b32 {S(sO + 2)}, 0x200000\ns_mov_b32 {S(sO + 3)}, 0x20000")
        a(f"s_lshl_b32 {S(sT0)}, {S(sW)}, 2\ns_mov_b32 {S(sT1)}, {RED[0]}")
        a(f"v_add_u32 {R(self.aRr)}, {S(sT0)}, {R(G)}")
        a(f"v_and_b32 {R(T)}, 7, {R(self.aRr)}")
        a(f"v_xor_b32 {R(T)}, {R(T)}, {R(Li)}")
        a(f"v_lshl_add_u32 {R(T)}, {R(T)}, 4, {S(sT1)}")
        a(f"v_lshl_add_u32 {R(self.aRr)}, {R(self.aRr)}, 8, {R(T)}")
        a(f"s_lshl_b32 {S(sT1)}, {S(sMem)}, 7")
        a(f"v_lshl_add_u32 {R(T)}, {R(Li)}, 3, {S(sT1)}")
        a(f"v_lshl_add_u32 {R(self.aOut)}, {R(G)}, 18, {R(T)}")
        a(f"s_lshl_b32 {S(sT1)}, {S(sRot)}, 4\ns_mul_i32 {S(sT0)}, {S(sW)}, {4 * HROW}")
        a(f"v_xor_b32 {R(T)}, {S(sT1)}, {R(T)}")
        a(f"v_mul_u32_u24 {R(self.aRes)}, {HROW}, {R(G)}")
        a(f"v_add3_u32 {R(self.aRes)}, {R(self.aRes)}, {R(T)}, {S(sT0)}")
        a(f"s_lshr_b32 {S(sT0)}, {S(sN)}, 3\ns_lshl_b32 {S(sT0)}, {S(sT0)}, 12\ns_lshl_b32 {S(sT1)}, {S(sW)}, 8\ns_add_u32 {S(sT0)}, {S(sT0)}, {S(sT1)}\ns_add_u32 {S(sT0)}, {S(sT0)}, {HH}")
        a(f"v_and_b32 {R(T)}, 3, {R(Li)}")
        a(f"v_lshl_add_u32 {R(T)}, {R(T)}, 10, {S(sT0)}")
        a(f"v_lshl_add_u32 {R(self.aSt)}, {R(G)}, 6, {R(T)}")
        a(f"s_and_b32 {S(sT0)}, {S(sS2)}, 0xf8\ns_lshr_b32 {S(sT1)}, {S(sW)}, 1\ns_add_u32 {S(sT0)}, {S(sT0)}, {S(sT1)}\ns_lshl_b32 {S(sT0)}, {S(sT0)}, 10")
        a(f"s_and_b32 {S(sT1)}, {S(sW)}, 1\ns_lshl_b32 {S(sT1)}, {S(sT1)}, 20\ns_add_u32 {S(sOff + 2)}, {S(sT0)}, {S(sT1)}\ns_add_u32 {S(sOff + 3)}, {S(sOff + 2)}, 4096")
        a(f"s_mov_b32 {S(sLn2)}, {fl(math.log(2.0))}")
    def tables_g2(self):
        a = self.a; va = self.va; L, Li, G, T = self.vL, self.vLi, self.vG, self.vT
        a(f"s_mul_i32 {S(sLn2)}, {S(sW)}, {4 * HROW}")
        a(f"v_xor_b32 {R(T)}, {S(sRot)}, {R(L)}")
        a(f"v_lshlrev_b32 {R(self.aHd)}, 4, {R(T)}")
        a(f"s_lshr_b32 {S(sT0)}, {S(sN)}, 3\ns_lshl_b32 {S(sT0)}, {S(sT0)}, 12\ns_lshl_b32 {S(sT1)}, {S(sW)}, 8\ns_add_u32 {S(sT0)}, {S(sT0)}, {S(sT1)}\ns_add_u32 {S(sT0)}, {S(sT0)}, {HH + 8}")
        a(f"v_and_b32 {R(T)}, 3, {R(Li)}")
        a(f"v_lshl_add_u32 {R(T)}, {R(T)}, 6, {S(sT0)}")
        a(f"v_lshl_add_u32 {R(self.aHw)}, {R(G)}, 10, {R(T)}")
        a(f"s_lshr_b32 {S(sHb)}, {S(sN)}, 3\ns_mul_i32 {S(sHb)}, {S(sHb)}, {HCL}\ns_add_u32 {S(sHb)}, {S(sHb)}, {HB}")
        a(f"s_lshl_b32 {S(sT0)}, {S(sW)}, 12\ns_add_u32 {S(sT0)}, {S(sT0)}, {RED[0]}")
        a(f"v_bitop3_b32 {R(T)}, {R(Li)}, {R(G)}, 7 bitop3:0x28")
        a(f"v_lshl_add_u32 {R(T)}, {R(T)}, 4, {S(sT0)}")
        a(f"v_lshl_add_u32 {R(self.aRw)}, {R(Li)}, 8, {R(T)}")
        a(f"v_xor_b32 {R(self.aRw + 1)}, 64, {R(self.aRw)}")
    def hn_dma(self, rt):
        out = []
        for n in range(4):
            out += [f"s_add_u32 m0, {S(sLn2)}, {rt * HTILE + 16 * n}",
                    f"buffer_load_dwordx4 {R(self.aHd)}, {S(sWS, 4)}, {S(sOff + 8 + rt)} offen offset:{1024 * n} sc1 lds"]
        return out
    def hn_load(self, rt):
        for l in self.hn_dma(rt): t = self.a(l)
        self.hntok[rt] = t
    def hn_check(self, rt):
        self.a.wait_vm(self.hntok[rt]); self.hnok.add(rt)
    def hn_poll(self):
        a = self.a; q = self.HC
        ld = [f"buffer_load_dword {R(q)}, {R(self.aHw)}, {S(sWS, 4)}, 0 offen sc1"]
        a.run(ld)
        self.point("hn_p")
        self.poll("hn", ld, lambda: a(f"v_cmp_ne_u32 vcc, {S(sEp)}, {R(q)}"))
    def bar_after(self, name):
        def f():
            self.a.wait_lg(getattr(self, name)); self.a("s_barrier")
        return [f]
    def pack(self, mf, fixed, floats, ops, g0, g1):
        n = len(mf)
        slot = [list(fixed.get(g, [])) for g in range(n)]
        for items, units_, f0, f1 in floats:
            for k, x in enumerate(items):
                units = units_
                if isinstance(x, tuple): x, units = x
                g = f0 + (k * (f1 - f0)) // max(len(items), 1)
                if units > 1:
                    last = g if k == 0 else max(g, prev)
                    cand = [q for q in range(last, min(last + 3, n)) if sum(u for _, u in slot[q]) + units <= 3]
                    g = cand[0] if cand else last
                elif k: g = max(g, prev)
                prev = g
                slot[g].append((x, units))
        base = [sum(u for _, u in sl) for sl in slot]
        best = None
        total = sum(o[1] for o in ops)
        for slack in range(0, 8):
            for span in range(min(g1, n) - g0, 8, -1):
                place = {}; out = [[] for _ in range(n)]; todo = list(range(len(ops))); done = 0; over = 0
                for g in range(g0, min(g1, n)):
                    used = base[g]
                    ready = [k for k in todo if all(d in place for d in ops[k][3])]
                    take = []
                    for k in ready:
                        since = g - max([place[d] for d in ops[k][3]], default=g0)
                        if not ops[k][2] and (used == 0 or (used == 1 and ops[k][1] > 1) or since > 3):
                            take.append(k); used += ops[k][1]; done += ops[k][1]
                    used = max(used, 1)
                    va_ = [k for k in ready if ops[k][2]]
                    while va_:
                        room = 3 - used
                        one = [k for k in va_ if ops[k][1] == 1]; two = [k for k in va_ if ops[k][1] == 2]
                        behind = done < total * (g - g0 + 1) / span - slack
                        if room >= 2 and two: k = two[0]
                        elif room == 1 and two and behind and len(one) < 2: k = two[0]
                        elif one and (room >= 1 or behind): k = one[0]
                        elif two and behind: k = two[0]
                        else: break
                        take.append(k); va_.remove(k); used += ops[k][1]; done += ops[k][1]
                    over += max(0, used - max(3, base[g]))
                    for k in take: todo.remove(k); out[g].append(ops[k][0])
                    for k in take: place[k] = g
                if not todo and (best is None or over < best[0]): best = (over, out)
                if not ops: break
            if not ops: break
        assert best, "could not pack"
        self.packinfo.append((best[0], sum(max(0, b - 3) for b in base)))
        for g in range(n):
            self.a.run([mf[g]] + [x for x, _ in slot[g]] + best[1][g])
    def silu_ops(self, acc, rt):
        tmp = self.SL; P = self.HP
        ops = []; idx = {}
        def add(key, x, u, v, deps): idx[key] = len(ops); ops.append((x, u, v, [idx[d] for d in deps]))
        for i in range(12):
            add(("e", i), f"v_exp_f32 {R(tmp + i)}, -{R(acc + i)}", 2, True, [])
            add(("a", i), f"v_add_f32 {R(tmp + i)}, 1.0, {R(tmp + i)}", 1, True, [("e", i)])
            add(("r", i), f"v_rcp_f32 {R(tmp + i)}, {R(tmp + i)}", 2, True, [("a", i)])
            add(("m", i), f"v_mul_f32 {R(tmp + i)}, {R(tmp + i)}, {R(acc + i)}", 1, True, [("r", i)])
            if i & 1: add(("c", i // 2), f"v_cvt_pk_bf16_f32 {R(P + i // 2)}, {R(tmp + i - 1)}, {R(tmp + i)}", 1, True, [("m", i), ("m", i - 1)])
            if i == 5: add(("x", 0), f"v_permlane32_swap_b32 {R(P)}, {R(P + 2)}", 2, True, [("c", 0), ("c", 2)])
            if i == 7:
                add(("x", 1), f"v_permlane32_swap_b32 {R(P + 1)}, {R(P + 3)}", 2, True, [("c", 1), ("c", 3)])
                if not self.cfg.get("st2"): add("st0", f"buffer_store_dwordx4 {R(P, 4)}, {R(self.aHs)}, {S(sWS, 4)}, {S(sOff + rt)} offen sc1", 3, False, [("x", 0), ("x", 1)])
            if i == 9: add(("x", 2), f"v_permlane32_swap_b32 {R(P + 4)}, {R(P + 6)}", 2, True, [("c", 4)])
        add(("x", 3), f"v_permlane32_swap_b32 {R(P + 5)}, {R(P + 7)}", 2, True, [("c", 5)])
        if self.cfg.get("st2"): add("st0", f"buffer_store_dwordx4 {R(P, 4)}, {R(self.aHs)}, {S(sWS, 4)}, {S(sOff + rt)} offen sc1", 3, False, [("x", 0), ("x", 1), ("c", 5)])
        add("st1", f"buffer_store_dwordx4 {R(P + 4, 4)}, {R(self.aHs + 1)}, {S(sWS, 4)}, {S(sOff + rt)} offen sc1", 3, False, [("x", 2), ("x", 3), "st0"])
        return ops
    def silu_flat(self, acc, rt):
        ops = self.silu_ops(acc, rt)
        order = sorted(range(len(ops)), key=lambda k: (self._depth(ops, k), k))
        return [ops[k][0] for k in order]
    def _depth(self, ops, k): return 1 + max([self._depth(ops, d) for d in ops[k][3]], default=0)
    def bar(self, name):
        self.bars.append(name); self.a("s_barrier")
    def waithn(self):
        self.a.wait_vm(self.tokhn); self.clrdone |= {(HN, 0), (HN, 1)} & self.cleared
    def waitclr(self):
        self.a.wait_vm(self.tokclr); self.clrdone = set(self.cleared)
    def karg(self):
        self.a("s_waitcnt lgkmcnt(0)"); self.srds()
    def role_b(self):
        a = self.a; va = self.va; c = self.cfg
        self.junk = []; self.role = "B"
        va.hi = 64
        self.vb = Alloc(180, 256); self.vb.used = va.used
        a("s_setprio %d" % c.get("prio_b0", 2))
        self.early_b()
        self.stamp("u0")
        a("s_setprio 0")
        self.bcut()
        self.common()
        va.at(60, 1, "cue"); self.aHr = va.at(61, 1, "aHr"); self.aHs = va.at(62, 2, "aHs")
        self.vW1 = va.at(48, 3, "vW1")
        a(f"s_lshr_b32 {S(sHb)}, {S(sOwn)}, 2\ns_mul_i32 {S(sHb)}, {S(sHb)}, 11")
        self.cf_sent = self.cf_own
        for name in self.bars + ["b5"]:
            self.curbar = name
            self.point("B_" + name)
            if name == "b2": assert self.cf_sent
            if name == ("e2" if "e2" in self.bars else "b3"): assert self.pkdone
            if name == [b for b in self.bars if b in ("b4", "e3", "s3", "t3")][-1]: assert {(HB, i) for i in range(6)} <= self.clrdone
            if name == "b5":
                assert all((1, i) in self.loaded for i in range(16))
                va.free(self.vW1, self.vT, self.vL16, self.vZero, self.vL, self.vLi, self.vG, self.vPf, self.vM1, *self.junk)
                a("s_setprio %d" % c.get("prio", (1, 0, 2))[2])
            self.stamp("B" + name)
            a("s_barrier")
        self.stamp("hn_in")
        self.SL = va.at(48, 12, "silu")
        ACC = va.at(0, 24, "acc1"); BF = va.at(24, 16, "bf"); self.HP = va.at(40, 8, "hp")
        NB = c.get("nb", 4)
        tok = {}
        def rd(n): tok[n] = a(f"ds_read_b128 {R(BF + 4 * (n % NB), 4)}, {R(self.aHr)} offset:{(n // 16) * HTILE + (n % 16) * 16}")
        for n in range(NB - 1): rd(n)
        cue = c.get("cue", (3, 4))
        for rt in range(4):
            acc = ACC + 12 * (rt & 1)
            mf = []; fixed = {}
            for ks in range(16):
                n = rt * 16 + ks
                for T in range(3):
                    cc = R(acc + 4 * T, 4) if ks else "0"
                    mf.append(f"v_mfma_f32_16x16x32_bf16 {R(acc + 4 * T, 4)}, {R(self.W1(ks, T), 4)}, {R(BF + 4 * (n % NB), 4)}, {cc}")
                if n + NB - 1 < 64: fixed[3 * ks] = [(lambda n=n: rd(n + NB - 1), 2)]
                if n + 1 < 64: fixed[3 * ks + 2] = [(lambda n=n: a.wait_lg(tok[n + 1]), 1)]
            if rt == 0: fixed[37] = [("s_barrier", 1)]
            if rt == cue[0]: fixed.setdefault(cue[1], []).append(("ds_write_b32 v60, v60", 2))
            ops = self.silu_ops(ACC + 12 * ((rt - 1) & 1), rt - 1) if rt else []
            self.pack(mf, fixed, [], ops, 1, 48)
            self.stamp("g1p%d" % rt)
        a.run(self.silu_flat(ACC + 12, 3))
        self.stamp("g1_end")
        a("s_setprio %d" % c.get("prio_epi", 2))
        va.hi = 256; va.lo = 64
        self.vL = va(1); self.vLi = va(1); self.vG = va(1); self.vT = va(1); self.vZero = va(1)
        self.aRr = va(1); self.aOut = va(1); self.aRes = va(1); self.aSt = va(1); ep = va(1)
        SV = va(4); RES = va(8); O = va(16); RB = va(16); K2 = va(2); P = va(2)
        self.tables_epi()
        stl = [f"buffer_load_dwordx2 {R(SV, 2)}, {R(self.aSt)}, {S(sWS, 4)}, 0 offen sc1"]
        a.run(stl)
        for r in range(4): a(f"ds_read_b64 {R(RES + 2 * r, 2)}, {R(self.aRes)} offset:{r * HTILE}")
        a(f"v_mov_b32 {R(self.vZero)}, 0\nv_mov_b32 {R(K2)}, {S(sLn2)}")
        def resid(rt):
            dpp = f"row_newbcast:{rt} row_mask:0xf bank_mask:0xf"
            a(f"v_mov_b32_dpp {R(P)}, {R(SV)} {dpp}\nv_mov_b32_dpp {R(P + 1)}, {R(SV + 1)} {dpp}")
            for h in range(2):
                a(f"v_lshlrev_b32 {R(O + 2 * h)}, 16, {R(RES + 2 * rt + h)}")
                a(f"v_and_b32 {R(O + 2 * h + 1)}, 0xffff0000, {R(RES + 2 * rt + h)}")
            for k in range(4): a(f"v_fma_f32 {R(O + k)}, {R(O + k)}, {R(P)}, {R(P + 1)}")
        for rt in range(4):
            if rt: resid(rt)
            if rt == 3: a("s_setprio 3")
            a("s_barrier")
            for src in range(4): a(f"ds_read_b128 {R(RB + 4 * src, 4)}, {R(self.aRr)} offset:{16384 * (rt & 1) + 4096 * src}")
            if rt == 0:
                resid(0)
            for src in range(4):
                if rt == 3:
                    for k in (0, 2): a(f"v_pk_fma_f32 {R(O + k, 2)}, {R(RB + 4 * src + k, 2)}, {R(K2, 2)}, {R(O + k, 2)} op_sel_hi:[1,0,1]")
                else:
                    for k in range(4): a(f"v_fmac_f32 {R(O + k)}, {S(sLn2)}, {R(RB + 4 * src + k)}")
            a(f"v_cvt_pk_bf16_f32 {R(RES + 2 * rt)}, {R(O)}, {R(O + 1)}\nv_cvt_pk_bf16_f32 {R(RES + 2 * rt + 1)}, {R(O + 2)}, {R(O + 3)}")
            a(f"buffer_store_dwordx2 {R(RES + 2 * rt, 2)}, {R(self.aOut)}, {S(sO, 4)}, {S(sOff + 2 + (rt >> 1))} offen offset:{2048 * (rt & 1)}{c.get('outflag', '')}")
        self.stamp("end")
    def ffn_a(self):
        a = self.a; va = self.va; c = self.cfg; T = self.vT
        self.HC = va(4, "hc"); self.hntok = {}; self.hnok = set()
        self.hn_poll()
        self.stamp("g3")
        self.point("hn_0")
        assert 0 in self.hnok
        a("s_barrier")
        a("s_setprio %d" % c.get("prio", (1, 0, 2))[1])
        self.point("hn_1")
        assert len(self.hnok) == 4
        a("s_barrier")
        self.point("w2")
        va.free(self.HC, self.aHw, self.vL, self.vLi, self.vG)
        self.stamp("w2_in")
        Lc = a.label("cue"); Ld = a.label("cued")
        a.wait_lg_all()
        a(f"v_mov_b32 {R(self.aHd)}, {S(sStg)}\ns_mov_b32 {S(sCnt)}, 0")
        a.auto = False
        a(f"{Lc}:\nds_read_b32 {R(T)}, {R(self.aHd)} offset:15360\ns_add_u32 {S(sCnt)}, {S(sCnt)}, 1\ns_waitcnt lgkmcnt(0)")
        a(f"v_cmp_ne_u32 vcc, 0, {R(T)}\ns_cbranch_vccnz {Ld}\ns_sleep 1\ns_cmp_lt_u32 {S(sCnt)}, {SPIN * 10}\ns_cbranch_scc1 {Lc}\n{Ld}:")
        a.auto = True
        self.stamp("cue")
        assert all((2, i) in self.loaded for i in range(11))
        a(f"v_add_u32 v0, {S(sHb)}, {R(self.vL16)}")
        va.free(self.aHd, self.vL16, self.vZero, self.aHf)
        a(f"v_mov_b32 v2, {R(self.aRw)}\nv_mov_b32 v3, {R(self.aRw + 1)}")
        va.free(self.aRw); self.aRw = va.at(2, 2, "aRw")
        HF = va.at(4, 44, "hf"); ACC = [va.at(48, 16, "acc2a"), va.at(64, 16, "acc2b")]; RD = HF + 32
        assert max(va.used) < 80, sorted(set(va.used.values()))
        tok = {}
        hso = lambda n: f"s_add_u32 {S(sD0)}, {S(sKap + n % 11)}, {45056 * (n // 11)}"
        hld = lambda q: f"buffer_load_dwordx4 {R(q, 4)}, v0, {S(sWS, 4)}, {S(sD0)} offen sc1"
        def hload(n): tok[n] = a(hld(HF + 4 * (n % 11)))
        for n in range(11):
            if c.get("hthr") and len(a.vm) > c["hthr"]: a(f"s_waitcnt vmcnt({c['hthr']})")
            a(hso(n)); hload(n)
        def red_w(rt, t): self.tokrw = a(f"ds_write_b128 {R(self.aRw + (t & 1))}, {R(ACC[rt & 1] + 4 * t, 4)} offset:{16384 * (rt & 1) + 128 * (t >> 1)}")
        def nanchk(rt): a(f"v_cmp_u_f32 vcc, {R(ACC[rt & 1])}, {R(ACC[rt & 1])}")
        def nanbr(rt):
            Lr = a.label("redo"); Lo = a.label("redone"); acc = ACC[rt & 1]
            site = self.npoll; self.npoll += 1; self.pollnames.append("H%d" % rt)
            a(f"s_cbranch_vccnz {Lr}\n{Lo}:")
            def tail():
                a.auto = False
                a(Lr + ":")
                if self.stamps: a(f"s_bitset1_b32 {S(sRet + site // 32)}, {site % 32}")
                a("s_waitcnt vmcnt(0)")
                for i0 in range(0, 11, 3):
                    fr = range(i0, min(i0 + 3, 11)); Ll = a.label("redo_loop"); Lg = a.label("redo_got")
                    a(f"s_mov_b32 {S(sCnt)}, 0\n{Ll}:")
                    for i in fr: a(hso(11 * rt + i)); a(hld(RD + 4 * (i - i0)))
                    a(f"s_add_u32 {S(sCnt)}, {S(sCnt)}, 1\ns_waitcnt vmcnt(0)")
                    a(f"v_max3_u32 {R(T)}, {R(RD)}, {R(RD + 4)}, {R(RD + 4 * (len(fr) - 1))}")
                    a(f"v_cmp_eq_u32 vcc, -1, {R(T)}\ns_cbranch_vccz {Lg}\ns_cmp_lt_u32 {S(sCnt)}, {SPIN}\ns_cbranch_scc1 {Ll}\n{Lg}:")
                    for i in fr:
                        for t in range(4):
                            a(f"v_mfma_f32_16x16x32_bf16 {R(acc + 4 * t, 4)}, {R(self.W2(i, t), 4)}, {R(RD + 4 * (i - i0), 4)}, {R(acc + 4 * t, 4) if i else 0}")
                if rt < 3:
                    for i in (8, 9, 10): a(hso(11 * (rt + 1) + i)); a(hld(HF + 4 * i))
                    a("s_waitcnt vmcnt(0)")
                a(f"s_nop 7\ns_branch {Lo}")
            self.tail.append(tail)
        self.stamp("g2_in")
        for rt in range(4):
            acc = ACC[rt & 1]
            order = [(i, t) for i in range(11) for t in range(4)]
            if rt == 3: order = order[:32] + [(i, t) for t in range(4) for i in (8, 9, 10)]
            mf = [f"v_mfma_f32_16x16x32_bf16 {R(acc + 4 * t, 4)}, {R(self.W2(i, t), 4)}, {R(HF + 4 * i, 4)}, {R(acc + 4 * t, 4) if i else 0}" for i, t in order]
            fixed = {}
            for i in range(11):
                n = 11 * rt + i
                if 1 <= n and n + 10 < 44: fixed[4 * i] = [(lambda n=n: hload(n + 10), 3)]
                fixed[4 * i + 3] = [(lambda n=n: a.wait_vm(tok[n + 1]), 1)] if n + 1 < 44 else []
                if n + 11 < 44: fixed[4 * i + 3].append((hso(n + 11), 1))
            if rt:
                fixed[1] = [(lambda rt=rt: nanchk(rt - 1), 2)]
                fixed[3].insert(0, (lambda rt=rt: nanbr(rt - 1), 1))
                for t in range(4): fixed[5 + 4 * t] = [(lambda rt=rt, t=t: red_w(rt - 1, t), 3)]
                fixed[c.get("rbar", 21)] = [(self.bar_after("tokrw")[0], 2)]
            if rt == 3:
                fixed[40] = [(lambda: red_w(3, 0), 3)]; fixed[42] = [(lambda: nanchk(3), 2)]; fixed[43] = [(lambda: red_w(3, 1), 3)]
            self.pack(mf, fixed, [], [], 0, 44)
            self.stamp("g2p%d" % rt)
        red_w(3, 2); red_w(3, 3)
        Lw = a.label("rewrite"); Lf = a.label("final")
        a(f"s_cbranch_vccz {Lf}")
        nanbr(3)
        a.auto = False
        for t in range(4): red_w(3, t)
        a.auto = True
        a(f"{Lf}:\ns_waitcnt lgkmcnt(0)\ns_barrier")
        if self.stamps: a(f"v_mov_b32 {R(self.vZero)}, 0")
    def finish(self, role):
        a = self.a
        if self.amp and role == "A":
            i, j = (self.stamps.index(n) for n in self.amp)
            self.stamp("end")
        if self.amp and role != self.cfg.get("amprole", "A"): return
        if self.amp:
            i, j = (self.stamps.index(n) for n in self.amp); e = self.stamps.index("end")
            a("s_waitcnt lgkmcnt(0)")
            if self.cfg.get("skew"):
                lo, hi = self.cfg["skew"]
                a(f"v_mbcnt_lo_u32_b32 v4, -1, 0\nv_lshlrev_b32 v4, 7, v4\ns_mov_b32 s4, {STAMP}\nbuffer_load_dword v5, v4, {S(sWS, 4)}, s4 offen sc1\ns_waitcnt vmcnt(0)")
                a(f"s_mov_b32 {S(sT1)}, 0")
                for l in range(lo, hi): a(f"v_readlane_b32 s4, v5, {l}\ns_nop 3\ns_sub_u32 s4, s4, {S(sStamp + 2 * i)}\ns_max_i32 {S(sT1)}, {S(sT1)}, s4")
                a(f"s_add_u32 {S(sStamp + 2 * j)}, {S(sStamp + 2 * i)}, {S(sT1)}")
            a(f"s_sub_u32 {S(sT0)}, {S(sStamp + 2 * j)}, {S(sStamp + 2 * i)}\ns_lshl_b32 {S(sT0)}, {S(sT0)}, 3\ns_min_u32 {S(sT0)}, {S(sT0)}, 100000")
            a(f"L_amp:\ns_memrealtime s[4:5]\ns_waitcnt lgkmcnt(0)\ns_sub_u32 {S(sT1)}, s4, {S(sStamp + 2 * e)}\ns_cmp_lt_u32 {S(sT1)}, {S(sT0)}\ns_cbranch_scc1 L_amp")
        elif self.stamps:
            a("s_waitcnt lgkmcnt(0)")
            a(f"s_lshl_b32 {S(sT0)}, s2, 3\ns_add_u32 {S(sT0)}, {S(sT0)}, s3\ns_lshl_b32 {S(sT0)}, {S(sT0)}, 6\ns_add_u32 {S(sT0)}, {S(sT0)}, {STAMP}")
            for i, sr in [(i, sStamp + 2 * i) for i in range(len(self.stamps))] + [(14, sRet), (15, sRet + 1)]:
                a(f"v_mov_b32 {R(self.vT)}, {S(sr)}")
                a(f"buffer_store_dword {R(self.vT)}, {R(self.vZero)}, {S(sWS, 4)}, {S(sT0)} offen offset:{4 * i}")
    def build(self):
        import copy
        a = self.a; va = self.va
        self.prologue()
        snap = (dict(va.used), list(a.vm), list(a.lg))
        self.prologue_a()
        self.point("start")
        self.stamp("tabs")
        self.p1()
        va.free(self.vM1)
        self.point("p1_end")
        self.p2_gather()
        self.point("g1_wait")
        self.p2()
        self.point("p2_end")
        self.p3_gather()
        self.point("g2_wait")
        self.p3()
        self.point("p3_end")
        self.ffn_a()
        self.finish("A")
        a("L_end:")
        a("s_endpgm")
        vTa = self.vT
        bstart = len(a.ins)
        a("L_roleB:")
        va.used, a.vm, a.lg = snap
        self.clrdone = set(self.cleared)
        self.role_b()
        self.finish("B")
        a("s_endpgm")
        self.vT = vTa
        for t in self.tail: t()
        if self.cfg.get("bnear", 1):
            blk = a.ins[bstart:self.bend]
            a.ins = a.ins[:self.splice] + blk + a.ins[self.splice:bstart] + a.ins[self.bend:]
        body = a.finalize()
        hdr = open("header.txt").read()
        s = hdr + f"; @launch grid=(256,1,1) block=(512,1,1) lds={LDS_SIZE}\n"
        s += f'.amdgcn_target "amdgcn-amd-amdhsa--gfx950"\n.text\n.globl {KN}\n.p2align 8\n.type {KN},@function\n{KN}:\n'
        s += body
        s += ".p2align 8\n.fill 4096, 4, 0xbf810000\n"
        s += f'''.section .rodata,"a"
.p2align 6
.amdhsa_kernel {KN}
  .amdhsa_next_free_vgpr 256
  .amdhsa_next_free_sgpr 102
  .amdhsa_accum_offset 256
  .amdhsa_group_segment_fixed_size 0
  .amdhsa_kernarg_size 72
  .amdhsa_user_sgpr_count 2
  .amdhsa_user_sgpr_kernarg_segment_ptr 1
  .amdhsa_system_sgpr_workgroup_id_x 1
  .amdhsa_float_denorm_mode_32 3
.end_amdhsa_kernel
'''
        return s

F = lambda name, *args: [(name, args)]
def write(cfg, out):
    g = Gen(cfg)
    s = g.build()
    open(out, "w").write(s)
    return g
```

```python
from gen4 import *
ST_A = ['entry', 'karg', 'tabs', 'x_in', 'z1_st', 'g1', 'z1_in', 'z2_st', 'g2', 'z2_in', 'hn_st']
ST_B = ['entry', 'hn_st', 'g3', 'hn_in', 'g1p0', 'g1p2', 'g1p3', 'g1_end', 'w2_in', 'cue', 'end']
ST_C = ['entry', 'Bb1', 'z1_st', 'Bb2', 'z1_in', 'Bb3', 'z2_st', 'Bb4', 'z2_in', 'Bb5', 'hn_in']
ST_D = ['entry', 'hn_in', 'w2_in', 'cue', 'g1_end', 'g2_in', 'g2p0', 'g2p1', 'g2p2', 'g2p3', 'end']
ST_H = ['entry', 'z1_st', 'z1_in', 'z2_st', 'z2_in', 'hn_st', 'hn_in', 'g1p0', 'g1_end', 'g2_in', 'end']
CL = lambda base, r: [("clear", (base, i)) for i in r]
CH = lambda r: [("clear_H", (i,)) for i in r]
WL = lambda *x: [("w_load", (i,)) for i in x]
L1 = lambda r: [("l1", (i,)) for i in r]
L2 = lambda r: [("l2", (i,)) for i in r]
HL = lambda *r: [("hn_load", (i,)) for i in r]
HK = lambda *r: [("hn_check", (i,)) for i in r]
SL = lambda n: F("sleep", n) if n else []
BAR = lambda n: F("bar", n)
PO = F("pack_out"); PW = F("pack_wait")
WF = F("w_stage") + F("w_coefs"); WS = F("w_spec"); WT = F("w_touch"); WC = F("waitclr")
T1 = F("tables_p1")
T2 = F("addr_g1") + F("tables_p2a") + F("tables_p2b") + F("addr_p2")
T3 = F("xnat_load") + F("addr_g2") + F("tables_p3") + F("tables_g2") + F("tables_w2")
G2W = F("xnat_unpack") + F("addr_g3")
KA = F("karg"); PA = F("pack_addr"); WA = F("w_addr"); TG = F("tables_g1")
VW = lambda n: F("vmwait", n)
def thr(f, r, n):
    out = []
    for i in r: out += VW(n) + f((i,))
    return out
MK = lambda n: F("mark", n)
HNC = CL(HN, (0, 1))
BE = PA + WA + TG
def base():
    return {"rot1": 0, "rot2": 0, "xrot1": 4, "xrot2": 7, "hdepth": 14, "prio": (1, 1, 0), "sched": dict(
        start=T1 + WA, p1_end=BAR("s1") + WL(0, 1) + WS + T2, g1_wait=WF, p2_end=T3 + SL(6), g2_wait=BAR("g2") + G2W,
        p3_s=BAR("s3"), p3_end=SL(10),
        hn_0=HL(0, 1, 2, 3) + HK(0), hn_1=L2((0, 1)) + HK(1, 2, 3), w2=thr(L2, range(2, 11), 4),
        B_pre=SL(8), B_pre3=SL(8), B_b1=PA + TG, B_b2=PO, B_b3=CH((0, 1, 2)) + PW, B_b4=CH((3, 4, 5)),
        B_s3=L1(range(3)) + WC, B_b5=L1(range(3, 16)),
    )}
def var(**kw):
    def f():
        c = base()
        for k, v in kw.items():
            if isinstance(v, list): c["sched"][k] = v
            else: c[k] = v
        return c
    return f
CFG = {"base": base}
ST_K = ['entry', 'u0', 'x_in', 'z1_st', 'Bb2', 'z1_in', 'Bb3', 'z2_st', 'g2', 'z2_in', 'hn_st']
ST_M = ['entry', 'z2_in', 'hn_st', 'st_st', 'g3', 'Bb5', 'hn_in', 'g1p0', 'g1_end', 'g2_in', 'end']
e0 = dict(B_b5=thr(L1, range(3, 16), 7), p3_end=SL(16), g2_wait=BAR("g2") + F("pre_st") + G2W)
e0.update(p3_end=SL(24), B_b5=thr(L1, range(3, 16), 10), st2=1)
e0.update(w2=thr(L2, range(2, 11), 6), hthr=9)
CFG["e0"] = var(**e0)
CFG["e1"] = var(**dict(e0, rbar=37))
CFG["e2"] = var(**dict(e0, outflag=" sc1"))
CFG["e3"] = var(**dict(e0, prio=(1, 0, 2)))
CFG["e4"] = var(**dict(e0, mrot=7))
ST_F = ['entry', 'u0', 'Bb2', 'Bb4', 'hn_in', 'g1p0', 'g1p1', 'g1p2', 'g1p3', 'g1_end', 'end']
ST_G = ['entry', 'x_in', 'z1_st', 'z2_in', 'hn_st', 'cue', 'g2_in', 'g2p0', 'g2p1', 'g2p2', 'g2p3']
CFG["e0c"] = lambda: dict(CFG["e0"](), cyc=1)
CFG["redo"] = var(**dict(e0, hn_p=L2(range(11)), hn_1=HK(1, 2, 3), w2=[], cue=(1, 4)))
v0 = dict(e0, outflag=" sc1", rbar=37)
CFG["v0"] = var(**v0)
CFG["v1"] = var(**dict(v0, p2_end=T3 + SL(12)))
CFG["v2"] = var(**dict(v0, p2_end=T3 + SL(18)))
v3 = dict(v0, g2_wait=G2W, p3_a=F("pre_st"), p3_t=SL(6) + BAR("t3"), B_b4=[], B_s3=CH((3, 4, 5)) + L1(range(2)), B_t3=L1(range(2, 5)) + WC, B_b5=thr(L1, range(5, 16), 10))
CFG["v3"] = var(**v3)
CFG["v4"] = var(**dict(v3, p2_end=T3 + SL(12)))
CFG["v5"] = var(**dict(v3, p2_end=T3 + SL(12), p1_end=BAR("s1") + WL(0, 1) + WS + T2 + SL(8)))
for k, off in enumerate((0, 32, 64, 128, 192, 232)): CFG["o%d" % k] = var(**dict(v0, wsoff=off << 20))
if __name__ == "__main__":
    name, out = sys.argv[1], sys.argv[2]
    c = CFG[name]()
    for x in sys.argv[3:]:
        if len(x) == 1: c["stamps"] = globals()["ST_" + x]
        if x.startswith("--amp="):
            c["amp"] = x[6:].split(","); c["stamps"] = list(dict.fromkeys(["entry"] + c["amp"] + ["end"]))
    g = write(c, out)
    print("wrote", out, "instrs", len(g.a.ins), "nops", g.a.nops_added, "vgpr high", g.va.high, "pack", g.packinfo)
```

```python
import sys, struct, math
from asmlib import *

KN = "sequential_preLN__spectral_gfnet__dense_activation_silu__prompt_kernel"
def fl(x): return "0x%08x" % struct.unpack("<I", struct.pack("<f", x))[0]

Z1 = 0x0; Z2 = 0x200000; HN = 0x400000; HH = 0x600000; HB = 0x800000; EPO = 0xE00000; STAMP = 0xE80000; W1P = 0x1000000; W2P = 0x1200000
WS_SIZE = 0x1400000
HCL = 4 * 44 * 1024
OOB = 0x40000000
HNL = 0; HROW = 1040; HTILE = 16 * HROW
EA = 0; EB = 8448
RED = (4 * HTILE, 4 * HTILE + 16384)
BST = RED[0]; BSTW = 8192
AR = 4 * HTILE + 32768; ARW = 16128
CUE = AR + 15360
LDS_SIZE = 163840
sX, sWR, sWI, sW1, sW2, sO, sWS = 8, 12, 16, 20, 24, 28, 32
sW, sS2, sK1, sM, sMem, sRot, sT0, sT1, sT2, sOnes, sMask, sEp, sCnt, sStg, sN, sD0, sHb, sU0, sLn2, sOwn = range(36, 56)
sOff = 56
sTag = 79
sPk = 72; sPj = 76
sKap = 68
sStamp = 80
sSel = 12

sRet = 6
SPIN = 20000

class Gen:
    def __init__(self, cfg):
        self.cfg = cfg
        self.amp = cfg.get("amp"); self.stamps = cfg.get("stamps") or []
        self.a = Asm(); self.va = Alloc(1, 256); self.vb = self.va
        self.tail = []; self.npoll = 0; self.pollnames = []
        self.sched = cfg.get("sched", {})
        self.W2 = lambda i, t: 80 + (i * 4 + t) * 4
        self.W1 = lambda ks, T: 64 + (ks * 3 + T) * 4
        self.cleared = set(); self.loaded = set(); self.pkdone = None; self.role = 'A'; self.cf_own = False
        self.packinfo = []; self.bars = []
    def stamp(self, name):
        if name in self.stamps:
            k = self.stamps.index(name)
            self.a(f"{'s_memtime' if self.cfg.get('cyc') else 's_memrealtime'} {S(sStamp + 2 * k, 2)}")
    def sincos(self, c, s, ang):
        self.a(f"v_cos_f32 {R(c)}, {R(ang)}"); self.a(f"v_sin_f32 {R(s)}, {R(ang)}")
    def poll(self, name, loads, check):
        a = self.a
        Lr = a.label(name + "_retry"); Lo = a.label(name + "_ok")
        site = self.npoll; self.npoll += 1; self.pollnames.append(name)
        check()
        a(f"s_cbranch_vccnz {Lr}")
        a(Lo + ":")
        def tail():
            a.auto = False
            a(Lr + ":")
            a(f"s_mov_b32 {S(sCnt)}, 0")
            Ll = a.label(name + "_loop")
            a(Ll + ":")
            if self.stamps: a(f"s_bitset1_b32 {S(sRet + site // 32)}, {site % 32}")
            if self.cfg.get("backoff"): a(f"s_sleep {self.cfg['backoff']}")
            for l in loads: a(l)
            a("s_waitcnt vmcnt(0)")
            check()
            a(f"s_cbranch_vccz {Lo}")
            a(f"s_add_u32 {S(sCnt)}, {S(sCnt)}, 1")
            a(f"s_cmp_lt_u32 {S(sCnt)}, {SPIN}")
            a(f"s_cbranch_scc1 {Ll}")
            a(f"s_branch {Lo}")
        self.tail.append(tail)
    def check_sentinel(self, regs):
        a = self.a; t = self.vT
        def chk():
            r = list(regs)
            if len(r) % 2 == 0:
                a(f"v_max_u32 {R(t)}, {R(r[0])}, {R(r[1])}"); r = r[2:]
            else:
                a(f"v_max3_u32 {R(t)}, {R(r[0])}, {R(r[1])}, {R(r[2])}"); r = r[3:]
            while r:
                a(f"v_max3_u32 {R(t)}, {R(t)}, {R(r[0])}, {R(r[1])}"); r = r[2:]
            a(f"v_cmp_eq_u32 vcc, -1, {R(t)}")
        return chk
    def cmul(self, ore, oim, re, im, c, s, conj, addend=None):
        a = self.a
        neg = " neg_lo:[0,1,0] neg_hi:[0,1,0]"
        for k in (0, 2):
            for o, x in ((ore, re), (oim, im)):
                if addend is None: a(f"v_pk_mul_f32 {R(o + k, 2)}, {R(x + k, 2)}, {R(c + k, 2)}")
                else: a(f"v_pk_fma_f32 {R(o + k, 2)}, {R(x + k, 2)}, {R(c + k, 2)}, {R(addend, 2)} op_sel_hi:[1,1,0] neg_lo:[0,0,1] neg_hi:[0,0,1]")
        for k in (0, 2):
            a(f"v_pk_fma_f32 {R(ore + k, 2)}, {R(im + k, 2)}, {R(s + k, 2)}, {R(ore + k, 2)}" + (neg if conj else ""))
            a(f"v_pk_fma_f32 {R(oim + k, 2)}, {R(re + k, 2)}, {R(s + k, 2)}, {R(oim + k, 2)}" + ("" if conj else neg))
    def stats(self, X, st, scale, mscale):
        a = self.a
        S0, S1, Q0, Q1 = st, st + 1, st + 2, st + 3
        for r in range(4):
            a(f"v_dot2c_f32_bf16 {R(S0)}, {S(sOnes)}, {R(X + r)}")
            a(f"v_dot2c_f32_bf16 {R(Q0)}, {R(X + r)}, {R(X + r)}")
        for r in range(4):
            a(f"v_dot2c_f32_bf16 {R(S1)}, {S(sOnes)}, {R(X + 4 + r)}")
            a(f"v_dot2c_f32_bf16 {R(Q1)}, {R(X + 4 + r)}, {R(X + 4 + r)}")
        a(f"v_permlane32_swap_b32 {R(S0)}, {R(S1)}")
        a(f"v_permlane32_swap_b32 {R(Q0)}, {R(Q1)}")
        a(f"v_add_f32 {R(S0)}, {R(S0)}, {R(S1)}")
        a(f"v_add_f32 {R(Q0)}, {R(Q0)}, {R(Q1)}")
        a(f"v_permlane16_swap_b32 {R(S0)}, {R(Q0)}")
        a(f"v_add_f32 {R(S0)}, {R(S0)}, {R(Q0)}")
        for sh in (8, 4, 2, 1):
            a(f"v_add_f32_dpp {R(S0)}, {R(S0)}, {R(S0)} row_ror:{sh} row_mask:0xf bank_mask:0xf")
        a(f"v_mul_f32 {R(Q0)}, {fl(1 / 512)}, {R(S0)}")
        a(f"v_mul_f32 {R(S0)}, {fl(1 / 512)}, {R(S0)}")
        a(f"v_permlane16_swap_b32 {R(S0)}, {R(Q0)}")
        a(f"v_fma_f32 {R(Q0)}, -{R(S0)}, {R(S0)}, {R(Q0)}")
        a(f"v_max_f32 {R(Q0)}, 0, {R(Q0)}")
        if scale != 1.0: a(f"v_fmamk_f32 {R(Q0)}, {R(Q0)}, {fl(1 / scale ** 2)}, {R(self.vEps)}")
        else: a(f"v_add_f32 {R(Q0)}, {fl(1e-5)}, {R(Q0)}")
        a(f"v_rsq_f32 {R(Q0)}, {R(Q0)}")
        if mscale is not None:
            a(f"v_mov_b32 {R(self.vMu)}, {R(S0)}")
            a(f"v_mul_f32 {R(S0)}, {R(mscale)}, {R(S0)}")
        a(f"v_mul_f32 {R(st + 4)}, {R(S0)}, {R(Q0)}")
        a(f"v_mul_f32 {R(st + 6)}, {R(S0)}, {R(Q0)}")
        a(f"v_mov_b32 {R(st)}, {R(Q0)}")
        a(f"v_permlane32_swap_b32 {R(st + 4)}, {R(st + 6)}")
        a(f"v_permlane32_swap_b32 {R(st)}, {R(st + 2)}")
    def early_b(self):
        a = self.a; va = self.va; T = self.vT; L = self.vL
        self.vP = va(1, "vP"); u = va(2, "junk"); self.junk.append(u)
        L3 = a.label("w3"); Le = a.label("join")
        a(f"v_and_b32 {R(L)}, 63, v0")
        a(f"s_and_b32 {S(sW)}, s3, 3")
        a(f"s_cmp_eq_u32 s3, 7\ns_cbranch_scc1 {L3}")
        a(f"s_xor_b32 {S(sT0)}, s2, 255\ns_mul_i32 {S(sT0)}, {S(sT0)}, 3\ns_add_u32 {S(sPj)}, {S(sT0)}, {S(sW)}")
        a(f"s_and_b32 {S(sT0)}, {S(sPj)}, 15\ns_mul_i32 {S(sT0)}, {S(sT0)}, {8 * 2752}\ns_lshr_b32 {S(sT1)}, {S(sPj)}, 4\ns_lshl_b32 {S(sT1)}, {S(sT1)}, 7\ns_add_u32 {S(sT0)}, {S(sT0)}, {S(sT1)}")
        a(f"s_sub_u32 {S(sT1)}, {S(sPj)}, 352\ns_and_b32 {S(sT2)}, {S(sT1)}, 7\ns_lshl_b32 {S(sT2)}, {S(sT2)}, 7\ns_lshr_b32 {S(sT1)}, {S(sT1)}, 3\ns_lshl_b32 {S(sT1)}, {S(sT1)}, 15\ns_add_u32 {S(sT1)}, {S(sT1)}, {S(sT2)}")
        a(f"s_lshl_b32 {S(sStg)}, {S(sW)}, 13\ns_add_u32 {S(sStg)}, {S(sStg)}, {BST}\ns_mov_b32 m0, {S(sStg)}")
        a(f"s_movk_i32 {S(sCnt)}, 1024\ns_movk_i32 {S(sU0)}, 7168")
        a(f"v_lshrrev_b32 {R(T)}, 3, {R(L)}\nv_and_b32 {R(self.vP)}, 7, v0\nv_lshlrev_b32 {R(self.vP)}, 4, {R(self.vP)}")
        a(f"s_mov_b32 {S(sW1 + 2)}, {512 * 2752}\ns_mov_b32 {S(sW1 + 3)}, 0x20000")
        a(f"s_cmp_lt_u32 {S(sPj)}, 352\ns_cselect_b32 {S(sD0)}, {S(sT0)}, {S(sT1)}\ns_cselect_b32 {S(sCnt)}, 2752, {S(sCnt)}\ns_cselect_b32 {S(sU0)}, {128 * 2752 - 1024}, {S(sU0)}")
        a(f"v_mad_u32_u24 {R(self.vP)}, {R(T)}, {S(sCnt)}, {R(self.vP)}")
        a("s_waitcnt lgkmcnt(0)")
        a(f"s_cselect_b64 {S(sW1, 2)}, {S(sOff + 8, 2)}, {S(sOff + 10, 2)}")
        self.point("B_pre")
        a.auto = False
        for p in range(4):
            if p: a(f"s_add_u32 {S(sD0)}, {S(sD0)}, {S(sU0)}")
            a(f"buffer_load_dwordx4 {R(self.vP)}, {S(sW1, 4)}, {S(sD0)} offen offset:{p * 1024} lds")
        self.srds()
        a(f"s_branch {Le}\n{L3}:")
        k = self.vP
        a(f"s_lshl_b32 {S(sT0)}, {S(sM)}, 6\ns_add_u32 {S(sT0)}, {S(sT0)}, {S(sK1)}\ns_movk_i32 {S(sPj)}, 1023\ns_mov_b32 {S(sStg)}, {BST + 3 * BSTW}")
        a(f"v_and_b32 {R(k)}, 28, v0")
        a(f"v_lshl_add_u32 {R(k)}, {R(k)}, 1, {S(sT0)}")
        a(f"v_cmp_gt_u32 vcc, 32, {R(L)}")
        a(f"v_sub_u32 {R(u)}, 0, {R(k)}")
        a(f"v_and_b32 {R(u)}, 2047, {R(u)}")
        a(f"v_cndmask_b32 {R(k)}, {R(u)}, {R(k)}, vcc")
        a(f"v_mul_u32_u24 {R(k)}, 514, {R(k)}")
        a(f"v_and_b32 {R(u)}, 3, v0")
        a(f"v_mul_u32_u24 {R(u)}, 84, {R(u)}")
        a(f"v_and_b32 {R(T)}, 32, v0")
        a(f"v_lshl_add_u32 {R(u)}, {R(T)}, 3, {R(u)}")
        a(f"v_add_u32 {R(k)}, {R(k)}, {R(u)}")
        a("s_waitcnt lgkmcnt(0)")
        self.srds()
        self.point("B_pre3")
        a(f"buffer_load_dword {R(u)}, {R(k)}, {S(sWR, 4)}, 0 offen offset:2")
        a(f"buffer_load_dword {R(u + 1)}, {R(k)}, {S(sWI, 4)}, 0 offen offset:2")
        a.auto = True
        a(Le + ":")
        self.pkpos = a.tok
        va.free(self.vP)
    def pack_addr(self):
        a = self.a; va = self.va; L, G, T = self.vL, self.vG, self.vT
        self.vTr = va(2, "vTr", 1); self.PK = self.vb(16, "PK")
        a(f"s_lshr_b32 {S(sT0)}, {S(sPj)}, 4\ns_lshl_b32 {S(sT0)}, {S(sT0)}, 16\ns_and_b32 {S(sT1)}, {S(sPj)}, 15\ns_lshl_b32 {S(sT1)}, {S(sT1)}, 10\ns_add_u32 {S(sT0)}, {S(sT0)}, {S(sT1)}\ns_add_u32 {S(sT0)}, {S(sT0)}, {W1P}")
        a(f"s_sub_u32 {S(sT1)}, {S(sPj)}, 352\ns_and_b32 {S(sT2)}, {S(sT1)}, 7\ns_mul_i32 {S(sT2)}, {S(sT2)}, 43\ns_lshr_b32 {S(sT1)}, {S(sT1)}, 3\ns_add_u32 {S(sT1)}, {S(sT1)}, {S(sT2)}\ns_lshl_b32 {S(sT1)}, {S(sT1)}, 12\ns_add_u32 {S(sT1)}, {S(sT1)}, {W2P}")
        a(f"s_cmp_lt_u32 {S(sPj)}, 696\ns_cselect_b32 {S(sT1)}, {S(sT1)}, 2.0\ns_movk_i32 {S(sT2)}, 1024")
        a(f"s_cmp_lt_u32 {S(sPj)}, 352\ns_cselect_b32 {S(sPk)}, {S(sT0)}, {S(sT1)}\ns_cselect_b32 {S(sT0)}, 16384, {S(sT2)}\ns_cselect_b32 {S(sT1)}, 512, {S(sT2)}\ns_cselect_b32 {S(sT2)}, 0, 1")
        for t in range(1, 4): a(f"s_add_u32 {S(sPk + t)}, {S(sPk + t - 1)}, {S(sT0)}")
        a(f"v_and_b32 {R(T)}, {S(sT2)}, {R(G)}")
        a(f"v_lshlrev_b32 {R(self.vTr)}, 1, {R(G)}")
        a(f"v_sub_u32 {R(T)}, {R(self.vTr)}, {R(T)}")
        a(f"v_lshl_add_u32 {R(T)}, {R(T)}, 9, {S(sStg)}")
        a(f"v_and_b32 {R(self.vTr)}, 12, {R(L)}")
        a(f"v_lshl_add_u32 {R(T)}, {R(self.vTr)}, 5, {R(T)}")
        a(f"v_and_b32 {R(self.vTr)}, 3, {R(L)}")
        a(f"v_lshl_add_u32 {R(self.vTr)}, {R(self.vTr)}, 3, {R(T)}")
        a(f"v_add_u32 {R(self.vTr + 1)}, {S(sT1)}, {R(self.vTr)}")
    def pack_out(self):
        a = self.a; PK = self.PK
        a(f"s_waitcnt vmcnt({sum(1 for t, _ in a.vm if t > self.pkpos)})")
        self.stamp("pk_in")
        for t in range(4):
            for h in range(2): a(f"ds_read_b64_tr_b16 {R(PK + 4 * t + 2 * h, 2)}, {R(self.vTr + h)} offset:{32 * t}")
        for t in range(4):
            self.pktok = a(f"buffer_store_dwordx4 {R(PK + 4 * t, 4)}, {R(self.vL16)}, {S(sWS, 4)}, {S(sPk + t)} offen sc1")
        self.va.free(self.vTr); self.vb.free(self.PK)
    def pack_wait(self):
        self.a.wait_vm(self.pktok); self.pkdone = self.curbar
    def l1(self, ks):
        assert self.usable(1)
        for T in range(3):
            q = self.W1(ks, T)
            assert not any((q + k) in self.va.used for k in range(4)), ("w1 registers in use", ks)
            self.a(f"buffer_load_dwordx4 {R(q, 4)}, {R(self.vW1 + T)}, {S(sWS, 4)}, {S(sOff + 4 + (ks >> 2))} offen offset:{(ks & 3) * 1024}{self.cfg.get('wflag', ' sc1')}")
        self.loaded.add((1, ks))
    def l2(self, i):
        assert "b4" in self.bars
        self.a(f"s_lshl2_add_u32 {S(sD0)}, {S(sKap + i)}, {S(sU0)}")
        for t in range(4):
            q = self.W2(i, t)
            assert not any((q + k) in self.va.used for k in range(4)), ("w2 registers in use", i, self.va.used.get(q))
            self.a(f"buffer_load_dwordx4 {R(q, 4)}, {R(self.vL16)}, {S(sWS, 4)}, {S(sD0)} offen offset:{t * 1024}{self.cfg.get('wflag', ' sc1')}")
        self.loaded.add((2, i))
    def usable(self, k):
        idx = lambda n: (self.bars + ["b5"]).index(n)
        last1 = "e1" if "e1" in self.bars else "b1"
        if idx(self.pkdone) <= idx(last1): return idx(self.curbar) > idx("b2")
        assert idx(self.pkdone) <= idx("e2" if "e2" in self.bars else "b3")
        return idx(self.curbar) > idx("b4")
    def bcut(self):
        if self.cfg.get("bnear", 1):
            self.a("s_branch L_contB"); self.bend = len(self.a.ins); self.a("L_contB:")
    def skew_pub(self, name):
        a = self.a; k = self.stamps.index(name)
        a(f"s_waitcnt lgkmcnt(0)\ns_lshl_b32 s4, s2, 7\ns_add_u32 s4, s4, {STAMP}\nv_mov_b32 {R(self.vT)}, {S(sStamp + 2 * k)}")
        a(f"buffer_store_dword {R(self.vT)}, off, {S(sWS, 4)}, s4 sc1")
    def vmwait(self, n): self.a(f"s_waitcnt vmcnt({n})")
    def plist(self, name):
        out = []
        for op, item in self.sched.get(name, []):
            out.append(lambda op=op, item=item: getattr(self, op)(*item))
        return out
    def fake(self, *items):
        for it in items: self.cleared.add(it)
        self.clrdone = set(self.cleared)
    def freeW(self): self.va.free(self.aW, self.aR)
    def mark(self, name): self.stamp(name)
    def sleep(self, n): self.a(f"s_sleep {n}")
    def drainvm(self, name):
        self.a.wait_vm_all(); self.stamp(name)
    def point(self, name): self.a.run(self.plist(name))
    def weave(self, mains, fills, f0=0.0, f1=1.0):
        a = self.a
        lst = []
        for op, item in mains: lst += a.capture(getattr(self, op), *item)
        glued = []
        for x in lst:
            if glued and isinstance(glued[-1], str) and glued[-1].split("\n")[-1].startswith("s_cmp"): glued[-1] += "\n" + x
            else: glued.append(x)
        self.sched["_w"] = fills
        a.run(spread(glued, (self.plist("_w"), int(f0 * len(glued)), int(f1 * len(glued)))))
    def prologue(self):
        a = self.a; va = self.va
        self.stamp("entry")
        a(f"s_load_dwordx2 {S(sX, 2)}, s[0:1], 0")
        a(f"s_load_dwordx2 {S(sWS, 2)}, s[0:1], 64")
        a(f"s_load_dwordx4 {S(sOff + 4, 4)}, s[0:1], 8")
        a(f"s_load_dwordx4 {S(sOff + 8, 4)}, s[0:1], 32")
        a(f"s_load_dwordx2 {S(sO, 2)}, s[0:1], 48")
        a(f"s_cmp_ge_u32 s2, 256\ns_cbranch_scc1 L_end")
        self.vT = va(1, "T"); self.vL16 = va(1, "l16"); self.vZero = va(1, "zero")
        self.vL = va(1, "lane"); self.vLi = va(1, "li"); self.vG = va(1, "g"); self.vPf = va(1, "pf"); self.vM1 = va(4, "m1")
        L, Li, G, T = self.vL, self.vLi, self.vG, self.vT
        a("s_getpc_b64 s[4:5]")
        a(f"s_lshr_b32 {S(sM)}, s2, 3\ns_and_b32 {S(sT0)}, {S(sM)}, 3\ns_lshl_b32 {S(sT0)}, {S(sT0)}, 13")
        a(f"v_lshrrev_b32 {R(T)}, 3, v0")
        a(f"v_lshl_add_u32 {R(T)}, {R(T)}, 7, {S(sT0)}")
        a(f"global_load_dword {R(self.vPf)}, {R(T)}, s[4:5]")
        a(f"v_lshrrev_b32 {R(T)}, 6, v0")
        a(f"v_and_b32 {R(Li)}, 15, v0")
        a(f"v_readfirstlane_b32 s3, {R(T)}")
        a(f"v_bfe_u32 {R(G)}, v0, 4, 2")
        a(f"s_and_b32 {S(sK1)}, s2, 7")
        a(f"s_cmp_ge_u32 s3, 4\ns_cbranch_scc1 L_roleB")
    def wsbase(self):
        if self.cfg.get("wsoff"): self.a(f"s_add_u32 {S(sWS)}, {S(sWS)}, {self.cfg['wsoff']}\ns_addc_u32 {S(sWS + 1)}, {S(sWS + 1)}, 0")
    def common(self):
        a = self.a; L = self.vL
        a(f"v_and_b32 {R(L)}, 63, v0")
        if self.role == "B": self.wsbase()
        if self.role == "B": a(f"s_mov_b32 {S(sWS + 2)}, {WS_SIZE}\ns_mov_b32 {S(sWS + 3)}, 0x20000")
        if self.stamps:
            a(f"s_mov_b32 {S(sRet)}, 0\ns_mov_b32 {S(sRet + 1)}, 0")
            for k in range(1, len(self.stamps)):
                if self.stamps[k] != ("u0" if self.bars else "karg"): a(f"s_mov_b32 {S(sStamp + 2 * k)}, 0")
        a(f"s_and_b32 {S(sW)}, s3, 3")
        a(f"s_lshl_b32 {S(sN)}, {S(sK1)}, 5\ns_or_b32 {S(sN)}, {S(sN)}, {S(sM)}")
        a(f"s_and_b32 {S(sMem)}, {S(sM)}, 7")
        a(f"s_lshr_b32 {S(sRot)}, {S(sM)}, 3\ns_mul_i32 {S(sRot)}, {S(sRot)}, {self.cfg.get('rot1', 4)}")
        if self.cfg.get("xrot1"): a(f"s_mul_i32 {S(sT0)}, {S(sK1)}, {self.cfg['xrot1']}\ns_xor_b32 {S(sRot)}, {S(sRot)}, {S(sT0)}\ns_and_b32 {S(sRot)}, {S(sRot)}, 12")
        a(f"v_mov_b32 {R(self.vZero)}, 0")
        a(f"v_lshlrev_b32 {R(self.vL16)}, 4, {R(L)}")
        if self.bars:
            for i in range(4): a(f"v_mov_b32 {R(self.vM1 + i)}, -1")
        a(f"s_lshl_b32 {S(sT0)}, {S(sN)}, 13\ns_lshl_b32 {S(sT1)}, {S(sW)}, 11\ns_add_u32 {S(sOwn)}, {S(sT0)}, {S(sT1)}")
    def srds(self, first=0):
        a = self.a
        for reg, src, n in ((sWR, sOff + 4, 2048 * 514), (sWI, sOff + 6, 2048 * 514))[first:]:
            a(f"s_mov_b64 {S(reg, 2)}, {S(src, 2)}\ns_mov_b32 {S(reg + 2)}, {n}\ns_mov_b32 {S(reg + 3)}, 0x20000")
    def prologue_a(self):
        a = self.a; va = self.va; Li, G = self.vLi, self.vG
        self.aHf = va(1, "aHf"); self.aRw = va(2, "aRw", 1); self.aHw = va(1, "aHw")
        self.aHd = va(1, "aHd")
        self.X = va(8, "X"); aX = va(1, "aX"); self.vEp = va(1, "ep")
        a(f"s_lshl_b32 {S(sS2)}, {S(sK1)}, 4\ns_and_b32 {S(sT0)}, {S(sM)}, 15\ns_or_b32 {S(sS2)}, {S(sS2)}, {S(sT0)}")
        a(f"s_and_b32 {S(sT0)}, s2, 0x80\ns_or_b32 {S(sS2)}, {S(sS2)}, {S(sT0)}")
        a(f"v_lshlrev_b32 {R(aX)}, 2, {R(Li)}")
        a(f"v_lshl_add_u32 {R(aX)}, {R(G)}, 8, {R(aX)}")
        a(f"s_lshl_b32 {S(sT0)}, s3, 19\ns_lshl_b32 {S(sT1)}, {S(sS2)}, 10")
        a(f"s_add_u32 {S(sOff)}, {S(sT0)}, {S(sT1)}\ns_add_u32 {S(sOff + 1)}, {S(sOff)}, 0x40000")
        a(f"s_mov_b32 {S(sX + 2)}, 0x200000\ns_mov_b32 {S(sX + 3)}, 0x20000")
        a(f"s_mov_b32 {S(sWS + 2)}, {WS_SIZE}\ns_mov_b32 {S(sWS + 3)}, 0x20000\ns_mov_b32 {S(sT2)}, {EPO}")
        if self.cfg.get("prio", (1, 0, 2))[0]: a("s_setprio %d" % self.cfg.get("prio", (1, 0, 2))[0])
        self.point("pre_karg")
        a("s_waitcnt lgkmcnt(0)")
        self.stamp("karg")
        for rho in range(2):
            for r in range(4):
                a(f"buffer_load_dword {R(self.X + 4 * rho + r)}, {R(aX)}, {S(sX, 4)}, {S(sOff + rho)} offen offset:{64 * r}")
        self.wsbase()
        a(f"buffer_load_dword {R(self.vEp)}, off, {S(sWS, 4)}, {S(sT2)} sc1")
        va.free(aX)
        if self.cfg.get("bnear", 1):
            a("s_branch L_contA"); self.splice = len(a.ins); a("L_contA:")
        self.common()
        a(f"s_mul_i32 {S(sStg)}, {S(sW)}, {ARW}\ns_add_u32 {S(sStg)}, {S(sStg)}, {AR}")
        a(f"s_mov_b32 {S(sOnes)}, 0x3f803f80\ns_mov_b32 {S(sMask)}, 0x00030003")
        a(f"v_add_u32 {R(self.aHf)}, {S(sStg)}, {R(self.vL16)}")
        a(f"v_mov_b32 {R(self.vT)}, {S(sStg)}")
        a(f"ds_write_b32 {R(self.vT)}, {R(self.vZero)} offset:15360")
    def clear(self, base, i):
        a = self.a
        a(f"s_add_u32 {S(sU0)}, {S(sOwn)}, {base + 1024 * i}")
        t = a(f"buffer_store_dwordx4 {R(self.vM1, 4)}, {R(self.vL16)}, {S(sWS, 4)}, {S(sU0)} offen sc1")
        self.tokclr = self.tokhn = t
        self.cleared.add((base, i))
    def preclr(self, n):
        a = self.a
        a(f"s_mov_b32 {S(sWS + 2)}, {WS_SIZE}\ns_mov_b32 {S(sWS + 3)}, 0x20000\ns_lshl_b32 s4, s2, 2\ns_or_b32 s4, s4, {S(sW)}\ns_lshl_b32 s4, s4, 12\ns_or_b32 s4, s4, {HB}")
        a(f"v_lshlrev_b32 {R(self.vL16)}, 4, {R(self.vL)}")
        for i in range(4): a(f"v_mov_b32 {R(self.vM1 + i)}, -1")
        au = a.auto; a.auto = False
        for i in range(n): a(f"buffer_store_dwordx4 {R(self.vM1, 4)}, {R(self.vL16)}, {S(sWS, 4)}, s4 offen offset:{1024 * i} sc1")
        a.auto = au
    def clear_H(self, i):
        a = self.a
        a(f"s_add_u32 {S(sU0)}, {S(sHb)}, {HB + 1024 * i}")
        if i == 5: a("s_mov_b32 exec_hi, 0")
        self.tokclr = a(f"buffer_store_dwordx4 {R(self.vM1, 4)}, {R(self.vL16)}, {S(sWS, 4)}, {S(sU0)} offen sc1")
        if i == 5: a("s_mov_b32 exec_hi, -1")
        self.cleared.add((HB, i))
    def w_addr(self):
        a = self.a; va = self.va; L, T = self.vL, self.vT
        k = va(1, "k"); u = va(1, "u"); self.aW = va(1, "aW"); self.aR = va(1, "aR")
        if self.role == "A": self.srds()
        a(f"s_lshl_b32 {S(sT0)}, {S(sW)}, 5\ns_and_b32 {S(sT1)}, s2, 15\ns_add_u32 {S(sT0)}, {S(sT0)}, {S(sT1)}")
        a(f"v_and_b32 {R(k)}, 0x19, {R(L)}")
        a(f"v_lshl_add_u32 {R(k)}, {R(k)}, 4, {S(sT0)}")
        a(f"v_and_b32 {R(T)}, 6, {R(L)}")
        a(f"v_lshl_add_u32 {R(k)}, {R(T)}, 8, {R(k)}")
        a(f"v_cmp_gt_u32 vcc, 32, {R(L)}")
        a(f"s_lshr_b32 {S(sT0)}, {S(sM)}, 1\ns_lshl_b32 {S(sT0)}, {S(sT0)}, 4\ns_sub_u32 {S(sT1)}, 498, {S(sT0)}")
        a(f"v_sub_u32 {R(u)}, 0, {R(k)}")
        a(f"v_and_b32 {R(u)}, 2047, {R(u)}")
        a(f"v_mul_u32_u24 {R(k)}, 514, {R(k)}")
        a(f"v_mul_u32_u24 {R(u)}, 514, {R(u)}")
        a(f"v_add_u32 {R(T)}, {S(sT0)}, {R(k)}")
        a(f"v_add_u32 {R(u)}, {S(sT1)}, {R(u)}")
        a(f"v_cndmask_b32 {R(self.aW)}, {R(u)}, {R(T)}, vcc")
        a(f"v_cndmask_b32 {R(self.aR)}, 2.0, {R(k)}, vcc")
        va.free(k, u)
        a(f"s_cmp_ge_u32 {S(sM)}, 2\ns_cselect_b32 {S(sOff + 9)}, 2.0, 0")
        self.WL = self.vb(10, "WL")
    def w_load(self, x):
        self.a(f"buffer_load_dwordx4 {R(self.WL + 4 * x, 4)}, {R(self.aW)}, {S((sWR, sWI)[x], 4)}, 0 offen")
    def w_spec(self):
        for x in range(2): self.a(f"buffer_load_ushort {R(self.WL + 8 + x)}, {R(self.aR)}, {S((sWR, sWI)[x], 4)}, {S(sOff + 9)} offen offset:256")
    def w_stage(self):
        a = self.a; va = self.va; L, Li, G, T = self.vL, self.vLi, self.vG, self.vT
        self.Wraw = self.vb(16, "Wraw")
        aw = va(1, "aw"); aP = va(1, "aP"); aQ = va(1, "aQ")
        a(f"s_add_u32 {S(sT0)}, {S(sStg)}, 4096")
        a(f"v_add_u32 {R(aw)}, {S(sT0)}, {R(self.vL16)}")
        a(f"v_and_b32 {R(T)}, 1, {R(Li)}")
        a(f"v_lshl_add_u32 {R(T)}, {R(G)}, 1, {R(T)}")
        a(f"v_lshl_add_u32 {R(T)}, {R(T)}, 4, {S(sT0)}")
        a(f"v_and_or_b32 {R(aP)}, {R(Li)}, 14, {R(T)}")
        a(f"v_xor_b32 {R(aQ)}, 14, {R(aP)}")
        for i in range(16): a(f"v_mov_b32 {R(self.Wraw + i)}, 0")
        for x in range(2): a(f"ds_write_b128 {R(aw)}, {R(self.WL + 4 * x, 4)} offset:{1024 * x}")
        Ls = a.label("nor")
        a(f"v_mov_b32 {R(self.WL + 9)}, {R(self.WL + 9)}")
        a(f"s_cmp_ge_u32 {S(sM)}, 2\ns_cbranch_scc1 {Ls}")
        a.auto = False
        a("s_mov_b32 exec_hi, 0")
        for x in range(2): a(f"ds_write_b16 {R(aw)}, {R(self.WL + 8 + x)} offset:{1024 * x}")
        a("s_mov_b32 exec_hi, -1")
        a.auto = True
        a(Ls + ":")
        for r in range(4):
            for x in range(2):
                a(f"ds_read_u16_d16_hi {R(self.Wraw + 4 * x + r)}, {R(aP)} offset:{1024 * x + 128 * r}")
                a(f"ds_read_u16_d16_hi {R(self.Wraw + 8 + 4 * x + r)}, {R(aQ)} offset:{1024 * x + 128 * r + 512}")
        self.vb.free(self.WL); va.free(aw, aP, aQ, self.aW, self.aR)
    def w_coefs(self):
        a = self.a; va = self.va; T = self.vT; W = self.Wraw
        sc = 2.0 ** -19 * 1.0039
        K = va(4, "K")
        al, be, c, s = (K + i for i in range(4))
        a(f"s_lshr_b32 {S(sT0)}, {S(sM)}, 1\ns_lshl_b32 {S(sT0)}, {S(sT0)}, 4")
        a(f"v_and_or_b32 {R(T)}, {R(self.vLi)}, 14, {S(sT0)}")
        a(f"v_cmp_ne_u32 vcc, 0, {R(T)}")
        a(f"v_mov_b32 {R(al)}, {fl(0.25)}")
        a(f"v_cvt_f32_u32 {R(T)}, {R(T)}")
        a(f"v_mul_f32 {R(T)}, {fl(1 / 1024)}, {R(T)}")
        a(f"v_cndmask_b32 {R(T)}, {R(al)}, {R(T)}, vcc")
        self.sincos(c, s, T)
        a(f"v_mul_f32 {R(c)}, {fl(sc / 2)}, {R(c)}")
        a(f"v_mul_f32 {R(s)}, {fl(sc / 2)}, {R(s)}")
        a(f"v_cndmask_b32 {R(c)}, 0, {R(c)}, vcc")
        a(f"v_sub_f32 {R(al)}, {fl(sc / 2)}, {R(s)}")
        a(f"v_add_f32 {R(be)}, {fl(sc / 2)}, {R(s)}")
        self.CF = self.vb(24, "CF")
        A1r, A1i, Br, Bi, A2r, A2i = (self.CF + 4 * i for i in range(6))
        Pr, Pi, Qr, Qi = (W + 4 * i for i in range(4))
        lo2 = " op_sel_hi:[1,0]"; hi2 = " op_sel:[0,1] op_sel_hi:[1,1]"
        lo3 = " op_sel_hi:[1,0,1]"; hi3 = " op_sel:[0,1,0] op_sel_hi:[1,1,1]"
        n2 = " neg_lo:[0,1] neg_hi:[0,1]"; n3 = " neg_lo:[0,1,0] neg_hi:[0,1,0]"
        P = lambda x: R(x, 2)
        for k in (0, 2):
            a(f"v_pk_mul_f32 {P(A1r + k)}, {P(Pr + k)}, {P(al)}" + lo2)
            a(f"v_pk_mul_f32 {P(A2r + k)}, {P(Pr + k)}, {P(al)}" + hi2)
            a(f"v_pk_add_f32 {P(Bi + k)}, {P(Pr + k)}, {P(Qr + k)}" + n2)
            a(f"v_pk_mul_f32 {P(A1i + k)}, {P(Pi + k)}, {P(al)}" + lo2)
            a(f"v_pk_mul_f32 {P(A2i + k)}, {P(Pi + k)}, {P(al)}" + hi2)
            a(f"v_pk_add_f32 {P(Br + k)}, {P(Pi + k)}, {P(Qi + k)}")
            a(f"v_pk_fma_f32 {P(A1r + k)}, {P(Qr + k)}, {P(al)}, {P(A1r + k)}" + hi3)
            a(f"v_pk_fma_f32 {P(A2r + k)}, {P(Qr + k)}, {P(al)}, {P(A2r + k)}" + lo3)
            a(f"v_pk_mul_f32 {P(Bi + k)}, {P(Bi + k)}, {P(c)}" + lo2)
            a(f"v_pk_fma_f32 {P(A1i + k)}, {P(Qi + k)}, {P(al)}, {P(A1i + k)}" + hi3 + n3)
            a(f"v_pk_fma_f32 {P(A2i + k)}, {P(Qi + k)}, {P(al)}, {P(A2i + k)}" + lo3 + n3)
            a(f"v_pk_mul_f32 {P(Br + k)}, {P(Br + k)}, {P(c)}" + lo2 + n2)
        if self.role == "A":
            self.cf_own = True; va.free(K); self.vb.free(W); return
        a(f"s_mul_i32 {S(sT0)}, {S(sW)}, {ARW}\ns_add_u32 {S(sT0)}, {S(sT0)}, {AR + 4096}")
        a(f"v_add_u32 {R(T)}, {S(sT0)}, {R(self.vL16)}")
        for i in range(6): a(f"ds_write_b128 {R(T)}, {R(self.CF + 4 * i, 4)} offset:{1024 * i}")
        a.wait_lg_all()
        self.cf_sent = True
        va.free(K); self.vb.free(W, self.CF)
    def tables_p1(self):
        a = self.a; va = self.va; Li, G, T = self.vLi, self.vG, self.vT
        self.M = va(8, "M"); self.M2 = va(8, "M2"); self.TW = va(8, "TW"); self.Gm = va(8, "G")
        p = va(1, "p"); c = va(1, "c"); s = va(1, "s"); u = va(1, "u"); f = va(1, "f")
        a(f"v_mul_u32_u24 {R(p)}, {R(Li)}, {R(G)}")
        a(f"v_cvt_f32_u32 {R(f)}, {R(Li)}")
        a(f"v_cvt_f32_u32 {R(p)}, {R(p)}")
        a(f"v_mul_f32 {R(p)}, {fl(1 / 64)}, {R(p)}")
        for r in range(4):
            if r: a(f"v_fmamk_f32 {R(p)}, {R(f)}, {fl(1 / 256)}, {R(p)}")
            a(f"v_mul_f32 {R(T)}, {fl(16.0)}, {R(p)}")
            a(f"v_fract_f32 {R(T)}, {R(T)}")
            self.sincos(c, s, T)
            self.sincos(self.TW + r, self.TW + 4 + r, p)
            a(f"v_cvt_pk_bf16_f32 {R(self.M + r)}, {R(c)}, {R(s)}")
            a(f"v_cvt_pk_bf16_f32 {R(self.M + 4 + r)}, -{R(s)}, {R(c)}")
            a(f"v_cvt_pk_f16_f32 {R(self.M2 + r)}, {R(c)}, {R(s)}")
            a(f"v_cvt_pk_f16_f32 {R(self.M2 + 4 + r)}, -{R(s)}, {R(c)}")
        msk = va(1, "msk"); sg = va(1, "sg")
        a(f"v_lshrrev_b32 {R(u)}, 1, {R(Li)}")
        a(f"v_and_b32 {R(p)}, 1, {R(G)}")
        a(f"v_lshl_add_u32 {R(p)}, {R(p)}, 10, {S(sS2)}")
        a(f"v_mul_u32_u24 {R(p)}, {R(p)}, {R(u)}")
        a(f"v_cvt_f32_u32 {R(f)}, {R(u)}")
        a(f"v_cvt_f32_u32 {R(p)}, {R(p)}")
        a(f"v_lshrrev_b32 {R(msk)}, 1, {R(G)}")
        a(f"v_mul_f32 {R(p)}, {fl(1 / 2048)}, {R(p)}")
        a(f"v_xor_b32 {R(msk)}, {R(msk)}, {R(Li)}")
        a(f"v_and_b32 {R(msk)}, 1, {R(msk)}")
        a(f"v_add_u32 {R(msk)}, -1, {R(msk)}")
        a(f"v_lshlrev_b32 {R(sg)}, 31, {R(Li)}")
        for r in range(4):
            if r: a(f"v_fmamk_f32 {R(p)}, {R(f)}, {fl(1 / 8)}, {R(p)}")
            self.sincos(c, s, p)
            a(f"v_cvt_pk_f16_f32 {R(self.Gm + r)}, {R(c)}, {R(s)}")
            a(f"v_cvt_pk_f16_f32 {R(self.Gm + 4 + r)}, -{R(s)}, {R(c)}")
            for q in (self.Gm + r, self.Gm + 4 + r):
                a(f"v_bitop3_b32 {R(q)}, {R(q)}, {R(sg)}, {R(msk)} bitop3:0x28")
        self.vMsk = msk
        va.free(sg, p, s, f)
        self.aE1w = va(1, "aE1w"); self.aE1r = va(2, "aE1r", 1); self.aZ1 = va(1, "aZ1"); self.v16 = va(1, "m16")
        a(f"s_lshr_b32 {S(sT0)}, {S(sW)}, 1\ns_lshl_b32 {S(sT0)}, {S(sT0)}, 12\ns_and_b32 {S(sT1)}, {S(sW)}, 1\ns_lshl_b32 {S(sT1)}, {S(sT1)}, 3")
        a(f"s_add_u32 {S(sT0)}, {S(sT0)}, {S(sT1)}\ns_add_u32 {S(sT0)}, {S(sT0)}, {EA}")
        a(f"v_lshl_add_u32 {R(self.aE1w)}, {R(Li)}, 4, {S(sT0)}")
        a(f"v_lshl_add_u32 {R(self.aE1w)}, {R(G)}, 10, {R(self.aE1w)}")
        hh = va(1, "hh")
        a(f"v_and_b32 {R(hh)}, 1, {R(G)}")
        a(f"v_lshlrev_b32 {R(u)}, 18, {R(u)}")
        a(f"v_lshl_add_u32 {R(u)}, {R(hh)}, 4, {R(u)}")
        a(f"v_and_b32 {R(T)}, 2, {R(G)}")
        a(f"v_and_or_b32 {R(T)}, {R(Li)}, 1, {R(T)}")
        a(f"v_lshl_add_u32 {R(self.aZ1)}, {R(T)}, 5, {R(u)}")
        a(f"s_movk_i32 {S(sT1)}, {EA // 16}")
        a(f"v_lshl_add_u32 {R(hh)}, {R(hh)}, 8, {S(sT1)}")
        a(f"s_lshl_b32 {S(sT0)}, {S(sW)}, 5")
        q = self.aE1r
        a(f"v_add_u32 {R(q)}, {S(sT0)}, {R(Li)}")
        a(f"v_cmp_eq_u32 vcc, 0, {R(q)}")
        a(f"v_cmp_lt_u32 s[4:5], 1, {R(G)}")
        a(f"v_sub_u32 {R(c)}, 256, {R(q)}")
        a(f"v_add_u32 {R(q + 1)}, 16, {R(q)}")
        a(f"v_add_u32 {R(u)}, -16, {R(c)}")
        a(f"v_mov_b32 {R(T)}, 128")
        a(f"v_cndmask_b32 {R(c)}, {R(c)}, {R(T)}, vcc")
        a(f"v_cndmask_b32 {R(q)}, {R(q)}, {R(c)}, s[4:5]")
        a(f"v_cndmask_b32 {R(q + 1)}, {R(q + 1)}, {R(u)}, s[4:5]")
        a(f"v_cmp_eq_u32 vcc, 0, {R(Li)}")
        a(f"v_add_lshl_u32 {R(q)}, {R(q)}, {R(hh)}, 4")
        a(f"v_add_lshl_u32 {R(q + 1)}, {R(q + 1)}, {R(hh)}, 4")
        a(f"v_mov_b32 {R(T)}, {fl(16.0)}")
        a(f"v_cndmask_b32 {R(self.v16)}, 0, {R(T)}, vcc")
        va.free(c, hh, u)
        self.ST = va(8, "ST"); self.vMu = va(1, "mu")
        for i in range(4): a(f"v_mov_b32 {R(self.ST + i)}, 0")
        a(f"s_lshl_b32 {S(sT0)}, {S(sW)}, 16\ns_lshl_b32 {S(sT1)}, s2, 7\ns_add_u32 {S(sOff + 2)}, {S(sT0)}, {S(sT1)}\ns_add_u32 {S(sOff + 3)}, {S(sOff + 2)}, 32768")
    def tags(self):
        a = self.a; va = self.va; Li, G = self.vLi, self.vG
        self.TG = va(4, "TG", 1); self.TG2 = va(1, "TG2"); u = self.vEp; T = self.vPf
        a(f"v_readfirstlane_b32 {S(sEp)}, {R(self.vEp)}")
        a(f"v_and_b32 {R(u)}, 1, {R(G)}")
        a(f"v_lshlrev_b32 {R(u)}, 4, {R(u)}")
        a(f"s_add_u32 {S(sT2)}, {S(sEp)}, 1\ns_and_b32 {S(sT2)}, {S(sT2)}, 15")
        a(f"s_and_b32 {S(sEp)}, {S(sEp)}, 0xfffffff0")
        a(f"s_and_b32 {S(sCnt)}, {S(sEp)}, 0xfefefef0\ns_or_b32 {S(sCnt)}, {S(sCnt)}, 0x10101010")
        a(f"s_or_b32 {S(sEp)}, {S(sEp)}, {S(sT2)}")
        a(f"s_mul_i32 {S(sT2)}, {S(sT2)}, 0x01010101")
        a(f"s_and_b32 {S(sU0)}, {S(sCnt)}, 0x0f0f0f0f\ns_add_u32 {S(sU0)}, {S(sU0)}, {S(sT2)}\ns_and_b32 {S(sU0)}, {S(sU0)}, 0x0f0f0f0f")
        a(f"s_lshr_b32 {S(sCnt)}, {S(sCnt)}, 4\ns_and_b32 {S(sCnt)}, {S(sCnt)}, 0x0f0f0f0f\ns_add_u32 {S(sCnt)}, {S(sCnt)}, {S(sT2)}\ns_and_b32 {S(sCnt)}, {S(sCnt)}, 0x0f0f0f0f")
        a(f"s_lshl_b32 {S(sCnt)}, {S(sCnt)}, 4\ns_or_b32 {S(sTag)}, {S(sCnt)}, {S(sU0)}")
        a(f"v_bfe_u32 {R(u)}, {S(sTag)}, {R(u)}, 16")
        a(f"v_and_b32 {R(T)}, 7, {R(Li)}")
        a(f"v_lshlrev_b32 {R(T)}, 2, {R(T)}")
        a(f"v_lshl_or_b32 {R(self.TG)}, {R(u)}, 14, {R(u)}")
        a(f"v_bfe_u32 {R(T)}, {S(sTag)}, {R(T)}, 4")
        for r in range(1, 4): a(f"v_lshrrev_b32 {R(self.TG + r)}, {4 * r}, {R(self.TG)}")
        a(f"v_lshl_or_b32 {R(T)}, {R(T)}, 14, {R(T)}")
        a(f"v_and_b32 {R(self.TG2)}, {S(sMask)}, {R(T)}")
        self.later_free = [self.vEp, self.vPf]
    def p1(self):
        a = self.a; va = self.va; X = self.X; M = self.M; M2 = self.M2; ST = self.ST
        D = va(16, "D"); E = va(16, "E"); cs = va(8, "cs")
        for rho in range(2):
            for ri in range(2):
                a(f"v_mfma_f32_16x16x32_bf16 {R(D + 8 * rho + 4 * ri, 4)}, {R(X + 4 * rho, 4)}, {R(M + 4 * ri, 4)}, 0")
        self.stamp("x_in")
        st = a.capture(self.stats, X, ST, 1.0, self.v16)
        tg = a.capture(self.tags)
        a.run(spread(st, (tg, 16, len(st)), (self.plist("p1_a"), 16, len(st))))
        va.free(*self.later_free)
        for rho in range(2):
            for k in range(0, 8, 2):
                a(f"v_pk_mul_f32 {R(cs + k, 2)}, {R(self.TW + k, 2)}, {R(ST + 2 * rho, 2)} op_sel_hi:[1,0]")
            self.cmul(E + 8 * rho, E + 8 * rho + 4, D + 8 * rho, D + 8 * rho + 4, cs, cs + 4, False, addend=ST + 4 + 2 * rho)
            for r in range(4):
                a(f"v_cvt_pk_f16_f32 {R(X + 4 * rho + r)}, {R(E + 8 * rho + r)}, {R(E + 8 * rho + 4 + r)}")
            for ri in range(2):
                a(f"v_mfma_f32_16x16x32_f16 {R(D + 8 * rho + 4 * ri, 4)}, {R(M2 + 4 * ri, 4)}, {R(X + 4 * rho, 4)}, 0")
        for r in range(4): a(f"v_cvt_pk_f16_f32 {R(E + 2 * r)}, {R(D + r)}, {R(D + 4 + r)}")
        for r in range(4):
            a(f"v_cvt_pk_f16_f32 {R(E + 2 * r + 1)}, {R(D + 8 + r)}, {R(D + 12 + r)}")
            a(f"ds_write_b64 {R(self.aE1w)}, {R(E + 2 * r, 2)} offset:{256 * r}")
        a.wait_lg_all(); self.bar("b1")
        for t in range(2):
            a(f"ds_read_b128 {R(X + 4 * t, 4)}, {R(self.aE1r + t)}")
        for t in range(2):
            for ri in range(2):
                a(f"v_mfma_f32_16x16x32_f16 {R(D + 8 * t + 4 * ri, 4)}, {R(X + 4 * t, 4)}, {R(self.Gm + 4 * ri, 4)}, 0")
        self.point("p1_e")
        for t in range(2):
            for r in range(4):
                a(f"v_cvt_pk_f16_f32 {R(E + 4 * t + r)}, {R(D + 8 * t + r)}, {R(D + 8 * t + 4 + r)}")
            for r in range(4):
                a(f"v_bfi_b32 {R(E + 4 * t + r)}, {S(sMask)}, {R(self.TG + r)}, {R(E + 4 * t + r)}")
            a(f"buffer_store_dwordx4 {R(E + 4 * t, 4)}, {R(self.aZ1)}, {S(sWS, 4)}, {S(sOff + 2 + t)} offen sc1")
        self.stamp("z1_st")
        va.free(D, E, cs, X, self.Gm, self.aE1w, self.aE1r, self.aZ1, self.v16, self.TG)
    def tables_p2a(self):
        a = self.a; va = self.va; Li, G, T = self.vLi, self.vG, self.vT
        self.M1 = self.vb(16, "M1")
        ka = va(1, "ka"); f0 = va(1, "f0"); c = va(2, "c", 1); s = va(2, "s", 1)
        a(f"s_and_b32 {S(sT0)}, {S(sM)}, 1\ns_lshl_b32 {S(sT1)}, {S(sW)}, 2")
        a(f"v_and_or_b32 {R(ka)}, {R(Li)}, 14, {S(sT0)}")
        a(f"v_lshl_add_u32 {R(f0)}, {R(G)}, 6, {S(sT1)}")
        a(f"v_and_b32 {R(T)}, 1, {R(Li)}")
        a(f"v_lshlrev_b32 {R(T)}, 6, {R(T)}")
        a(f"v_mad_u32_u24 {R(f0)}, {R(f0)}, {R(ka)}, {R(T)}")
        a(f"v_and_b32 {R(f0)}, 255, {R(f0)}")
        a(f"v_cvt_f32_u32 {R(ka)}, {R(ka)}")
        a(f"v_cvt_f32_u32 {R(f0)}, {R(f0)}")
        a(f"v_mul_f32 {R(f0)}, {fl(1 / 256)}, {R(f0)}")
        for n in range(17):
            if n < 16:
                be, r = n >> 2, n & 3
                if n: a(f"v_fmamk_f32 {R(T)}, {R(ka)}, {fl(be / 256 + r / 16)}, {R(f0)}")
                self.sincos(c + (n & 1), s + (n & 1), T if n else f0)
            if n: a(f"v_cvt_pk_f16_f32 {R(self.M1 + n - 1)}, {R(c + ((n - 1) & 1))}, {R(s + ((n - 1) & 1))}")
        va.free(ka, f0, c, s)
    def tables_p2b(self):
        a = self.a; va = self.va; Li, G, T = self.vLi, self.vG, self.vT
        self.M5 = self.vb(16, "M5")
        b = va(1, "b"); st = va(1, "st"); f0 = va(1, "f0"); c = va(1, "c"); s = va(1, "s"); ih = va(1, "ih")
        a(f"s_and_b32 {S(sT0)}, {S(sM)}, 1\ns_lshl_b32 {S(sT1)}, {S(sW)}, 2")
        a(f"v_and_or_b32 {R(b)}, {R(Li)}, 1, {S(sT1)}")
        a(f"v_and_b32 {R(ih)}, 1, {R(G)}")
        a(f"v_lshlrev_b32 {R(ih)}, 2, {R(ih)}")
        for t in range(2):
            if t: a(f"v_add_u32 {R(b)}, 2, {R(b)}")
            a(f"v_and_b32 {R(st)}, 14, {R(Li)}")
            a(f"v_lshl_add_u32 {R(st)}, {R(st)}, 3, {R(b)}")
            a(f"v_lshlrev_b32 {R(st)}, 1, {R(st)}")
            a(f"v_mul_u32_u24 {R(f0)}, {S(sT0)}, {R(b)}")
            a(f"v_mad_u32_u24 {R(f0)}, {R(ih)}, {R(st)}, {R(f0)}")
            a(f"v_cvt_f32_u32 {R(st)}, {R(st)}")
            a(f"v_cvt_f32_u32 {R(f0)}, {R(f0)}")
            a(f"v_mul_f32 {R(f0)}, {fl(1 / 256)}, {R(f0)}")
            for r in range(4):
                if r: a(f"v_fmamk_f32 {R(f0)}, {R(st)}, {fl(1 / 256)}, {R(f0)}")
                self.sincos(c, s, f0)
                a(f"v_and_b32 {R(c)}, {R(self.vMsk)}, {R(c)}")
                a(f"v_and_b32 {R(s)}, {R(self.vMsk)}, {R(s)}")
                a(f"v_cvt_pk_bf16_f32 {R(self.M5 + 8 * t + r)}, {R(c)}, -{R(s)}")
                a(f"v_cvt_pk_bf16_f32 {R(self.M5 + 8 * t + 4 + r)}, {R(s)}, {R(c)}")
        va.free(b, st, f0, c, s, ih, self.vMsk)
    def addr_g1(self):
        a = self.a; va = self.va; Li, G, T = self.vLi, self.vG, self.vT
        self.aG1 = va(1, "aG1"); self.aG2 = va(1, "aG2")
        a(f"v_lshlrev_b32 {R(T)}, 2, {R(Li)}")
        a(f"v_lshl_add_u32 {R(self.aG2)}, {R(G)}, 9, {R(T)}")
        a(f"v_lshrrev_b32 {R(T)}, 1, {R(G)}")
        a(f"v_mul_u32_u24 {R(T)}, {16384 - 1024}, {R(T)}")
        a(f"v_add_u32 {R(self.aG1)}, {R(T)}, {R(self.aG2)}")
        a(f"s_lshr_b32 {S(sT0)}, {S(sN)}, 2\ns_lshl_b32 {S(sT0)}, {S(sT0)}, 15\ns_lshl_b32 {S(sT1)}, {S(sW)}, 12\ns_add_u32 {S(sT0)}, {S(sT0)}, {S(sT1)}")
        a(f"s_and_b32 {S(sT1)}, {S(sM)}, 2\ns_lshl_b32 {S(sT1)}, {S(sT1)}, 5\ns_add_u32 {S(sOff + 4)}, {S(sT0)}, {S(sT1)}")
    def addr_p2(self):
        a = self.a; va = self.va; Li, G, T = self.vLi, self.vG, self.vT
        self.aE2w = va(1, "aE2w"); self.aE2r = va(1, "aE2r"); self.aE3w = va(1, "aE3w"); self.aE3r = va(1, "aE3r"); self.aZ2 = va(1, "aZ2")
        p = va(1, "p"); h = va(1, "h"); o = va(1, "o")
        a(f"v_lshrrev_b32 {R(h)}, 1, {R(Li)}")
        a(f"v_and_b32 {R(o)}, 1, {R(Li)}")
        a(f"s_lshl_b32 {S(sT0)}, {S(sW)}, 11\ns_add_u32 {S(sT0)}, {S(sT0)}, {EB}")
        a(f"v_and_b32 {R(T)}, 8, {R(Li)}")
        a(f"v_add_lshl_u32 {R(p)}, {R(T)}, {R(Li)}, 4")
        a(f"v_lshl_add_u32 {R(p)}, {R(G)}, 9, {R(p)}")
        a(f"v_add_u32 {R(self.aE2w)}, {S(sT0)}, {R(p)}")
        a(f"s_lshl_b32 {S(sT0)}, {S(sW)}, 9\ns_add_u32 {S(sT0)}, {S(sT0)}, {EB}")
        a(f"v_lshl_add_u32 {R(p)}, {R(G)}, 11, {S(sT0)}")
        a(f"v_lshl_add_u32 {R(p)}, {R(o)}, 7, {R(p)}")
        a(f"v_lshl_add_u32 {R(self.aE2r)}, {R(h)}, 4, {R(p)}")
        a(f"s_lshr_b32 {S(sT0)}, {S(sW)}, 1\ns_lshl_b32 {S(sT0)}, {S(sT0)}, 8\ns_and_b32 {S(sT1)}, {S(sW)}, 1\ns_lshl_b32 {S(sT1)}, {S(sT1)}, 3")
        a(f"s_add_u32 {S(sT0)}, {S(sT0)}, {S(sT1)}\ns_add_u32 {S(sT0)}, {S(sT0)}, {EA}")
        a(f"v_mul_u32_u24 {R(p)}, 528, {R(Li)}")
        a(f"v_lshl_add_u32 {R(p)}, {R(G)}, 5, {R(p)}")
        a(f"v_add_u32 {R(self.aE3w)}, {S(sT0)}, {R(p)}")
        a(f"s_mul_i32 {S(sT0)}, {S(sW)}, {4 * 528}\ns_add_u32 {S(sT0)}, {S(sT0)}, {EA}")
        a(f"v_lshrrev_b32 {R(T)}, 1, {R(G)}")
        a(f"v_lshl_add_u32 {R(p)}, {R(T)}, 4, {S(sT0)}")
        a(f"v_add_u32 {R(self.aE3r)}, {R(self.vL16)}, {R(p)}")
        a(f"v_lshlrev_b32 {R(p)}, 18, {R(h)}")
        a(f"v_lshl_add_u32 {R(p)}, {R(o)}, 6, {R(p)}")
        a(f"v_lshl_add_u32 {R(self.aZ2)}, {R(G)}, 4, {R(p)}")
        self.TG3 = va(4, "TG3", 1); self.TG4 = va(1, "TG4")
        a(f"v_lshlrev_b32 {R(p)}, 3, {R(G)}")
        a(f"v_bfe_u32 {R(p)}, {S(sTag)}, {R(p)}, 8")
        a(f"v_lshl_or_b32 {R(self.TG3)}, {R(p)}, 15, {R(p)}")
        for r in range(1, 4): a(f"v_lshrrev_b32 {R(self.TG3 + r)}, {2 * r}, {R(self.TG3)}")
        a(f"v_lshlrev_b32 {R(p)}, 1, {R(Li)}")
        a(f"v_bfe_u32 {R(p)}, {S(sTag)}, {R(p)}, 2")
        a(f"v_lshl_or_b32 {R(p)}, {R(p)}, 15, {R(p)}")
        a(f"v_and_b32 {R(self.TG4)}, 0x10001, {R(p)}")
        va.free(p, h, o)
        a(f"s_lshl_b32 {S(sT0)}, {S(sW)}, 16\ns_lshl_b32 {S(sT1)}, s2, 7\ns_add_u32 {S(sT0)}, {S(sT0)}, {S(sT1)}")
        a(f"s_add_u32 {S(sOff + 6)}, {S(sT0)}, {Z2}\ns_add_u32 {S(sOff + 7)}, {S(sT0)}, {Z2 + 32768}")
        a(f"s_or_b32 {S(sT0)}, s2, {S(sW)}\ns_cmp_lg_u32 {S(sT0)}, 0\ns_cselect_b32 {S(sOff + 8)}, 2.0, {EPO}")
    def prewrite(self, which):
        a = self.a; E = self.va(4, "pre")
        tg = self.TG if which == 1 else self.TG3
        for r in range(4): a(f"v_not_b32 {R(E + r)}, {R(tg + r)}")
        for t in range(2): a(f"buffer_store_dwordx4 {R(E, 4)}, {R(self.aZ1 if which == 1 else self.aZ2)}, {S(sWS, 4)}, {S(sOff + (2 if which == 1 else 6) + t)} offen sc1")
        self.va.free(E)
    def p2_gather(self):
        a = self.a; va = self.va
        self.Y = va(16, "Y")
        self.g1 = [f"buffer_load_dword {R(self.Y + 4 * be + r)}, {R(self.aG1)}, {S(sWS, 4)}, {S(sOff + 4)} offen offset:{1024 * be + 128 * r} sc1"
                   for be in range(4) for r in range(4)]
        self.stamp("g1")
        for l in self.g1: a(l)
    def p2(self):
        a = self.a; va = self.va; Y = self.Y; M = self.M; M2 = self.M2; T = self.vT
        D = va(16, "D"); E = va(16, "E")
        def chk():
            for be in range(4):
                for i in range(4 * be, 4 * be + 4): a(f"v_xor_b32 {R(Y + i)}, {R(self.TG2)}, {R(Y + i)}")
                if be == 0: a(f"v_or_b32 {R(T)}, {R(Y)}, {R(Y + 1)}")
                else: a(f"v_or3_b32 {R(T)}, {R(T)}, {R(Y + 4 * be)}, {R(Y + 4 * be + 1)}")
                a(f"v_or3_b32 {R(T)}, {R(T)}, {R(Y + 4 * be + 2)}, {R(Y + 4 * be + 3)}")
                a(f"v_mfma_f32_16x16x32_f16 {R(D + 4 * be, 4)}, {R(self.M1 + 4 * be, 4)}, {R(Y + 4 * be, 4)}, 0")
            a(f"v_and_b32 {R(T)}, {S(sMask)}, {R(T)}")
            a(f"v_cmp_ne_u32 vcc, 0, {R(T)}")
        self.poll("z1", self.g1, chk)
        self.stamp("z1_in")
        for ip in range(2):
            for be in range(4):
                a(f"v_cvt_pk_f16_f32 {R(E + 4 * ip + be)}, {R(D + 4 * be + 2 * ip)}, {R(D + 4 * be + 2 * ip + 1)}")
            a(f"ds_write_b128 {R(self.aE2w)}, {R(E + 4 * ip, 4)} offset:{128 * ip}")
        self.point("p2_a")
        a.wait_lg_all(); self.bar("b2")
        for uv in range(2):
            a(f"ds_read_b128 {R(Y + 4 * uv, 4)}, {R(self.aE2r)} offset:{256 * uv}")
        if not self.cf_own: self.CF = va(24, "CF")
        for i in range(0 if self.cf_own else 6): a(f"ds_read_b128 {R(self.CF + 4 * i, 4)}, {R(self.aHf)} offset:{4096 + 1024 * i}")
        a(f"v_mov_b32 {R(T)}, {S(sEp)}")
        a(f"buffer_store_dword {R(T)}, {R(self.vZero)}, {S(sWS, 4)}, {S(sOff + 8)} offen sc1")
        self.point("p2_b")
        for uv in range(2):
            for ri in range(2):
                a(f"v_mfma_f32_16x16x32_f16 {R(D + 8 * uv + 4 * ri, 4)}, {R(M2 + 4 * ri, 4)}, {R(Y + 4 * uv, 4)}, 0")
        self.point("p2_c")
        Ur, Ui, Vr, Vi = D, D + 4, D + 8, D + 12
        A1r, A1i, Br, Bi, A2r, A2i = (self.CF + 4 * i for i in range(6))
        neg = " neg_lo:[0,1,0] neg_hi:[0,1,0]"; neg2 = " neg_lo:[0,1] neg_hi:[0,1]"
        terms = [(E, [(Ur, A1r, 0), (Ui, A1i, 1), (Vr, Br, 0), (Vi, Bi, 1)]),
                 (E + 4, [(Ur, A1i, 0), (Ui, A1r, 0), (Vr, Bi, 0), (Vi, Br, 0)]),
                 (E + 8, [(Ur, Br, 1), (Ui, Bi, 0), (Vr, A2r, 0), (Vi, A2i, 1)]),
                 (E + 12, [(Ur, Bi, 1), (Ui, Br, 1), (Vr, A2i, 0), (Vi, A2r, 0)])]
        def mix(tm, step):
            for o, tl in tm:
                x, cf, ng = tl[step]
                for k in (0, 2):
                    if step == 0: a(f"v_pk_mul_f32 {R(o + k, 2)}, {R(x + k, 2)}, {R(cf + k, 2)}" + (neg2 if ng else ""))
                    else: a(f"v_pk_fma_f32 {R(o + k, 2)}, {R(x + k, 2)}, {R(cf + k, 2)}, {R(o + k, 2)}" + (neg if ng else ""))
        D2 = Y + 8
        for step in range(2): mix(terms, step)
        for uv in range(2):
            for step in (2, 3): mix(terms[2 * uv:2 * uv + 2], step)
            for r in range(4):
                a(f"v_cvt_pk_bf16_f32 {R(Y + 4 * uv + r)}, {R(E + 8 * uv + 4 + r)}, {R(E + 8 * uv + r)}")
            dst = D2 if uv == 0 else D
            for ri in range(2):
                a(f"v_mfma_f32_16x16x32_bf16 {R(dst + 4 * ri, 4)}, {R(Y + 4 * uv, 4)}, {R(M + 4 * (1 - ri), 4)}, 0")
        for uv in range(2):
            dst = D2 if uv == 0 else D
            for sp in range(2):
                for r in (2 * sp, 2 * sp + 1):
                    a(f"v_cvt_pk_bf16_f32 {R(E + 4 * uv + r)}, {R(dst + r)}, {R(dst + 4 + r)}")
                a(f"ds_write_b64 {R(self.aE3w)}, {R(E + 4 * uv + 2 * sp, 2)} offset:{128 * uv + 16 * sp}")
        a(f"s_mov_b32 {S(sMask)}, 0x10001")
        self.point("p2_d")
        a.wait_lg_all(); self.bar("b3")
        for t in range(2):
            a(f"ds_read_b128 {R(Y + 4 * t, 4)}, {R(self.aE3r)} offset:{1056 * t}")
        for t in range(2):
            for ri in range(2):
                a(f"v_mfma_f32_16x16x32_bf16 {R(D + 8 * t + 4 * ri, 4)}, {R(Y + 4 * t, 4)}, {R(self.M5 + 8 * t + 4 * ri, 4)}, 0")
        self.point("p2_e")
        for t in range(2):
            for r in range(4):
                a(f"v_cvt_pk_bf16_f32 {R(E + 4 * t + r)}, {R(D + 8 * t + r)}, {R(D + 8 * t + 4 + r)}")
            for r in range(4):
                a(f"v_bfi_b32 {R(E + 4 * t + r)}, {S(sMask)}, {R(self.TG3 + r)}, {R(E + 4 * t + r)}")
            a(f"buffer_store_dwordx4 {R(E + 4 * t, 4)}, {R(self.aZ2)}, {S(sWS, 4)}, {S(sOff + 6 + t)} offen sc1")
        self.stamp("z2_st")
        self.vb.free(self.CF, self.M1, self.M5)
        va.free(D, E, Y, self.M2, self.TG2, self.aG1, self.aE2w, self.aE2r, self.aE3w, self.aE3r, self.aZ2, self.TG3)
    def xnat_load(self):
        a = self.a; va = self.va
        self.XN = va(8, "XN"); self.vNat = va(1, "nat")
        a(f"v_lshlrev_b32 {R(self.vNat)}, 6, {R(self.vLi)}")
        a(f"v_lshl_add_u32 {R(self.vNat)}, {R(self.vG)}, 4, {R(self.vNat)}")
        for rho in range(2):
            a(f"buffer_load_dwordx4 {R(self.XN + 4 * rho, 4)}, {R(self.vNat)}, {S(sX, 4)}, {S(sOff + rho)} offen")
    def addr_g2(self):
        a = self.a
        a(f"s_bfe_u32 {S(sT0)}, {S(sS2)}, 0x60001\ns_lshl_b32 {S(sT0)}, {S(sT0)}, 15\ns_lshl_b32 {S(sT1)}, {S(sW)}, 13\ns_add_u32 {S(sT0)}, {S(sT0)}, {S(sT1)}")
        a(f"s_and_b32 {S(sT1)}, {S(sM)}, 1\ns_lshl_b32 {S(sT1)}, {S(sT1)}, 6\ns_add_u32 {S(sT0)}, {S(sT0)}, {S(sT1)}")
        a(f"s_add_u32 {S(sOff + 4)}, {S(sT0)}, {Z2}\ns_add_u32 {S(sOff + 5)}, {S(sT0)}, {Z2 + 4096}")
    def tables_p3(self):
        a = self.a; va = self.va; Li, G, T = self.vLi, self.vG, self.vT
        self.M4 = va(8, "M4"); self.Gi = va(4, "Gi"); self.vEps = va(1, "eps")
        self.aE4w = va(4, "aE4w", 1); self.aE4r = va(2, "aE4r", 1)
        p = va(1, "p"); c = va(1, "c"); s = va(1, "s"); u = va(1, "u")
        a(f"v_lshrrev_b32 {R(u)}, 1, {R(Li)}")
        a(f"v_lshl_add_u32 {R(u)}, {R(u)}, 8, {S(sS2)}")
        a(f"v_and_b32 {R(T)}, 1, {R(G)}")
        a(f"v_mul_u32_u24 {R(p)}, {R(u)}, {R(T)}")
        a(f"s_lshr_b32 {S(sT0)}, {S(sS2)}, 4\ns_lshl_b32 {S(sT0)}, {S(sT0)}, 4")
        a(f"v_and_b32 {R(c)}, 2, {R(G)}")
        a(f"v_mad_u32_u24 {R(p)}, {R(c)}, {S(sT0)}, {R(p)}")
        a(f"v_and_b32 {R(T)}, 1, {R(Li)}")
        a(f"v_lshlrev_b32 {R(T)}, 7, {R(T)}")
        a(f"v_sub_u32 {R(p)}, {R(T)}, {R(p)}")
        a(f"v_and_b32 {R(p)}, 511, {R(p)}")
        a(f"v_cvt_f32_u32 {R(u)}, {R(u)}")
        a(f"v_cvt_f32_u32 {R(p)}, {R(p)}")
        a(f"v_lshlrev_b32 {R(c)}, 14, {R(c)}")
        a(f"v_mul_f32 {R(p)}, {fl(1 / 512)}, {R(p)}")
        for i in range(8): a(f"v_xor_b32 {R(self.M4 + i)}, {R(c)}, {R(self.M + i)}")
        for r in range(4):
            self.sincos(c, s, p)
            if r < 3: a(f"v_fmamk_f32 {R(p)}, {R(u)}, {fl(-1 / 2048)}, {R(p)}")
            a(f"v_cvt_pk_bf16_f32 {R(self.Gi + r)}, {R(c)}, {R(s)}")
        a(f"v_mul_u32_u24 {R(u)}, {ARW + 64}, {R(G)}")
        a(f"v_add_u32 {R(u)}, {AR}, {R(u)}")
        a(f"s_lshl_b32 {S(sT0)}, {S(sW)}, 5")
        a(f"v_and_or_b32 {R(p)}, {R(Li)}, 7, {S(sT0)}")
        a(f"v_cmp_lt_u32 s[4:5], 7, {R(Li)}")
        a(f"v_cmp_eq_u32 vcc, 0, {R(p)}")
        a(f"v_sub_u32 {R(c)}, 256, {R(p)}")
        a(f"v_mov_b32 {R(T)}, 128")
        for t in range(4):
            q = self.aE4w + t
            if t:
                a(f"v_add_u32 {R(p)}, 8, {R(p)}\nv_add_u32 {R(c)}, -8, {R(c)}")
                a(f"v_cndmask_b32 {R(q)}, {R(p)}, {R(c)}, s[4:5]")
            else:
                a(f"v_cndmask_b32 {R(T)}, {R(c)}, {R(T)}, vcc")
                a(f"v_cndmask_b32 {R(q)}, {R(p)}, {R(T)}, s[4:5]")
            a(f"v_lshrrev_b32 {R(T)}, 6, {R(q)}")
            a(f"v_lshl_add_u32 {R(q)}, {R(T)}, 4, {R(q)}")
            a(f"v_lshl_add_u32 {R(q)}, {R(q)}, 2, {R(u)}")
        a(f"s_mul_i32 {S(sT0)}, {S(sW)}, {ARW + 64}\ns_add_u32 {S(sT0)}, {S(sT0)}, {AR}")
        a(f"v_mul_u32_u24 {R(p)}, 320, {R(G)}")
        a(f"v_lshl_add_u32 {R(p)}, {R(Li)}, 2, {R(p)}")
        a(f"v_add_u32 {R(self.aE4r)}, {S(sT0)}, {R(p)}")
        a(f"v_add_u32 {R(self.aE4r + 1)}, 1280, {R(self.aE4r)}")
        va.free(p, c, s, u)
        for i in range(4): a(f"v_mov_b32 {R(self.ST + i)}, 0")
        a(f"v_mov_b32 {R(self.vEps)}, {fl(1e-5 / 1.4426950408889634 ** 2)}")
        a(f"s_add_u32 {S(sOff + 6)}, {S(sOwn)}, {HN}\ns_lshr_b32 {S(sOff + 7)}, {S(sOwn)}, 4\ns_add_u32 {S(sOff + 7)}, {S(sOff + 7)}, {HH}")
    def pre_st(self):
        a = self.a; T = self.vT; E = self.va(2, "pre")
        a(f"v_not_b32 {R(E)}, {S(sEp)}")
        a(f"v_lshlrev_b32 {R(T)}, 2, {R(self.vL)}")
        a(f"s_mov_b32 exec_hi, 0")
        a(f"buffer_store_dword {R(E)}, {R(T)}, {S(sWS, 4)}, {S(sOff + 7)} offen sc1")
        a(f"s_mov_b32 exec_hi, -1")
        self.va.free(E)
    def xnat_unpack(self):
        a = self.a; va = self.va
        self.XC = va(16, "XC")
        for rho in range(2):
            for r in range(4):
                a(f"v_lshlrev_b32 {R(self.XC + 8 * rho + r)}, 16, {R(self.XN + 4 * rho + r)}")
                a(f"v_and_b32 {R(self.XC + 8 * rho + 4 + r)}, 0xffff0000, {R(self.XN + 4 * rho + r)}")
        va.free(self.XN)
    def p3_gather(self):
        a = self.a; va = self.va
        self.Y = va(16, "Y")
        self.g2 = [f"buffer_load_dword {R(self.Y + 4 * t + r)}, {R(self.aG2)}, {S(sWS, 4)}, {S(sOff + 4 + (t >> 1))} offen offset:{(t & 1) * 2048 + 128 * r} sc1"
                   for t in range(4) for r in range(4)]
        self.stamp("g2")
        for l in self.g2: a(l)
    def p3(self):
        a = self.a; va = self.va; Y = self.Y; M = self.M; M4 = self.M4; ST = self.ST; XC = self.XC; T = self.vT
        D = va(16, "D"); E = va(16, "E")
        TG4 = self.TG4; Gi = self.Gi
        def chk():
            for t in range(4):
                for i in range(4 * t, 4 * t + 4): a(f"v_xor_b32 {R(Y + i)}, {R(TG4)}, {R(Y + i)}")
                if t == 0: a(f"v_or_b32 {R(T)}, {R(Y)}, {R(Y + 1)}")
                else: a(f"v_or3_b32 {R(T)}, {R(T)}, {R(Y + 4 * t)}, {R(Y + 4 * t + 1)}")
                a(f"v_or3_b32 {R(T)}, {R(T)}, {R(Y + 4 * t + 2)}, {R(Y + 4 * t + 3)}")
                a(f"v_mfma_f32_16x16x32_bf16 {R(D + 4 * t, 4)}, {R(Gi, 4)}, {R(Y + 4 * t, 4)}, 0")
            a(f"v_and_b32 {R(T)}, {S(sMask)}, {R(T)}")
            a(f"v_cmp_ne_u32 vcc, 0, {R(T)}")
        self.poll("z2", self.g2, chk)
        self.stamp("z2_in")
        for t in range(4):
            a(f"v_cvt_pk_bf16_f32 {R(E + 2 * t)}, {R(D + 4 * t + 1)}, {R(D + 4 * t)}")
            a(f"v_cvt_pk_bf16_f32 {R(E + 2 * t + 1)}, {R(D + 4 * t + 3)}, {R(D + 4 * t + 2)}")
            a(f"ds_write2st64_b32 {R(self.aE4w + t)}, {R(E + 2 * t)}, {R(E + 2 * t + 1)} offset0:0 offset1:5")
        self.point("p3_a")
        a.wait_lg_all(); self.bar("b4")
        for rho in range(2):
            for h in range(2):
                tk = a(f"ds_read2_b32 {R(Y + 4 * rho + 2 * h, 2)}, {R(self.aE4r + rho)} offset0:{32 * h} offset1:{32 * h + 16}")
        self.point("p3_b")
        for rho in range(2):
            for ri in range(2):
                a(f"v_mfma_f32_16x16x32_bf16 {R(D + 8 * rho + 4 * ri, 4)}, {R(Y + 4 * rho, 4)}, {R(M4 + 4 * (1 - ri), 4)}, 0")
        self.point("p3_c")
        for rho in range(2):
            self.cmul(E + 8 * rho, E + 8 * rho + 4, D + 8 * rho, D + 8 * rho + 4, self.TW, self.TW + 4, True)
            for r in range(4):
                a(f"v_cvt_pk_bf16_f32 {R(Y + 4 * rho + r)}, {R(E + 8 * rho + 4 + r)}, {R(E + 8 * rho + r)}")
            for ri in range(2):
                q = XC + 8 * rho + 4 * ri
                a(f"v_mfma_f32_16x16x32_bf16 {R(q, 4)}, {R(Y + 4 * rho, 4)}, {R(M + 4 * (1 - ri), 4)}, {R(q, 4)}")
        st = a.capture(self.stats, D, ST, 1.4426950408889634, None)
        cv = [[f"v_cvt_pk_bf16_f32 {R(D + 4 * rho + r)}, {R(XC + 8 * rho + r)}, {R(XC + 8 * rho + 4 + r)}" for r in range(4)] for rho in range(2)]
        a.run(cv[0] + st[:8] + cv[1] + st[8:16])
        a.run(spread(st[16:], (self.plist("p3_d"), 0, len(st) - 16)))
        self.point("p3_e")
        for rho in range(2):
            for k in range(0, 8, 2):
                q = XC + 8 * rho + k
                a(f"v_pk_fma_f32 {R(q, 2)}, {R(q, 2)}, {R(ST + 2 * rho, 2)}, {R(ST + 4 + 2 * rho, 2)} op_sel_hi:[1,0,0] neg_lo:[0,0,1] neg_hi:[0,0,1]")
            for r in range(4):
                a(f"v_cvt_pk_bf16_f32 {R(E + 4 * rho + r)}, {R(XC + 8 * rho + r)}, {R(XC + 8 * rho + 4 + r)}")
            tokhn = a(f"buffer_store_dwordx4 {R(E + 4 * rho, 4)}, {R(self.vNat)}, {S(sWS, 4)}, {S(sOff + 6)} offen offset:{1024 * rho} sc1")
        self.stamp("hn_st")
        self.point("p3_s")
        a(f"v_cmp_gt_u32 vcc, 32, {R(self.vL)}")
        a(f"v_and_b32 {R(T)}, 28, {R(self.vL)}")
        a(f"v_mov_b32 {R(D + 2)}, {S(sEp)}")
        a(f"v_cndmask_b32 {R(D)}, {R(ST + 2)}, {R(ST)}, vcc")
        a(f"v_mov_b32 {R(D + 1)}, {R(self.vMu)}")
        a(f"v_rcp_f32 {R(D)}, {R(D)}")
        a(f"v_lshlrev_b32 {R(T)}, 25, {R(T)}")
        a(f"v_and_or_b32 {R(T)}, {R(self.vL16)}, 48, {R(T)}")
        a(f"v_and_b32 {R(D + 3)}, 32, {R(self.vL)}")
        a(f"v_lshl_add_u32 {R(T)}, {R(D + 3)}, 1, {R(T)}")
        self.point("p3_t")
        a.wait_vm(tokhn)
        a(f"buffer_store_dwordx4 {R(D, 4)}, {R(T)}, {S(sWS, 4)}, {S(sOff + 7)} offen sc1")
        self.stamp("st_st")
        va.free(D, E, Y, XC, ST, self.M, self.M4, self.TW, self.Gi, self.aE4w, self.aE4r, self.aG2, self.vNat, self.vEps, self.vMu, self.TG4)
    def tables_w2(self):
        a = self.a; va = self.va; L, Li, G, T = self.vL, self.vLi, self.vG, self.vT
        a(f"s_lshr_b32 {S(sT2)}, {S(sM)}, 3\ns_mul_i32 {S(sT2)}, {S(sT2)}, {self.cfg.get('rot2', 3)}\ns_mul_i32 {S(sT1)}, {S(sK1)}, {self.cfg.get('xrot2', 0)}\ns_add_u32 {S(sT2)}, {S(sT2)}, {S(sT1)}")
        if self.cfg.get("mrot"): a(f"s_mul_i32 {S(sT1)}, {S(sMem)}, {self.cfg['mrot']}\ns_add_u32 {S(sT2)}, {S(sT2)}, {S(sT1)}")
        a(f"s_mul_i32 {S(sT1)}, {S(sT2)}, 373\ns_lshr_b32 {S(sT1)}, {S(sT1)}, 12\ns_mul_i32 {S(sT1)}, {S(sT1)}, 11\ns_sub_u32 {S(sT2)}, {S(sT2)}, {S(sT1)}")
        a(f"s_lshl_b32 {S(sT2)}, {S(sT2)}, 10\ns_mul_i32 {S(sT1)}, {S(sW)}, 11264")
        a(f"s_add_u32 {S(sT0)}, {S(sT2)}, {S(sT1)}\ns_add_u32 {S(sT2)}, {S(sT1)}, 11264")
        sal = []
        for i in range(11):
            if i: sal += [f"s_add_u32 {S(sT0)}, {S(sT0)}, 1024", f"s_cmp_eq_u32 {S(sT0)}, {S(sT2)}", f"s_cselect_b32 {S(sT0)}, {S(sT1)}, {S(sT0)}"]
            sal += [f"s_cmp_eq_u32 {S(sT0)}, {43 * 1024}", f"s_cselect_b32 {S(sKap + i)}, 0x2000000, {S(sT0)}"]
        a.run(sal)
        a(f"s_mul_i32 {S(sU0)}, {S(sMem)}, {43 * 4096}\ns_add_u32 {S(sU0)}, {S(sU0)}, {W2P}")
    def addr_g3(self):
        a = self.a
        a(f"s_lshr_b32 {S(sT0)}, {S(sN)}, 3\ns_lshl_b32 {S(sT1)}, {S(sT0)}, 16\ns_lshl_b32 {S(sT2)}, {S(sW)}, 12\ns_add_u32 {S(sT0)}, {S(sT1)}, {S(sT2)}")
        for rt in range(4):
            a(f"s_add_u32 {S(sOff + 8 + rt)}, {S(sT0)}, {HN + rt * 16384}")
    def tables_g1(self):
        a = self.a; va = self.va; L, Li, G, T = self.vL, self.vLi, self.vG, self.vT
        a(f"v_mul_u32_u24 {R(T)}, {HROW}, {R(Li)}")
        a(f"v_lshl_add_u32 {R(self.aHr)}, {R(G)}, 8, {R(T)}")
        a(f"s_lshr_b32 {S(sLn2)}, {S(sN)}, 3\ns_mul_i32 {S(sLn2)}, {S(sLn2)}, {HCL}\ns_add_u32 {S(sLn2)}, {S(sLn2)}, {HB}")
        a(f"s_lshl_b32 {S(sT0)}, {S(sMem)}, 2\ns_add_u32 {S(sT0)}, {S(sT0)}, {S(sW)}")
        a(f"s_lshl_b32 s4, {S(sT0)}, 10\ns_lshl_b32 {S(sT0)}, {S(sT0)}, 15")
        a(f"s_mul_i32 {S(sT1)}, {S(sMem)}, 3\ns_add_u32 {S(sT1)}, {S(sT1)}, {S(sW)}")
        a(f"s_cmp_eq_u32 {S(sMem)}, 7\ns_subb_u32 {S(sT1)}, {S(sT1)}, 0")
        a(f"s_cmp_ge_u32 {S(sMem)}, 6\ns_addc_u32 {S(sT2)}, {S(sW)}, 0")
        a(f"s_lshl_b32 s5, {S(sT1)}, 9\ns_add_u32 s5, s5, 32768\ns_lshl_b32 {S(sT1)}, {S(sT1)}, 14\ns_add_u32 {S(sT1)}, {S(sT1)}, {64 * 16384}")
        a(f"s_cmp_lt_u32 {S(sT2)}, 3\ns_cselect_b32 s5, s5, 2.0\ns_cselect_b32 {S(sT1)}, {S(sT1)}, 2.0")
        a(f"v_add_u32 {R(self.vW1)}, {S(sT0)}, {R(self.vL16)}")
        a(f"v_add_u32 {R(self.vW1 + 1)}, 16384, {R(self.vW1)}")
        a(f"v_add_u32 {R(self.vW1 + 2)}, {S(sT1)}, {R(self.vL16)}")
        for q in range(4): a(f"s_xor_b32 {S(sT0)}, {S(sRot)}, {4 * q}\ns_lshl_b32 {S(sT0)}, {S(sT0)}, 10\ns_add_u32 {S(sOff + 4 + q)}, {S(sT0)}, {W1P}")
        a(f"v_cmp_gt_u32 vcc, 32, {R(L)}")
        a(f"v_add_u32 {R(self.aHs)}, s4, {R(self.vL16)}")
        a(f"v_add_u32 {R(self.aHs + 1)}, s5, {R(self.vL16)}")
        a(f"v_cndmask_b32 {R(self.aHs + 1)}, 2.0, {R(self.aHs + 1)}, vcc")
        for rt in range(4): a(f"s_add_u32 {S(sOff + rt)}, {S(sLn2)}, {rt * 45056}")
        a(f"s_mul_i32 {S(sT0)}, {S(sW)}, {ARW}\ns_add_u32 {S(sT0)}, {S(sT0)}, {CUE}")
        a(f"v_mov_b32 v60, {S(sT0)}")
    def tables_epi(self):
        a = self.a; va = self.va; L, Li, G, T = self.vL, self.vLi, self.vG, self.vT
        a(f"v_mbcnt_lo_u32_b32 {R(L)}, -1, 0\nv_mbcnt_hi_u32_b32 {R(L)}, -1, {R(L)}")
        a(f"v_and_b32 {R(Li)}, 15, {R(L)}\nv_lshrrev_b32 {R(G)}, 4, {R(L)}")
        a(f"s_lshl_b32 {S(sS2)}, {S(sK1)}, 4\ns_and_b32 {S(sT0)}, {S(sM)}, 15\ns_or_b32 {S(sS2)}, {S(sS2)}, {S(sT0)}")
        a(f"s_and_b32 {S(sT0)}, s2, 0x80\ns_or_b32 {S(sS2)}, {S(sS2)}, {S(sT0)}")
        a(f"s_mov_b32 {S(sO + 2)}, 0x200000\ns_mov_b32 {S(sO + 3)}, 0x20000")
        a(f"s_lshl_b32 {S(sT0)}, {S(sW)}, 2\ns_mov_b32 {S(sT1)}, {RED[0]}")
        a(f"v_add_u32 {R(self.aRr)}, {S(sT0)}, {R(G)}")
        a(f"v_and_b32 {R(T)}, 7, {R(self.aRr)}")
        a(f"v_xor_b32 {R(T)}, {R(T)}, {R(Li)}")
        a(f"v_lshl_add_u32 {R(T)}, {R(T)}, 4, {S(sT1)}")
        a(f"v_lshl_add_u32 {R(self.aRr)}, {R(self.aRr)}, 8, {R(T)}")
        a(f"s_lshl_b32 {S(sT1)}, {S(sMem)}, 7")
        a(f"v_lshl_add_u32 {R(T)}, {R(Li)}, 3, {S(sT1)}")
        a(f"v_lshl_add_u32 {R(self.aOut)}, {R(G)}, 18, {R(T)}")
        a(f"s_lshl_b32 {S(sT1)}, {S(sRot)}, 4\ns_mul_i32 {S(sT0)}, {S(sW)}, {4 * HROW}")
        a(f"v_xor_b32 {R(T)}, {S(sT1)}, {R(T)}")
        a(f"v_mul_u32_u24 {R(self.aRes)}, {HROW}, {R(G)}")
        a(f"v_add3_u32 {R(self.aRes)}, {R(self.aRes)}, {R(T)}, {S(sT0)}")
        a(f"s_lshr_b32 {S(sT0)}, {S(sN)}, 3\ns_lshl_b32 {S(sT0)}, {S(sT0)}, 12\ns_lshl_b32 {S(sT1)}, {S(sW)}, 8\ns_add_u32 {S(sT0)}, {S(sT0)}, {S(sT1)}\ns_add_u32 {S(sT0)}, {S(sT0)}, {HH}")
        a(f"v_and_b32 {R(T)}, 3, {R(Li)}")
        a(f"v_lshl_add_u32 {R(T)}, {R(T)}, 10, {S(sT0)}")
        a(f"v_lshl_add_u32 {R(self.aSt)}, {R(G)}, 6, {R(T)}")
        a(f"s_and_b32 {S(sT0)}, {S(sS2)}, 0xf8\ns_lshr_b32 {S(sT1)}, {S(sW)}, 1\ns_add_u32 {S(sT0)}, {S(sT0)}, {S(sT1)}\ns_lshl_b32 {S(sT0)}, {S(sT0)}, 10")
        a(f"s_and_b32 {S(sT1)}, {S(sW)}, 1\ns_lshl_b32 {S(sT1)}, {S(sT1)}, 20\ns_add_u32 {S(sOff + 2)}, {S(sT0)}, {S(sT1)}\ns_add_u32 {S(sOff + 3)}, {S(sOff + 2)}, 4096")
        a(f"s_mov_b32 {S(sLn2)}, {fl(math.log(2.0))}")
    def tables_g2(self):
        a = self.a; va = self.va; L, Li, G, T = self.vL, self.vLi, self.vG, self.vT
        a(f"s_mul_i32 {S(sLn2)}, {S(sW)}, {4 * HROW}")
        a(f"v_xor_b32 {R(T)}, {S(sRot)}, {R(L)}")
        a(f"v_lshlrev_b32 {R(self.aHd)}, 4, {R(T)}")
        a(f"s_lshr_b32 {S(sT0)}, {S(sN)}, 3\ns_lshl_b32 {S(sT0)}, {S(sT0)}, 12\ns_lshl_b32 {S(sT1)}, {S(sW)}, 8\ns_add_u32 {S(sT0)}, {S(sT0)}, {S(sT1)}\ns_add_u32 {S(sT0)}, {S(sT0)}, {HH + 8}")
        a(f"v_and_b32 {R(T)}, 3, {R(Li)}")
        a(f"v_lshl_add_u32 {R(T)}, {R(T)}, 6, {S(sT0)}")
        a(f"v_lshl_add_u32 {R(self.aHw)}, {R(G)}, 10, {R(T)}")
        a(f"s_lshr_b32 {S(sHb)}, {S(sN)}, 3\ns_mul_i32 {S(sHb)}, {S(sHb)}, {HCL}\ns_add_u32 {S(sHb)}, {S(sHb)}, {HB}")
        a(f"s_lshl_b32 {S(sT0)}, {S(sW)}, 12\ns_add_u32 {S(sT0)}, {S(sT0)}, {RED[0]}")
        a(f"v_bitop3_b32 {R(T)}, {R(Li)}, {R(G)}, 7 bitop3:0x28")
        a(f"v_lshl_add_u32 {R(T)}, {R(T)}, 4, {S(sT0)}")
        a(f"v_lshl_add_u32 {R(self.aRw)}, {R(Li)}, 8, {R(T)}")
        a(f"v_xor_b32 {R(self.aRw + 1)}, 64, {R(self.aRw)}")
    def hn_dma(self, rt):
        out = []
        for n in range(4):
            out += [f"s_add_u32 m0, {S(sLn2)}, {rt * HTILE + 16 * n}",
                    f"buffer_load_dwordx4 {R(self.aHd)}, {S(sWS, 4)}, {S(sOff + 8 + rt)} offen offset:{1024 * n} sc1 lds"]
        return out
    def hn_load(self, rt):
        for l in self.hn_dma(rt): t = self.a(l)
        self.hntok[rt] = t
    def hn_check(self, rt):
        self.a.wait_vm(self.hntok[rt]); self.hnok.add(rt)
    def hn_poll(self):
        a = self.a; q = self.HC
        ld = [f"buffer_load_dword {R(q)}, {R(self.aHw)}, {S(sWS, 4)}, 0 offen sc1"]
        a.run(ld)
        self.point("hn_p")
        self.poll("hn", ld, lambda: a(f"v_cmp_ne_u32 vcc, {S(sEp)}, {R(q)}"))
    def bar_after(self, name):
        def f():
            self.a.wait_lg(getattr(self, name)); self.a("s_barrier")
        return [f]
    def pack(self, mf, fixed, floats, ops, g0, g1):
        n = len(mf)
        slot = [list(fixed.get(g, [])) for g in range(n)]
        for items, units_, f0, f1 in floats:
            for k, x in enumerate(items):
                units = units_
                if isinstance(x, tuple): x, units = x
                g = f0 + (k * (f1 - f0)) // max(len(items), 1)
                if units > 1:
                    last = g if k == 0 else max(g, prev)
                    cand = [q for q in range(last, min(last + 3, n)) if sum(u for _, u in slot[q]) + units <= 3]
                    g = cand[0] if cand else last
                elif k: g = max(g, prev)
                prev = g
                slot[g].append((x, units))
        base = [sum(u for _, u in sl) for sl in slot]
        best = None
        total = sum(o[1] for o in ops)
        for slack in range(0, 8):
            for span in range(min(g1, n) - g0, 8, -1):
                place = {}; out = [[] for _ in range(n)]; todo = list(range(len(ops))); done = 0; over = 0
                for g in range(g0, min(g1, n)):
                    used = base[g]
                    ready = [k for k in todo if all(d in place for d in ops[k][3])]
                    take = []
                    for k in ready:
                        since = g - max([place[d] for d in ops[k][3]], default=g0)
                        if not ops[k][2] and (used == 0 or (used == 1 and ops[k][1] > 1) or since > 3):
                            take.append(k); used += ops[k][1]; done += ops[k][1]
                    used = max(used, 1)
                    va_ = [k for k in ready if ops[k][2]]
                    while va_:
                        room = 3 - used
                        one = [k for k in va_ if ops[k][1] == 1]; two = [k for k in va_ if ops[k][1] == 2]
                        behind = done < total * (g - g0 + 1) / span - slack
                        if room >= 2 and two: k = two[0]
                        elif room == 1 and two and behind and len(one) < 2: k = two[0]
                        elif one and (room >= 1 or behind): k = one[0]
                        elif two and behind: k = two[0]
                        else: break
                        take.append(k); va_.remove(k); used += ops[k][1]; done += ops[k][1]
                    over += max(0, used - max(3, base[g]))
                    for k in take: todo.remove(k); out[g].append(ops[k][0])
                    for k in take: place[k] = g
                if not todo and (best is None or over < best[0]): best = (over, out)
                if not ops: break
            if not ops: break
        assert best, "could not pack"
        self.packinfo.append((best[0], sum(max(0, b - 3) for b in base)))
        for g in range(n):
            self.a.run([mf[g]] + [x for x, _ in slot[g]] + best[1][g])
    def silu_ops(self, acc, rt):
        tmp = self.SL; P = self.HP
        ops = []; idx = {}
        def add(key, x, u, v, deps): idx[key] = len(ops); ops.append((x, u, v, [idx[d] for d in deps]))
        for i in range(12):
            add(("e", i), f"v_exp_f32 {R(tmp + i)}, -{R(acc + i)}", 2, True, [])
            add(("a", i), f"v_add_f32 {R(tmp + i)}, 1.0, {R(tmp + i)}", 1, True, [("e", i)])
            add(("r", i), f"v_rcp_f32 {R(tmp + i)}, {R(tmp + i)}", 2, True, [("a", i)])
            add(("m", i), f"v_mul_f32 {R(tmp + i)}, {R(tmp + i)}, {R(acc + i)}", 1, True, [("r", i)])
            if i & 1: add(("c", i // 2), f"v_cvt_pk_bf16_f32 {R(P + i // 2)}, {R(tmp + i - 1)}, {R(tmp + i)}", 1, True, [("m", i), ("m", i - 1)])
            if i == 5: add(("x", 0), f"v_permlane32_swap_b32 {R(P)}, {R(P + 2)}", 2, True, [("c", 0), ("c", 2)])
            if i == 7:
                add(("x", 1), f"v_permlane32_swap_b32 {R(P + 1)}, {R(P + 3)}", 2, True, [("c", 1), ("c", 3)])
                if not self.cfg.get("st2"): add("st0", f"buffer_store_dwordx4 {R(P, 4)}, {R(self.aHs)}, {S(sWS, 4)}, {S(sOff + rt)} offen sc1", 3, False, [("x", 0), ("x", 1)])
            if i == 9: add(("x", 2), f"v_permlane32_swap_b32 {R(P + 4)}, {R(P + 6)}", 2, True, [("c", 4)])
        add(("x", 3), f"v_permlane32_swap_b32 {R(P + 5)}, {R(P + 7)}", 2, True, [("c", 5)])
        if self.cfg.get("st2"): add("st0", f"buffer_store_dwordx4 {R(P, 4)}, {R(self.aHs)}, {S(sWS, 4)}, {S(sOff + rt)} offen sc1", 3, False, [("x", 0), ("x", 1), ("c", 5)])
        add("st1", f"buffer_store_dwordx4 {R(P + 4, 4)}, {R(self.aHs + 1)}, {S(sWS, 4)}, {S(sOff + rt)} offen sc1", 3, False, [("x", 2), ("x", 3), "st0"])
        return ops
    def silu_flat(self, acc, rt):
        ops = self.silu_ops(acc, rt)
        order = sorted(range(len(ops)), key=lambda k: (self._depth(ops, k), k))
        return [ops[k][0] for k in order]
    def _depth(self, ops, k): return 1 + max([self._depth(ops, d) for d in ops[k][3]], default=0)
    def bar(self, name):
        self.bars.append(name); self.a("s_barrier")
    def waithn(self):
        self.a.wait_vm(self.tokhn); self.clrdone |= {(HN, 0), (HN, 1)} & self.cleared
    def waitclr(self):
        self.a.wait_vm(self.tokclr); self.clrdone = set(self.cleared)
    def karg(self):
        self.a("s_waitcnt lgkmcnt(0)"); self.srds()
    def role_b(self):
        a = self.a; va = self.va; c = self.cfg
        self.junk = []; self.role = "B"
        va.hi = 64
        self.vb = Alloc(180, 256); self.vb.used = va.used
        a("s_setprio %d" % c.get("prio_b0", 2))
        self.early_b()
        self.stamp("u0")
        a("s_setprio 0")
        self.bcut()
        self.common()
        va.at(60, 1, "cue"); self.aHr = va.at(61, 1, "aHr"); self.aHs = va.at(62, 2, "aHs")
        self.vW1 = va.at(48, 3, "vW1")
        a(f"s_lshr_b32 {S(sHb)}, {S(sOwn)}, 2\ns_mul_i32 {S(sHb)}, {S(sHb)}, 11")
        self.cf_sent = self.cf_own
        for name in self.bars + ["b5"]:
            self.curbar = name
            self.point("B_" + name)
            if name == "b2": assert self.cf_sent
            if name == ("e2" if "e2" in self.bars else "b3"): assert self.pkdone
            if name == [b for b in self.bars if b in ("b4", "e3", "s3", "t3")][-1]: assert {(HB, i) for i in range(6)} <= self.clrdone
            if name == "b5":
                assert all((1, i) in self.loaded for i in range(16))
                va.free(self.vW1, self.vT, self.vL16, self.vZero, self.vL, self.vLi, self.vG, self.vPf, self.vM1, *self.junk)
                a("s_setprio %d" % c.get("prio", (1, 0, 2))[2])
            self.stamp("B" + name)
            a("s_barrier")
        self.stamp("hn_in")
        self.SL = va.at(48, 12, "silu")
        ACC = va.at(0, 24, "acc1"); BF = va.at(24, 16, "bf"); self.HP = va.at(40, 8, "hp")
        NB = c.get("nb", 4)
        tok = {}
        def rd(n): tok[n] = a(f"ds_read_b128 {R(BF + 4 * (n % NB), 4)}, {R(self.aHr)} offset:{(n // 16) * HTILE + (n % 16) * 16}")
        for n in range(NB - 1): rd(n)
        cue = c.get("cue", (3, 4))
        for rt in range(4):
            acc = ACC + 12 * (rt & 1)
            mf = []; fixed = {}
            for ks in range(16):
                n = rt * 16 + ks
                for T in range(3):
                    cc = R(acc + 4 * T, 4) if ks else "0"
                    mf.append(f"v_mfma_f32_16x16x32_bf16 {R(acc + 4 * T, 4)}, {R(self.W1(ks, T), 4)}, {R(BF + 4 * (n % NB), 4)}, {cc}")
                if n + NB - 1 < 64: fixed[3 * ks] = [(lambda n=n: rd(n + NB - 1), 2)]
                if n + 1 < 64: fixed[3 * ks + 2] = [(lambda n=n: a.wait_lg(tok[n + 1]), 1)]
            if rt == 0: fixed[37] = [("s_barrier", 1)]
            if rt == cue[0]: fixed.setdefault(cue[1], []).append(("ds_write_b32 v60, v60", 2))
            ops = self.silu_ops(ACC + 12 * ((rt - 1) & 1), rt - 1) if rt else []
            self.pack(mf, fixed, [], ops, 1, 48)
            self.stamp("g1p%d" % rt)
        a.run(self.silu_flat(ACC + 12, 3))
        self.stamp("g1_end")
        a("s_setprio %d" % c.get("prio_epi", 2))
        va.hi = 256; va.lo = 64
        self.vL = va(1); self.vLi = va(1); self.vG = va(1); self.vT = va(1); self.vZero = va(1)
        self.aRr = va(1); self.aOut = va(1); self.aRes = va(1); self.aSt = va(1); ep = va(1)
        SV = va(4); RES = va(8); O = va(16); RB = va(16); K2 = va(2); P = va(2)
        self.tables_epi()
        stl = [f"buffer_load_dwordx2 {R(SV, 2)}, {R(self.aSt)}, {S(sWS, 4)}, 0 offen sc1"]
        a.run(stl)
        for r in range(4): a(f"ds_read_b64 {R(RES + 2 * r, 2)}, {R(self.aRes)} offset:{r * HTILE}")
        a(f"v_mov_b32 {R(self.vZero)}, 0\nv_mov_b32 {R(K2)}, {S(sLn2)}")
        def resid(rt):
            dpp = f"row_newbcast:{rt} row_mask:0xf bank_mask:0xf"
            a(f"v_mov_b32_dpp {R(P)}, {R(SV)} {dpp}\nv_mov_b32_dpp {R(P + 1)}, {R(SV + 1)} {dpp}")
            for h in range(2):
                a(f"v_lshlrev_b32 {R(O + 2 * h)}, 16, {R(RES + 2 * rt + h)}")
                a(f"v_and_b32 {R(O + 2 * h + 1)}, 0xffff0000, {R(RES + 2 * rt + h)}")
            for k in range(4): a(f"v_fma_f32 {R(O + k)}, {R(O + k)}, {R(P)}, {R(P + 1)}")
        for rt in range(4):
            if rt: resid(rt)
            if rt == 3: a("s_setprio 3")
            a("s_barrier")
            for src in range(4): a(f"ds_read_b128 {R(RB + 4 * src, 4)}, {R(self.aRr)} offset:{16384 * (rt & 1) + 4096 * src}")
            if rt == 0:
                resid(0)
            for src in range(4):
                if rt == 3:
                    for k in (0, 2): a(f"v_pk_fma_f32 {R(O + k, 2)}, {R(RB + 4 * src + k, 2)}, {R(K2, 2)}, {R(O + k, 2)} op_sel_hi:[1,0,1]")
                else:
                    for k in range(4): a(f"v_fmac_f32 {R(O + k)}, {S(sLn2)}, {R(RB + 4 * src + k)}")
            a(f"v_cvt_pk_bf16_f32 {R(RES + 2 * rt)}, {R(O)}, {R(O + 1)}\nv_cvt_pk_bf16_f32 {R(RES + 2 * rt + 1)}, {R(O + 2)}, {R(O + 3)}")
            a(f"buffer_store_dwordx2 {R(RES + 2 * rt, 2)}, {R(self.aOut)}, {S(sO, 4)}, {S(sOff + 2 + (rt >> 1))} offen offset:{2048 * (rt & 1)}{c.get('outflag', '')}")
        self.stamp("end")
    def ffn_a(self):
        a = self.a; va = self.va; c = self.cfg; T = self.vT
        self.HC = va(4, "hc"); self.hntok = {}; self.hnok = set()
        self.hn_poll()
        self.stamp("g3")
        self.point("hn_0")
        assert 0 in self.hnok
        a("s_barrier")
        a("s_setprio %d" % c.get("prio", (1, 0, 2))[1])
        self.point("hn_1")
        assert len(self.hnok) == 4
        a("s_barrier")
        self.point("w2")
        va.free(self.HC, self.aHw, self.vL, self.vLi, self.vG)
        self.stamp("w2_in")
        Lc = a.label("cue"); Ld = a.label("cued")
        a.wait_lg_all()
        a(f"v_mov_b32 {R(self.aHd)}, {S(sStg)}\ns_mov_b32 {S(sCnt)}, 0")
        a.auto = False
        a(f"{Lc}:\nds_read_b32 {R(T)}, {R(self.aHd)} offset:15360\ns_add_u32 {S(sCnt)}, {S(sCnt)}, 1\ns_waitcnt lgkmcnt(0)")
        a(f"v_cmp_ne_u32 vcc, 0, {R(T)}\ns_cbranch_vccnz {Ld}\ns_sleep 1\ns_cmp_lt_u32 {S(sCnt)}, {SPIN * 10}\ns_cbranch_scc1 {Lc}\n{Ld}:")
        a.auto = True
        self.stamp("cue")
        assert all((2, i) in self.loaded for i in range(11))
        a(f"v_add_u32 v0, {S(sHb)}, {R(self.vL16)}")
        va.free(self.aHd, self.vL16, self.vZero, self.aHf)
        a(f"v_mov_b32 v2, {R(self.aRw)}\nv_mov_b32 v3, {R(self.aRw + 1)}")
        va.free(self.aRw); self.aRw = va.at(2, 2, "aRw")
        HF = va.at(4, 44, "hf"); ACC = [va.at(48, 16, "acc2a"), va.at(64, 16, "acc2b")]; RD = HF + 32
        assert max(va.used) < 80, sorted(set(va.used.values()))
        tok = {}
        hso = lambda n: f"s_add_u32 {S(sD0)}, {S(sKap + n % 11)}, {45056 * (n // 11)}"
        hld = lambda q: f"buffer_load_dwordx4 {R(q, 4)}, v0, {S(sWS, 4)}, {S(sD0)} offen sc1"
        def hload(n): tok[n] = a(hld(HF + 4 * (n % 11)))
        for n in range(11):
            if c.get("hthr") and len(a.vm) > c["hthr"]: a(f"s_waitcnt vmcnt({c['hthr']})")
            a(hso(n)); hload(n)
        def red_w(rt, t): self.tokrw = a(f"ds_write_b128 {R(self.aRw + (t & 1))}, {R(ACC[rt & 1] + 4 * t, 4)} offset:{16384 * (rt & 1) + 128 * (t >> 1)}")
        def nanchk(rt): a(f"v_cmp_u_f32 vcc, {R(ACC[rt & 1])}, {R(ACC[rt & 1])}")
        def nanbr(rt):
            Lr = a.label("redo"); Lo = a.label("redone"); acc = ACC[rt & 1]
            site = self.npoll; self.npoll += 1; self.pollnames.append("H%d" % rt)
            a(f"s_cbranch_vccnz {Lr}\n{Lo}:")
            def tail():
                a.auto = False
                a(Lr + ":")
                if self.stamps: a(f"s_bitset1_b32 {S(sRet + site // 32)}, {site % 32}")
                a("s_waitcnt vmcnt(0)")
                for i0 in range(0, 11, 3):
                    fr = range(i0, min(i0 + 3, 11)); Ll = a.label("redo_loop"); Lg = a.label("redo_got")
                    a(f"s_mov_b32 {S(sCnt)}, 0\n{Ll}:")
                    for i in fr: a(hso(11 * rt + i)); a(hld(RD + 4 * (i - i0)))
                    a(f"s_add_u32 {S(sCnt)}, {S(sCnt)}, 1\ns_waitcnt vmcnt(0)")
                    a(f"v_max3_u32 {R(T)}, {R(RD)}, {R(RD + 4)}, {R(RD + 4 * (len(fr) - 1))}")
                    a(f"v_cmp_eq_u32 vcc, -1, {R(T)}\ns_cbranch_vccz {Lg}\ns_cmp_lt_u32 {S(sCnt)}, {SPIN}\ns_cbranch_scc1 {Ll}\n{Lg}:")
                    for i in fr:
                        for t in range(4):
                            a(f"v_mfma_f32_16x16x32_bf16 {R(acc + 4 * t, 4)}, {R(self.W2(i, t), 4)}, {R(RD + 4 * (i - i0), 4)}, {R(acc + 4 * t, 4) if i else 0}")
                if rt < 3:
                    for i in (8, 9, 10): a(hso(11 * (rt + 1) + i)); a(hld(HF + 4 * i))
                    a("s_waitcnt vmcnt(0)")
                a(f"s_nop 7\ns_branch {Lo}")
            self.tail.append(tail)
        self.stamp("g2_in")
        for rt in range(4):
            acc = ACC[rt & 1]
            order = [(i, t) for i in range(11) for t in range(4)]
            if rt == 3: order = order[:32] + [(i, t) for t in range(4) for i in (8, 9, 10)]
            mf = [f"v_mfma_f32_16x16x32_bf16 {R(acc + 4 * t, 4)}, {R(self.W2(i, t), 4)}, {R(HF + 4 * i, 4)}, {R(acc + 4 * t, 4) if i else 0}" for i, t in order]
            fixed = {}
            for i in range(11):
                n = 11 * rt + i
                if 1 <= n and n + 10 < 44: fixed[4 * i] = [(lambda n=n: hload(n + 10), 3)]
                fixed[4 * i + 3] = [(lambda n=n: a.wait_vm(tok[n + 1]), 1)] if n + 1 < 44 else []
                if n + 11 < 44: fixed[4 * i + 3].append((hso(n + 11), 1))
            if rt:
                fixed[1] = [(lambda rt=rt: nanchk(rt - 1), 2)]
                fixed[3].insert(0, (lambda rt=rt: nanbr(rt - 1), 1))
                for t in range(4): fixed[5 + 4 * t] = [(lambda rt=rt, t=t: red_w(rt - 1, t), 3)]
                fixed[c.get("rbar", 21)] = [(self.bar_after("tokrw")[0], 2)]
            if rt == 3:
                fixed[40] = [(lambda: red_w(3, 0), 3)]; fixed[42] = [(lambda: nanchk(3), 2)]; fixed[43] = [(lambda: red_w(3, 1), 3)]
            self.pack(mf, fixed, [], [], 0, 44)
            self.stamp("g2p%d" % rt)
        red_w(3, 2); red_w(3, 3)
        Lw = a.label("rewrite"); Lf = a.label("final")
        a(f"s_cbranch_vccz {Lf}")
        nanbr(3)
        a.auto = False
        for t in range(4): red_w(3, t)
        a.auto = True
        a(f"{Lf}:\ns_waitcnt lgkmcnt(0)\ns_barrier")
        if self.stamps: a(f"v_mov_b32 {R(self.vZero)}, 0")
    def finish(self, role):
        a = self.a
        if self.amp and role == "A":
            i, j = (self.stamps.index(n) for n in self.amp)
            self.stamp("end")
        if self.amp and role != self.cfg.get("amprole", "A"): return
        if self.amp:
            i, j = (self.stamps.index(n) for n in self.amp); e = self.stamps.index("end")
            a("s_waitcnt lgkmcnt(0)")
            if self.cfg.get("skew"):
                lo, hi = self.cfg["skew"]
                a(f"v_mbcnt_lo_u32_b32 v4, -1, 0\nv_lshlrev_b32 v4, 7, v4\ns_mov_b32 s4, {STAMP}\nbuffer_load_dword v5, v4, {S(sWS, 4)}, s4 offen sc1\ns_waitcnt vmcnt(0)")
                a(f"s_mov_b32 {S(sT1)}, 0")
                for l in range(lo, hi): a(f"v_readlane_b32 s4, v5, {l}\ns_nop 3\ns_sub_u32 s4, s4, {S(sStamp + 2 * i)}\ns_max_i32 {S(sT1)}, {S(sT1)}, s4")
                a(f"s_add_u32 {S(sStamp + 2 * j)}, {S(sStamp + 2 * i)}, {S(sT1)}")
            a(f"s_sub_u32 {S(sT0)}, {S(sStamp + 2 * j)}, {S(sStamp + 2 * i)}\ns_lshl_b32 {S(sT0)}, {S(sT0)}, 3\ns_min_u32 {S(sT0)}, {S(sT0)}, 100000")
            a(f"L_amp:\ns_memrealtime s[4:5]\ns_waitcnt lgkmcnt(0)\ns_sub_u32 {S(sT1)}, s4, {S(sStamp + 2 * e)}\ns_cmp_lt_u32 {S(sT1)}, {S(sT0)}\ns_cbranch_scc1 L_amp")
        elif self.stamps:
            a("s_waitcnt lgkmcnt(0)")
            a(f"s_lshl_b32 {S(sT0)}, s2, 3\ns_add_u32 {S(sT0)}, {S(sT0)}, s3\ns_lshl_b32 {S(sT0)}, {S(sT0)}, 6\ns_add_u32 {S(sT0)}, {S(sT0)}, {STAMP}")
            for i, sr in [(i, sStamp + 2 * i) for i in range(len(self.stamps))] + [(14, sRet), (15, sRet + 1)]:
                a(f"v_mov_b32 {R(self.vT)}, {S(sr)}")
                a(f"buffer_store_dword {R(self.vT)}, {R(self.vZero)}, {S(sWS, 4)}, {S(sT0)} offen offset:{4 * i}")
    def build(self):
        import copy
        a = self.a; va = self.va
        self.prologue()
        snap = (dict(va.used), list(a.vm), list(a.lg))
        self.prologue_a()
        self.point("start")
        self.stamp("tabs")
        self.p1()
        va.free(self.vM1)
        self.point("p1_end")
        self.p2_gather()
        self.point("g1_wait")
        self.p2()
        self.point("p2_end")
        self.p3_gather()
        self.point("g2_wait")
        self.p3()
        self.point("p3_end")
        self.ffn_a()
        self.finish("A")
        a("L_end:")
        a("s_endpgm")
        vTa = self.vT
        bstart = len(a.ins)
        a("L_roleB:")
        va.used, a.vm, a.lg = snap
        self.clrdone = set(self.cleared)
        self.role_b()
        self.finish("B")
        a("s_endpgm")
        self.vT = vTa
        for t in self.tail: t()
        if self.cfg.get("bnear", 1):
            blk = a.ins[bstart:self.bend]
            a.ins = a.ins[:self.splice] + blk + a.ins[self.splice:bstart] + a.ins[self.bend:]
        body = a.finalize()
        hdr = open("header.txt").read()
        s = hdr + f"; @launch grid=(256,1,1) block=(512,1,1) lds={LDS_SIZE}\n"
        s += f'.amdgcn_target "amdgcn-amd-amdhsa--gfx950"\n.text\n.globl {KN}\n.p2align 8\n.type {KN},@function\n{KN}:\n'
        s += body
        s += ".p2align 8\n.fill 4096, 4, 0xbf810000\n"
        s += f'''.section .rodata,"a"
.p2align 6
.amdhsa_kernel {KN}
  .amdhsa_next_free_vgpr 256
  .amdhsa_next_free_sgpr 102
  .amdhsa_accum_offset 256
  .amdhsa_group_segment_fixed_size 0
  .amdhsa_kernarg_size 72
  .amdhsa_user_sgpr_count 2
  .amdhsa_user_sgpr_kernarg_segment_ptr 1
  .amdhsa_system_sgpr_workgroup_id_x 1
  .amdhsa_float_denorm_mode_32 3
.end_amdhsa_kernel
'''
        return s

F = lambda name, *args: [(name, args)]
def write(cfg, out):
    g = Gen(cfg)
    s = g.build()
    open(out, "w").write(s)
    return g
```

```python
from gen4 import *
ST_A = ['entry', 'karg', 'tabs', 'x_in', 'z1_st', 'g1', 'z1_in', 'z2_st', 'g2', 'z2_in', 'hn_st']
ST_B = ['entry', 'hn_st', 'g3', 'hn_in', 'g1p0', 'g1p2', 'g1p3', 'g1_end', 'w2_in', 'cue', 'end']
ST_C = ['entry', 'Bb1', 'z1_st', 'Bb2', 'z1_in', 'Bb3', 'z2_st', 'Bb4', 'z2_in', 'Bb5', 'hn_in']
ST_D = ['entry', 'hn_in', 'w2_in', 'cue', 'g1_end', 'g2_in', 'g2p0', 'g2p1', 'g2p2', 'g2p3', 'end']
ST_H = ['entry', 'z1_st', 'z1_in', 'z2_st', 'z2_in', 'hn_st', 'hn_in', 'g1p0', 'g1_end', 'g2_in', 'end']
CL = lambda base, r: [("clear", (base, i)) for i in r]
CH = lambda r: [("clear_H", (i,)) for i in r]
WL = lambda *x: [("w_load", (i,)) for i in x]
L1 = lambda r: [("l1", (i,)) for i in r]
L2 = lambda r: [("l2", (i,)) for i in r]
HL = lambda *r: [("hn_load", (i,)) for i in r]
HK = lambda *r: [("hn_check", (i,)) for i in r]
SL = lambda n: F("sleep", n) if n else []
BAR = lambda n: F("bar", n)
PO = F("pack_out"); PW = F("pack_wait")
WF = F("w_stage") + F("w_coefs"); WS = F("w_spec"); WT = F("w_touch"); WC = F("waitclr")
T1 = F("tables_p1")
T2 = F("addr_g1") + F("tables_p2a") + F("tables_p2b") + F("addr_p2")
T3 = F("xnat_load") + F("addr_g2") + F("tables_p3") + F("tables_g2") + F("tables_w2")
G2W = F("xnat_unpack") + F("addr_g3")
KA = F("karg"); PA = F("pack_addr"); WA = F("w_addr"); TG = F("tables_g1")
VW = lambda n: F("vmwait", n)
def thr(f, r, n):
    out = []
    for i in r: out += VW(n) + f((i,))
    return out
MK = lambda n: F("mark", n)
HNC = CL(HN, (0, 1))
BE = PA + WA + TG
def base():
    return {"rot1": 0, "rot2": 0, "xrot1": 4, "xrot2": 7, "hdepth": 14, "prio": (1, 1, 0), "sched": dict(
        start=T1 + WA, p1_end=BAR("s1") + WL(0, 1) + WS + T2, g1_wait=WF, p2_end=T3 + SL(6), g2_wait=BAR("g2") + G2W,
        p3_s=BAR("s3"), p3_end=SL(10),
        hn_0=HL(0, 1, 2, 3) + HK(0), hn_1=L2((0, 1)) + HK(1, 2, 3), w2=thr(L2, range(2, 11), 4),
        B_pre=SL(8), B_pre3=SL(8), B_b1=PA + TG, B_b2=PO, B_b3=CH((0, 1, 2)) + PW, B_b4=CH((3, 4, 5)),
        B_s3=L1(range(3)) + WC, B_b5=L1(range(3, 16)),
    )}
def var(**kw):
    def f():
        c = base()
        for k, v in kw.items():
            if isinstance(v, list): c["sched"][k] = v
            else: c[k] = v
        return c
    return f
CFG = {"base": base}
ST_K = ['entry', 'u0', 'x_in', 'z1_st', 'Bb2', 'z1_in', 'Bb3', 'z2_st', 'g2', 'z2_in', 'hn_st']
ST_M = ['entry', 'z2_in', 'hn_st', 'st_st', 'g3', 'Bb5', 'hn_in', 'g1p0', 'g1_end', 'g2_in', 'end']
e0 = dict(B_b5=thr(L1, range(3, 16), 7), p3_end=SL(16), g2_wait=BAR("g2") + F("pre_st") + G2W)
e0.update(p3_end=SL(24), B_b5=thr(L1, range(3, 16), 10), st2=1)
e0.update(w2=thr(L2, range(2, 11), 6), hthr=9)
CFG["e0"] = var(**e0)
CFG["e1"] = var(**dict(e0, rbar=37))
CFG["e2"] = var(**dict(e0, outflag=" sc1"))
CFG["e3"] = var(**dict(e0, prio=(1, 0, 2)))
CFG["e4"] = var(**dict(e0, mrot=7))
ST_F = ['entry', 'u0', 'Bb2', 'Bb4', 'hn_in', 'g1p0', 'g1p1', 'g1p2', 'g1p3', 'g1_end', 'end']
ST_G = ['entry', 'x_in', 'z1_st', 'z2_in', 'hn_st', 'cue', 'g2_in', 'g2p0', 'g2p1', 'g2p2', 'g2p3']
CFG["e0c"] = lambda: dict(CFG["e0"](), cyc=1)
CFG["redo"] = var(**dict(e0, hn_p=L2(range(11)), hn_1=HK(1, 2, 3), w2=[], cue=(1, 4)))
v0 = dict(e0, outflag=" sc1", rbar=37)
CFG["v0"] = var(**v0)
CFG["v1"] = var(**dict(v0, p2_end=T3 + SL(12)))
CFG["v2"] = var(**dict(v0, p2_end=T3 + SL(18)))
v3 = dict(v0, g2_wait=G2W, p3_a=F("pre_st"), p3_t=SL(6) + BAR("t3"), B_b4=[], B_s3=CH((3, 4, 5)) + L1(range(2)), B_t3=L1(range(2, 5)) + WC, B_b5=thr(L1, range(5, 16), 10))
CFG["v3"] = var(**v3)
CFG["v4"] = var(**dict(v3, p2_end=T3 + SL(12)))
CFG["v5"] = var(**dict(v3, p2_end=T3 + SL(12), p1_end=BAR("s1") + WL(0, 1) + WS + T2 + SL(8)))
for k, off in enumerate((0, 32, 64, 128, 192, 232)): CFG["o%d" % k] = var(**dict(v0, wsoff=off << 20))
ST_P = ['entry', 'u0', 'pk_in', 'po', 'pw', 'z1_st', 'a1', 'end']
CFG["p0"] = var(**dict(v0, amprole="B", B_b2=PO + MK("po") + PW + MK("pw"), B_b3=CH((0, 1, 2))))
CFG["p1"] = var(**dict(v0, amprole="B", p1_end=BAR("s1") + BAR("s1b") + WL(0, 1) + WS + T2, B_s1b=SL(40) + PO + MK("po") + PW + MK("pw"), B_b2=[], B_b3=CH((0, 1, 2))))
CFG["p2"] = var(**dict(v0, p1_end=F("drainvm", "a1") + SL(40) + BAR("s1") + WL(0, 1) + WS + T2))
if __name__ == "__main__":
    name, out = sys.argv[1], sys.argv[2]
    c = CFG[name]()
    for x in sys.argv[3:]:
        if len(x) == 1: c["stamps"] = globals()["ST_" + x]
        if x.startswith("--amp="):
            c["amp"] = x[6:].split(","); c["stamps"] = list(dict.fromkeys(["entry"] + c["amp"] + ["end"]))
    g = write(c, out)
    print("wrote", out, "instrs", len(g.a.ins), "nops", g.a.nops_added, "vgpr high", g.va.high, "pack", g.packinfo)
```

```python
import sys, struct, math
from asmlib import *

KN = "sequential_preLN__spectral_gfnet__dense_activation_silu__prompt_kernel"
def fl(x): return "0x%08x" % struct.unpack("<I", struct.pack("<f", x))[0]

Z1 = 0x0; Z2 = 0x200000; HN = 0x400000; HH = 0x600000; HB = 0x800000; EPO = 0xE00000; STAMP = 0xE80000; W1P = 0x1000000; W2P = 0x1200000
WS_SIZE = 0x1400000
HCL = 4 * 44 * 1024
OOB = 0x40000000
HNL = 0; HROW = 1040; HTILE = 16 * HROW
EA = 0; EB = 8448
RED = (4 * HTILE, 4 * HTILE + 16384)
BST = RED[0]; BSTW = 8192
AR = 4 * HTILE + 32768; ARW = 16128
CUE = AR + 15360
LDS_SIZE = 163840
sX, sWR, sWI, sW1, sW2, sO, sWS = 8, 12, 16, 20, 24, 28, 32
sW, sS2, sK1, sM, sMem, sRot, sT0, sT1, sT2, sOnes, sMask, sEp, sCnt, sStg, sN, sD0, sHb, sU0, sLn2, sOwn = range(36, 56)
sOff = 56
sTag = 79
sPk = 8; sPj = 37
sKap = 68
sStamp = 80
sSel = 12

sRet = 6
SPIN = 20000

class Gen:
    def __init__(self, cfg):
        self.cfg = cfg
        self.amp = cfg.get("amp"); self.stamps = cfg.get("stamps") or []
        self.a = Asm(); self.va = Alloc(1, 256); self.vb = self.va
        self.tail = []; self.npoll = 0; self.pollnames = []
        self.sched = cfg.get("sched", {})
        self.W2 = lambda i, t: 80 + (i * 4 + t) * 4
        self.W1 = lambda ks, T: 64 + (ks * 3 + T) * 4
        self.cleared = set(); self.loaded = set(); self.pkdone = None; self.pktok = None; self.r2iss = set(); self.r2done = set(); self.r2need = None; self.role = 'A'; self.cf_own = False
        self.packinfo = []; self.bars = []
    def stamp(self, name):
        if name in self.stamps:
            k = self.stamps.index(name)
            self.a(f"{'s_memtime' if self.cfg.get('cyc') else 's_memrealtime'} {S(sStamp + 2 * k, 2)}")
    def sincos(self, c, s, ang):
        self.a(f"v_cos_f32 {R(c)}, {R(ang)}"); self.a(f"v_sin_f32 {R(s)}, {R(ang)}")
    def poll(self, name, loads, check):
        a = self.a
        Lr = a.label(name + "_retry"); Lo = a.label(name + "_ok")
        site = self.npoll; self.npoll += 1; self.pollnames.append(name)
        check()
        a(f"s_cbranch_vccnz {Lr}")
        a(Lo + ":")
        def tail():
            a.auto = False
            a(Lr + ":")
            a(f"s_mov_b32 {S(sCnt)}, 0")
            Ll = a.label(name + "_loop")
            a(Ll + ":")
            if self.stamps: a(f"s_bitset1_b32 {S(sRet + site // 32)}, {site % 32}")
            if self.cfg.get("backoff"): a(f"s_sleep {self.cfg['backoff']}")
            for l in loads: a(l)
            a("s_waitcnt vmcnt(0)")
            check()
            a(f"s_cbranch_vccz {Lo}")
            a(f"s_add_u32 {S(sCnt)}, {S(sCnt)}, 1")
            a(f"s_cmp_lt_u32 {S(sCnt)}, {SPIN}")
            a(f"s_cbranch_scc1 {Ll}")
            a(f"s_branch {Lo}")
        self.tail.append(tail)
    def check_sentinel(self, regs):
        a = self.a; t = self.vT
        def chk():
            r = list(regs)
            if len(r) % 2 == 0:
                a(f"v_max_u32 {R(t)}, {R(r[0])}, {R(r[1])}"); r = r[2:]
            else:
                a(f"v_max3_u32 {R(t)}, {R(r[0])}, {R(r[1])}, {R(r[2])}"); r = r[3:]
            while r:
                a(f"v_max3_u32 {R(t)}, {R(t)}, {R(r[0])}, {R(r[1])}"); r = r[2:]
            a(f"v_cmp_eq_u32 vcc, -1, {R(t)}")
        return chk
    def cmul(self, ore, oim, re, im, c, s, conj, addend=None):
        a = self.a
        neg = " neg_lo:[0,1,0] neg_hi:[0,1,0]"
        for k in (0, 2):
            for o, x in ((ore, re), (oim, im)):
                if addend is None: a(f"v_pk_mul_f32 {R(o + k, 2)}, {R(x + k, 2)}, {R(c + k, 2)}")
                else: a(f"v_pk_fma_f32 {R(o + k, 2)}, {R(x + k, 2)}, {R(c + k, 2)}, {R(addend, 2)} op_sel_hi:[1,1,0] neg_lo:[0,0,1] neg_hi:[0,0,1]")
        for k in (0, 2):
            a(f"v_pk_fma_f32 {R(ore + k, 2)}, {R(im + k, 2)}, {R(s + k, 2)}, {R(ore + k, 2)}" + (neg if conj else ""))
            a(f"v_pk_fma_f32 {R(oim + k, 2)}, {R(re + k, 2)}, {R(s + k, 2)}, {R(oim + k, 2)}" + ("" if conj else neg))
    def stats(self, X, st, scale, mscale):
        a = self.a
        S0, S1, Q0, Q1 = st, st + 1, st + 2, st + 3
        for r in range(4):
            a(f"v_dot2c_f32_bf16 {R(S0)}, {S(sOnes)}, {R(X + r)}")
            a(f"v_dot2c_f32_bf16 {R(Q0)}, {R(X + r)}, {R(X + r)}")
        for r in range(4):
            a(f"v_dot2c_f32_bf16 {R(S1)}, {S(sOnes)}, {R(X + 4 + r)}")
            a(f"v_dot2c_f32_bf16 {R(Q1)}, {R(X + 4 + r)}, {R(X + 4 + r)}")
        a(f"v_permlane32_swap_b32 {R(S0)}, {R(S1)}")
        a(f"v_permlane32_swap_b32 {R(Q0)}, {R(Q1)}")
        a(f"v_add_f32 {R(S0)}, {R(S0)}, {R(S1)}")
        a(f"v_add_f32 {R(Q0)}, {R(Q0)}, {R(Q1)}")
        a(f"v_permlane16_swap_b32 {R(S0)}, {R(Q0)}")
        a(f"v_add_f32 {R(S0)}, {R(S0)}, {R(Q0)}")
        for sh in (8, 4, 2, 1):
            a(f"v_add_f32_dpp {R(S0)}, {R(S0)}, {R(S0)} row_ror:{sh} row_mask:0xf bank_mask:0xf")
        a(f"v_mul_f32 {R(Q0)}, {fl(1 / 512)}, {R(S0)}")
        a(f"v_mul_f32 {R(S0)}, {fl(1 / 512)}, {R(S0)}")
        a(f"v_permlane16_swap_b32 {R(S0)}, {R(Q0)}")
        a(f"v_fma_f32 {R(Q0)}, -{R(S0)}, {R(S0)}, {R(Q0)}")
        a(f"v_max_f32 {R(Q0)}, 0, {R(Q0)}")
        if scale != 1.0: a(f"v_fmamk_f32 {R(Q0)}, {R(Q0)}, {fl(1 / scale ** 2)}, {R(self.vEps)}")
        else: a(f"v_add_f32 {R(Q0)}, {fl(1e-5)}, {R(Q0)}")
        a(f"v_rsq_f32 {R(Q0)}, {R(Q0)}")
        if mscale is not None:
            a(f"v_mov_b32 {R(self.vMu)}, {R(S0)}")
            a(f"v_mul_f32 {R(S0)}, {R(mscale)}, {R(S0)}")
        a(f"v_mul_f32 {R(st + 4)}, {R(S0)}, {R(Q0)}")
        a(f"v_mul_f32 {R(st + 6)}, {R(S0)}, {R(Q0)}")
        a(f"v_mov_b32 {R(st)}, {R(Q0)}")
        a(f"v_permlane32_swap_b32 {R(st + 4)}, {R(st + 6)}")
        a(f"v_permlane32_swap_b32 {R(st)}, {R(st + 2)}")
    def early_b(self):
        a = self.a; va = self.va; T = self.vT; L = self.vL
        self.vP = va(1, "vP"); u = va(2, "junk"); self.junk.append(u)
        L3 = a.label("w3"); Le = a.label("join")
        a(f"v_and_b32 {R(L)}, 63, v0")
        a(f"s_and_b32 {S(sW)}, s3, 3")
        a(f"s_cmp_eq_u32 s3, 7\ns_cbranch_scc1 {L3}")
        a(f"s_xor_b32 {S(sT0)}, s2, 255\ns_mul_i32 {S(sT0)}, {S(sT0)}, 3\ns_add_u32 {S(sPj)}, {S(sT0)}, {S(sW)}")
        a(f"s_and_b32 {S(sT0)}, {S(sPj)}, 15\ns_mul_i32 {S(sT0)}, {S(sT0)}, {8 * 2752}\ns_lshr_b32 {S(sT1)}, {S(sPj)}, 4\ns_lshl_b32 {S(sT1)}, {S(sT1)}, 7\ns_add_u32 {S(sT0)}, {S(sT0)}, {S(sT1)}")
        a(f"s_sub_u32 {S(sT1)}, {S(sPj)}, 352\ns_and_b32 {S(sT2)}, {S(sT1)}, 7\ns_lshl_b32 {S(sT2)}, {S(sT2)}, 7\ns_lshr_b32 {S(sT1)}, {S(sT1)}, 3\ns_lshl_b32 {S(sT1)}, {S(sT1)}, 15\ns_add_u32 {S(sT1)}, {S(sT1)}, {S(sT2)}")
        a(f"s_lshl_b32 {S(sStg)}, {S(sW)}, 13\ns_add_u32 {S(sStg)}, {S(sStg)}, {BST}\ns_mov_b32 m0, {S(sStg)}")
        a(f"s_movk_i32 {S(sCnt)}, 1024\ns_movk_i32 {S(sU0)}, 7168")
        a(f"v_lshrrev_b32 {R(T)}, 3, {R(L)}\nv_and_b32 {R(self.vP)}, 7, v0\nv_lshlrev_b32 {R(self.vP)}, 4, {R(self.vP)}")
        a(f"s_mov_b32 {S(sW1 + 2)}, {512 * 2752}\ns_mov_b32 {S(sW1 + 3)}, 0x20000")
        a(f"s_cmp_lt_u32 {S(sPj)}, 352\ns_cselect_b32 {S(sD0)}, {S(sT0)}, {S(sT1)}\ns_cselect_b32 {S(sCnt)}, 2752, {S(sCnt)}\ns_cselect_b32 {S(sU0)}, {128 * 2752 - 1024}, {S(sU0)}")
        a(f"v_mad_u32_u24 {R(self.vP)}, {R(T)}, {S(sCnt)}, {R(self.vP)}")
        a("s_waitcnt lgkmcnt(0)")
        a(f"s_cselect_b64 {S(sW1, 2)}, {S(sOff + 8, 2)}, {S(sOff + 10, 2)}")
        self.point("B_pre")
        a.auto = False
        for p in range(4):
            if p: a(f"s_add_u32 {S(sD0)}, {S(sD0)}, {S(sU0)}")
            a(f"buffer_load_dwordx4 {R(self.vP)}, {S(sW1, 4)}, {S(sD0)} offen offset:{p * 1024} lds")
        self.srds()
        a(f"s_branch {Le}\n{L3}:")
        k = self.vP
        a(f"s_lshl_b32 {S(sT0)}, {S(sM)}, 6\ns_add_u32 {S(sT0)}, {S(sT0)}, {S(sK1)}\ns_movk_i32 {S(sPj)}, 1023\ns_mov_b32 {S(sStg)}, {BST + 3 * BSTW}")
        a(f"v_and_b32 {R(k)}, 28, v0")
        a(f"v_lshl_add_u32 {R(k)}, {R(k)}, 1, {S(sT0)}")
        a(f"v_cmp_gt_u32 vcc, 32, {R(L)}")
        a(f"v_sub_u32 {R(u)}, 0, {R(k)}")
        a(f"v_and_b32 {R(u)}, 2047, {R(u)}")
        a(f"v_cndmask_b32 {R(k)}, {R(u)}, {R(k)}, vcc")
        a(f"v_mul_u32_u24 {R(k)}, 514, {R(k)}")
        a(f"v_and_b32 {R(u)}, 3, v0")
        a(f"v_mul_u32_u24 {R(u)}, 84, {R(u)}")
        a(f"v_and_b32 {R(T)}, 32, v0")
        a(f"v_lshl_add_u32 {R(u)}, {R(T)}, 3, {R(u)}")
        a(f"v_add_u32 {R(k)}, {R(k)}, {R(u)}")
        a("s_waitcnt lgkmcnt(0)")
        self.srds()
        self.point("B_pre3")
        a(f"buffer_load_dword {R(u)}, {R(k)}, {S(sWR, 4)}, 0 offen offset:2")
        a(f"buffer_load_dword {R(u + 1)}, {R(k)}, {S(sWI, 4)}, 0 offen offset:2")
        a.auto = True
        a(Le + ":")
        self.pkpos = a.tok
        va.free(self.vP)
    def pack_addr(self):
        a = self.a; va = self.va; L, G, T = self.vL, self.vG, self.vT
        self.vTr = va(2, "vTr", 1); self.PK = self.vb(16, "PK")
        a(f"s_lshr_b32 {S(sT0)}, {S(sPj)}, 4\ns_lshl_b32 {S(sT0)}, {S(sT0)}, 16\ns_and_b32 {S(sT1)}, {S(sPj)}, 15\ns_lshl_b32 {S(sT1)}, {S(sT1)}, 10\ns_add_u32 {S(sT0)}, {S(sT0)}, {S(sT1)}\ns_add_u32 {S(sT0)}, {S(sT0)}, {W1P}")
        a(f"s_sub_u32 {S(sT1)}, {S(sPj)}, 352\ns_and_b32 {S(sT2)}, {S(sT1)}, 7\ns_mul_i32 {S(sT2)}, {S(sT2)}, 43\ns_lshr_b32 {S(sT1)}, {S(sT1)}, 3\ns_add_u32 {S(sT1)}, {S(sT1)}, {S(sT2)}\ns_lshl_b32 {S(sT1)}, {S(sT1)}, 12\ns_add_u32 {S(sT1)}, {S(sT1)}, {W2P}")
        a(f"s_cmp_lt_u32 {S(sPj)}, 696\ns_cselect_b32 {S(sT1)}, {S(sT1)}, 2.0\ns_movk_i32 {S(sT2)}, 1024")
        a(f"s_cmp_lt_u32 {S(sPj)}, 352\ns_cselect_b32 {S(sPk)}, {S(sT0)}, {S(sT1)}\ns_cselect_b32 {S(sT0)}, 16384, {S(sT2)}\ns_cselect_b32 {S(sT1)}, 512, {S(sT2)}\ns_cselect_b32 {S(sT2)}, 0, 1")
        for t in range(1, 4): a(f"s_add_u32 {S(sPk + t)}, {S(sPk + t - 1)}, {S(sT0)}")
        a(f"v_and_b32 {R(T)}, {S(sT2)}, {R(G)}")
        a(f"v_lshlrev_b32 {R(self.vTr)}, 1, {R(G)}")
        a(f"v_sub_u32 {R(T)}, {R(self.vTr)}, {R(T)}")
        a(f"v_lshl_add_u32 {R(T)}, {R(T)}, 9, {S(sStg)}")
        a(f"v_and_b32 {R(self.vTr)}, 12, {R(L)}")
        a(f"v_lshl_add_u32 {R(T)}, {R(self.vTr)}, 5, {R(T)}")
        a(f"v_and_b32 {R(self.vTr)}, 3, {R(L)}")
        a(f"v_lshl_add_u32 {R(self.vTr)}, {R(self.vTr)}, 3, {R(T)}")
        a(f"v_add_u32 {R(self.vTr + 1)}, {S(sT1)}, {R(self.vTr)}")
    def pack_out(self):
        a = self.a; PK = self.PK
        a(f"s_waitcnt vmcnt({sum(1 for t, _ in a.vm if t > self.pkpos)})")
        self.stamp("pk_in")
        for t in range(4):
            for h in range(2): a(f"ds_read_b64_tr_b16 {R(PK + 4 * t + 2 * h, 2)}, {R(self.vTr + h)} offset:{32 * t}")
        for t in range(4):
            self.pktok = a(f"buffer_store_dwordx4 {R(PK + 4 * t, 4)}, {R(self.vL16)}, {S(sWS, 4)}, {S(sPk + t)} offen sc1")
        self.va.free(self.vTr); self.vb.free(self.PK)
    def pack_wait(self):
        self.a.wait_vm(self.pktok); self.pkdone = self.curbar
    def l1(self, ks):
        assert self.usable(1)
        for T in range(3):
            q = self.W1(ks, T)
            assert not any((q + k) in self.va.used for k in range(4)), ("w1 registers in use", ks)
            self.a(f"buffer_load_dwordx4 {R(q, 4)}, {R(self.vW1 + T)}, {S(sWS, 4)}, {S(sOff + 4 + (ks >> 2))} offen offset:{(ks & 3) * 1024}{self.cfg.get('wflag', ' sc1')}")
        self.loaded.add((1, ks))
    def l2(self, i):
        assert "b4" in self.bars
        self.a(f"s_lshl2_add_u32 {S(sD0)}, {S(sKap + i)}, {S(sU0)}")
        for t in range(4):
            q = self.W2(i, t)
            assert not any((q + k) in self.va.used for k in range(4)), ("w2 registers in use", i, self.va.used.get(q))
            self.a(f"buffer_load_dwordx4 {R(q, 4)}, {R(self.vL16)}, {S(sWS, 4)}, {S(sD0)} offen offset:{t * 1024}{self.cfg.get('wflag', ' sc1')}")
        self.loaded.add((2, i))
    def r2_addr(self):
        a = self.a; va = self.va; L, G, T = self.vL, self.vG, self.vT
        self.vR2 = va(1, "vR2"); u = va(1, "u")
        a(f"s_mov_b64 {S(sW2, 2)}, {S(sOff + 10, 2)}\ns_mov_b32 {S(sW2 + 2)}, {1376 * 1024}\ns_mov_b32 {S(sW2 + 3)}, 0x20000")
        self.tables_w2(5)
        a(f"v_lshlrev_b32 {R(u)}, 1, {R(G)}")
        a(f"v_bitop3_b32 {R(u)}, {R(u)}, {R(L)}, 7 bitop3:0x28")
        a(f"s_lshl_b32 {S(sT0)}, {S(sMem)}, 7\ns_mul_i32 {S(sEp)}, {S(sW)}, {4 * HROW}")
        a(f"v_lshl_add_u32 {R(u)}, {R(u)}, 4, {S(sT0)}")
        a(f"v_lshrrev_b32 {R(T)}, 3, {R(L)}")
        a(f"v_lshl_add_u32 {R(self.vR2)}, {R(T)}, 10, {R(u)}")
        va.free(u); self.junk.append(self.vR2)
    def r2_dma(self, i):
        a = self.a
        if i < 3: a(f"s_add_u32 m0, {S(sEp)}, {HTILE * (i + 1)}")
        else:
            assert self.pktok
            a(f"s_add_u32 m0, {S(sStg)}, {4096 * (i - 3)}")
        a(f"s_lshl_b32 {S(sD0)}, {S(sKap + i)}, 5")
        for p in range(4):
            if p: a(f"s_add_u32 {S(sD0)}, {S(sD0)}, 7168")
            self.r2tok = a(f"buffer_load_dwordx4 {R(self.vR2)}, {S(sW2, 4)}, {S(sD0)} offen offset:{p * 1024} lds")
        self.r2iss.add(i)
    def r2_wait(self):
        self.a.wait_vm(self.r2tok); self.r2done |= self.r2iss
    def r2_drain(self, n):
        a = self.a; va = self.va; L, T = self.vL, self.vT
        self.r2need = (n, self.bars[-1])
        tr = va(4, "tr", 1); ch = va(1, "ch"); u = va(1, "u")
        a(f"v_and_b32 {R(ch)}, 3, {R(L)}")
        a(f"v_lshl_add_u32 {R(ch)}, {R(ch)}, 3, {S(sLn2)}")
        a(f"v_bfe_u32 {R(T)}, {R(L)}, 2, 3")
        a(f"v_bfe_u32 {R(u)}, {R(L)}, 3, 2")
        a(f"v_lshl_add_u32 {R(ch)}, {R(T)}, 7, {R(ch)}")
        a(f"v_lshrrev_b32 {R(T)}, 5, {R(L)}")
        a(f"v_lshl_add_u32 {R(ch)}, {R(T)}, 11, {R(ch)}")
        for t in range(4):
            if t: a(f"v_xor_b32 {R(T)}, {t}, {R(u)}")
            a(f"v_lshl_add_u32 {R(tr + t)}, {R(T if t else u)}, 5, {R(ch)}")
        for i in range(n):
            if i == 3:
                a(f"s_mul_i32 {S(sT0)}, {S(sW)}, {BSTW - 4 * HROW}\ns_add_u32 {S(sT0)}, {S(sT0)}, {BST}")
                for t in range(4): a(f"v_add_u32 {R(tr + t)}, {S(sT0)}, {R(tr + t)}")
            off = HTILE * (i + 1) if i < 3 else 4096 * (i - 3)
            for t in range(4):
                q = self.W2(i, t)
                assert not any((q + k) in va.used for k in range(4)), ("w2 registers in use", i, va.used.get(q))
                for h in range(2): a(f"ds_read_b64_tr_b16 {R(q + 2 * h, 2)}, {R(tr + t)} offset:{off + 1024 * h}")
            self.loaded.add((2, i))
        a.wait_lg_all()
        va.free(tr, ch, u)
    def usable(self, k):
        idx = lambda n: (self.bars + ["b5"]).index(n)
        last1 = "e1" if "e1" in self.bars else "b1"
        if idx(self.pkdone) <= idx(last1): return idx(self.curbar) > idx("b2")
        assert idx(self.pkdone) <= idx("e2" if "e2" in self.bars else "b3")
        return idx(self.curbar) > idx("b4")
    def bcut(self):
        if self.cfg.get("bnear", 1):
            self.a("s_branch L_contB"); self.bend = len(self.a.ins); self.a("L_contB:")
    def skew_pub(self, name):
        a = self.a; k = self.stamps.index(name)
        a(f"s_waitcnt lgkmcnt(0)\ns_lshl_b32 s4, s2, 7\ns_add_u32 s4, s4, {STAMP}\nv_mov_b32 {R(self.vT)}, {S(sStamp + 2 * k)}")
        a(f"buffer_store_dword {R(self.vT)}, off, {S(sWS, 4)}, s4 sc1")
    def vmwait(self, n): self.a(f"s_waitcnt vmcnt({n})")
    def plist(self, name):
        out = []
        for op, item in self.sched.get(name, []):
            out.append(lambda op=op, item=item: getattr(self, op)(*item))
        return out
    def fake(self, *items):
        for it in items: self.cleared.add(it)
        self.clrdone = set(self.cleared)
    def freeW(self): self.va.free(self.aW, self.aR)
    def mark(self, name): self.stamp(name)
    def sleep(self, n): self.a(f"s_sleep {n}")
    def drainvm(self, name):
        self.a.wait_vm_all(); self.stamp(name)
    def point(self, name): self.a.run(self.plist(name))
    def weave(self, mains, fills, f0=0.0, f1=1.0):
        a = self.a
        lst = []
        for op, item in mains: lst += a.capture(getattr(self, op), *item)
        glued = []
        for x in lst:
            if glued and isinstance(glued[-1], str) and glued[-1].split("\n")[-1].startswith("s_cmp"): glued[-1] += "\n" + x
            else: glued.append(x)
        self.sched["_w"] = fills
        a.run(spread(glued, (self.plist("_w"), int(f0 * len(glued)), int(f1 * len(glued)))))
    def prologue(self):
        a = self.a; va = self.va
        self.stamp("entry")
        a(f"s_load_dwordx2 {S(sX, 2)}, s[0:1], 0")
        a(f"s_load_dwordx2 {S(sWS, 2)}, s[0:1], 64")
        a(f"s_load_dwordx4 {S(sOff + 4, 4)}, s[0:1], 8")
        a(f"s_load_dwordx4 {S(sOff + 8, 4)}, s[0:1], 32")
        a(f"s_load_dwordx2 {S(sO, 2)}, s[0:1], 48")
        a(f"s_cmp_ge_u32 s2, 256\ns_cbranch_scc1 L_end")
        self.vT = va(1, "T"); self.vL16 = va(1, "l16"); self.vZero = va(1, "zero")
        self.vL = va(1, "lane"); self.vLi = va(1, "li"); self.vG = va(1, "g"); self.vPf = va(1, "pf"); self.vM1 = va(4, "m1")
        L, Li, G, T = self.vL, self.vLi, self.vG, self.vT
        a("s_getpc_b64 s[4:5]")
        a(f"s_lshr_b32 {S(sM)}, s2, 3\ns_and_b32 {S(sT0)}, {S(sM)}, 3\ns_lshl_b32 {S(sT0)}, {S(sT0)}, 13")
        a(f"v_lshrrev_b32 {R(T)}, 3, v0")
        a(f"v_lshl_add_u32 {R(T)}, {R(T)}, 7, {S(sT0)}")
        a(f"global_load_dword {R(self.vPf)}, {R(T)}, s[4:5]")
        a(f"v_lshrrev_b32 {R(T)}, 6, v0")
        a(f"v_and_b32 {R(Li)}, 15, v0")
        a(f"v_readfirstlane_b32 s3, {R(T)}")
        a(f"v_bfe_u32 {R(G)}, v0, 4, 2")
        a(f"s_and_b32 {S(sK1)}, s2, 7")
        a(f"s_cmp_ge_u32 s3, 4\ns_cbranch_scc1 L_roleB")
    def wsbase(self):
        if self.cfg.get("wsoff"): self.a(f"s_add_u32 {S(sWS)}, {S(sWS)}, {self.cfg['wsoff']}\ns_addc_u32 {S(sWS + 1)}, {S(sWS + 1)}, 0")
    def common(self):
        a = self.a; L = self.vL
        a(f"v_and_b32 {R(L)}, 63, v0")
        if self.role == "B": self.wsbase()
        if self.role == "B": a(f"s_mov_b32 {S(sWS + 2)}, {WS_SIZE}\ns_mov_b32 {S(sWS + 3)}, 0x20000")
        if self.stamps:
            a(f"s_mov_b32 {S(sRet)}, 0\ns_mov_b32 {S(sRet + 1)}, 0")
            for k in range(1, len(self.stamps)):
                if self.stamps[k] != ("u0" if self.bars else "karg"): a(f"s_mov_b32 {S(sStamp + 2 * k)}, 0")
        a(f"s_and_b32 {S(sW)}, s3, 3")
        a(f"s_lshl_b32 {S(sN)}, {S(sK1)}, 5\ns_or_b32 {S(sN)}, {S(sN)}, {S(sM)}")
        a(f"s_and_b32 {S(sMem)}, {S(sM)}, 7")
        a(f"s_lshr_b32 {S(sRot)}, {S(sM)}, 3\ns_mul_i32 {S(sRot)}, {S(sRot)}, {self.cfg.get('rot1', 4)}")
        if self.cfg.get("xrot1"): a(f"s_mul_i32 {S(sT0)}, {S(sK1)}, {self.cfg['xrot1']}\ns_xor_b32 {S(sRot)}, {S(sRot)}, {S(sT0)}\ns_and_b32 {S(sRot)}, {S(sRot)}, 12")
        a(f"v_mov_b32 {R(self.vZero)}, 0")
        a(f"v_lshlrev_b32 {R(self.vL16)}, 4, {R(L)}")
        if self.bars:
            for i in range(4): a(f"v_mov_b32 {R(self.vM1 + i)}, -1")
        a(f"s_lshl_b32 {S(sT0)}, {S(sN)}, 13\ns_lshl_b32 {S(sT1)}, {S(sW)}, 11\ns_add_u32 {S(sOwn)}, {S(sT0)}, {S(sT1)}")
    def srds(self, first=0):
        a = self.a
        for reg, src, n in ((sWR, sOff + 4, 2048 * 514), (sWI, sOff + 6, 2048 * 514))[first:]:
            a(f"s_mov_b64 {S(reg, 2)}, {S(src, 2)}\ns_mov_b32 {S(reg + 2)}, {n}\ns_mov_b32 {S(reg + 3)}, 0x20000")
    def prologue_a(self):
        a = self.a; va = self.va; Li, G = self.vLi, self.vG
        self.aHf = va(1, "aHf"); self.aRw = va(2, "aRw", 1); self.aHw = va(1, "aHw")
        self.aHd = va(1, "aHd")
        self.X = va(8, "X"); aX = va(1, "aX"); self.vEp = va(1, "ep")
        a(f"s_lshl_b32 {S(sS2)}, {S(sK1)}, 4\ns_and_b32 {S(sT0)}, {S(sM)}, 15\ns_or_b32 {S(sS2)}, {S(sS2)}, {S(sT0)}")
        a(f"s_and_b32 {S(sT0)}, s2, 0x80\ns_or_b32 {S(sS2)}, {S(sS2)}, {S(sT0)}")
        a(f"v_lshlrev_b32 {R(aX)}, 2, {R(Li)}")
        a(f"v_lshl_add_u32 {R(aX)}, {R(G)}, 8, {R(aX)}")
        a(f"s_lshl_b32 {S(sT0)}, s3, 19\ns_lshl_b32 {S(sT1)}, {S(sS2)}, 10")
        a(f"s_add_u32 {S(sOff)}, {S(sT0)}, {S(sT1)}\ns_add_u32 {S(sOff + 1)}, {S(sOff)}, 0x40000")
        a(f"s_mov_b32 {S(sX + 2)}, 0x200000\ns_mov_b32 {S(sX + 3)}, 0x20000")
        a(f"s_mov_b32 {S(sWS + 2)}, {WS_SIZE}\ns_mov_b32 {S(sWS + 3)}, 0x20000\ns_mov_b32 {S(sT2)}, {EPO}")
        if self.cfg.get("prio", (1, 0, 2))[0]: a("s_setprio %d" % self.cfg.get("prio", (1, 0, 2))[0])
        self.point("pre_karg")
        a("s_waitcnt lgkmcnt(0)")
        self.stamp("karg")
        for rho in range(2):
            for r in range(4):
                a(f"buffer_load_dword {R(self.X + 4 * rho + r)}, {R(aX)}, {S(sX, 4)}, {S(sOff + rho)} offen offset:{64 * r}")
        self.wsbase()
        a(f"buffer_load_dword {R(self.vEp)}, off, {S(sWS, 4)}, {S(sT2)} sc1")
        va.free(aX)
        if self.cfg.get("bnear", 1):
            a("s_branch L_contA"); self.splice = len(a.ins); a("L_contA:")
        self.common()
        a(f"s_mul_i32 {S(sStg)}, {S(sW)}, {ARW}\ns_add_u32 {S(sStg)}, {S(sStg)}, {AR}")
        a(f"s_mov_b32 {S(sOnes)}, 0x3f803f80\ns_mov_b32 {S(sMask)}, 0x00030003")
        a(f"v_add_u32 {R(self.aHf)}, {S(sStg)}, {R(self.vL16)}")
        a(f"v_mov_b32 {R(self.vT)}, {S(sStg)}")
        a(f"ds_write_b32 {R(self.vT)}, {R(self.vZero)} offset:15360")
    def clear(self, base, i):
        a = self.a
        a(f"s_add_u32 {S(sU0)}, {S(sOwn)}, {base + 1024 * i}")
        t = a(f"buffer_store_dwordx4 {R(self.vM1, 4)}, {R(self.vL16)}, {S(sWS, 4)}, {S(sU0)} offen sc1")
        self.tokclr = self.tokhn = t
        self.cleared.add((base, i))
    def preclr(self, n):
        a = self.a
        a(f"s_mov_b32 {S(sWS + 2)}, {WS_SIZE}\ns_mov_b32 {S(sWS + 3)}, 0x20000\ns_lshl_b32 s4, s2, 2\ns_or_b32 s4, s4, {S(sW)}\ns_lshl_b32 s4, s4, 12\ns_or_b32 s4, s4, {HB}")
        a(f"v_lshlrev_b32 {R(self.vL16)}, 4, {R(self.vL)}")
        for i in range(4): a(f"v_mov_b32 {R(self.vM1 + i)}, -1")
        au = a.auto; a.auto = False
        for i in range(n): a(f"buffer_store_dwordx4 {R(self.vM1, 4)}, {R(self.vL16)}, {S(sWS, 4)}, s4 offen offset:{1024 * i} sc1")
        a.auto = au
    def clear_H(self, i):
        a = self.a
        a(f"s_add_u32 {S(sU0)}, {S(sHb)}, {HB + 1024 * i}")
        if i == 5: a("s_mov_b32 exec_hi, 0")
        self.tokclr = a(f"buffer_store_dwordx4 {R(self.vM1, 4)}, {R(self.vL16)}, {S(sWS, 4)}, {S(sU0)} offen sc1")
        if i == 5: a("s_mov_b32 exec_hi, -1")
        self.cleared.add((HB, i))
    def w_addr(self):
        a = self.a; va = self.va; L, T = self.vL, self.vT
        k = va(1, "k"); u = va(1, "u"); self.aW = va(1, "aW"); self.aR = va(1, "aR")
        if self.role == "A": self.srds()
        a(f"s_lshl_b32 {S(sT0)}, {S(sW)}, 5\ns_and_b32 {S(sT1)}, s2, 15\ns_add_u32 {S(sT0)}, {S(sT0)}, {S(sT1)}")
        a(f"v_and_b32 {R(k)}, 0x19, {R(L)}")
        a(f"v_lshl_add_u32 {R(k)}, {R(k)}, 4, {S(sT0)}")
        a(f"v_and_b32 {R(T)}, 6, {R(L)}")
        a(f"v_lshl_add_u32 {R(k)}, {R(T)}, 8, {R(k)}")
        a(f"v_cmp_gt_u32 vcc, 32, {R(L)}")
        a(f"s_lshr_b32 {S(sT0)}, {S(sM)}, 1\ns_lshl_b32 {S(sT0)}, {S(sT0)}, 4\ns_sub_u32 {S(sT1)}, 498, {S(sT0)}")
        a(f"v_sub_u32 {R(u)}, 0, {R(k)}")
        a(f"v_and_b32 {R(u)}, 2047, {R(u)}")
        a(f"v_mul_u32_u24 {R(k)}, 514, {R(k)}")
        a(f"v_mul_u32_u24 {R(u)}, 514, {R(u)}")
        a(f"v_add_u32 {R(T)}, {S(sT0)}, {R(k)}")
        a(f"v_add_u32 {R(u)}, {S(sT1)}, {R(u)}")
        a(f"v_cndmask_b32 {R(self.aW)}, {R(u)}, {R(T)}, vcc")
        a(f"v_cndmask_b32 {R(self.aR)}, 2.0, {R(k)}, vcc")
        va.free(k, u)
        a(f"s_cmp_ge_u32 {S(sM)}, 2\ns_cselect_b32 {S(sOff + 9)}, 2.0, 0")
        self.WL = self.vb(10, "WL")
    def w_load(self, x):
        self.a(f"buffer_load_dwordx4 {R(self.WL + 4 * x, 4)}, {R(self.aW)}, {S((sWR, sWI)[x], 4)}, 0 offen")
    def w_spec(self):
        for x in range(2): self.a(f"buffer_load_ushort {R(self.WL + 8 + x)}, {R(self.aR)}, {S((sWR, sWI)[x], 4)}, {S(sOff + 9)} offen offset:256")
    def w_stage(self):
        a = self.a; va = self.va; L, Li, G, T = self.vL, self.vLi, self.vG, self.vT
        self.Wraw = self.vb(16, "Wraw")
        aw = va(1, "aw"); aP = va(1, "aP"); aQ = va(1, "aQ")
        a(f"s_add_u32 {S(sT0)}, {S(sStg)}, 4096")
        a(f"v_add_u32 {R(aw)}, {S(sT0)}, {R(self.vL16)}")
        a(f"v_and_b32 {R(T)}, 1, {R(Li)}")
        a(f"v_lshl_add_u32 {R(T)}, {R(G)}, 1, {R(T)}")
        a(f"v_lshl_add_u32 {R(T)}, {R(T)}, 4, {S(sT0)}")
        a(f"v_and_or_b32 {R(aP)}, {R(Li)}, 14, {R(T)}")
        a(f"v_xor_b32 {R(aQ)}, 14, {R(aP)}")
        for i in range(16): a(f"v_mov_b32 {R(self.Wraw + i)}, 0")
        for x in range(2): a(f"ds_write_b128 {R(aw)}, {R(self.WL + 4 * x, 4)} offset:{1024 * x}")
        Ls = a.label("nor")
        a(f"v_mov_b32 {R(self.WL + 9)}, {R(self.WL + 9)}")
        a(f"s_cmp_ge_u32 {S(sM)}, 2\ns_cbranch_scc1 {Ls}")
        a.auto = False
        a("s_mov_b32 exec_hi, 0")
        for x in range(2): a(f"ds_write_b16 {R(aw)}, {R(self.WL + 8 + x)} offset:{1024 * x}")
        a("s_mov_b32 exec_hi, -1")
        a.auto = True
        a(Ls + ":")
        for r in range(4):
            for x in range(2):
                a(f"ds_read_u16_d16_hi {R(self.Wraw + 4 * x + r)}, {R(aP)} offset:{1024 * x + 128 * r}")
                a(f"ds_read_u16_d16_hi {R(self.Wraw + 8 + 4 * x + r)}, {R(aQ)} offset:{1024 * x + 128 * r + 512}")
        self.vb.free(self.WL); va.free(aw, aP, aQ, self.aW, self.aR)
    def w_coefs(self):
        a = self.a; va = self.va; T = self.vT; W = self.Wraw
        sc = 2.0 ** -19 * 1.0039
        K = va(4, "K")
        al, be, c, s = (K + i for i in range(4))
        a(f"s_lshr_b32 {S(sT0)}, {S(sM)}, 1\ns_lshl_b32 {S(sT0)}, {S(sT0)}, 4")
        a(f"v_and_or_b32 {R(T)}, {R(self.vLi)}, 14, {S(sT0)}")
        a(f"v_cmp_ne_u32 vcc, 0, {R(T)}")
        a(f"v_mov_b32 {R(al)}, {fl(0.25)}")
        a(f"v_cvt_f32_u32 {R(T)}, {R(T)}")
        a(f"v_mul_f32 {R(T)}, {fl(1 / 1024)}, {R(T)}")
        a(f"v_cndmask_b32 {R(T)}, {R(al)}, {R(T)}, vcc")
        self.sincos(c, s, T)
        a(f"v_mul_f32 {R(c)}, {fl(sc / 2)}, {R(c)}")
        a(f"v_mul_f32 {R(s)}, {fl(sc / 2)}, {R(s)}")
        a(f"v_cndmask_b32 {R(c)}, 0, {R(c)}, vcc")
        a(f"v_sub_f32 {R(al)}, {fl(sc / 2)}, {R(s)}")
        a(f"v_add_f32 {R(be)}, {fl(sc / 2)}, {R(s)}")
        self.CF = self.vb(24, "CF")
        A1r, A1i, Br, Bi, A2r, A2i = (self.CF + 4 * i for i in range(6))
        Pr, Pi, Qr, Qi = (W + 4 * i for i in range(4))
        lo2 = " op_sel_hi:[1,0]"; hi2 = " op_sel:[0,1] op_sel_hi:[1,1]"
        lo3 = " op_sel_hi:[1,0,1]"; hi3 = " op_sel:[0,1,0] op_sel_hi:[1,1,1]"
        n2 = " neg_lo:[0,1] neg_hi:[0,1]"; n3 = " neg_lo:[0,1,0] neg_hi:[0,1,0]"
        P = lambda x: R(x, 2)
        for k in (0, 2):
            a(f"v_pk_mul_f32 {P(A1r + k)}, {P(Pr + k)}, {P(al)}" + lo2)
            a(f"v_pk_mul_f32 {P(A2r + k)}, {P(Pr + k)}, {P(al)}" + hi2)
            a(f"v_pk_add_f32 {P(Bi + k)}, {P(Pr + k)}, {P(Qr + k)}" + n2)
            a(f"v_pk_mul_f32 {P(A1i + k)}, {P(Pi + k)}, {P(al)}" + lo2)
            a(f"v_pk_mul_f32 {P(A2i + k)}, {P(Pi + k)}, {P(al)}" + hi2)
            a(f"v_pk_add_f32 {P(Br + k)}, {P(Pi + k)}, {P(Qi + k)}")
            a(f"v_pk_fma_f32 {P(A1r + k)}, {P(Qr + k)}, {P(al)}, {P(A1r + k)}" + hi3)
            a(f"v_pk_fma_f32 {P(A2r + k)}, {P(Qr + k)}, {P(al)}, {P(A2r + k)}" + lo3)
            a(f"v_pk_mul_f32 {P(Bi + k)}, {P(Bi + k)}, {P(c)}" + lo2)
            a(f"v_pk_fma_f32 {P(A1i + k)}, {P(Qi + k)}, {P(al)}, {P(A1i + k)}" + hi3 + n3)
            a(f"v_pk_fma_f32 {P(A2i + k)}, {P(Qi + k)}, {P(al)}, {P(A2i + k)}" + lo3 + n3)
            a(f"v_pk_mul_f32 {P(Br + k)}, {P(Br + k)}, {P(c)}" + lo2 + n2)
        if self.role == "A":
            self.cf_own = True; va.free(K); self.vb.free(W); return
        a(f"s_mul_i32 {S(sT0)}, {S(sW)}, {ARW}\ns_add_u32 {S(sT0)}, {S(sT0)}, {AR + 4096}")
        a(f"v_add_u32 {R(T)}, {S(sT0)}, {R(self.vL16)}")
        for i in range(6): a(f"ds_write_b128 {R(T)}, {R(self.CF + 4 * i, 4)} offset:{1024 * i}")
        a.wait_lg_all()
        self.cf_sent = True
        va.free(K); self.vb.free(W, self.CF)
    def tables_p1(self):
        a = self.a; va = self.va; Li, G, T = self.vLi, self.vG, self.vT
        self.M = va(8, "M"); self.M2 = va(8, "M2"); self.TW = va(8, "TW"); self.Gm = va(8, "G")
        p = va(1, "p"); c = va(1, "c"); s = va(1, "s"); u = va(1, "u"); f = va(1, "f")
        a(f"v_mul_u32_u24 {R(p)}, {R(Li)}, {R(G)}")
        a(f"v_cvt_f32_u32 {R(f)}, {R(Li)}")
        a(f"v_cvt_f32_u32 {R(p)}, {R(p)}")
        a(f"v_mul_f32 {R(p)}, {fl(1 / 64)}, {R(p)}")
        for r in range(4):
            if r: a(f"v_fmamk_f32 {R(p)}, {R(f)}, {fl(1 / 256)}, {R(p)}")
            a(f"v_mul_f32 {R(T)}, {fl(16.0)}, {R(p)}")
            a(f"v_fract_f32 {R(T)}, {R(T)}")
            self.sincos(c, s, T)
            self.sincos(self.TW + r, self.TW + 4 + r, p)
            a(f"v_cvt_pk_bf16_f32 {R(self.M + r)}, {R(c)}, {R(s)}")
            a(f"v_cvt_pk_bf16_f32 {R(self.M + 4 + r)}, -{R(s)}, {R(c)}")
            a(f"v_cvt_pk_f16_f32 {R(self.M2 + r)}, {R(c)}, {R(s)}")
            a(f"v_cvt_pk_f16_f32 {R(self.M2 + 4 + r)}, -{R(s)}, {R(c)}")
        msk = va(1, "msk"); sg = va(1, "sg")
        a(f"v_lshrrev_b32 {R(u)}, 1, {R(Li)}")
        a(f"v_and_b32 {R(p)}, 1, {R(G)}")
        a(f"v_lshl_add_u32 {R(p)}, {R(p)}, 10, {S(sS2)}")
        a(f"v_mul_u32_u24 {R(p)}, {R(p)}, {R(u)}")
        a(f"v_cvt_f32_u32 {R(f)}, {R(u)}")
        a(f"v_cvt_f32_u32 {R(p)}, {R(p)}")
        a(f"v_lshrrev_b32 {R(msk)}, 1, {R(G)}")
        a(f"v_mul_f32 {R(p)}, {fl(1 / 2048)}, {R(p)}")
        a(f"v_xor_b32 {R(msk)}, {R(msk)}, {R(Li)}")
        a(f"v_and_b32 {R(msk)}, 1, {R(msk)}")
        a(f"v_add_u32 {R(msk)}, -1, {R(msk)}")
        a(f"v_lshlrev_b32 {R(sg)}, 31, {R(Li)}")
        for r in range(4):
            if r: a(f"v_fmamk_f32 {R(p)}, {R(f)}, {fl(1 / 8)}, {R(p)}")
            self.sincos(c, s, p)
            a(f"v_cvt_pk_f16_f32 {R(self.Gm + r)}, {R(c)}, {R(s)}")
            a(f"v_cvt_pk_f16_f32 {R(self.Gm + 4 + r)}, -{R(s)}, {R(c)}")
            for q in (self.Gm + r, self.Gm + 4 + r):
                a(f"v_bitop3_b32 {R(q)}, {R(q)}, {R(sg)}, {R(msk)} bitop3:0x28")
        self.vMsk = msk
        va.free(sg, p, s, f)
        self.aE1w = va(1, "aE1w"); self.aE1r = va(2, "aE1r", 1); self.aZ1 = va(1, "aZ1"); self.v16 = va(1, "m16")
        a(f"s_lshr_b32 {S(sT0)}, {S(sW)}, 1\ns_lshl_b32 {S(sT0)}, {S(sT0)}, 12\ns_and_b32 {S(sT1)}, {S(sW)}, 1\ns_lshl_b32 {S(sT1)}, {S(sT1)}, 3")
        a(f"s_add_u32 {S(sT0)}, {S(sT0)}, {S(sT1)}\ns_add_u32 {S(sT0)}, {S(sT0)}, {EA}")
        a(f"v_lshl_add_u32 {R(self.aE1w)}, {R(Li)}, 4, {S(sT0)}")
        a(f"v_lshl_add_u32 {R(self.aE1w)}, {R(G)}, 10, {R(self.aE1w)}")
        hh = va(1, "hh")
        a(f"v_and_b32 {R(hh)}, 1, {R(G)}")
        a(f"v_lshlrev_b32 {R(u)}, 18, {R(u)}")
        a(f"v_lshl_add_u32 {R(u)}, {R(hh)}, 4, {R(u)}")
        a(f"v_and_b32 {R(T)}, 2, {R(G)}")
        a(f"v_and_or_b32 {R(T)}, {R(Li)}, 1, {R(T)}")
        a(f"v_lshl_add_u32 {R(self.aZ1)}, {R(T)}, 5, {R(u)}")
        a(f"s_movk_i32 {S(sT1)}, {EA // 16}")
        a(f"v_lshl_add_u32 {R(hh)}, {R(hh)}, 8, {S(sT1)}")
        a(f"s_lshl_b32 {S(sT0)}, {S(sW)}, 5")
        q = self.aE1r
        a(f"v_add_u32 {R(q)}, {S(sT0)}, {R(Li)}")
        a(f"v_cmp_eq_u32 vcc, 0, {R(q)}")
        a(f"v_cmp_lt_u32 s[4:5], 1, {R(G)}")
        a(f"v_sub_u32 {R(c)}, 256, {R(q)}")
        a(f"v_add_u32 {R(q + 1)}, 16, {R(q)}")
        a(f"v_add_u32 {R(u)}, -16, {R(c)}")
        a(f"v_mov_b32 {R(T)}, 128")
        a(f"v_cndmask_b32 {R(c)}, {R(c)}, {R(T)}, vcc")
        a(f"v_cndmask_b32 {R(q)}, {R(q)}, {R(c)}, s[4:5]")
        a(f"v_cndmask_b32 {R(q + 1)}, {R(q + 1)}, {R(u)}, s[4:5]")
        a(f"v_cmp_eq_u32 vcc, 0, {R(Li)}")
        a(f"v_add_lshl_u32 {R(q)}, {R(q)}, {R(hh)}, 4")
        a(f"v_add_lshl_u32 {R(q + 1)}, {R(q + 1)}, {R(hh)}, 4")
        a(f"v_mov_b32 {R(T)}, {fl(16.0)}")
        a(f"v_cndmask_b32 {R(self.v16)}, 0, {R(T)}, vcc")
        va.free(c, hh, u)
        self.ST = va(8, "ST"); self.vMu = va(1, "mu")
        for i in range(4): a(f"v_mov_b32 {R(self.ST + i)}, 0")
        a(f"s_lshl_b32 {S(sT0)}, {S(sW)}, 16\ns_lshl_b32 {S(sT1)}, s2, 7\ns_add_u32 {S(sOff + 2)}, {S(sT0)}, {S(sT1)}\ns_add_u32 {S(sOff + 3)}, {S(sOff + 2)}, 32768")
    def tags(self):
        a = self.a; va = self.va; Li, G = self.vLi, self.vG
        self.TG = va(4, "TG", 1); self.TG2 = va(1, "TG2"); u = self.vEp; T = self.vPf
        a(f"v_readfirstlane_b32 {S(sEp)}, {R(self.vEp)}")
        a(f"v_and_b32 {R(u)}, 1, {R(G)}")
        a(f"v_lshlrev_b32 {R(u)}, 4, {R(u)}")
        a(f"s_add_u32 {S(sT2)}, {S(sEp)}, 1\ns_and_b32 {S(sT2)}, {S(sT2)}, 15")
        a(f"s_and_b32 {S(sEp)}, {S(sEp)}, 0xfffffff0")
        a(f"s_and_b32 {S(sCnt)}, {S(sEp)}, 0xfefefef0\ns_or_b32 {S(sCnt)}, {S(sCnt)}, 0x10101010")
        a(f"s_or_b32 {S(sEp)}, {S(sEp)}, {S(sT2)}")
        a(f"s_mul_i32 {S(sT2)}, {S(sT2)}, 0x01010101")
        a(f"s_and_b32 {S(sU0)}, {S(sCnt)}, 0x0f0f0f0f\ns_add_u32 {S(sU0)}, {S(sU0)}, {S(sT2)}\ns_and_b32 {S(sU0)}, {S(sU0)}, 0x0f0f0f0f")
        a(f"s_lshr_b32 {S(sCnt)}, {S(sCnt)}, 4\ns_and_b32 {S(sCnt)}, {S(sCnt)}, 0x0f0f0f0f\ns_add_u32 {S(sCnt)}, {S(sCnt)}, {S(sT2)}\ns_and_b32 {S(sCnt)}, {S(sCnt)}, 0x0f0f0f0f")
        a(f"s_lshl_b32 {S(sCnt)}, {S(sCnt)}, 4\ns_or_b32 {S(sTag)}, {S(sCnt)}, {S(sU0)}")
        a(f"v_bfe_u32 {R(u)}, {S(sTag)}, {R(u)}, 16")
        a(f"v_and_b32 {R(T)}, 7, {R(Li)}")
        a(f"v_lshlrev_b32 {R(T)}, 2, {R(T)}")
        a(f"v_lshl_or_b32 {R(self.TG)}, {R(u)}, 14, {R(u)}")
        a(f"v_bfe_u32 {R(T)}, {S(sTag)}, {R(T)}, 4")
        for r in range(1, 4): a(f"v_lshrrev_b32 {R(self.TG + r)}, {4 * r}, {R(self.TG)}")
        a(f"v_lshl_or_b32 {R(T)}, {R(T)}, 14, {R(T)}")
        a(f"v_and_b32 {R(self.TG2)}, {S(sMask)}, {R(T)}")
        self.later_free = [self.vEp, self.vPf]
    def p1(self):
        a = self.a; va = self.va; X = self.X; M = self.M; M2 = self.M2; ST = self.ST
        D = va(16, "D"); E = va(16, "E"); cs = va(8, "cs")
        for rho in range(2):
            for ri in range(2):
                a(f"v_mfma_f32_16x16x32_bf16 {R(D + 8 * rho + 4 * ri, 4)}, {R(X + 4 * rho, 4)}, {R(M + 4 * ri, 4)}, 0")
        self.stamp("x_in")
        st = a.capture(self.stats, X, ST, 1.0, self.v16)
        tg = a.capture(self.tags)
        a.run(spread(st, (tg, 16, len(st)), (self.plist("p1_a"), 16, len(st))))
        va.free(*self.later_free)
        for rho in range(2):
            for k in range(0, 8, 2):
                a(f"v_pk_mul_f32 {R(cs + k, 2)}, {R(self.TW + k, 2)}, {R(ST + 2 * rho, 2)} op_sel_hi:[1,0]")
            self.cmul(E + 8 * rho, E + 8 * rho + 4, D + 8 * rho, D + 8 * rho + 4, cs, cs + 4, False, addend=ST + 4 + 2 * rho)
            for r in range(4):
                a(f"v_cvt_pk_f16_f32 {R(X + 4 * rho + r)}, {R(E + 8 * rho + r)}, {R(E + 8 * rho + 4 + r)}")
            for ri in range(2):
                a(f"v_mfma_f32_16x16x32_f16 {R(D + 8 * rho + 4 * ri, 4)}, {R(M2 + 4 * ri, 4)}, {R(X + 4 * rho, 4)}, 0")
        for r in range(4): a(f"v_cvt_pk_f16_f32 {R(E + 2 * r)}, {R(D + r)}, {R(D + 4 + r)}")
        for r in range(4):
            a(f"v_cvt_pk_f16_f32 {R(E + 2 * r + 1)}, {R(D + 8 + r)}, {R(D + 12 + r)}")
            a(f"ds_write_b64 {R(self.aE1w)}, {R(E + 2 * r, 2)} offset:{256 * r}")
        a.wait_lg_all(); self.bar("b1")
        for t in range(2):
            a(f"ds_read_b128 {R(X + 4 * t, 4)}, {R(self.aE1r + t)}")
        for t in range(2):
            for ri in range(2):
                a(f"v_mfma_f32_16x16x32_f16 {R(D + 8 * t + 4 * ri, 4)}, {R(X + 4 * t, 4)}, {R(self.Gm + 4 * ri, 4)}, 0")
        self.point("p1_e")
        for t in range(2):
            for r in range(4):
                a(f"v_cvt_pk_f16_f32 {R(E + 4 * t + r)}, {R(D + 8 * t + r)}, {R(D + 8 * t + 4 + r)}")
            for r in range(4):
                a(f"v_bfi_b32 {R(E + 4 * t + r)}, {S(sMask)}, {R(self.TG + r)}, {R(E + 4 * t + r)}")
            a(f"buffer_store_dwordx4 {R(E + 4 * t, 4)}, {R(self.aZ1)}, {S(sWS, 4)}, {S(sOff + 2 + t)} offen sc1")
        self.stamp("z1_st")
        va.free(D, E, cs, X, self.Gm, self.aE1w, self.aE1r, self.aZ1, self.v16, self.TG)
    def tables_p2a(self):
        a = self.a; va = self.va; Li, G, T = self.vLi, self.vG, self.vT
        self.M1 = self.vb(16, "M1")
        ka = va(1, "ka"); f0 = va(1, "f0"); c = va(2, "c", 1); s = va(2, "s", 1)
        a(f"s_and_b32 {S(sT0)}, {S(sM)}, 1\ns_lshl_b32 {S(sT1)}, {S(sW)}, 2")
        a(f"v_and_or_b32 {R(ka)}, {R(Li)}, 14, {S(sT0)}")
        a(f"v_lshl_add_u32 {R(f0)}, {R(G)}, 6, {S(sT1)}")
        a(f"v_and_b32 {R(T)}, 1, {R(Li)}")
        a(f"v_lshlrev_b32 {R(T)}, 6, {R(T)}")
        a(f"v_mad_u32_u24 {R(f0)}, {R(f0)}, {R(ka)}, {R(T)}")
        a(f"v_and_b32 {R(f0)}, 255, {R(f0)}")
        a(f"v_cvt_f32_u32 {R(ka)}, {R(ka)}")
        a(f"v_cvt_f32_u32 {R(f0)}, {R(f0)}")
        a(f"v_mul_f32 {R(f0)}, {fl(1 / 256)}, {R(f0)}")
        for n in range(17):
            if n < 16:
                be, r = n >> 2, n & 3
                if n: a(f"v_fmamk_f32 {R(T)}, {R(ka)}, {fl(be / 256 + r / 16)}, {R(f0)}")
                self.sincos(c + (n & 1), s + (n & 1), T if n else f0)
            if n: a(f"v_cvt_pk_f16_f32 {R(self.M1 + n - 1)}, {R(c + ((n - 1) & 1))}, {R(s + ((n - 1) & 1))}")
        va.free(ka, f0, c, s)
    def tables_p2b(self):
        a = self.a; va = self.va; Li, G, T = self.vLi, self.vG, self.vT
        self.M5 = self.vb(16, "M5")
        b = va(1, "b"); st = va(1, "st"); f0 = va(1, "f0"); c = va(1, "c"); s = va(1, "s"); ih = va(1, "ih")
        a(f"s_and_b32 {S(sT0)}, {S(sM)}, 1\ns_lshl_b32 {S(sT1)}, {S(sW)}, 2")
        a(f"v_and_or_b32 {R(b)}, {R(Li)}, 1, {S(sT1)}")
        a(f"v_and_b32 {R(ih)}, 1, {R(G)}")
        a(f"v_lshlrev_b32 {R(ih)}, 2, {R(ih)}")
        for t in range(2):
            if t: a(f"v_add_u32 {R(b)}, 2, {R(b)}")
            a(f"v_and_b32 {R(st)}, 14, {R(Li)}")
            a(f"v_lshl_add_u32 {R(st)}, {R(st)}, 3, {R(b)}")
            a(f"v_lshlrev_b32 {R(st)}, 1, {R(st)}")
            a(f"v_mul_u32_u24 {R(f0)}, {S(sT0)}, {R(b)}")
            a(f"v_mad_u32_u24 {R(f0)}, {R(ih)}, {R(st)}, {R(f0)}")
            a(f"v_cvt_f32_u32 {R(st)}, {R(st)}")
            a(f"v_cvt_f32_u32 {R(f0)}, {R(f0)}")
            a(f"v_mul_f32 {R(f0)}, {fl(1 / 256)}, {R(f0)}")
            for r in range(4):
                if r: a(f"v_fmamk_f32 {R(f0)}, {R(st)}, {fl(1 / 256)}, {R(f0)}")
                self.sincos(c, s, f0)
                a(f"v_and_b32 {R(c)}, {R(self.vMsk)}, {R(c)}")
                a(f"v_and_b32 {R(s)}, {R(self.vMsk)}, {R(s)}")
                a(f"v_cvt_pk_bf16_f32 {R(self.M5 + 8 * t + r)}, {R(c)}, -{R(s)}")
                a(f"v_cvt_pk_bf16_f32 {R(self.M5 + 8 * t + 4 + r)}, {R(s)}, {R(c)}")
        va.free(b, st, f0, c, s, ih, self.vMsk)
    def addr_g1(self):
        a = self.a; va = self.va; Li, G, T = self.vLi, self.vG, self.vT
        self.aG1 = va(1, "aG1"); self.aG2 = va(1, "aG2")
        a(f"v_lshlrev_b32 {R(T)}, 2, {R(Li)}")
        a(f"v_lshl_add_u32 {R(self.aG2)}, {R(G)}, 9, {R(T)}")
        a(f"v_lshrrev_b32 {R(T)}, 1, {R(G)}")
        a(f"v_mul_u32_u24 {R(T)}, {16384 - 1024}, {R(T)}")
        a(f"v_add_u32 {R(self.aG1)}, {R(T)}, {R(self.aG2)}")
        a(f"s_lshr_b32 {S(sT0)}, {S(sN)}, 2\ns_lshl_b32 {S(sT0)}, {S(sT0)}, 15\ns_lshl_b32 {S(sT1)}, {S(sW)}, 12\ns_add_u32 {S(sT0)}, {S(sT0)}, {S(sT1)}")
        a(f"s_and_b32 {S(sT1)}, {S(sM)}, 2\ns_lshl_b32 {S(sT1)}, {S(sT1)}, 5\ns_add_u32 {S(sOff + 4)}, {S(sT0)}, {S(sT1)}")
    def addr_p2(self):
        a = self.a; va = self.va; Li, G, T = self.vLi, self.vG, self.vT
        self.aE2w = va(1, "aE2w"); self.aE2r = va(1, "aE2r"); self.aE3w = va(1, "aE3w"); self.aE3r = va(1, "aE3r"); self.aZ2 = va(1, "aZ2")
        p = va(1, "p"); h = va(1, "h"); o = va(1, "o")
        a(f"v_lshrrev_b32 {R(h)}, 1, {R(Li)}")
        a(f"v_and_b32 {R(o)}, 1, {R(Li)}")
        a(f"s_lshl_b32 {S(sT0)}, {S(sW)}, 11\ns_add_u32 {S(sT0)}, {S(sT0)}, {EB}")
        a(f"v_and_b32 {R(T)}, 8, {R(Li)}")
        a(f"v_add_lshl_u32 {R(p)}, {R(T)}, {R(Li)}, 4")
        a(f"v_lshl_add_u32 {R(p)}, {R(G)}, 9, {R(p)}")
        a(f"v_add_u32 {R(self.aE2w)}, {S(sT0)}, {R(p)}")
        a(f"s_lshl_b32 {S(sT0)}, {S(sW)}, 9\ns_add_u32 {S(sT0)}, {S(sT0)}, {EB}")
        a(f"v_lshl_add_u32 {R(p)}, {R(G)}, 11, {S(sT0)}")
        a(f"v_lshl_add_u32 {R(p)}, {R(o)}, 7, {R(p)}")
        a(f"v_lshl_add_u32 {R(self.aE2r)}, {R(h)}, 4, {R(p)}")
        a(f"s_lshr_b32 {S(sT0)}, {S(sW)}, 1\ns_lshl_b32 {S(sT0)}, {S(sT0)}, 8\ns_and_b32 {S(sT1)}, {S(sW)}, 1\ns_lshl_b32 {S(sT1)}, {S(sT1)}, 3")
        a(f"s_add_u32 {S(sT0)}, {S(sT0)}, {S(sT1)}\ns_add_u32 {S(sT0)}, {S(sT0)}, {EA}")
        a(f"v_mul_u32_u24 {R(p)}, 528, {R(Li)}")
        a(f"v_lshl_add_u32 {R(p)}, {R(G)}, 5, {R(p)}")
        a(f"v_add_u32 {R(self.aE3w)}, {S(sT0)}, {R(p)}")
        a(f"s_mul_i32 {S(sT0)}, {S(sW)}, {4 * 528}\ns_add_u32 {S(sT0)}, {S(sT0)}, {EA}")
        a(f"v_lshrrev_b32 {R(T)}, 1, {R(G)}")
        a(f"v_lshl_add_u32 {R(p)}, {R(T)}, 4, {S(sT0)}")
        a(f"v_add_u32 {R(self.aE3r)}, {R(self.vL16)}, {R(p)}")
        a(f"v_lshlrev_b32 {R(p)}, 18, {R(h)}")
        a(f"v_lshl_add_u32 {R(p)}, {R(o)}, 6, {R(p)}")
        a(f"v_lshl_add_u32 {R(self.aZ2)}, {R(G)}, 4, {R(p)}")
        self.TG3 = va(4, "TG3", 1); self.TG4 = va(1, "TG4")
        a(f"v_lshlrev_b32 {R(p)}, 3, {R(G)}")
        a(f"v_bfe_u32 {R(p)}, {S(sTag)}, {R(p)}, 8")
        a(f"v_lshl_or_b32 {R(self.TG3)}, {R(p)}, 15, {R(p)}")
        for r in range(1, 4): a(f"v_lshrrev_b32 {R(self.TG3 + r)}, {2 * r}, {R(self.TG3)}")
        a(f"v_lshlrev_b32 {R(p)}, 1, {R(Li)}")
        a(f"v_bfe_u32 {R(p)}, {S(sTag)}, {R(p)}, 2")
        a(f"v_lshl_or_b32 {R(p)}, {R(p)}, 15, {R(p)}")
        a(f"v_and_b32 {R(self.TG4)}, 0x10001, {R(p)}")
        va.free(p, h, o)
        a(f"s_lshl_b32 {S(sT0)}, {S(sW)}, 16\ns_lshl_b32 {S(sT1)}, s2, 7\ns_add_u32 {S(sT0)}, {S(sT0)}, {S(sT1)}")
        a(f"s_add_u32 {S(sOff + 6)}, {S(sT0)}, {Z2}\ns_add_u32 {S(sOff + 7)}, {S(sT0)}, {Z2 + 32768}")
        a(f"s_or_b32 {S(sT0)}, s2, {S(sW)}\ns_cmp_lg_u32 {S(sT0)}, 0\ns_cselect_b32 {S(sOff + 8)}, 2.0, {EPO}")
    def prewrite(self, which):
        a = self.a; E = self.va(4, "pre")
        tg = self.TG if which == 1 else self.TG3
        for r in range(4): a(f"v_not_b32 {R(E + r)}, {R(tg + r)}")
        for t in range(2): a(f"buffer_store_dwordx4 {R(E, 4)}, {R(self.aZ1 if which == 1 else self.aZ2)}, {S(sWS, 4)}, {S(sOff + (2 if which == 1 else 6) + t)} offen sc1")
        self.va.free(E)
    def p2_gather(self):
        a = self.a; va = self.va
        self.Y = va(16, "Y")
        self.g1 = [f"buffer_load_dword {R(self.Y + 4 * be + r)}, {R(self.aG1)}, {S(sWS, 4)}, {S(sOff + 4)} offen offset:{1024 * be + 128 * r} sc1"
                   for be in range(4) for r in range(4)]
        self.stamp("g1")
        for l in self.g1: a(l)
    def p2(self):
        a = self.a; va = self.va; Y = self.Y; M = self.M; M2 = self.M2; T = self.vT
        D = va(16, "D"); E = va(16, "E")
        def chk():
            for be in range(4):
                for i in range(4 * be, 4 * be + 4): a(f"v_xor_b32 {R(Y + i)}, {R(self.TG2)}, {R(Y + i)}")
                if be == 0: a(f"v_or_b32 {R(T)}, {R(Y)}, {R(Y + 1)}")
                else: a(f"v_or3_b32 {R(T)}, {R(T)}, {R(Y + 4 * be)}, {R(Y + 4 * be + 1)}")
                a(f"v_or3_b32 {R(T)}, {R(T)}, {R(Y + 4 * be + 2)}, {R(Y + 4 * be + 3)}")
                a(f"v_mfma_f32_16x16x32_f16 {R(D + 4 * be, 4)}, {R(self.M1 + 4 * be, 4)}, {R(Y + 4 * be, 4)}, 0")
            a(f"v_and_b32 {R(T)}, {S(sMask)}, {R(T)}")
            a(f"v_cmp_ne_u32 vcc, 0, {R(T)}")
        self.poll("z1", self.g1, chk)
        self.stamp("z1_in")
        for ip in range(2):
            for be in range(4):
                a(f"v_cvt_pk_f16_f32 {R(E + 4 * ip + be)}, {R(D + 4 * be + 2 * ip)}, {R(D + 4 * be + 2 * ip + 1)}")
            a(f"ds_write_b128 {R(self.aE2w)}, {R(E + 4 * ip, 4)} offset:{128 * ip}")
        self.point("p2_a")
        a.wait_lg_all(); self.bar("b2")
        for uv in range(2):
            a(f"ds_read_b128 {R(Y + 4 * uv, 4)}, {R(self.aE2r)} offset:{256 * uv}")
        if not self.cf_own: self.CF = va(24, "CF")
        for i in range(0 if self.cf_own else 6): a(f"ds_read_b128 {R(self.CF + 4 * i, 4)}, {R(self.aHf)} offset:{4096 + 1024 * i}")
        a(f"v_mov_b32 {R(T)}, {S(sEp)}")
        a(f"buffer_store_dword {R(T)}, {R(self.vZero)}, {S(sWS, 4)}, {S(sOff + 8)} offen sc1")
        self.point("p2_b")
        for uv in range(2):
            for ri in range(2):
                a(f"v_mfma_f32_16x16x32_f16 {R(D + 8 * uv + 4 * ri, 4)}, {R(M2 + 4 * ri, 4)}, {R(Y + 4 * uv, 4)}, 0")
        self.point("p2_c")
        Ur, Ui, Vr, Vi = D, D + 4, D + 8, D + 12
        A1r, A1i, Br, Bi, A2r, A2i = (self.CF + 4 * i for i in range(6))
        neg = " neg_lo:[0,1,0] neg_hi:[0,1,0]"; neg2 = " neg_lo:[0,1] neg_hi:[0,1]"
        terms = [(E, [(Ur, A1r, 0), (Ui, A1i, 1), (Vr, Br, 0), (Vi, Bi, 1)]),
                 (E + 4, [(Ur, A1i, 0), (Ui, A1r, 0), (Vr, Bi, 0), (Vi, Br, 0)]),
                 (E + 8, [(Ur, Br, 1), (Ui, Bi, 0), (Vr, A2r, 0), (Vi, A2i, 1)]),
                 (E + 12, [(Ur, Bi, 1), (Ui, Br, 1), (Vr, A2i, 0), (Vi, A2r, 0)])]
        def mix(tm, step):
            for o, tl in tm:
                x, cf, ng = tl[step]
                for k in (0, 2):
                    if step == 0: a(f"v_pk_mul_f32 {R(o + k, 2)}, {R(x + k, 2)}, {R(cf + k, 2)}" + (neg2 if ng else ""))
                    else: a(f"v_pk_fma_f32 {R(o + k, 2)}, {R(x + k, 2)}, {R(cf + k, 2)}, {R(o + k, 2)}" + (neg if ng else ""))
        D2 = Y + 8
        for step in range(2): mix(terms, step)
        for uv in range(2):
            for step in (2, 3): mix(terms[2 * uv:2 * uv + 2], step)
            for r in range(4):
                a(f"v_cvt_pk_bf16_f32 {R(Y + 4 * uv + r)}, {R(E + 8 * uv + 4 + r)}, {R(E + 8 * uv + r)}")
            dst = D2 if uv == 0 else D
            for ri in range(2):
                a(f"v_mfma_f32_16x16x32_bf16 {R(dst + 4 * ri, 4)}, {R(Y + 4 * uv, 4)}, {R(M + 4 * (1 - ri), 4)}, 0")
        for uv in range(2):
            dst = D2 if uv == 0 else D
            for sp in range(2):
                for r in (2 * sp, 2 * sp + 1):
                    a(f"v_cvt_pk_bf16_f32 {R(E + 4 * uv + r)}, {R(dst + r)}, {R(dst + 4 + r)}")
                a(f"ds_write_b64 {R(self.aE3w)}, {R(E + 4 * uv + 2 * sp, 2)} offset:{128 * uv + 16 * sp}")
        a(f"s_mov_b32 {S(sMask)}, 0x10001")
        self.point("p2_d")
        a.wait_lg_all(); self.bar("b3")
        for t in range(2):
            a(f"ds_read_b128 {R(Y + 4 * t, 4)}, {R(self.aE3r)} offset:{1056 * t}")
        for t in range(2):
            for ri in range(2):
                a(f"v_mfma_f32_16x16x32_bf16 {R(D + 8 * t + 4 * ri, 4)}, {R(Y + 4 * t, 4)}, {R(self.M5 + 8 * t + 4 * ri, 4)}, 0")
        self.point("p2_e")
        for t in range(2):
            for r in range(4):
                a(f"v_cvt_pk_bf16_f32 {R(E + 4 * t + r)}, {R(D + 8 * t + r)}, {R(D + 8 * t + 4 + r)}")
            for r in range(4):
                a(f"v_bfi_b32 {R(E + 4 * t + r)}, {S(sMask)}, {R(self.TG3 + r)}, {R(E + 4 * t + r)}")
            a(f"buffer_store_dwordx4 {R(E + 4 * t, 4)}, {R(self.aZ2)}, {S(sWS, 4)}, {S(sOff + 6 + t)} offen sc1")
        self.stamp("z2_st")
        self.vb.free(self.CF, self.M1, self.M5)
        va.free(D, E, Y, self.M2, self.TG2, self.aG1, self.aE2w, self.aE2r, self.aE3w, self.aE3r, self.aZ2, self.TG3)
    def xnat_load(self):
        a = self.a; va = self.va
        self.XN = va(8, "XN"); self.vNat = va(1, "nat")
        a(f"v_lshlrev_b32 {R(self.vNat)}, 6, {R(self.vLi)}")
        a(f"v_lshl_add_u32 {R(self.vNat)}, {R(self.vG)}, 4, {R(self.vNat)}")
        for rho in range(2):
            a(f"buffer_load_dwordx4 {R(self.XN + 4 * rho, 4)}, {R(self.vNat)}, {S(sX, 4)}, {S(sOff + rho)} offen")
    def addr_g2(self):
        a = self.a
        a(f"s_bfe_u32 {S(sT0)}, {S(sS2)}, 0x60001\ns_lshl_b32 {S(sT0)}, {S(sT0)}, 15\ns_lshl_b32 {S(sT1)}, {S(sW)}, 13\ns_add_u32 {S(sT0)}, {S(sT0)}, {S(sT1)}")
        a(f"s_and_b32 {S(sT1)}, {S(sM)}, 1\ns_lshl_b32 {S(sT1)}, {S(sT1)}, 6\ns_add_u32 {S(sT0)}, {S(sT0)}, {S(sT1)}")
        a(f"s_add_u32 {S(sOff + 4)}, {S(sT0)}, {Z2}\ns_add_u32 {S(sOff + 5)}, {S(sT0)}, {Z2 + 4096}")
    def tables_p3(self):
        a = self.a; va = self.va; Li, G, T = self.vLi, self.vG, self.vT
        self.M4 = va(8, "M4"); self.Gi = va(4, "Gi"); self.vEps = va(1, "eps")
        self.aE4w = va(4, "aE4w", 1); self.aE4r = va(2, "aE4r", 1)
        p = va(1, "p"); c = va(1, "c"); s = va(1, "s"); u = va(1, "u")
        a(f"v_lshrrev_b32 {R(u)}, 1, {R(Li)}")
        a(f"v_lshl_add_u32 {R(u)}, {R(u)}, 8, {S(sS2)}")
        a(f"v_and_b32 {R(T)}, 1, {R(G)}")
        a(f"v_mul_u32_u24 {R(p)}, {R(u)}, {R(T)}")
        a(f"s_lshr_b32 {S(sT0)}, {S(sS2)}, 4\ns_lshl_b32 {S(sT0)}, {S(sT0)}, 4")
        a(f"v_and_b32 {R(c)}, 2, {R(G)}")
        a(f"v_mad_u32_u24 {R(p)}, {R(c)}, {S(sT0)}, {R(p)}")
        a(f"v_and_b32 {R(T)}, 1, {R(Li)}")
        a(f"v_lshlrev_b32 {R(T)}, 7, {R(T)}")
        a(f"v_sub_u32 {R(p)}, {R(T)}, {R(p)}")
        a(f"v_and_b32 {R(p)}, 511, {R(p)}")
        a(f"v_cvt_f32_u32 {R(u)}, {R(u)}")
        a(f"v_cvt_f32_u32 {R(p)}, {R(p)}")
        a(f"v_lshlrev_b32 {R(c)}, 14, {R(c)}")
        a(f"v_mul_f32 {R(p)}, {fl(1 / 512)}, {R(p)}")
        for i in range(8): a(f"v_xor_b32 {R(self.M4 + i)}, {R(c)}, {R(self.M + i)}")
        for r in range(4):
            self.sincos(c, s, p)
            if r < 3: a(f"v_fmamk_f32 {R(p)}, {R(u)}, {fl(-1 / 2048)}, {R(p)}")
            a(f"v_cvt_pk_bf16_f32 {R(self.Gi + r)}, {R(c)}, {R(s)}")
        a(f"v_mul_u32_u24 {R(u)}, {ARW + 64}, {R(G)}")
        a(f"v_add_u32 {R(u)}, {AR}, {R(u)}")
        a(f"s_lshl_b32 {S(sT0)}, {S(sW)}, 5")
        a(f"v_and_or_b32 {R(p)}, {R(Li)}, 7, {S(sT0)}")
        a(f"v_cmp_lt_u32 s[4:5], 7, {R(Li)}")
        a(f"v_cmp_eq_u32 vcc, 0, {R(p)}")
        a(f"v_sub_u32 {R(c)}, 256, {R(p)}")
        a(f"v_mov_b32 {R(T)}, 128")
        for t in range(4):
            q = self.aE4w + t
            if t:
                a(f"v_add_u32 {R(p)}, 8, {R(p)}\nv_add_u32 {R(c)}, -8, {R(c)}")
                a(f"v_cndmask_b32 {R(q)}, {R(p)}, {R(c)}, s[4:5]")
            else:
                a(f"v_cndmask_b32 {R(T)}, {R(c)}, {R(T)}, vcc")
                a(f"v_cndmask_b32 {R(q)}, {R(p)}, {R(T)}, s[4:5]")
            a(f"v_lshrrev_b32 {R(T)}, 6, {R(q)}")
            a(f"v_lshl_add_u32 {R(q)}, {R(T)}, 4, {R(q)}")
            a(f"v_lshl_add_u32 {R(q)}, {R(q)}, 2, {R(u)}")
        a(f"s_mul_i32 {S(sT0)}, {S(sW)}, {ARW + 64}\ns_add_u32 {S(sT0)}, {S(sT0)}, {AR}")
        a(f"v_mul_u32_u24 {R(p)}, 320, {R(G)}")
        a(f"v_lshl_add_u32 {R(p)}, {R(Li)}, 2, {R(p)}")
        a(f"v_add_u32 {R(self.aE4r)}, {S(sT0)}, {R(p)}")
        a(f"v_add_u32 {R(self.aE4r + 1)}, 1280, {R(self.aE4r)}")
        va.free(p, c, s, u)
        for i in range(4): a(f"v_mov_b32 {R(self.ST + i)}, 0")
        a(f"v_mov_b32 {R(self.vEps)}, {fl(1e-5 / 1.4426950408889634 ** 2)}")
        a(f"s_add_u32 {S(sOff + 6)}, {S(sOwn)}, {HN}\ns_lshr_b32 {S(sOff + 7)}, {S(sOwn)}, 4\ns_add_u32 {S(sOff + 7)}, {S(sOff + 7)}, {HH}")
    def pre_st(self):
        a = self.a; T = self.vT; E = self.va(2, "pre")
        a(f"v_not_b32 {R(E)}, {S(sEp)}")
        a(f"v_lshlrev_b32 {R(T)}, 2, {R(self.vL)}")
        a(f"s_mov_b32 exec_hi, 0")
        a(f"buffer_store_dword {R(E)}, {R(T)}, {S(sWS, 4)}, {S(sOff + 7)} offen sc1")
        a(f"s_mov_b32 exec_hi, -1")
        self.va.free(E)
    def xnat_unpack(self):
        a = self.a; va = self.va
        self.XC = va(16, "XC")
        for rho in range(2):
            for r in range(4):
                a(f"v_lshlrev_b32 {R(self.XC + 8 * rho + r)}, 16, {R(self.XN + 4 * rho + r)}")
                a(f"v_and_b32 {R(self.XC + 8 * rho + 4 + r)}, 0xffff0000, {R(self.XN + 4 * rho + r)}")
        va.free(self.XN)
    def p3_gather(self):
        a = self.a; va = self.va
        self.Y = va(16, "Y")
        self.g2 = [f"buffer_load_dword {R(self.Y + 4 * t + r)}, {R(self.aG2)}, {S(sWS, 4)}, {S(sOff + 4 + (t >> 1))} offen offset:{(t & 1) * 2048 + 128 * r} sc1"
                   for t in range(4) for r in range(4)]
        self.stamp("g2")
        for l in self.g2: a(l)
    def p3(self):
        a = self.a; va = self.va; Y = self.Y; M = self.M; M4 = self.M4; ST = self.ST; XC = self.XC; T = self.vT
        D = va(16, "D"); E = va(16, "E")
        TG4 = self.TG4; Gi = self.Gi
        def chk():
            for t in range(4):
                for i in range(4 * t, 4 * t + 4): a(f"v_xor_b32 {R(Y + i)}, {R(TG4)}, {R(Y + i)}")
                if t == 0: a(f"v_or_b32 {R(T)}, {R(Y)}, {R(Y + 1)}")
                else: a(f"v_or3_b32 {R(T)}, {R(T)}, {R(Y + 4 * t)}, {R(Y + 4 * t + 1)}")
                a(f"v_or3_b32 {R(T)}, {R(T)}, {R(Y + 4 * t + 2)}, {R(Y + 4 * t + 3)}")
                a(f"v_mfma_f32_16x16x32_bf16 {R(D + 4 * t, 4)}, {R(Gi, 4)}, {R(Y + 4 * t, 4)}, 0")
            a(f"v_and_b32 {R(T)}, {S(sMask)}, {R(T)}")
            a(f"v_cmp_ne_u32 vcc, 0, {R(T)}")
        self.poll("z2", self.g2, chk)
        self.stamp("z2_in")
        for t in range(4):
            a(f"v_cvt_pk_bf16_f32 {R(E + 2 * t)}, {R(D + 4 * t + 1)}, {R(D + 4 * t)}")
            a(f"v_cvt_pk_bf16_f32 {R(E + 2 * t + 1)}, {R(D + 4 * t + 3)}, {R(D + 4 * t + 2)}")
            a(f"ds_write2st64_b32 {R(self.aE4w + t)}, {R(E + 2 * t)}, {R(E + 2 * t + 1)} offset0:0 offset1:5")
        self.point("p3_a")
        a.wait_lg_all(); self.bar("b4")
        for rho in range(2):
            for h in range(2):
                tk = a(f"ds_read2_b32 {R(Y + 4 * rho + 2 * h, 2)}, {R(self.aE4r + rho)} offset0:{32 * h} offset1:{32 * h + 16}")
        self.point("p3_b")
        for rho in range(2):
            for ri in range(2):
                a(f"v_mfma_f32_16x16x32_bf16 {R(D + 8 * rho + 4 * ri, 4)}, {R(Y + 4 * rho, 4)}, {R(M4 + 4 * (1 - ri), 4)}, 0")
        self.point("p3_c")
        for rho in range(2):
            self.cmul(E + 8 * rho, E + 8 * rho + 4, D + 8 * rho, D + 8 * rho + 4, self.TW, self.TW + 4, True)
            for r in range(4):
                a(f"v_cvt_pk_bf16_f32 {R(Y + 4 * rho + r)}, {R(E + 8 * rho + 4 + r)}, {R(E + 8 * rho + r)}")
            for ri in range(2):
                q = XC + 8 * rho + 4 * ri
                a(f"v_mfma_f32_16x16x32_bf16 {R(q, 4)}, {R(Y + 4 * rho, 4)}, {R(M + 4 * (1 - ri), 4)}, {R(q, 4)}")
        st = a.capture(self.stats, D, ST, 1.4426950408889634, None)
        cv = [[f"v_cvt_pk_bf16_f32 {R(D + 4 * rho + r)}, {R(XC + 8 * rho + r)}, {R(XC + 8 * rho + 4 + r)}" for r in range(4)] for rho in range(2)]
        a.run(cv[0] + st[:8] + cv[1] + st[8:16])
        a.run(spread(st[16:], (self.plist("p3_d"), 0, len(st) - 16)))
        self.point("p3_e")
        for rho in range(2):
            for k in range(0, 8, 2):
                q = XC + 8 * rho + k
                a(f"v_pk_fma_f32 {R(q, 2)}, {R(q, 2)}, {R(ST + 2 * rho, 2)}, {R(ST + 4 + 2 * rho, 2)} op_sel_hi:[1,0,0] neg_lo:[0,0,1] neg_hi:[0,0,1]")
            for r in range(4):
                a(f"v_cvt_pk_bf16_f32 {R(E + 4 * rho + r)}, {R(XC + 8 * rho + r)}, {R(XC + 8 * rho + 4 + r)}")
            tokhn = a(f"buffer_store_dwordx4 {R(E + 4 * rho, 4)}, {R(self.vNat)}, {S(sWS, 4)}, {S(sOff + 6)} offen offset:{1024 * rho} sc1")
        self.stamp("hn_st")
        self.point("p3_s")
        a(f"v_cmp_gt_u32 vcc, 32, {R(self.vL)}")
        a(f"v_and_b32 {R(T)}, 28, {R(self.vL)}")
        a(f"v_mov_b32 {R(D + 2)}, {S(sEp)}")
        a(f"v_cndmask_b32 {R(D)}, {R(ST + 2)}, {R(ST)}, vcc")
        a(f"v_mov_b32 {R(D + 1)}, {R(self.vMu)}")
        a(f"v_rcp_f32 {R(D)}, {R(D)}")
        a(f"v_lshlrev_b32 {R(T)}, 25, {R(T)}")
        a(f"v_and_or_b32 {R(T)}, {R(self.vL16)}, 48, {R(T)}")
        a(f"v_and_b32 {R(D + 3)}, 32, {R(self.vL)}")
        a(f"v_lshl_add_u32 {R(T)}, {R(D + 3)}, 1, {R(T)}")
        self.point("p3_t")
        a.wait_vm(tokhn)
        a(f"buffer_store_dwordx4 {R(D, 4)}, {R(T)}, {S(sWS, 4)}, {S(sOff + 7)} offen sc1")
        self.stamp("st_st")
        va.free(D, E, Y, XC, ST, self.M, self.M4, self.TW, self.Gi, self.aE4w, self.aE4r, self.aG2, self.vNat, self.vEps, self.vMu, self.TG4)
    def tables_w2(self, n=11):
        a = self.a; va = self.va; L, Li, G, T = self.vL, self.vLi, self.vG, self.vT
        a(f"s_lshr_b32 {S(sT2)}, {S(sM)}, 3\ns_mul_i32 {S(sT2)}, {S(sT2)}, {self.cfg.get('rot2', 3)}\ns_mul_i32 {S(sT1)}, {S(sK1)}, {self.cfg.get('xrot2', 0)}\ns_add_u32 {S(sT2)}, {S(sT2)}, {S(sT1)}")
        if self.cfg.get("mrot"): a(f"s_mul_i32 {S(sT1)}, {S(sMem)}, {self.cfg['mrot']}\ns_add_u32 {S(sT2)}, {S(sT2)}, {S(sT1)}")
        a(f"s_mul_i32 {S(sT1)}, {S(sT2)}, 373\ns_lshr_b32 {S(sT1)}, {S(sT1)}, 12\ns_mul_i32 {S(sT1)}, {S(sT1)}, 11\ns_sub_u32 {S(sT2)}, {S(sT2)}, {S(sT1)}")
        a(f"s_lshl_b32 {S(sT2)}, {S(sT2)}, 10\ns_mul_i32 {S(sT1)}, {S(sW)}, 11264")
        a(f"s_add_u32 {S(sT0)}, {S(sT2)}, {S(sT1)}\ns_add_u32 {S(sT2)}, {S(sT1)}, 11264")
        sal = []
        for i in range(n):
            if i: sal += [f"s_add_u32 {S(sT0)}, {S(sT0)}, 1024", f"s_cmp_eq_u32 {S(sT0)}, {S(sT2)}", f"s_cselect_b32 {S(sT0)}, {S(sT1)}, {S(sT0)}"]
            sal += [f"s_cmp_eq_u32 {S(sT0)}, {43 * 1024}", f"s_cselect_b32 {S(sKap + i)}, 0x2000000, {S(sT0)}"]
        a.run(sal)
        a(f"s_mul_i32 {S(sU0)}, {S(sMem)}, {43 * 4096}\ns_add_u32 {S(sU0)}, {S(sU0)}, {W2P}")
    def addr_g3(self):
        a = self.a
        a(f"s_lshr_b32 {S(sT0)}, {S(sN)}, 3\ns_lshl_b32 {S(sT1)}, {S(sT0)}, 16\ns_lshl_b32 {S(sT2)}, {S(sW)}, 12\ns_add_u32 {S(sT0)}, {S(sT1)}, {S(sT2)}")
        for rt in range(4):
            a(f"s_add_u32 {S(sOff + 8 + rt)}, {S(sT0)}, {HN + rt * 16384}")
    def tables_g1(self):
        a = self.a; va = self.va; L, Li, G, T = self.vL, self.vLi, self.vG, self.vT
        a(f"v_mul_u32_u24 {R(T)}, {HROW}, {R(Li)}")
        a(f"v_lshl_add_u32 {R(self.aHr)}, {R(G)}, 8, {R(T)}")
        a(f"s_lshr_b32 {S(sLn2)}, {S(sN)}, 3\ns_mul_i32 {S(sLn2)}, {S(sLn2)}, {HCL}\ns_add_u32 {S(sLn2)}, {S(sLn2)}, {HB}")
        a(f"s_lshl_b32 {S(sT0)}, {S(sMem)}, 2\ns_add_u32 {S(sT0)}, {S(sT0)}, {S(sW)}")
        a(f"s_lshl_b32 s4, {S(sT0)}, 10\ns_lshl_b32 {S(sT0)}, {S(sT0)}, 15")
        a(f"s_mul_i32 {S(sT1)}, {S(sMem)}, 3\ns_add_u32 {S(sT1)}, {S(sT1)}, {S(sW)}")
        a(f"s_cmp_eq_u32 {S(sMem)}, 7\ns_subb_u32 {S(sT1)}, {S(sT1)}, 0")
        a(f"s_cmp_ge_u32 {S(sMem)}, 6\ns_addc_u32 {S(sT2)}, {S(sW)}, 0")
        a(f"s_lshl_b32 s5, {S(sT1)}, 9\ns_add_u32 s5, s5, 32768\ns_lshl_b32 {S(sT1)}, {S(sT1)}, 14\ns_add_u32 {S(sT1)}, {S(sT1)}, {64 * 16384}")
        a(f"s_cmp_lt_u32 {S(sT2)}, 3\ns_cselect_b32 s5, s5, 2.0\ns_cselect_b32 {S(sT1)}, {S(sT1)}, 2.0")
        a(f"v_add_u32 {R(self.vW1)}, {S(sT0)}, {R(self.vL16)}")
        a(f"v_add_u32 {R(self.vW1 + 1)}, 16384, {R(self.vW1)}")
        a(f"v_add_u32 {R(self.vW1 + 2)}, {S(sT1)}, {R(self.vL16)}")
        for q in range(4): a(f"s_xor_b32 {S(sT0)}, {S(sRot)}, {4 * q}\ns_lshl_b32 {S(sT0)}, {S(sT0)}, 10\ns_add_u32 {S(sOff + 4 + q)}, {S(sT0)}, {W1P}")
        a(f"v_cmp_gt_u32 vcc, 32, {R(L)}")
        a(f"v_add_u32 {R(self.aHs)}, s4, {R(self.vL16)}")
        a(f"v_add_u32 {R(self.aHs + 1)}, s5, {R(self.vL16)}")
        a(f"v_cndmask_b32 {R(self.aHs + 1)}, 2.0, {R(self.aHs + 1)}, vcc")
        for rt in range(4): a(f"s_add_u32 {S(sOff + rt)}, {S(sLn2)}, {rt * 45056}")
        a(f"s_mul_i32 {S(sT0)}, {S(sW)}, {ARW}\ns_add_u32 {S(sT0)}, {S(sT0)}, {CUE}")
        a(f"v_mov_b32 v60, {S(sT0)}")
    def tables_epi(self):
        a = self.a; va = self.va; L, Li, G, T = self.vL, self.vLi, self.vG, self.vT
        a(f"v_mbcnt_lo_u32_b32 {R(L)}, -1, 0\nv_mbcnt_hi_u32_b32 {R(L)}, -1, {R(L)}")
        a(f"v_and_b32 {R(Li)}, 15, {R(L)}\nv_lshrrev_b32 {R(G)}, 4, {R(L)}")
        a(f"s_lshl_b32 {S(sS2)}, {S(sK1)}, 4\ns_and_b32 {S(sT0)}, {S(sM)}, 15\ns_or_b32 {S(sS2)}, {S(sS2)}, {S(sT0)}")
        a(f"s_and_b32 {S(sT0)}, s2, 0x80\ns_or_b32 {S(sS2)}, {S(sS2)}, {S(sT0)}")
        a(f"s_mov_b32 {S(sO + 2)}, 0x200000\ns_mov_b32 {S(sO + 3)}, 0x20000")
        a(f"s_lshl_b32 {S(sT0)}, {S(sW)}, 2\ns_mov_b32 {S(sT1)}, {RED[0]}")
        a(f"v_add_u32 {R(self.aRr)}, {S(sT0)}, {R(G)}")
        a(f"v_and_b32 {R(T)}, 7, {R(self.aRr)}")
        a(f"v_xor_b32 {R(T)}, {R(T)}, {R(Li)}")
        a(f"v_lshl_add_u32 {R(T)}, {R(T)}, 4, {S(sT1)}")
        a(f"v_lshl_add_u32 {R(self.aRr)}, {R(self.aRr)}, 8, {R(T)}")
        a(f"s_lshl_b32 {S(sT1)}, {S(sMem)}, 7")
        a(f"v_lshl_add_u32 {R(T)}, {R(Li)}, 3, {S(sT1)}")
        a(f"v_lshl_add_u32 {R(self.aOut)}, {R(G)}, 18, {R(T)}")
        a(f"s_lshl_b32 {S(sT1)}, {S(sRot)}, 4\ns_mul_i32 {S(sT0)}, {S(sW)}, {4 * HROW}")
        a(f"v_xor_b32 {R(T)}, {S(sT1)}, {R(T)}")
        a(f"v_mul_u32_u24 {R(self.aRes)}, {HROW}, {R(G)}")
        a(f"v_add3_u32 {R(self.aRes)}, {R(self.aRes)}, {R(T)}, {S(sT0)}")
        a(f"s_lshr_b32 {S(sT0)}, {S(sN)}, 3\ns_lshl_b32 {S(sT0)}, {S(sT0)}, 12\ns_lshl_b32 {S(sT1)}, {S(sW)}, 8\ns_add_u32 {S(sT0)}, {S(sT0)}, {S(sT1)}\ns_add_u32 {S(sT0)}, {S(sT0)}, {HH}")
        a(f"v_and_b32 {R(T)}, 3, {R(Li)}")
        a(f"v_lshl_add_u32 {R(T)}, {R(T)}, 10, {S(sT0)}")
        a(f"v_lshl_add_u32 {R(self.aSt)}, {R(G)}, 6, {R(T)}")
        a(f"s_and_b32 {S(sT0)}, {S(sS2)}, 0xf8\ns_lshr_b32 {S(sT1)}, {S(sW)}, 1\ns_add_u32 {S(sT0)}, {S(sT0)}, {S(sT1)}\ns_lshl_b32 {S(sT0)}, {S(sT0)}, 10")
        a(f"s_and_b32 {S(sT1)}, {S(sW)}, 1\ns_lshl_b32 {S(sT1)}, {S(sT1)}, 20\ns_add_u32 {S(sOff + 2)}, {S(sT0)}, {S(sT1)}\ns_add_u32 {S(sOff + 3)}, {S(sOff + 2)}, 4096")
        a(f"s_mov_b32 {S(sLn2)}, {fl(math.log(2.0))}")
    def tables_g2(self):
        a = self.a; va = self.va; L, Li, G, T = self.vL, self.vLi, self.vG, self.vT
        a(f"s_mul_i32 {S(sLn2)}, {S(sW)}, {4 * HROW}")
        a(f"v_xor_b32 {R(T)}, {S(sRot)}, {R(L)}")
        a(f"v_lshlrev_b32 {R(self.aHd)}, 4, {R(T)}")
        a(f"s_lshr_b32 {S(sT0)}, {S(sN)}, 3\ns_lshl_b32 {S(sT0)}, {S(sT0)}, 12\ns_lshl_b32 {S(sT1)}, {S(sW)}, 8\ns_add_u32 {S(sT0)}, {S(sT0)}, {S(sT1)}\ns_add_u32 {S(sT0)}, {S(sT0)}, {HH + 8}")
        a(f"v_and_b32 {R(T)}, 3, {R(Li)}")
        a(f"v_lshl_add_u32 {R(T)}, {R(T)}, 6, {S(sT0)}")
        a(f"v_lshl_add_u32 {R(self.aHw)}, {R(G)}, 10, {R(T)}")
        a(f"s_lshr_b32 {S(sHb)}, {S(sN)}, 3\ns_mul_i32 {S(sHb)}, {S(sHb)}, {HCL}\ns_add_u32 {S(sHb)}, {S(sHb)}, {HB}")
        a(f"s_lshl_b32 {S(sT0)}, {S(sW)}, 12\ns_add_u32 {S(sT0)}, {S(sT0)}, {RED[0]}")
        a(f"v_bitop3_b32 {R(T)}, {R(Li)}, {R(G)}, 7 bitop3:0x28")
        a(f"v_lshl_add_u32 {R(T)}, {R(T)}, 4, {S(sT0)}")
        a(f"v_lshl_add_u32 {R(self.aRw)}, {R(Li)}, 8, {R(T)}")
        a(f"v_xor_b32 {R(self.aRw + 1)}, 64, {R(self.aRw)}")
    def hn_dma(self, rt):
        out = []
        for n in range(4):
            out += [f"s_add_u32 m0, {S(sLn2)}, {rt * HTILE + 16 * n}",
                    f"buffer_load_dwordx4 {R(self.aHd)}, {S(sWS, 4)}, {S(sOff + 8 + rt)} offen offset:{1024 * n} sc1 lds"]
        return out
    def hn_load(self, rt):
        for l in self.hn_dma(rt): t = self.a(l)
        self.hntok[rt] = t
    def hn_check(self, rt):
        self.a.wait_vm(self.hntok[rt]); self.hnok.add(rt)
    def hn_poll(self):
        a = self.a; q = self.HC
        ld = [f"buffer_load_dword {R(q)}, {R(self.aHw)}, {S(sWS, 4)}, 0 offen sc1"]
        a.run(ld)
        self.point("hn_p")
        self.poll("hn", ld, lambda: a(f"v_cmp_ne_u32 vcc, {S(sEp)}, {R(q)}"))
    def bar_after(self, name):
        def f():
            self.a.wait_lg(getattr(self, name)); self.a("s_barrier")
        return [f]
    def pack(self, mf, fixed, floats, ops, g0, g1):
        n = len(mf)
        slot = [list(fixed.get(g, [])) for g in range(n)]
        for items, units_, f0, f1 in floats:
            for k, x in enumerate(items):
                units = units_
                if isinstance(x, tuple): x, units = x
                g = f0 + (k * (f1 - f0)) // max(len(items), 1)
                if units > 1:
                    last = g if k == 0 else max(g, prev)
                    cand = [q for q in range(last, min(last + 3, n)) if sum(u for _, u in slot[q]) + units <= 3]
                    g = cand[0] if cand else last
                elif k: g = max(g, prev)
                prev = g
                slot[g].append((x, units))
        base = [sum(u for _, u in sl) for sl in slot]
        best = None
        total = sum(o[1] for o in ops)
        for slack in range(0, 8):
            for span in range(min(g1, n) - g0, 8, -1):
                place = {}; out = [[] for _ in range(n)]; todo = list(range(len(ops))); done = 0; over = 0
                for g in range(g0, min(g1, n)):
                    used = base[g]
                    ready = [k for k in todo if all(d in place for d in ops[k][3])]
                    take = []
                    for k in ready:
                        since = g - max([place[d] for d in ops[k][3]], default=g0)
                        if not ops[k][2] and (used == 0 or (used == 1 and ops[k][1] > 1) or since > 3):
                            take.append(k); used += ops[k][1]; done += ops[k][1]
                    used = max(used, 1)
                    va_ = [k for k in ready if ops[k][2]]
                    while va_:
                        room = 3 - used
                        one = [k for k in va_ if ops[k][1] == 1]; two = [k for k in va_ if ops[k][1] == 2]
                        behind = done < total * (g - g0 + 1) / span - slack
                        if room >= 2 and two: k = two[0]
                        elif room == 1 and two and behind and len(one) < 2: k = two[0]
                        elif one and (room >= 1 or behind): k = one[0]
                        elif two and behind: k = two[0]
                        else: break
                        take.append(k); va_.remove(k); used += ops[k][1]; done += ops[k][1]
                    over += max(0, used - max(3, base[g]))
                    for k in take: todo.remove(k); out[g].append(ops[k][0])
                    for k in take: place[k] = g
                if not todo and (best is None or over < best[0]): best = (over, out)
                if not ops: break
            if not ops: break
        assert best, "could not pack"
        self.packinfo.append((best[0], sum(max(0, b - 3) for b in base)))
        for g in range(n):
            self.a.run([mf[g]] + [x for x, _ in slot[g]] + best[1][g])
    def silu_ops(self, acc, rt):
        tmp = self.SL; P = self.HP
        ops = []; idx = {}
        def add(key, x, u, v, deps): idx[key] = len(ops); ops.append((x, u, v, [idx[d] for d in deps]))
        for i in range(12):
            add(("e", i), f"v_exp_f32 {R(tmp + i)}, -{R(acc + i)}", 2, True, [])
            add(("a", i), f"v_add_f32 {R(tmp + i)}, 1.0, {R(tmp + i)}", 1, True, [("e", i)])
            add(("r", i), f"v_rcp_f32 {R(tmp + i)}, {R(tmp + i)}", 2, True, [("a", i)])
            add(("m", i), f"v_mul_f32 {R(tmp + i)}, {R(tmp + i)}, {R(acc + i)}", 1, True, [("r", i)])
            if i & 1: add(("c", i // 2), f"v_cvt_pk_bf16_f32 {R(P + i // 2)}, {R(tmp + i - 1)}, {R(tmp + i)}", 1, True, [("m", i), ("m", i - 1)])
            if i == 5: add(("x", 0), f"v_permlane32_swap_b32 {R(P)}, {R(P + 2)}", 2, True, [("c", 0), ("c", 2)])
            if i == 7:
                add(("x", 1), f"v_permlane32_swap_b32 {R(P + 1)}, {R(P + 3)}", 2, True, [("c", 1), ("c", 3)])
                if not self.cfg.get("st2"): add("st0", f"buffer_store_dwordx4 {R(P, 4)}, {R(self.aHs)}, {S(sWS, 4)}, {S(sOff + rt)} offen sc1", 3, False, [("x", 0), ("x", 1)])
            if i == 9: add(("x", 2), f"v_permlane32_swap_b32 {R(P + 4)}, {R(P + 6)}", 2, True, [("c", 4)])
        add(("x", 3), f"v_permlane32_swap_b32 {R(P + 5)}, {R(P + 7)}", 2, True, [("c", 5)])
        if self.cfg.get("st2"): add("st0", f"buffer_store_dwordx4 {R(P, 4)}, {R(self.aHs)}, {S(sWS, 4)}, {S(sOff + rt)} offen sc1", 3, False, [("x", 0), ("x", 1), ("c", 5)])
        add("st1", f"buffer_store_dwordx4 {R(P + 4, 4)}, {R(self.aHs + 1)}, {S(sWS, 4)}, {S(sOff + rt)} offen sc1", 3, False, [("x", 2), ("x", 3), "st0"])
        return ops
    def silu_flat(self, acc, rt):
        ops = self.silu_ops(acc, rt)
        order = sorted(range(len(ops)), key=lambda k: (self._depth(ops, k), k))
        return [ops[k][0] for k in order]
    def _depth(self, ops, k): return 1 + max([self._depth(ops, d) for d in ops[k][3]], default=0)
    def bar(self, name):
        self.bars.append(name); self.a("s_barrier")
    def waithn(self):
        self.a.wait_vm(self.tokhn); self.clrdone |= {(HN, 0), (HN, 1)} & self.cleared
    def waitclr(self):
        self.a.wait_vm(self.tokclr); self.clrdone = set(self.cleared)
    def karg(self):
        self.a("s_waitcnt lgkmcnt(0)"); self.srds()
    def role_b(self):
        a = self.a; va = self.va; c = self.cfg
        self.junk = []; self.role = "B"
        va.hi = 64
        self.vb = Alloc(180, 256); self.vb.used = va.used
        a("s_setprio %d" % c.get("prio_b0", 2))
        self.early_b()
        self.stamp("u0")
        a("s_setprio 0")
        self.bcut()
        self.common()
        va.at(60, 1, "cue"); self.aHr = va.at(61, 1, "aHr"); self.aHs = va.at(62, 2, "aHs")
        self.vW1 = va.at(48, 3, "vW1")
        a(f"s_lshr_b32 {S(sHb)}, {S(sOwn)}, 2\ns_mul_i32 {S(sHb)}, {S(sHb)}, 11")
        self.cf_sent = self.cf_own
        for name in self.bars + ["b5"]:
            self.curbar = name
            self.point("B_" + name)
            if name == "b2": assert self.cf_sent
            if self.r2need and name == self.r2need[1]: assert self.r2done >= set(range(self.r2need[0]))
            if name == ("e2" if "e2" in self.bars else "b3"): assert self.pkdone
            if name == [b for b in self.bars if b in ("b4", "e3", "s3", "t3")][-1]: assert {(HB, i) for i in range(6)} <= self.clrdone
            if name == "b5":
                assert all((1, i) in self.loaded for i in range(16))
                va.free(self.vW1, self.vT, self.vL16, self.vZero, self.vL, self.vLi, self.vG, self.vPf, self.vM1, *self.junk)
                a("s_setprio %d" % c.get("prio", (1, 0, 2))[2])
            self.stamp("B" + name)
            a("s_barrier")
        self.stamp("hn_in")
        self.SL = va.at(48, 12, "silu")
        ACC = va.at(0, 24, "acc1"); BF = va.at(24, 16, "bf"); self.HP = va.at(40, 8, "hp")
        NB = c.get("nb", 4)
        tok = {}
        def rd(n): tok[n] = a(f"ds_read_b128 {R(BF + 4 * (n % NB), 4)}, {R(self.aHr)} offset:{(n // 16) * HTILE + (n % 16) * 16}")
        for n in range(NB - 1): rd(n)
        cue = c.get("cue", (3, 4))
        for rt in range(4):
            acc = ACC + 12 * (rt & 1)
            mf = []; fixed = {}
            for ks in range(16):
                n = rt * 16 + ks
                for T in range(3):
                    cc = R(acc + 4 * T, 4) if ks else "0"
                    mf.append(f"v_mfma_f32_16x16x32_bf16 {R(acc + 4 * T, 4)}, {R(self.W1(ks, T), 4)}, {R(BF + 4 * (n % NB), 4)}, {cc}")
                if n + NB - 1 < 64: fixed[3 * ks] = [(lambda n=n: rd(n + NB - 1), 2)]
                if n + 1 < 64: fixed[3 * ks + 2] = [(lambda n=n: a.wait_lg(tok[n + 1]), 1)]
            if rt == 0: fixed[37] = [("s_barrier", 1)]
            if rt == cue[0]: fixed.setdefault(cue[1], []).append(("ds_write_b32 v60, v60", 2))
            ops = self.silu_ops(ACC + 12 * ((rt - 1) & 1), rt - 1) if rt else []
            self.pack(mf, fixed, [], ops, 1, 48)
            self.stamp("g1p%d" % rt)
        a.run(self.silu_flat(ACC + 12, 3))
        self.stamp("g1_end")
        a("s_setprio %d" % c.get("prio_epi", 2))
        va.hi = 256; va.lo = 64
        self.vL = va(1); self.vLi = va(1); self.vG = va(1); self.vT = va(1); self.vZero = va(1)
        self.aRr = va(1); self.aOut = va(1); self.aRes = va(1); self.aSt = va(1); ep = va(1)
        SV = va(4); RES = va(8); O = va(16); RB = va(16); K2 = va(2); P = va(2)
        self.tables_epi()
        stl = [f"buffer_load_dwordx2 {R(SV, 2)}, {R(self.aSt)}, {S(sWS, 4)}, 0 offen sc1"]
        a.run(stl)
        for r in range(4): a(f"ds_read_b64 {R(RES + 2 * r, 2)}, {R(self.aRes)} offset:{r * HTILE}")
        a(f"v_mov_b32 {R(self.vZero)}, 0\nv_mov_b32 {R(K2)}, {S(sLn2)}")
        def resid(rt):
            dpp = f"row_newbcast:{rt} row_mask:0xf bank_mask:0xf"
            a(f"v_mov_b32_dpp {R(P)}, {R(SV)} {dpp}\nv_mov_b32_dpp {R(P + 1)}, {R(SV + 1)} {dpp}")
            for h in range(2):
                a(f"v_lshlrev_b32 {R(O + 2 * h)}, 16, {R(RES + 2 * rt + h)}")
                a(f"v_and_b32 {R(O + 2 * h + 1)}, 0xffff0000, {R(RES + 2 * rt + h)}")
            for k in range(4): a(f"v_fma_f32 {R(O + k)}, {R(O + k)}, {R(P)}, {R(P + 1)}")
        for rt in range(4):
            if rt: resid(rt)
            if rt == 3: a("s_setprio 3")
            a("s_barrier")
            for src in range(4): a(f"ds_read_b128 {R(RB + 4 * src, 4)}, {R(self.aRr)} offset:{16384 * (rt & 1) + 4096 * src}")
            if rt == 0:
                resid(0)
            for src in range(4):
                if rt == 3:
                    for k in (0, 2): a(f"v_pk_fma_f32 {R(O + k, 2)}, {R(RB + 4 * src + k, 2)}, {R(K2, 2)}, {R(O + k, 2)} op_sel_hi:[1,0,1]")
                else:
                    for k in range(4): a(f"v_fmac_f32 {R(O + k)}, {S(sLn2)}, {R(RB + 4 * src + k)}")
            a(f"v_cvt_pk_bf16_f32 {R(RES + 2 * rt)}, {R(O)}, {R(O + 1)}\nv_cvt_pk_bf16_f32 {R(RES + 2 * rt + 1)}, {R(O + 2)}, {R(O + 3)}")
            a(f"buffer_store_dwordx2 {R(RES + 2 * rt, 2)}, {R(self.aOut)}, {S(sO, 4)}, {S(sOff + 2 + (rt >> 1))} offen offset:{2048 * (rt & 1)}{c.get('outflag', '')}")
        self.stamp("end")
    def ffn_a(self):
        a = self.a; va = self.va; c = self.cfg; T = self.vT
        self.HC = va(4, "hc"); self.hntok = {}; self.hnok = set()
        self.hn_poll()
        self.stamp("g3")
        self.point("hn_0")
        assert 0 in self.hnok
        a("s_barrier")
        a("s_setprio %d" % c.get("prio", (1, 0, 2))[1])
        self.point("hn_1")
        assert len(self.hnok) == 4
        a("s_barrier")
        self.point("w2")
        va.free(self.HC, self.aHw, self.vL, self.vLi, self.vG)
        self.stamp("w2_in")
        Lc = a.label("cue"); Ld = a.label("cued")
        a.wait_lg_all()
        a(f"v_mov_b32 {R(self.aHd)}, {S(sStg)}\ns_mov_b32 {S(sCnt)}, 0")
        a.auto = False
        a(f"{Lc}:\nds_read_b32 {R(T)}, {R(self.aHd)} offset:15360\ns_add_u32 {S(sCnt)}, {S(sCnt)}, 1\ns_waitcnt lgkmcnt(0)")
        a(f"v_cmp_ne_u32 vcc, 0, {R(T)}\ns_cbranch_vccnz {Ld}\ns_sleep 1\ns_cmp_lt_u32 {S(sCnt)}, {SPIN * 10}\ns_cbranch_scc1 {Lc}\n{Ld}:")
        a.auto = True
        self.stamp("cue")
        assert all((2, i) in self.loaded for i in range(11))
        a(f"v_add_u32 v0, {S(sHb)}, {R(self.vL16)}")
        va.free(self.aHd, self.vL16, self.vZero, self.aHf)
        a(f"v_mov_b32 v2, {R(self.aRw)}\nv_mov_b32 v3, {R(self.aRw + 1)}")
        va.free(self.aRw); self.aRw = va.at(2, 2, "aRw")
        HF = va.at(4, 44, "hf"); ACC = [va.at(48, 16, "acc2a"), va.at(64, 16, "acc2b")]; RD = HF + 32
        assert max(va.used) < 80, sorted(set(va.used.values()))
        tok = {}
        hso = lambda n: f"s_add_u32 {S(sD0)}, {S(sKap + n % 11)}, {45056 * (n // 11)}"
        hld = lambda q: f"buffer_load_dwordx4 {R(q, 4)}, v0, {S(sWS, 4)}, {S(sD0)} offen sc1"
        def hload(n): tok[n] = a(hld(HF + 4 * (n % 11)))
        for n in range(11):
            if c.get("hthr") and len(a.vm) > c["hthr"]: a(f"s_waitcnt vmcnt({c['hthr']})")
            a(hso(n)); hload(n)
        def red_w(rt, t): self.tokrw = a(f"ds_write_b128 {R(self.aRw + (t & 1))}, {R(ACC[rt & 1] + 4 * t, 4)} offset:{16384 * (rt & 1) + 128 * (t >> 1)}")
        def nanchk(rt): a(f"v_cmp_u_f32 vcc, {R(ACC[rt & 1])}, {R(ACC[rt & 1])}")
        def nanbr(rt):
            Lr = a.label("redo"); Lo = a.label("redone"); acc = ACC[rt & 1]
            site = self.npoll; self.npoll += 1; self.pollnames.append("H%d" % rt)
            a(f"s_cbranch_vccnz {Lr}\n{Lo}:")
            def tail():
                a.auto = False
                a(Lr + ":")
                if self.stamps: a(f"s_bitset1_b32 {S(sRet + site // 32)}, {site % 32}")
                a("s_waitcnt vmcnt(0)")
                for i0 in range(0, 11, 3):
                    fr = range(i0, min(i0 + 3, 11)); Ll = a.label("redo_loop"); Lg = a.label("redo_got")
                    a(f"s_mov_b32 {S(sCnt)}, 0\n{Ll}:")
                    for i in fr: a(hso(11 * rt + i)); a(hld(RD + 4 * (i - i0)))
                    a(f"s_add_u32 {S(sCnt)}, {S(sCnt)}, 1\ns_waitcnt vmcnt(0)")
                    a(f"v_max3_u32 {R(T)}, {R(RD)}, {R(RD + 4)}, {R(RD + 4 * (len(fr) - 1))}")
                    a(f"v_cmp_eq_u32 vcc, -1, {R(T)}\ns_cbranch_vccz {Lg}\ns_cmp_lt_u32 {S(sCnt)}, {SPIN}\ns_cbranch_scc1 {Ll}\n{Lg}:")
                    for i in fr:
                        for t in range(4):
                            a(f"v_mfma_f32_16x16x32_bf16 {R(acc + 4 * t, 4)}, {R(self.W2(i, t), 4)}, {R(RD + 4 * (i - i0), 4)}, {R(acc + 4 * t, 4) if i else 0}")
                if rt < 3:
                    for i in (8, 9, 10): a(hso(11 * (rt + 1) + i)); a(hld(HF + 4 * i))
                    a("s_waitcnt vmcnt(0)")
                a(f"s_nop 7\ns_branch {Lo}")
            self.tail.append(tail)
        if "prio_g2" in c: a("s_setprio %d" % c["prio_g2"])
        self.stamp("g2_in")
        for rt in range(4):
            acc = ACC[rt & 1]
            order = [(i, t) for i in range(11) for t in range(4)]
            if rt == 3: order = order[:32] + [(i, t) for t in range(4) for i in (8, 9, 10)]
            mf = [f"v_mfma_f32_16x16x32_bf16 {R(acc + 4 * t, 4)}, {R(self.W2(i, t), 4)}, {R(HF + 4 * i, 4)}, {R(acc + 4 * t, 4) if i else 0}" for i, t in order]
            fixed = {}
            for i in range(11):
                n = 11 * rt + i
                if 1 <= n and n + 10 < 44: fixed[4 * i] = [(lambda n=n: hload(n + 10), 3)]
                fixed[4 * i + 3] = [(lambda n=n: a.wait_vm(tok[n + 1]), 1)] if n + 1 < 44 else []
                if n + 11 < 44: fixed[4 * i + 3].append((hso(n + 11), 1))
            if rt:
                fixed[1] = [(lambda rt=rt: nanchk(rt - 1), 2)]
                fixed[3].insert(0, (lambda rt=rt: nanbr(rt - 1), 1))
                for t in range(4): fixed[5 + 4 * t] = [(lambda rt=rt, t=t: red_w(rt - 1, t), 3)]
                fixed[c.get("rbar", 21)] = [(self.bar_after("tokrw")[0], 2)]
            if rt == 3:
                fixed[40] = [(lambda: red_w(3, 0), 3)]; fixed[42] = [(lambda: nanchk(3), 2)]; fixed[43] = [(lambda: red_w(3, 1), 3)]
            self.pack(mf, fixed, [], [], 0, 44)
            self.stamp("g2p%d" % rt)
        red_w(3, 2); red_w(3, 3)
        Lw = a.label("rewrite"); Lf = a.label("final")
        a(f"s_cbranch_vccz {Lf}")
        nanbr(3)
        a.auto = False
        for t in range(4): red_w(3, t)
        a.auto = True
        a(f"{Lf}:\ns_waitcnt lgkmcnt(0)\ns_barrier")
        if self.stamps: a(f"v_mov_b32 {R(self.vZero)}, 0")
    def finish(self, role):
        a = self.a
        if self.amp and role == "A":
            i, j = (self.stamps.index(n) for n in self.amp)
            self.stamp("end")
        if self.amp and role != self.cfg.get("amprole", "A"): return
        if self.amp:
            i, j = (self.stamps.index(n) for n in self.amp); e = self.stamps.index("end")
            a("s_waitcnt lgkmcnt(0)")
            if self.cfg.get("skew"):
                lo, hi = self.cfg["skew"]
                a(f"v_mbcnt_lo_u32_b32 v4, -1, 0\nv_lshlrev_b32 v4, 7, v4\ns_mov_b32 s4, {STAMP}\nbuffer_load_dword v5, v4, {S(sWS, 4)}, s4 offen sc1\ns_waitcnt vmcnt(0)")
                a(f"s_mov_b32 {S(sT1)}, 0")
                for l in range(lo, hi): a(f"v_readlane_b32 s4, v5, {l}\ns_nop 3\ns_sub_u32 s4, s4, {S(sStamp + 2 * i)}\ns_max_i32 {S(sT1)}, {S(sT1)}, s4")
                a(f"s_add_u32 {S(sStamp + 2 * j)}, {S(sStamp + 2 * i)}, {S(sT1)}")
            a(f"s_sub_u32 {S(sT0)}, {S(sStamp + 2 * j)}, {S(sStamp + 2 * i)}\ns_lshl_b32 {S(sT0)}, {S(sT0)}, 3\ns_min_u32 {S(sT0)}, {S(sT0)}, 100000")
            a(f"L_amp:\ns_memrealtime s[4:5]\ns_waitcnt lgkmcnt(0)\ns_sub_u32 {S(sT1)}, s4, {S(sStamp + 2 * e)}\ns_cmp_lt_u32 {S(sT1)}, {S(sT0)}\ns_cbranch_scc1 L_amp")
        elif self.stamps:
            a("s_waitcnt lgkmcnt(0)")
            a(f"s_lshl_b32 {S(sT0)}, s2, 3\ns_add_u32 {S(sT0)}, {S(sT0)}, s3\ns_lshl_b32 {S(sT0)}, {S(sT0)}, 6\ns_add_u32 {S(sT0)}, {S(sT0)}, {STAMP}")
            for i, sr in [(i, sStamp + 2 * i) for i in range(len(self.stamps))] + [(14, sRet), (15, sRet + 1)]:
                a(f"v_mov_b32 {R(self.vT)}, {S(sr)}")
                a(f"buffer_store_dword {R(self.vT)}, {R(self.vZero)}, {S(sWS, 4)}, {S(sT0)} offen offset:{4 * i}")
    def build(self):
        import copy
        a = self.a; va = self.va
        self.prologue()
        snap = (dict(va.used), list(a.vm), list(a.lg))
        self.prologue_a()
        self.point("start")
        self.stamp("tabs")
        self.p1()
        va.free(self.vM1)
        self.point("p1_end")
        self.p2_gather()
        self.point("g1_wait")
        self.p2()
        self.point("p2_end")
        self.p3_gather()
        self.point("g2_wait")
        self.p3()
        self.point("p3_end")
        self.ffn_a()
        self.finish("A")
        a("L_end:")
        a("s_endpgm")
        vTa = self.vT
        bstart = len(a.ins)
        a("L_roleB:")
        va.used, a.vm, a.lg = snap
        self.clrdone = set(self.cleared)
        self.role_b()
        self.finish("B")
        a("s_endpgm")
        self.vT = vTa
        for t in self.tail: t()
        if self.cfg.get("bnear", 1):
            blk = a.ins[bstart:self.bend]
            a.ins = a.ins[:self.splice] + blk + a.ins[self.splice:bstart] + a.ins[self.bend:]
        body = a.finalize()
        hdr = open("header.txt").read()
        s = hdr + f"; @launch grid=(256,1,1) block=(512,1,1) lds={LDS_SIZE}\n"
        s += f'.amdgcn_target "amdgcn-amd-amdhsa--gfx950"\n.text\n.globl {KN}\n.p2align 8\n.type {KN},@function\n{KN}:\n'
        s += body
        s += ".p2align 8\n.fill 4096, 4, 0xbf810000\n"
        s += f'''.section .rodata,"a"
.p2align 6
.amdhsa_kernel {KN}
  .amdhsa_next_free_vgpr 256
  .amdhsa_next_free_sgpr 102
  .amdhsa_accum_offset 256
  .amdhsa_group_segment_fixed_size 0
  .amdhsa_kernarg_size 72
  .amdhsa_user_sgpr_count 2
  .amdhsa_user_sgpr_kernarg_segment_ptr 1
  .amdhsa_system_sgpr_workgroup_id_x 1
  .amdhsa_float_denorm_mode_32 3
.end_amdhsa_kernel
'''
        return s

F = lambda name, *args: [(name, args)]
def write(cfg, out):
    g = Gen(cfg)
    s = g.build()
    open(out, "w").write(s)
    return g
```

```python
from gen4 import *
ST_A = ['entry', 'karg', 'tabs', 'x_in', 'z1_st', 'g1', 'z1_in', 'z2_st', 'g2', 'z2_in', 'hn_st']
ST_B = ['entry', 'hn_st', 'g3', 'hn_in', 'g1p0', 'g1p2', 'g1p3', 'g1_end', 'w2_in', 'cue', 'end']
ST_C = ['entry', 'Bb1', 'z1_st', 'Bb2', 'z1_in', 'Bb3', 'z2_st', 'Bb4', 'z2_in', 'Bb5', 'hn_in']
ST_D = ['entry', 'hn_in', 'w2_in', 'cue', 'g1_end', 'g2_in', 'g2p0', 'g2p1', 'g2p2', 'g2p3', 'end']
ST_H = ['entry', 'z1_st', 'z1_in', 'z2_st', 'z2_in', 'hn_st', 'hn_in', 'g1p0', 'g1_end', 'g2_in', 'end']
CL = lambda base, r: [("clear", (base, i)) for i in r]
CH = lambda r: [("clear_H", (i,)) for i in r]
WL = lambda *x: [("w_load", (i,)) for i in x]
L1 = lambda r: [("l1", (i,)) for i in r]
L2 = lambda r: [("l2", (i,)) for i in r]
HL = lambda *r: [("hn_load", (i,)) for i in r]
HK = lambda *r: [("hn_check", (i,)) for i in r]
SL = lambda n: F("sleep", n) if n else []
BAR = lambda n: F("bar", n)
PO = F("pack_out"); PW = F("pack_wait")
WF = F("w_stage") + F("w_coefs"); WS = F("w_spec"); WT = F("w_touch"); WC = F("waitclr")
T1 = F("tables_p1")
T2 = F("addr_g1") + F("tables_p2a") + F("tables_p2b") + F("addr_p2")
T3 = F("xnat_load") + F("addr_g2") + F("tables_p3") + F("tables_g2") + F("tables_w2")
G2W = F("xnat_unpack") + F("addr_g3")
KA = F("karg"); PA = F("pack_addr"); WA = F("w_addr"); TG = F("tables_g1")
VW = lambda n: F("vmwait", n)
def thr(f, r, n):
    out = []
    for i in r: out += VW(n) + f((i,))
    return out
MK = lambda n: F("mark", n)
HNC = CL(HN, (0, 1))
BE = PA + WA + TG
def base():
    return {"rot1": 0, "rot2": 0, "xrot1": 4, "xrot2": 7, "hdepth": 14, "prio": (1, 1, 0), "sched": dict(
        start=T1 + WA, p1_end=BAR("s1") + WL(0, 1) + WS + T2, g1_wait=WF, p2_end=T3 + SL(6), g2_wait=BAR("g2") + G2W,
        p3_s=BAR("s3"), p3_end=SL(10),
        hn_0=HL(0, 1, 2, 3) + HK(0), hn_1=L2((0, 1)) + HK(1, 2, 3), w2=thr(L2, range(2, 11), 4),
        B_pre=SL(8), B_pre3=SL(8), B_b1=PA + TG, B_b2=PO, B_b3=CH((0, 1, 2)) + PW, B_b4=CH((3, 4, 5)),
        B_s3=L1(range(3)) + WC, B_b5=L1(range(3, 16)),
    )}
def var(**kw):
    def f():
        c = base()
        for k, v in kw.items():
            if isinstance(v, list): c["sched"][k] = v
            else: c[k] = v
        return c
    return f
CFG = {"base": base}
ST_K = ['entry', 'u0', 'x_in', 'z1_st', 'Bb2', 'z1_in', 'Bb3', 'z2_st', 'g2', 'z2_in', 'hn_st']
ST_M = ['entry', 'z2_in', 'hn_st', 'st_st', 'g3', 'Bb5', 'hn_in', 'g1p0', 'g1_end', 'g2_in', 'end']
e0 = dict(B_b5=thr(L1, range(3, 16), 7), p3_end=SL(16), g2_wait=BAR("g2") + F("pre_st") + G2W)
e0.update(p3_end=SL(24), B_b5=thr(L1, range(3, 16), 10), st2=1)
e0.update(w2=thr(L2, range(2, 11), 6), hthr=9)
CFG["e0"] = var(**e0)
CFG["e1"] = var(**dict(e0, rbar=37))
CFG["e2"] = var(**dict(e0, outflag=" sc1"))
CFG["e3"] = var(**dict(e0, prio=(1, 0, 2)))
CFG["e4"] = var(**dict(e0, mrot=7))
ST_F = ['entry', 'u0', 'Bb2', 'Bb4', 'hn_in', 'g1p0', 'g1p1', 'g1p2', 'g1p3', 'g1_end', 'end']
ST_G = ['entry', 'x_in', 'z1_st', 'z2_in', 'hn_st', 'cue', 'g2_in', 'g2p0', 'g2p1', 'g2p2', 'g2p3']
CFG["e0c"] = lambda: dict(CFG["e0"](), cyc=1)
CFG["redo"] = var(**dict(e0, hn_p=L2(range(11)), hn_1=HK(1, 2, 3), w2=[], cue=(1, 4)))
v0 = dict(e0, outflag=" sc1", rbar=37)
CFG["v0"] = var(**v0)
R2 = lambda *r: [("r2_dma", (i,)) for i in r]
RW = F("r2_wait"); RA = F("r2_addr")
def early(n, **kw):
    d = dict(v0, B_b1=PA + TG + RA, p3_end=F("r2_drain", n) + SL(24 - 2 * n), hn_1=L2(range(n, n + 2)) + HK(1, 2, 3), w2=thr(L2, range(n + 2, 11), 6), B_s3=L1(range(3)) + WC + RW)
    d.update(kw); return var(**d)
S2E = BAR("s2") + T3 + SL(6)
P1 = dict(prio=(1, 0, 2)); P2 = dict(prio=(1, 3, 2), prio_g2=0)
CFG["w1"] = early(2, p2_end=S2E, B_g2=R2(0, 1), **P1)
CFG["w2"] = early(2, p2_end=S2E, B_g2=R2(0, 1), **P2)
CFG["w3"] = early(3, p2_end=S2E, B_g2=R2(0, 1, 2), **P1)
CFG["w4"] = early(3, p2_end=S2E, B_g2=R2(0, 1, 2), **P2)
CFG["w5"] = early(4, p2_end=S2E, B_g2=R2(0, 1, 2), B_b4=R2(3) + CH((3, 4, 5)), **P2)
CFG["w6"] = early(5, p2_end=S2E, B_b3=R2(0, 1) + PW, B_g2=R2(2, 3, 4), B_b4=CH(range(6)), **P2)
CFG["w7"] = early(4, p2_end=S2E, B_g2=R2(0, 1, 2, 3), **P2)
CFG["w8"] = early(5, p2_end=BAR("s2") + T3 + SL(10), B_g2=R2(0, 1, 2, 3, 4), **P2)
if __name__ == "__main__":
    name, out = sys.argv[1], sys.argv[2]
    c = CFG[name]()
    for x in sys.argv[3:]:
        if len(x) == 1: c["stamps"] = globals()["ST_" + x]
        if x.startswith("--amp="):
            c["amp"] = x[6:].split(","); c["stamps"] = list(dict.fromkeys(["entry"] + c["amp"] + ["end"]))
    g = write(c, out)
    print("wrote", out, "instrs", len(g.a.ins), "nops", g.a.nops_added, "vgpr high", g.va.high, "pack", g.packinfo)
```
